```python
import torch

def _softmax(x, axis=-1):
    return torch.softmax(x, dim=axis)
def _gelu(x):
    return torch.nn.functional.gelu(x, approximate="tanh")
def _silu(x):
    return torch.nn.functional.silu(x)
def _sigmoid(x):
    return torch.sigmoid(x)
def _layernorm(x, axis=-1, eps=1e-5):
    m = x.mean(dim=axis, keepdim=True)
    v = x.var(dim=axis, keepdim=True, unbiased=False)
    return (x - m) / torch.sqrt(v + eps)
def _scatter_add(tgt, idx, src, axis=0):
    return tgt.clone().index_add_(axis, idx, src)
def _segment_sum(src, seg, n):
    out = torch.zeros((n,) + src.shape[1:], dtype=src.dtype)
    return out.index_add_(0, seg, src)
def _pad(x, pw):
    flat = tuple(v for pair in reversed(pw) for v in pair)
    return torch.nn.functional.pad(x, flat)

kernel_name = 'recurrent_scan__sliding_block_cached__dense_activation_squared_relu__decode'

def setup_inputs():

    _w = (lambda a: (lambda t: t.to(torch.bfloat16) if t.is_floating_point() else t)(torch.as_tensor(a)))
    def _A_setup():
        B, Sq, D = 4, 1, 512
        Hq, Hkv, Sk, Dh = 32, 8, 4096, 128
        assert Hq % Hkv == 0, (Hq, Hkv)
        return {
            "x": _w((lambda *s: torch.randn(*s, dtype=torch.bfloat16) * 0.05)(B, Sq, D)),
            "k_cache": _w((lambda *s: torch.randn(*s, dtype=torch.bfloat16) * 0.8)(B, Hkv, Sk, Dh)),
            "v_cache": _w((lambda *s: torch.randn(*s, dtype=torch.bfloat16) * 0.2)(B, Hkv, Sk, Dh)),
            "wq": _w((lambda *s: torch.randn(*s, dtype=torch.bfloat16) * 0.8)(D, Hq * Dh) * (D ** -0.5)),
            "wo": _w((lambda *s: torch.randn(*s, dtype=torch.bfloat16) * 0.2)(Hq * Dh, D) * ((Hq * Dh) ** -0.5)),
        }
    _A_in = _A_setup()

    def _B_setup():
        B, S, D, F = 4, 1, 512, 1792
        return {
            "x": _w((lambda *s: torch.randn(*s, dtype=torch.bfloat16) * 0.05)(B, S, D)),
            "w1": _w((lambda *s: torch.randn(*s, dtype=torch.bfloat16) * 0.1)(D, F)),
            "b1": _w((lambda *s: torch.randn(*s, dtype=torch.bfloat16) * 0.4)(F)),
            "w2": _w((lambda *s: torch.randn(*s, dtype=torch.bfloat16) * 0.1)(F, D)),
            "b2": _w((lambda *s: torch.randn(*s, dtype=torch.bfloat16) * 6.4)(D)),
        }
    _B_in = _B_setup()

    return {
        "A_x": _A_in["x"],
        "A_k_cache": _A_in["k_cache"],
        "A_v_cache": _A_in["v_cache"],
        "A_wq": _A_in["wq"],
        "A_wo": _A_in["wo"],
        "B_x": _B_in["x"],
        "B_w1": _B_in["w1"],
        "B_b1": _B_in["b1"],
        "B_w2": _B_in["w2"],
        "B_b2": _B_in["b2"],
    }

def reference(A_x, A_k_cache, A_v_cache, A_wq, A_wo, B_x, B_w1, B_b1, B_w2, B_b2):
    def _A_ref(x, k_cache, v_cache, wq, wo):
        B, Sq, D = x.shape
        Hq, Dh = 32, 128
        Hkv, Sk = k_cache.shape[1], k_cache.shape[2]
        W = min(4096, max(256, Sk // 4))
        rep = Hq // Hkv
        q = (lambda x, *d: x.permute(*d))((x @ wq).reshape(B, Sq, Hq, Dh), 0, 2, 1, 3)
        k = (lambda x, n, axis: torch.repeat_interleave(x, n, dim=axis))(k_cache[:, :, Sk - W:, :], rep, axis=1)
        v = (lambda x, n, axis: torch.repeat_interleave(x, n, dim=axis))(v_cache[:, :, Sk - W:, :], rep, axis=1)
        scores = torch.einsum("bhqd,bhkd->bhqk", q, k) * (Dh ** -0.5)
        p = _softmax(scores, axis=-1)
        o = torch.einsum("bhqk,bhkd->bhqd", p, v)
        return (lambda x, *d: x.permute(*d))(o, 0, 2, 1, 3).reshape(B, Sq, Hq * Dh) @ wo

    def _B_ref(x, w1, b1, w2, b2):
        h = torch.einsum("bsd,df->bsf", x, w1) + b1
        zero = torch.zeros_like(h)
        r = torch.where(h > zero, h, zero)
        h = r * r
        out = torch.einsum("bsf,fd->bsd", h, w2) + b2
        return out

    x = A_x
    xn = _layernorm(x, axis=-1)
    s = _A_ref(xn, A_k_cache, A_v_cache, A_wq, A_wo)
    g = _silu(_B_ref(xn, B_w1, B_b1, B_w2, B_b2))
    return x + s * g
```

```python
import sys, json, struct

NAME = "recurrent_scan__sliding_block_cached__dense_activation_squared_relu__decode"

Q_WS   = 0x1000
XC_WS  = 0x41000
H_WS   = 0x50000
O_WS   = 0x90000
P3_WS  = 0x140000
ST_WS  = 0x300000
WS_BYTES = 0x400000

L_K  = 0
L_V  = 32768
L_WQ = 65536
L_WO = 81920
L_W1 = 98304
L_W2 = 106496
L_XN = 114688
XN_STR = 1088
L_QL = L_XN + 4352
QL_STR = 320
L_OC = L_QL + 1280
OC_H = 528
OC_W = 2112
L_ML = L_OC + 8448
L_FL = L_ML + 128
LDS_BYTES = L_FL + 64

def f2u(x):
    return struct.unpack("<I", struct.pack("<f", x))[0]

class G:
    def __init__(self, opt):
        self.L = []
        self.opt = opt
        self.nst = 0
    def __call__(self, s):
        for line in s.strip().split("\n"):
            self.L.append("    " + line.strip())
    def label(self, n):
        self.L.append(n + ":")
    def stamp(self, k):
        if self.opt.get("stamps"):
            self(f"s_memrealtime s[{70+2*k}:{71+2*k}]")
    def srd(self, d, p, nbytes):
        self(f"s_mov_b32 s{d}, s{p}\ns_mov_b32 s{d+1}, s{p+1}\ns_mov_b32 s{d+2}, {hex(nbytes)}\ns_mov_b32 s{d+3}, 0x20000")

P_X, P_K, P_V, P_WQ, P_WO, P_BX, P_W1, P_B1, P_W2, P_B2, P_OUT, P_DBG, P_WS = 8, 10, 12, 14, 16, 18, 20, 22, 24, 26, 28, 30, 32
S_E, S_T, S_LO = 34, 35, 37
SRD_A, SRD_B, SRD_W, SRD_C = 40, 44, 48, 52
SPIN_MAX = 1 << 16

def tagcheck(g, regs, vT, tmp):
    ts = []
    i = 0
    k = 0
    while i + 1 < len(regs):
        g(f"v_bitop3_b32 v{tmp[k]}, v{regs[i]}, v{regs[i+1]}, v{vT} bitop3:0x7e")
        ts.append(tmp[k]); k += 1; i += 2
    assert i == len(regs)
    while len(ts) > 1:
        n = []
        i = 0
        while i < len(ts):
            if len(ts) - i >= 3:
                g(f"v_or3_b32 v{ts[i]}, v{ts[i]}, v{ts[i+1]}, v{ts[i+2]}"); n.append(ts[i]); i += 3
            elif len(ts) - i == 2:
                g(f"v_or_b32 v{ts[i]}, v{ts[i]}, v{ts[i+1]}"); n.append(ts[i]); i += 2
            else:
                n.append(ts[i]); i += 1
        ts = n
    g(f"v_and_b32 v{ts[0]}, 0x3ff, v{ts[0]}")
    g(f"v_cmp_ne_u32 vcc, 0, v{ts[0]}")

def rnd(g, d, s):
    g(f"v_cvt_pk_bf16_f32 v{d}, v{s}, v{s}")
    g(f"v_and_b32 v{d}, 0xffff0000, v{d}")

def wave_sum(g, v, sdst):
    for c in ("row_ror:8", "row_ror:4", "row_ror:2", "row_ror:1"):
        g("s_nop 1")
        g(f"v_add_f32_dpp v{v}, v{v}, v{v} {c} row_mask:0xf bank_mask:0xf")
    g("s_nop 1")
    g(f"v_add_f32_dpp v{v}, v{v}, v{v} row_bcast:15 row_mask:0xa bank_mask:0xf")
    g("s_nop 1")
    g(f"v_add_f32_dpp v{v}, v{v}, v{v} row_bcast:31 row_mask:0xc bank_mask:0xf")
    g("s_nop 0")
    g(f"v_readlane_b32 s{sdst}, v{v}, 63")

def tile_voff(g, d, t, rowstride):
    g(f"v_lshrrev_b32 v{t}, 4, v0")
    g(f"v_lshlrev_b32 v{t}, 1, v{t}")
    g(f"v_and_b32 v{d}, 7, v0")
    g(f"v_xor_b32 v{d}, v{d}, v{t}")
    g(f"v_lshlrev_b32 v{d}, 4, v{d}")
    g(f"v_lshrrev_b32 v{t}, 3, v0")
    g(f"v_mul_u32_u24 v{t}, {rowstride}, v{t}")
    g(f"v_add_u32 v{d}, v{d}, v{t}")

def tile_raddr(g, d, t):
    g(f"v_lshrrev_b32 v{t}, 3, v0")
    g(f"v_and_b32 v{t}, 3, v{t}")
    g(f"v_lshlrev_b32 v{t}, 5, v{t}")
    g(f"v_lshrrev_b32 v{d}, 2, v0")
    g(f"v_lshl_add_u32 v{t}, v{d}, 7, v{t}")
    g(f"v_and_b32 v{d}, 3, v0")
    g(f"v_lshl_add_u32 v{d}, v{d}, 3, v{t}")
    g(f"v_add_u32 v{d}, 0x10000, v{d}")
    for u in (1, 2, 3):
        g(f"v_xor_b32 v{d+u}, {32*u}, v{d}")

def tile_dma(g, n, voff, srd, ssoff, ldsbase, rowstride, flags):
    step = 8 * rowstride
    for i in range(n):
        if i % 4 == 0:
            g(f"s_mov_b32 m0, {ldsbase + i*1024}" if isinstance(ldsbase, int) else f"s_add_u32 m0, s{ldsbase[0]}, {ldsbase[1] + i*1024}")
        if i == 0:
            g("s_nop 0")
        elif i % 4 == 0:
            g(f"s_add_u32 s{ssoff}, s{ssoff}, {step + 3072}")
        else:
            g(f"s_add_u32 s{ssoff}, s{ssoff}, {step - 1024}")
        g(f"buffer_load_dwordx4 v{voff}, s[{srd}:{srd+3}], s{ssoff} offen offset:{(i%4)*1024} {flags} lds")

def gen(opt):
    g = G(opt)
    NT = opt.get("nt", "nt")
    XF = opt.get("xflags", "")
    SC = "sc1"
    QX = opt.get("qx", 5)
    KPRE = opt.get("kpre", 2)
    g.stamp(0)
    g("s_cmp_ge_u32 s2, 256")
    g("s_cbranch_scc1 L_exit")
    g("s_load_dwordx16 s[8:23], s[0:1], 0")
    g("s_load_dwordx8 s[24:31], s[0:1], 64")
    g("s_load_dwordx2 s[32:33], s[0:1], 96")
    g("v_lshrrev_b32 v1, 6, v0")
    g("v_and_b32 v0, 63, v0")
    g("v_readfirstlane_b32 s3, v1")
    g("s_and_b32 s4, s2, 7")
    g("s_lshr_b32 s5, s2, 3")
    g(f"s_movk_i32 s{S_LO}, 0x3ff")
    g("s_cmp_eq_u32 s3, 0")
    g("s_cbranch_scc0 L_not0")
    g("s_setprio 3")
    tile_voff(g, 2, 3, 8192)
    g("s_lshr_b32 s6, s5, 3")
    g("s_lshl_b32 s38, s6, 20")
    g("s_lshl_b32 s39, s4, 10")
    g("s_add_u32 s38, s38, s39")
    g("s_and_b32 s7, s5, 7")
    g("s_lshl_b32 s39, s7, 7")
    g("s_add_u32 s38, s38, s39")
    g("s_waitcnt lgkmcnt(0)")
    g(f"s_load_dword s{S_E}, s[{P_WS}:{P_WS+1}], 0")
    g.srd(SRD_A, P_WQ, 512*4096*2)
    tile_dma(g, 16, 2, SRD_A, 38, L_WQ, 8192, NT)
    g.stamp(1)
    g.srd(SRD_W, P_WS, WS_BYTES)
    tile_raddr(g, 4, 3)
    g("v_and_b32 v8, 3, v0")
    g(f"v_mul_u32_u24 v8, {XN_STR}, v8")
    g("v_lshrrev_b32 v9, 4, v0")
    g("v_lshl_add_u32 v8, v9, 4, v8")
    g("s_lshl_b32 s39, s6, 8")
    g(f"s_add_u32 s39, s39, {L_XN}")
    g("v_add_u32 v8, s39, v8")
    g("v_and_b32 v10, 3, v0")
    g("v_lshlrev_b32 v10, 11, v10")
    g("v_lshl_add_u32 v10, v9, 4, v10")
    g("s_lshl_b32 s38, s4, 15")
    g("s_lshl_b32 s39, s6, 13")
    g("s_add_u32 s38, s38, s39")
    g("s_lshl_b32 s39, s7, 8")
    g("s_add_u32 s38, s38, s39")
    g(f"s_add_u32 s38, s38, {Q_WS}")
    g("s_waitcnt lgkmcnt(0)")
    g(f"s_add_u32 s{S_T}, s{S_E}, 1")
    g(f"s_and_b32 s{S_T}, s{S_T}, s{S_LO}")
    g(f"v_mov_b32 v11, s{S_T}")
    g("s_barrier")
    for t in range(4):
        g(f"ds_read_b128 v[{12+4*t}:{15+4*t}], v8 offset:{64*t}")
    for t in range(4):
        g(f"s_waitcnt vmcnt({12-4*t})")
        for u in range(4):
            g(f"ds_read_b64_tr_b16 v[{28+4*u}:{29+4*u}], v{4+u} offset:{L_WQ - 65536 + t*4096}")
            g(f"ds_read_b64_tr_b16 v[{30+4*u}:{31+4*u}], v{4+u} offset:{L_WQ - 65536 + t*4096 + 2048}")
        for u in range(4):
            g(f"s_waitcnt lgkmcnt({6-2*u})")
            c = "0" if t == 0 else f"v[{44+4*u}:{47+4*u}]"
            g(f"v_mfma_f32_16x16x32_bf16 v[{44+4*u}:{47+4*u}], v[{28+4*u}:{31+4*u}], v[{12+4*t}:{15+4*t}], {c}")
    g("s_mov_b32 exec_lo, 0x000f000f")
    g("s_mov_b32 exec_hi, 0x000f000f")
    g("s_nop 2")
    for u in range(4):
        for r in range(4):
            g(f"v_bfi_b32 v{44+4*u+r}, s{S_LO}, v11, v{44+4*u+r}")
        g(f"buffer_store_dwordx4 v[{44+4*u}:{47+4*u}], v10, s[{SRD_W}:{SRD_W+3}], s38 offen offset:{64*u} {SC}")
    g("s_mov_b64 exec, -1")
    g.stamp(2)
    g("s_setprio 0")
    g("s_branch L_wo_pre")
    g.label("L_not0")
    g("s_cmp_ge_u32 s3, 4")
    g("s_cbranch_scc0 L_ln")
    g("s_cmp_eq_u32 s3, 8")
    g("s_cbranch_scc1 L_ln")
    g("s_sub_u32 s3, s3, 4")
    g("v_lshrrev_b32 v8, 4, v0")
    g("v_and_b32 v9, 15, v0")
    g("v_xor_b32 v2, v9, v8")
    g("v_lshlrev_b32 v2, 4, v2")
    g("v_lshl_add_u32 v2, v8, 8, v2")
    for i in (1, 2, 3):
        g(f"v_xor_b32 v{2+i}, {64*i}, v2")
    g("s_lshr_b32 s6, s5, 3")
    g("s_and_b32 s7, s5, 7")
    g("s_lshl_b32 s38, s6, 3")
    g("s_add_u32 s38, s38, s4")
    g("s_lshl_b32 s38, s38, 20")
    g("s_lshl_b32 s39, s7, 15")
    g("s_add_u32 s38, s38, s39")
    g("s_lshl_b32 s56, s3, 13")
    g("s_add_u32 s38, s38, s56")
    g(f"s_add_u32 s38, s38, {768*1024}")
    g("s_add_u32 s39, s38, 4096")
    g(f"s_add_u32 m0, s56, {L_K}")
    g("s_waitcnt lgkmcnt(0)")
    g(f"s_load_dword s{S_E}, s[{P_WS}:{P_WS+1}], 0")
    g.srd(SRD_A, P_K, 4*8*4096*128*2)
    def kdma(i):
        if i == 4:
            g(f"s_add_u32 m0, s56, {L_K + 4096}")
            g("s_nop 0")
        g(f"buffer_load_dwordx4 v{2+(i&3)}, s[{SRD_A}:{SRD_A+3}], s{38 + (i>>2)} offen offset:{(i&3)*1024} {NT} lds")
    for i in range(KPRE):
        kdma(i)
    g.stamp(1)
    g.srd(SRD_B, P_V, 4*8*4096*128*2)
    g.srd(SRD_W, P_WS, WS_BYTES)
    g("v_lshlrev_b32 v6, 1, v8")
    g("v_xor_b32 v6, v9, v6")
    g("v_lshlrev_b32 v6, 4, v6")
    g("v_lshl_add_u32 v6, v8, 8, v6")
    g("v_xor_b32 v7, 128, v6")
    g("v_xor_b32 v10, v8, v9")
    g("v_lshlrev_b32 v10, 4, v10")
    g("v_lshl_add_u32 v10, v9, 8, v10")
    g("v_add_u32 v10, s56, v10")
    for t in (1, 2, 3):
        g(f"v_xor_b32 v{10+t}, {64*t}, v10")
    g("v_lshrrev_b32 v22, 2, v0")
    g("v_and_b32 v23, 7, v22")
    g("v_lshlrev_b32 v23, 5, v23")
    g("v_lshl_add_u32 v23, v22, 8, v23")
    g("v_and_b32 v14, 3, v0")
    g("v_lshl_add_u32 v14, v14, 3, v23")
    g(f"s_add_u32 s57, s56, {L_V}")
    g("v_add_u32 v14, s57, v14")
    for u in range(1, 8):
        g(f"v_xor_b32 v{14+u}, {32*u}, v14")
    g("v_lshrrev_b32 v23, 5, v0")
    g("v_and_b32 v24, 31, v0")
    g("v_lshlrev_b32 v22, 14, v23")
    g("v_lshl_add_u32 v22, v24, 4, v22")
    g("s_lshl_b32 s58, s4, 15")
    g("s_lshl_b32 s59, s6, 11")
    g("s_add_u32 s58, s58, s59")
    g("s_lshl_b32 s59, s3, 9")
    g("s_add_u32 s58, s58, s59")
    g(f"s_add_u32 s58, s58, {Q_WS}")
    g("s_add_u32 s59, s58, 8192")
    g("v_lshlrev_b32 v23, 2, v23")
    g("v_lshl_add_u32 v23, v24, 3, v23")
    g(f"s_mul_i32 s60, s3, {QL_STR}")
    g(f"s_add_u32 s60, s60, {L_QL}")
    g("v_add_u32 v23, s60, v23")
    g("v_and_b32 v25, 3, v0")
    g(f"v_mul_u32_u24 v24, {QL_STR}, v25")
    g("v_lshl_add_u32 v24, v8, 4, v24")
    g(f"v_add_u32 v24, {L_QL}, v24")
    g(f"v_mul_u32_u24 v26, {OC_H}, v25")
    g("v_lshl_add_u32 v26, v8, 4, v26")
    g(f"s_mul_i32 s60, s3, {OC_W}")
    g(f"s_add_u32 s60, s60, {L_OC}")
    g("v_add_u32 v26, s60, v26")
    g("v_lshlrev_b32 v27, 5, v25")
    g("s_lshl_b32 s60, s3, 2")
    g(f"s_add_u32 s60, s60, {L_ML}")
    g("v_add_u32 v27, s60, v27")
    g(f"s_mul_i32 s60, s3, {OC_H}")
    g(f"s_add_u32 s60, s60, {L_OC}")
    g("v_lshlrev_b32 v30, 3, v0")
    g("v_add_u32 v28, s60, v30")
    g("s_lshl_b32 s60, s3, 5")
    g(f"s_add_u32 s60, s60, {L_ML}")
    g("v_mov_b32 v29, s60")
    g("s_lshl_b32 s61, s4, 2")
    g("s_add_u32 s61, s61, s3")
    g("s_lshl_b32 s61, s61, 5")
    g("s_add_u32 s61, s61, s5")
    g("s_mul_i32 s61, s61, 640")
    g(f"s_add_u32 s61, s61, {O_WS}")
    for r in range(4):
        g(f"v_mov_b32 v{32+r}, 0x3f803f80")
    g(f"s_mov_b32 s62, {hex(f2u(1.4426950408889634 / (128 ** 0.5)))}")
    g("s_waitcnt lgkmcnt(0)")
    g(f"s_add_u32 s{S_T}, s{S_E}, 1")
    g(f"s_and_b32 s{S_T}, s{S_T}, s{S_LO}")
    g(f"v_mov_b32 v31, s{S_T}")
    g("s_barrier")
    g.stamp(2)
    for i in range(KPRE, 8):
        kdma(i)
    for i in range(8):
        if i % 4 == 0:
            g(f"s_add_u32 m0, s56, {L_V + i*1024}")
            g("s_nop 0")
        g(f"buffer_load_dwordx4 v{6+(i&1)}, s[{SRD_B}:{SRD_B+3}], s{38 + (i>>2)} offen offset:{(i&3)*1024} {NT} lds")
    g.stamp(3)
    g(f"s_waitcnt vmcnt({QX})")
    g(f"buffer_load_dwordx4 v[36:39], v22, s[{SRD_W}:{SRD_W+3}], s58 offen {SC}")
    g(f"buffer_load_dwordx4 v[40:43], v22, s[{SRD_W}:{SRD_W+3}], s59 offen {SC}")
    g("s_barrier")
    g.stamp(4)
    for tau in range(2):
        for t in range(4):
            r = 48 + 16*tau + 4*t
            g(f"ds_read_b128 v[{r}:{r+3}], v{10+t} offset:{4096*tau}")
    g("s_waitcnt vmcnt(2)")
    g.stamp(5)
    for u in range(8):
        g(f"ds_read_b64_tr_b16 v[{80+4*u}:{81+4*u}], v{14+u}")
        g(f"ds_read_b64_tr_b16 v[{82+4*u}:{83+4*u}], v{14+u} offset:4096")
    g("s_mov_b32 s63, 0")
    g.label("L_qchk")
    g("s_waitcnt vmcnt(0)")
    tagcheck(g, list(range(36, 44)), 31, [44, 45, 46, 47])
    g("s_cbranch_vccz L_qok")
    g("s_add_u32 s63, s63, 1")
    g(f"s_cmp_gt_u32 s63, {SPIN_MAX}")
    g("s_cbranch_scc1 L_qok")
    g(f"buffer_load_dwordx4 v[36:39], v22, s[{SRD_W}:{SRD_W+3}], s58 offen {SC}")
    g(f"buffer_load_dwordx4 v[40:43], v22, s[{SRD_W}:{SRD_W+3}], s59 offen {SC}")
    g("s_branch L_qchk")
    g.label("L_qok")
    g.stamp(6)
    g("v_pk_add_f32 v[36:37], v[36:37], v[40:41]")
    g("v_pk_add_f32 v[38:39], v[38:39], v[42:43]")
    g("s_nop 1")
    g("v_permlane32_swap_b32 v36, v38")
    g("v_permlane32_swap_b32 v37, v39")
    g("s_nop 0")
    g("v_pk_add_f32 v[36:37], v[36:37], v[38:39]")
    g("v_cvt_pk_bf16_f32 v36, v36, v37")
    g("ds_write_b32 v23, v36")
    g("s_waitcnt lgkmcnt(0)")
    g("s_barrier")
    for t in range(4):
        g(f"ds_read_b128 v[{112+4*t}:{115+4*t}], v24 offset:{64*t}")
    for t in range(4):
        g(f"s_waitcnt lgkmcnt({3-t})")
        for tau in range(2):
            r = 48 + 16*tau + 4*t
            c = "0" if t == 0 else f"v[{36+4*tau}:{39+4*tau}]"
            g(f"v_mfma_f32_16x16x32_bf16 v[{36+4*tau}:{39+4*tau}], v[{r}:{r+3}], v[{112+4*t}:{115+4*t}], {c}")
    g("s_nop 6")
    g("v_max3_f32 v44, v36, v37, v38")
    g("v_max3_f32 v45, v39, v40, v41")
    g("v_max3_f32 v44, v44, v42, v43")
    g("v_max_f32 v44, v44, v45")
    g("v_mov_b32 v45, v44")
    g("s_nop 1")
    g("v_permlane32_swap_b32 v44, v45")
    g("s_nop 0")
    g("v_max_f32 v44, v44, v45")
    g("v_mov_b32 v45, v44")
    g("s_nop 1")
    g("v_permlane16_swap_b32 v44, v45")
    g("s_nop 0")
    g("v_max_f32 v44, v44, v45")
    g("v_mul_f32 v44, s62, v44")
    for i in range(8):
        g(f"v_fma_f32 v{36+i}, v{36+i}, s62, -v44")
    for i in range(8):
        g(f"v_exp_f32 v{36+i}, v{36+i}")
    for i in range(4):
        g(f"v_cvt_pk_bf16_f32 v{36+i}, v{36+2*i}, v{37+2*i}")
    g("s_nop 1")
    for u in range(8):
        g(f"v_mfma_f32_16x16x32_bf16 v[{48+4*u}:{51+4*u}], v[{80+4*u}:{83+4*u}], v[36:39], 0")
    g("v_mfma_f32_16x16x32_bf16 v[40:43], v[32:35], v[36:39], 0")
    g("s_mov_b32 exec_lo, 0x000f000f")
    g("s_mov_b32 exec_hi, 0x000f000f")
    for u in range(8):
        g(f"ds_write_b128 v26, v[{48+4*u}:{51+4*u}] offset:{64*u}")
    g("ds_write2_b32 v27, v44, v40 offset0:0 offset1:4")
    g("s_mov_b64 exec, -1")
    g("s_waitcnt lgkmcnt(0)")
    g("s_barrier")
    g.stamp(7)
    g("ds_read_b128 v[36:39], v29")
    g("ds_read_b128 v[40:43], v29 offset:16")
    for w in range(4):
        g(f"ds_read_b64 v[{48+2*w}:{49+2*w}], v28 offset:{OC_W*w}")
    g("s_waitcnt lgkmcnt(5)")
    g("v_max3_f32 v44, v36, v37, v38")
    g("v_max_f32 v44, v44, v39")
    g(f"v_bfi_b32 v44, s{S_LO}, v31, v44")
    for w in range(4):
        g(f"v_sub_f32 v{36+w}, v{36+w}, v44")
    for w in range(4):
        g(f"v_exp_f32 v{36+w}, v{36+w}")
    g("s_waitcnt lgkmcnt(0)")
    g("v_mul_f32 v56, v36, v48")
    g("v_mul_f32 v57, v36, v49")
    for w in range(1, 4):
        g(f"v_fmac_f32 v56, v{36+w}, v{48+2*w}")
        g(f"v_fmac_f32 v57, v{36+w}, v{49+2*w}")
    g(f"v_bfi_b32 v56, s{S_LO}, v31, v56")
    g(f"v_bfi_b32 v57, s{S_LO}, v31, v57")
    g(f"buffer_store_dwordx2 v[56:57], v30, s[{SRD_W}:{SRD_W+3}], s61 offen {SC}")
    g("v_mul_f32 v45, v36, v40")
    for w in range(1, 4):
        g(f"v_fmac_f32 v45, v{36+w}, v{40+w}")
    g("v_mov_b32 v46, v31")
    g("v_mov_b32 v47, v31")
    g(f"v_bfi_b32 v45, s{S_LO}, v31, v45")
    g("s_mov_b64 exec, 1")
    g(f"buffer_store_dwordx4 v[44:47], v30, s[{SRD_W}:{SRD_W+3}], s61 offen offset:512 {SC}")
    g.stamp(8)
    if opt.get("stamps"):
        g("s_add_u32 s3, s3, 4")
    g("s_branch L_end")
    g.label("L_ln")
    g("s_min_u32 s6, s3, 4")
    g("s_sub_u32 s6, s6, 1")
    g("v_lshlrev_b32 v2, 4, v0")
    g("s_lshl_b32 s38, s6, 10")
    g("s_waitcnt lgkmcnt(0)")
    g(f"s_load_dword s{S_E}, s[{P_WS}:{P_WS+1}], 0")
    g.srd(SRD_C, P_X, 4096)
    g(f"buffer_load_dwordx4 v[4:7], v2, s[{SRD_C}:{SRD_C+3}], s38 offen {XF}")
    if opt.get("cpf", 1):
        g("s_cmp_eq_u32 s3, 8")
        g("s_cbranch_scc0 L_nopf")
        g("s_getpc_b64 s[64:65]")
        g.label("L_pc")
        g(f"s_sub_u32 s64, s64, L_pc-{NAME}_kernel")
        g("s_subb_u32 s65, s65, 0")
        g("v_lshlrev_b32 v3, 6, v0")
        g("global_load_dword v126, v3, s[64:65]")
        g("v_add_u32 v3, 4096, v3")
        g("global_load_dword v127, v3, s[64:65]")
        g("s_waitcnt vmcnt(2)")
        g("s_branch L_pfd")
        g.label("L_nopf")
        g("s_waitcnt vmcnt(0)")
        g.label("L_pfd")
    else:
        g("s_waitcnt vmcnt(0)")
    g.stamp(1)
    g.srd(SRD_W, P_WS, WS_BYTES)
    for i in range(4):
        g(f"v_lshlrev_b32 v{12+2*i}, 16, v{4+i}")
        g(f"v_and_b32 v{13+2*i}, 0xffff0000, v{4+i}")
    g("v_pk_add_f32 v[20:21], v[12:13], v[14:15]")
    g("v_pk_add_f32 v[22:23], v[16:17], v[18:19]")
    g("v_pk_add_f32 v[20:21], v[20:21], v[22:23]")
    g("v_add_f32 v20, v20, v21")
    wave_sum(g, 20, 38)
    g(f"v_mov_b32 v21, {hex(f2u(1.0/512))}")
    g("s_nop 0")
    g("v_mul_f32 v20, s38, v21")
    for i in range(8):
        g(f"v_sub_f32 v{24+i}, v{12+i}, v20")
    g("v_mul_f32 v22, v24, v24")
    g("v_mul_f32 v23, v25, v25")
    for i in range(1, 4):
        g(f"v_fmac_f32 v22, v{24+2*i}, v{24+2*i}")
        g(f"v_fmac_f32 v23, v{25+2*i}, v{25+2*i}")
    g("v_add_f32 v22, v22, v23")
    wave_sum(g, 22, 38)
    rnd(g, 20, 20)
    g("v_mul_f32 v22, s38, v21")
    rnd(g, 22, 22)
    g(f"v_add_f32 v22, {hex(f2u(1e-5))}, v22")
    rnd(g, 22, 22)
    g("v_sqrt_f32 v22, v22")
    g("s_nop 0")
    rnd(g, 22, 22)
    g("v_rcp_f32 v22, v22")
    for i in range(8):
        g(f"v_sub_f32 v{12+i}, v{12+i}, v20")
    for i in range(4):
        g(f"v_cvt_pk_bf16_f32 v{4+i}, v{12+2*i}, v{13+2*i}")
    for i in range(4):
        g(f"v_lshlrev_b32 v{12+2*i}, 16, v{4+i}")
        g(f"v_and_b32 v{13+2*i}, 0xffff0000, v{4+i}")
    for i in range(8):
        g(f"v_mul_f32 v{12+i}, v{12+i}, v22")
    for i in range(4):
        g(f"v_cvt_pk_bf16_f32 v{4+i}, v{12+2*i}, v{13+2*i}")
    g("v_lshrrev_b32 v12, 2, v0")
    g("v_lshlrev_b32 v12, 6, v12")
    g("v_and_b32 v13, 1, v0")
    g("v_lshl_add_u32 v12, v13, 5, v12")
    g("v_and_b32 v13, 2, v0")
    g("v_lshl_add_u32 v12, v13, 2, v12")
    g(f"s_mul_i32 s38, s6, {XN_STR}")
    g(f"s_add_u32 s38, s38, {L_XN}")
    g("v_add_u32 v12, s38, v12")
    g("ds_write2_b64 v12, v[4:5], v[6:7] offset0:0 offset1:2")
    g("s_waitcnt lgkmcnt(0)")
    g(f"s_add_u32 s{S_T}, s{S_E}, 1")
    g(f"s_and_b32 s{S_T}, s{S_T}, s{S_LO}")
    g(f"v_mov_b32 v11, s{S_T}")
    g("s_barrier")
    g.stamp(2)
    tile_raddr(g, 4, 3)
    g("s_cmp_eq_u32 s3, 8")
    g("s_cbranch_scc1 L_w8")
    g("s_cmp_eq_u32 s3, 2")
    g("s_cbranch_scc0 L_wo_pre")
    g("s_getreg_b32 s57, hwreg(HW_REG_XCC_ID, 0, 4)")
    g("s_lshl_b32 s57, s57, 10")
    g(f"s_or_b32 s57, s57, s{S_T}")
    for r in range(4):
        g(f"v_mov_b32 v{12+r}, s57")
    g("s_lshl_b32 s58, s4, 9")
    g(f"s_add_u32 s58, s58, {XC_WS}")
    g("s_lshl_b32 s59, s5, 4")
    g("s_add_u32 s59, s59, s58")
    g("v_mov_b32 v16, 0")
    g("s_mov_b64 exec, 1")
    g(f"buffer_store_dwordx4 v[12:15], v16, s[{SRD_W}:{SRD_W+3}], s59 offen {SC}")
    g("s_mov_b64 exec, -1")
    g.label("L_wo_pre")
    g.srd(SRD_A, P_WO, 4096*512*2)
    tile_voff(g, 2, 3, 1024)
    g("s_lshl_b32 s38, s5, 17")
    g("s_lshl_b32 s39, s3, 15")
    g("s_add_u32 s38, s38, s39")
    g("s_lshl_b32 s39, s4, 7")
    g("s_add_u32 s38, s38, s39")
    g("s_lshl_b32 s56, s3, 12")
    g("v_and_b32 v9, 3, v0")
    g("v_and_b32 v10, 12, v0")
    g("v_lshl_add_u32 v9, v10, 1, v9")
    g("v_mul_u32_u24 v9, 640, v9")
    g("v_lshrrev_b32 v10, 4, v0")
    g("v_lshl_add_u32 v8, v10, 4, v9")
    g("s_mul_i32 s60, s5, 20480")
    g(f"s_add_u32 s60, s60, {O_WS + 512}")
    g("s_lshl_b32 s61, s3, 7")
    g("s_add_u32 s61, s61, s60")
    g("s_sub_u32 s61, s61, 512")
    g("v_lshrrev_b32 v10, 1, v0")
    g("v_mul_u32_u24 v10, 5120, v10")
    g("v_and_b32 v3, 1, v0")
    g("v_lshl_add_u32 v10, v3, 4, v10")
    g("s_mul_i32 s62, s4, 163840")
    g("s_lshl_b32 s39, s5, 2")
    g("s_add_u32 s39, s39, s3")
    g("s_lshl_b32 s39, s39, 5")
    g("s_add_u32 s62, s62, s39")
    g(f"s_add_u32 s62, s62, {P3_WS}")
    g("s_cmp_eq_u32 s3, 1")
    g("s_cbranch_scc0 L_wo_b2")
    g("s_cmp_lt_u32 s5, 28")
    g("s_cbranch_scc0 L_wo_b2")
    g.srd(SRD_B, P_W1, 512*1792*2)
    tile_voff(g, 12, 3, 3584)
    g(f"s_mul_i32 s57, s4, {64*3584}")
    g("s_lshl_b32 s39, s5, 7")
    g("s_add_u32 s57, s57, s39")
    g("v_and_b32 v13, 3, v0")
    g(f"v_mul_u32_u24 v14, {XN_STR}, v13")
    g("v_lshrrev_b32 v3, 4, v0")
    g("v_lshl_add_u32 v14, v3, 4, v14")
    g("s_lshl_b32 s39, s4, 7")
    g(f"s_add_u32 s39, s39, {L_XN}")
    g("v_add_u32 v14, s39, v14")
    g("ds_read_b128 v[16:19], v14")
    g("ds_read_b128 v[20:23], v14 offset:64")
    g("v_mul_u32_u24 v13, 7168, v13")
    g("v_lshl_add_u32 v13, v3, 4, v13")
    g("s_mul_i32 s58, s4, 28672")
    g("s_lshl_b32 s39, s5, 8")
    g("s_add_u32 s58, s58, s39")
    g(f"s_add_u32 s58, s58, {H_WS}")
    g("s_setprio 2")
    g("s_barrier")
    tile_dma(g, 8, 12, SRD_B, 57, L_W1, 3584, NT)
    g("s_setprio 0")
    tile_dma(g, 4, 2, SRD_A, 38, (56, L_WO), 1024, NT)
    g.stamp(3)
    g("s_barrier")
    g("s_barrier")
    g("s_waitcnt vmcnt(4)")
    g.stamp(4)
    for t in range(2):
        for u in range(4):
            r = 24 + 16*t + 4*u
            g(f"ds_read_b64_tr_b16 v[{r}:{r+1}], v{4+u} offset:{L_W1 - 65536 + t*4096}")
            g(f"ds_read_b64_tr_b16 v[{r+2}:{r+3}], v{4+u} offset:{L_W1 - 65536 + t*4096 + 2048}")
    for t in range(2):
        for u in range(4):
            r = 24 + 16*t + 4*u
            g(f"s_waitcnt lgkmcnt({14 - 8*t - 2*u})")
            c = "0" if t == 0 else f"v[{56+4*u}:{59+4*u}]"
            g(f"v_mfma_f32_16x16x32_bf16 v[{56+4*u}:{59+4*u}], v[{r}:{r+3}], v[{16+4*t}:{19+4*t}], {c}")
    g("s_mov_b32 exec_lo, 0x000f000f")
    g("s_mov_b32 exec_hi, 0x000f000f")
    g("s_nop 2")
    for u in range(4):
        for r in range(4):
            g(f"v_bfi_b32 v{56+4*u+r}, s{S_LO}, v11, v{56+4*u+r}")
        g(f"buffer_store_dwordx4 v[{56+4*u}:{59+4*u}], v13, s[{SRD_W}:{SRD_W+3}], s58 offen offset:{64*u} {SC}")
    g("s_mov_b64 exec, -1")
    g.stamp(5)
    g("s_waitcnt vmcnt(4)")
    g("s_branch L_wo_go")
    g.label("L_wo_b2")
    g("s_barrier")
    tile_dma(g, 4, 2, SRD_A, 38, (56, L_WO), 1024, NT)
    g.stamp(3)
    g("s_cmp_eq_u32 s3, 2")
    g("s_cbranch_scc0 L_wo_b2b")
    g("v_and_b32 v16, 31, v0")
    g("v_lshlrev_b32 v16, 4, v16")
    g("v_mov_b32 v17, s57")
    g("s_mov_b32 s63, 0")
    g("s_barrier")
    g.label("L_xc")
    g(f"buffer_load_dwordx4 v[12:15], v16, s[{SRD_W}:{SRD_W+3}], s58 offen {SC}")
    g("s_add_u32 s63, s63, 1")
    g(f"s_cmp_gt_u32 s63, {SPIN_MAX}")
    g("s_cbranch_scc1 L_xcok")
    g("s_waitcnt vmcnt(0)")
    g("v_bitop3_b32 v18, v12, v13, v17 bitop3:0x7e")
    g("v_bitop3_b32 v19, v14, v15, v17 bitop3:0x7e")
    g("v_or_b32 v18, v18, v19")
    g("v_and_b32 v19, 0x3ff, v18")
    g("v_cmp_ne_u32 vcc, 0, v19")
    g("s_cbranch_vccnz L_xc")
    g.label("L_xcok")
    g("v_cmp_ne_u32 vcc, 0, v18")
    g("s_cmp_lg_u64 vcc, 0")
    g("s_cselect_b32 s59, 1, 0")
    if opt.get("force_remote"):
        g("s_mov_b32 s59, 1")
    g("v_mov_b32 v18, s59")
    g(f"v_mov_b32 v19, {L_FL}")
    g("ds_write_b32 v19, v18")
    g("s_waitcnt lgkmcnt(0)")
    g("s_branch L_wo_b3")
    g.label("L_wo_b2b")
    g("s_barrier")
    g.label("L_wo_b3")
    g("s_barrier")
    g("s_waitcnt vmcnt(0)")
    g.label("L_wo_go")
    g.stamp(6)
    g(f"s_add_u32 s56, s56, {L_WO - 65536}")
    for u in range(4):
        g(f"v_add_u32 v{4+u}, s56, v{4+u}")
    g(f"v_mov_b32 v12, {L_FL}")
    g("ds_read_b32 v12, v12")
    for u in range(4):
        g(f"ds_read_b64_tr_b16 v[{16+4*u}:{17+4*u}], v{4+u}")
        g(f"ds_read_b64_tr_b16 v[{18+4*u}:{19+4*u}], v{4+u} offset:2048")
    g("s_mov_b32 s63, 0")
    g("s_waitcnt lgkmcnt(0)")
    g("v_readfirstlane_b32 s59, v12")
    if opt.get("d2", 0):
        g(f"s_sleep {opt['d2']}")
    g.label("L_o")
    W = f"s[{SRD_W}:{SRD_W+3}]"
    g(f"buffer_load_dwordx4 v[32:35], v9, {W}, s60 offen {SC}")
    g(f"buffer_load_dwordx4 v[36:39], v9, {W}, s60 offen offset:2560 {SC}")
    g(f"buffer_load_dwordx4 v[40:43], v8, {W}, s61 offen {SC}")
    g(f"buffer_load_dwordx4 v[44:47], v8, {W}, s61 offen offset:64 {SC}")
    g(f"buffer_load_dwordx4 v[48:51], v8, {W}, s61 offen offset:2560 {SC}")
    g(f"buffer_load_dwordx4 v[52:55], v8, {W}, s61 offen offset:2624 {SC}")
    g("s_add_u32 s63, s63, 1")
    g(f"s_cmp_gt_u32 s63, {SPIN_MAX}")
    g("s_cbranch_scc1 L_ook")
    g("s_waitcnt vmcnt(0)")
    tagcheck(g, list(range(32, 56)), 11, list(range(56, 68)))
    g("s_cbranch_vccnz L_o")
    g.label("L_ook")
    g.stamp(7)
    g("v_max_f32 v56, v32, v36")
    g("s_nop 1")
    g("v_max_f32_dpp v56, v56, v56 quad_perm:[1,0,3,2] row_mask:0xf bank_mask:0xf")
    g("s_nop 1")
    g("v_max_f32_dpp v56, v56, v56 quad_perm:[2,3,0,1] row_mask:0xf bank_mask:0xf")
    g("v_sub_f32 v32, v32, v56")
    g("v_sub_f32 v36, v36, v56")
    g("v_exp_f32 v32, v32")
    g("v_exp_f32 v36, v36")
    g("s_nop 0")
    g("v_mul_f32 v57, v32, v33")
    g("v_fmac_f32 v57, v36, v37")
    g("s_nop 1")
    g("v_add_f32_dpp v57, v57, v57 quad_perm:[1,0,3,2] row_mask:0xf bank_mask:0xf")
    g("s_nop 1")
    g("v_add_f32_dpp v57, v57, v57 quad_perm:[2,3,0,1] row_mask:0xf bank_mask:0xf")
    g("v_rcp_f32 v57, v57")
    g("s_nop 0")
    g("v_mul_f32 v32, v32, v57")
    g("v_mul_f32 v36, v36, v57")
    for i in range(8):
        g(f"v_mul_f32 v{40+i}, v32, v{40+i}")
    for i in range(8):
        g(f"v_fmac_f32 v{40+i}, v36, v{48+i}")
    for i in range(4):
        g(f"v_cvt_pk_bf16_f32 v{40+i}, v{40+2*i}, v{41+2*i}")
    g("s_nop 1")
    for u in range(4):
        g(f"v_mfma_f32_16x16x32_bf16 v[{48+4*u}:{51+4*u}], v[40:43], v[{16+4*u}:{19+4*u}], 0")
    g("s_cmp_eq_u32 s59, 0")
    g("s_nop 3")
    for u in range(4):
        g(f"v_pk_add_f32 v[{48+4*u}:{49+4*u}], v[{48+4*u}:{49+4*u}], v[{50+4*u}:{51+4*u}]")
    for u in range(4):
        g(f"v_add_f32 v{32+u}, v{48+4*u}, v{49+4*u}")
    for u in range(4):
        g(f"v_bfi_b32 v{32+u}, s{S_LO}, v11, v{32+u}")
    g("s_cbranch_scc0 L_wo_rem")
    g(f"buffer_store_dwordx4 v[32:35], v10, {W}, s62 offen")
    g.stamp(8)
    g("s_branch L_end")
    g.label("L_wo_rem")
    g(f"buffer_store_dwordx4 v[32:35], v10, {W}, s62 offen {SC}")
    g.stamp(8)
    g("s_branch L_end")
    g.label("L_w8")
    g.srd(SRD_A, P_W2, 1792*512*2)
    g.srd(SRD_B, P_B1, 1792*2)
    tile_voff(g, 2, 3, 1024)
    g("s_lshl_b32 s38, s5, 16")
    g("s_lshl_b32 s39, s4, 7")
    g("s_add_u32 s38, s38, s39")
    g("v_lshrrev_b32 v12, 4, v0")
    g("v_bfe_u32 v13, v0, 1, 1")
    g("v_bfe_u32 v14, v0, 2, 2")
    g("v_and_b32 v15, 1, v0")
    g("v_lshlrev_b32 v8, 6, v13")
    g("v_lshl_add_u32 v8, v12, 3, v8")
    g("s_lshl_b32 s57, s5, 7")
    g("v_lshl_add_u32 v9, v15, 2, v14")
    g("v_mul_u32_u24 v9, 7168, v9")
    g("v_lshl_add_u32 v9, v8, 1, v9")
    g("s_lshl_b32 s58, s5, 8")
    g(f"s_add_u32 s58, s58, {H_WS}")
    for kk in range(1, 4):
        g(f"s_add_u32 s{58+kk}, s58, {kk*57344}")
    g("v_lshrrev_b32 v10, 1, v0")
    g("v_mul_u32_u24 v10, 5120, v10")
    g("v_lshl_add_u32 v10, v15, 4, v10")
    g("s_mul_i32 s62, s4, 163840")
    g(f"s_add_u32 s62, s62, {P3_WS}")
    g("s_mul_i32 s64, s5, 5120")
    g("s_add_u32 s64, s64, s62")
    g("s_add_u32 s65, s64, 4096")
    g("s_lshl_b32 s39, s5, 5")
    g("s_add_u32 s62, s62, s39")
    g("s_add_u32 s62, s62, 4096")
    g("v_lshlrev_b32 v3, 4, v0")
    g("v_and_b32 v16, 1, v12")
    g("v_lshl_add_u32 v16, v13, 1, v16")
    g("v_lshlrev_b32 v16, 5, v16")
    g("v_lshl_add_u32 v16, v15, 1, v16")
    g("s_and_b32 s39, s5, 7")
    g("s_lshl_b32 s39, s39, 2")
    g("s_lshl_b32 s66, s4, 7")
    g("s_add_u32 s66, s66, s39")
    g("s_lshr_b32 s39, s5, 3")
    g("s_lshl_b32 s39, s39, 10")
    g("s_add_u32 s67, s66, s39")
    g("s_barrier")
    g("s_cmp_lt_u32 s5, 28")
    g("s_cbranch_scc0 L_w8_nou")
    tile_dma(g, 8, 2, SRD_A, 38, L_W2, 1024, NT)
    g(f"buffer_load_dwordx2 v[20:21], v8, s[{SRD_B}:{SRD_B+3}], s57 offen")
    g(f"buffer_load_dwordx2 v[22:23], v8, s[{SRD_B}:{SRD_B+3}], s57 offen offset:32")
    g.label("L_w8_nou")
    g.srd(SRD_B, P_B2, 1024)
    g(f"buffer_load_ushort v17, v16, s[{SRD_C}:{SRD_C+3}], s67 offen")
    g(f"buffer_load_ushort v18, v16, s[{SRD_B}:{SRD_B+3}], s66 offen")
    if opt.get("prewarm", 1):
        for i in range(4):
            g(f"buffer_load_dwordx4 v[24:27], v3, {W}, s64 offen offset:{1024*i} {SC}")
        g(f"buffer_load_dwordx4 v[24:27], v3, {W}, s65 offen {SC}")
    g.srd(SRD_A, P_OUT, 4096)
    g.stamp(3)
    g("s_barrier")
    g("s_barrier")
    g(f"v_mov_b32 v12, {L_FL}")
    g("ds_read_b32 v12, v12")
    g("s_waitcnt vmcnt(0) lgkmcnt(0)")
    g.stamp(4)
    g("v_readfirstlane_b32 s56, v12")
    g("v_lshlrev_b32 v17, 16, v17")
    g("v_lshlrev_b32 v18, 16, v18")
    for r in range(4):
        g(f"v_mov_b32 v{96+r}, v11")
    g("s_cmp_lt_u32 s5, 28")
    g("s_cbranch_scc0 L_w8_pub")
    for t in range(2):
        for u in range(4):
            r = 24 + 16*t + 4*u
            g(f"ds_read_b64_tr_b16 v[{r}:{r+1}], v{4+u} offset:{L_W2 - 65536 + t*4096}")
            g(f"ds_read_b64_tr_b16 v[{r+2}:{r+3}], v{4+u} offset:{L_W2 - 65536 + t*4096 + 2048}")
    for i in range(4):
        g(f"v_lshlrev_b32 v{88+2*i}, 16, v{20+i}")
        g(f"v_and_b32 v{89+2*i}, 0xffff0000, v{20+i}")
    g("s_mov_b32 s63, 0")
    g.label("L_h")
    for kk in range(4):
        g(f"buffer_load_dwordx4 v[{56+8*kk}:{59+8*kk}], v9, {W}, s{58+kk} offen {SC}")
        g(f"buffer_load_dwordx4 v[{60+8*kk}:{63+8*kk}], v9, {W}, s{58+kk} offen offset:64 {SC}")
    g("s_add_u32 s63, s63, 1")
    g(f"s_cmp_gt_u32 s63, {SPIN_MAX}")
    g("s_cbranch_scc1 L_hok")
    g("s_waitcnt vmcnt(0)")
    tagcheck(g, list(range(56, 88)), 11, list(range(100, 116)))
    g("s_cbranch_vccnz L_h")
    g.label("L_hok")
    g.stamp(5)
    for i in range(4):
        g(f"v_pk_add_f32 v[{56+2*i}:{57+2*i}], v[{56+2*i}:{57+2*i}], v[{64+2*i}:{65+2*i}]")
        g(f"v_pk_add_f32 v[{72+2*i}:{73+2*i}], v[{72+2*i}:{73+2*i}], v[{80+2*i}:{81+2*i}]")
    for i in range(4):
        g(f"v_pk_add_f32 v[{56+2*i}:{57+2*i}], v[{56+2*i}:{57+2*i}], v[{72+2*i}:{73+2*i}]")
    for i in range(8):
        g(f"v_add_f32_dpp v{56+i}, v{56+i}, v{56+i} quad_perm:[1,0,3,2] row_mask:0xf bank_mask:0xf")
    for i in range(4):
        g(f"v_cvt_pk_bf16_f32 v{64+i}, v{56+2*i}, v{57+2*i}")
    for i in range(4):
        g(f"v_lshlrev_b32 v{56+2*i}, 16, v{64+i}")
        g(f"v_and_b32 v{57+2*i}, 0xffff0000, v{64+i}")
    for i in range(4):
        g(f"v_pk_add_f32 v[{56+2*i}:{57+2*i}], v[{56+2*i}:{57+2*i}], v[{88+2*i}:{89+2*i}]")
    for i in range(4):
        g(f"v_cvt_pk_bf16_f32 v{64+i}, v{56+2*i}, v{57+2*i}")
    for i in range(4):
        g(f"v_lshlrev_b32 v{56+2*i}, 16, v{64+i}")
        g(f"v_and_b32 v{57+2*i}, 0xffff0000, v{64+i}")
    for i in range(8):
        g(f"v_max_f32 v{56+i}, 0, v{56+i}")
    for i in range(4):
        g(f"v_pk_mul_f32 v[{56+2*i}:{57+2*i}], v[{56+2*i}:{57+2*i}], v[{56+2*i}:{57+2*i}]")
    for i in range(4):
        g(f"v_cvt_pk_bf16_f32 v{64+i}, v{56+2*i}, v{57+2*i}")
    g("s_waitcnt lgkmcnt(0)")
    g("s_nop 0")
    for u in range(4):
        for t in range(2):
            r = 24 + 16*t + 4*u
            d = 68 + 8*u + 4*t
            g(f"v_mfma_f32_16x16x32_bf16 v[{d}:{d+3}], v[64:67], v[{r}:{r+3}], 0")
    g("s_nop 4")
    for u in range(4):
        g(f"v_add_f32 v{100+u}, v{68+8*u}, v{68+8*u+4+2}")
    for u in range(4):
        g(f"v_bfi_b32 v{96+u}, s{S_LO}, v11, v{100+u}")
    g.label("L_w8_pub")
    g("s_cmp_eq_u32 s56, 0")
    g("s_cbranch_scc0 L_w8_rem")
    g(f"buffer_store_dwordx4 v[96:99], v10, {W}, s62 offen")
    g("s_branch L_fin")
    g.label("L_w8_rem")
    g(f"buffer_store_dwordx4 v[96:99], v10, {W}, s62 offen {SC}")
    g.label("L_fin")
    g.stamp(6)
    g("s_mov_b32 s63, 0")
    g("v_and_b32 v19, 2, v0")
    g("v_cmp_ne_u32 s[68:69], 0, v19")
    g(f"s_mov_b32 s57, {hex(f2u(-1.4426950408889634))}")
    g.label("L_f")
    for i in range(4):
        g(f"buffer_load_dwordx4 v[{24+4*i}:{27+4*i}], v3, {W}, s64 offen offset:{1024*i} {SC}")
    g(f"buffer_load_dwordx4 v[40:43], v3, {W}, s65 offen {SC}")
    g("s_add_u32 s63, s63, 1")
    g(f"s_cmp_gt_u32 s63, {SPIN_MAX}")
    g("s_cbranch_scc1 L_fok")
    g("s_waitcnt vmcnt(0)")
    tagcheck(g, list(range(24, 44)), 11, list(range(44, 54)))
    g("s_cbranch_vccnz L_f")
    g.label("L_fok")
    g.stamp(7)
    g("v_pk_add_f32 v[24:25], v[24:25], v[28:29]")
    g("v_pk_add_f32 v[26:27], v[26:27], v[30:31]")
    g("v_pk_add_f32 v[32:33], v[32:33], v[36:37]")
    g("v_pk_add_f32 v[34:35], v[34:35], v[38:39]")
    g("v_pk_add_f32 v[24:25], v[24:25], v[32:33]")
    g("v_pk_add_f32 v[26:27], v[26:27], v[34:35]")
    g("s_nop 1")
    for i in range(4):
        g(f"v_permlane32_swap_b32 v{24+i}, v{40+i}")
    g("s_nop 0")
    g("v_pk_add_f32 v[24:25], v[24:25], v[40:41]")
    g("v_pk_add_f32 v[26:27], v[26:27], v[42:43]")
    g("s_nop 1")
    g("v_permlane16_swap_b32 v24, v25")
    g("v_permlane16_swap_b32 v26, v27")
    g("s_nop 0")
    g("v_add_f32 v24, v24, v25")
    g("v_add_f32 v26, v26, v27")
    for c in ("row_ror:8", "row_ror:4", "row_ror:2"):
        g("s_nop 0")
        g(f"v_add_f32_dpp v24, v24, v24 {c} row_mask:0xf bank_mask:0xf")
        g(f"v_add_f32_dpp v26, v26, v26 {c} row_mask:0xf bank_mask:0xf")
    g("v_cndmask_b32 v24, v24, v26, s[68:69]")
    rnd(g, 24, 24)
    g("v_add_f32 v25, v24, v18")
    rnd(g, 25, 25)
    g("v_mul_f32 v26, s57, v25")
    g("v_exp_f32 v26, v26")
    g("s_nop 0")
    g("v_add_f32 v26, 1.0, v26")
    g("v_rcp_f32 v26, v26")
    g("s_nop 0")
    g("v_mul_f32 v26, v25, v26")
    rnd(g, 26, 26)
    g("s_nop 1")
    g("v_permlane32_swap_b32 v26, v27")
    g("s_mov_b32 exec_lo, 0x000f000f")
    g("s_mov_b32 exec_hi, 0")
    g("v_mul_f32 v24, v24, v27")
    rnd(g, 24, 24)
    g("v_add_f32 v24, v24, v17")
    g("v_cvt_pk_bf16_f32 v24, v24, v24")
    g(f"buffer_store_short v24, v16, s[{SRD_A}:{SRD_A+3}], s67 offen")
    g.stamp(8)
    g("s_cmp_eq_u32 s2, 0")
    g("s_cbranch_scc0 L_end")
    g(f"s_add_u32 s{S_E}, s{S_E}, 1")
    g(f"v_mov_b32 v24, s{S_E}")
    g("v_mov_b32 v25, 0")
    g("s_mov_b64 exec, 1")
    g(f"buffer_store_dword v24, v25, {W}, 0 offen")
    g.label("L_end")
    if opt.get("stamps"):
        g("s_waitcnt vmcnt(0)")
        g("s_memrealtime s[88:89]")
        g("s_waitcnt lgkmcnt(0)")
        g("s_mov_b64 exec, 1")
        g("s_mul_i32 s38, s2, 9")
        g("s_add_u32 s38, s38, s3")
        g("s_lshl_b32 s38, s38, 6")
        g(f"s_add_u32 s38, s38, {ST_WS}")
        for k in range(10):
            g(f"v_mov_b32 v{4+k}, s{70+2*k}")
        g("v_mov_b32 v14, s63")
        g("v_mov_b32 v15, 0")
        g("v_mov_b32 v1, 0")
        g(f"buffer_store_dwordx4 v[4:7], v1, {W}, s38 offen")
        g(f"buffer_store_dwordx4 v[8:11], v1, {W}, s38 offen offset:16")
        g(f"buffer_store_dwordx4 v[12:15], v1, {W}, s38 offen offset:32")
    g.label("L_exit")
    body = "\n".join(x for x in g.L if x.strip())
    hdr = open("cdna_kernels/" + NAME + ".s.ref").read().split("; Override launch")[0]
    VG = 128
    return f"""{hdr}; Override launch geometry by editing the next line (default: block=256,
; @launch grid=(256,1,1) block=(576,1,1) lds={LDS_BYTES}
.amdgcn_target "amdgcn-amd-amdhsa--gfx950"
.text
.globl {NAME}_kernel
.p2align 8
.type {NAME}_kernel,@function
{NAME}_kernel:
{body}
    s_endpgm
.section .rodata,"a"
.p2align 6
.amdhsa_kernel {NAME}_kernel
  .amdhsa_next_free_vgpr {VG}
  .amdhsa_next_free_sgpr 96
  .amdhsa_accum_offset {VG}
  .amdhsa_group_segment_fixed_size 0
  .amdhsa_kernarg_size 104
  .amdhsa_user_sgpr_count 2
  .amdhsa_user_sgpr_kernarg_segment_ptr 1
  .amdhsa_system_sgpr_workgroup_id_x 1
.end_amdhsa_kernel
"""

if __name__ == "__main__":
    out = sys.argv[1]
    opt = {}
    for a in sys.argv[2:]:
        k, v = a.split("=")
        try: v = int(v)
        except ValueError: pass
        opt[k] = v
    open(out, "w").write(gen(opt))
```

```python
import sys, json, struct

NAME = "recurrent_scan__sliding_block_cached__dense_activation_squared_relu__decode"

Q_WS   = 0x1000
XC_WS  = 0x41000
PRE_WS = 0x42000
H_WS   = 0x50000
O_WS   = 0x90000
P3_WS  = 0x140000
ST_WS  = 0x300000
WS_BYTES = 0x400000

L_K  = 0
L_V  = 32768
L_WQ = 65536
L_WO = 81920
L_W1 = 98304
L_W2 = 106496
L_XN = 114688
XN_STR = 1088
L_QL = L_XN + 4352
QL_STR = 320
L_OC = L_QL + 1280
OC_H = 528
OC_W = 2112
L_ML = L_OC + 8448
L_FL = L_ML + 128
LDS_BYTES = L_FL + 64

def f2u(x):
    return struct.unpack("<I", struct.pack("<f", x))[0]

class G:
    def __init__(self, opt):
        self.L = []
        self.opt = opt
        self.nst = 0
    def __call__(self, s):
        for line in s.strip().split("\n"):
            self.L.append("    " + line.strip())
    def label(self, n):
        self.L.append(n + ":")
    def stamp(self, k):
        if self.opt.get("stamps"):
            self(f"s_memrealtime s[{70+2*k}:{71+2*k}]")
    def srd(self, d, p, nbytes):
        self(f"s_mov_b32 s{d}, s{p}\ns_mov_b32 s{d+1}, s{p+1}\ns_mov_b32 s{d+2}, {hex(nbytes)}\ns_mov_b32 s{d+3}, 0x20000")

P_X, P_K, P_V, P_WQ, P_WO, P_BX, P_W1, P_B1, P_W2, P_B2, P_OUT, P_DBG, P_WS = 8, 10, 12, 14, 16, 18, 20, 22, 24, 26, 28, 30, 32
S_E, S_T, S_LO = 34, 35, 37
SRD_A, SRD_B, SRD_W, SRD_C = 40, 44, 48, 52
SPIN_MAX = 1 << 16

def tagcheck(g, regs, vT, tmp):
    ts = []
    i = 0
    k = 0
    while i + 1 < len(regs):
        g(f"v_bitop3_b32 v{tmp[k]}, v{regs[i]}, v{regs[i+1]}, v{vT} bitop3:0x7e")
        ts.append(tmp[k]); k += 1; i += 2
    assert i == len(regs)
    while len(ts) > 1:
        n = []
        i = 0
        while i < len(ts):
            if len(ts) - i >= 3:
                g(f"v_or3_b32 v{ts[i]}, v{ts[i]}, v{ts[i+1]}, v{ts[i+2]}"); n.append(ts[i]); i += 3
            elif len(ts) - i == 2:
                g(f"v_or_b32 v{ts[i]}, v{ts[i]}, v{ts[i+1]}"); n.append(ts[i]); i += 2
            else:
                n.append(ts[i]); i += 1
        ts = n
    g(f"v_and_b32 v{ts[0]}, 0x3ff, v{ts[0]}")
    g(f"v_cmp_ne_u32 vcc, 0, v{ts[0]}")

def rnd(g, d, s):
    g(f"v_cvt_pk_bf16_f32 v{d}, v{s}, v{s}")
    g(f"v_and_b32 v{d}, 0xffff0000, v{d}")

def wave_sum(g, v, sdst):
    for c in ("row_ror:8", "row_ror:4", "row_ror:2", "row_ror:1"):
        g("s_nop 1")
        g(f"v_add_f32_dpp v{v}, v{v}, v{v} {c} row_mask:0xf bank_mask:0xf")
    g("s_nop 1")
    g(f"v_add_f32_dpp v{v}, v{v}, v{v} row_bcast:15 row_mask:0xa bank_mask:0xf")
    g("s_nop 1")
    g(f"v_add_f32_dpp v{v}, v{v}, v{v} row_bcast:31 row_mask:0xc bank_mask:0xf")
    g("s_nop 0")
    g(f"v_readlane_b32 s{sdst}, v{v}, 63")

def tile_voff(g, d, t, rowstride):
    g(f"v_lshrrev_b32 v{t}, 4, v0")
    g(f"v_lshlrev_b32 v{t}, 1, v{t}")
    g(f"v_and_b32 v{d}, 7, v0")
    g(f"v_xor_b32 v{d}, v{d}, v{t}")
    g(f"v_lshlrev_b32 v{d}, 4, v{d}")
    g(f"v_lshrrev_b32 v{t}, 3, v0")
    g(f"v_mul_u32_u24 v{t}, {rowstride}, v{t}")
    g(f"v_add_u32 v{d}, v{d}, v{t}")

def tile_raddr(g, d, t):
    g(f"v_lshrrev_b32 v{t}, 3, v0")
    g(f"v_and_b32 v{t}, 3, v{t}")
    g(f"v_lshlrev_b32 v{t}, 5, v{t}")
    g(f"v_lshrrev_b32 v{d}, 2, v0")
    g(f"v_lshl_add_u32 v{t}, v{d}, 7, v{t}")
    g(f"v_and_b32 v{d}, 3, v0")
    g(f"v_lshl_add_u32 v{d}, v{d}, 3, v{t}")
    g(f"v_add_u32 v{d}, 0x10000, v{d}")
    for u in (1, 2, 3):
        g(f"v_xor_b32 v{d+u}, {32*u}, v{d}")

def tile_dma(g, n, voff, srd, ssoff, ldsbase, rowstride, flags):
    step = 8 * rowstride
    for i in range(n):
        if i % 4 == 0:
            g(f"s_mov_b32 m0, {ldsbase + i*1024}" if isinstance(ldsbase, int) else f"s_add_u32 m0, s{ldsbase[0]}, {ldsbase[1] + i*1024}")
        if i == 0:
            g("s_nop 0")
        elif i % 4 == 0:
            g(f"s_add_u32 s{ssoff}, s{ssoff}, {step + 3072}")
        else:
            g(f"s_add_u32 s{ssoff}, s{ssoff}, {step - 1024}")
        g(f"buffer_load_dwordx4 v{voff}, s[{srd}:{srd+3}], s{ssoff} offen offset:{(i%4)*1024} {flags} lds")

def gen(opt):
    g = G(opt)
    NT = opt.get("nt", "nt")
    XF = opt.get("xflags", "")
    SC = "sc1"
    B4 = opt.get("b4", 1)
    QX = opt.get("qx", 3)
    KPRE = 0
    g.stamp(0)
    g("s_cmp_ge_u32 s2, 256")
    g("s_cbranch_scc1 L_exit")
    g("s_load_dwordx16 s[8:23], s[0:1], 0")
    g("s_load_dwordx8 s[24:31], s[0:1], 64")
    g("s_load_dwordx2 s[32:33], s[0:1], 96")
    g("v_lshrrev_b32 v1, 6, v0")
    g("v_and_b32 v0, 63, v0")
    g("v_readfirstlane_b32 s3, v1")
    g("s_and_b32 s4, s2, 7")
    g("s_lshr_b32 s5, s2, 3")
    g(f"s_movk_i32 s{S_LO}, 0x3ff")
    g("s_movk_i32 s6, 0x10e")
    g("s_bitcmp1_b32 s6, s3")
    g("s_cbranch_scc0 L_notln")
    g("s_setprio 3")
    g("s_min_u32 s6, s3, 4")
    g("s_sub_u32 s6, s6, 1")
    g("v_lshlrev_b32 v2, 4, v0")
    g("s_lshl_b32 s38, s6, 10")
    g(f"s_mov_b32 s{SRD_C+2}, 4096")
    g(f"s_mov_b32 s{SRD_C+3}, 0x20000")
    g("s_waitcnt lgkmcnt(0)")
    g(f"s_mov_b32 s{SRD_C}, s{P_X}")
    g(f"s_mov_b32 s{SRD_C+1}, s{P_X+1}")
    g(f"buffer_load_dwordx4 v[4:7], v2, s[{SRD_C}:{SRD_C+3}], s38 offen {XF}")
    g("s_setprio 0")
    g("s_branch L_ln")
    g.label("L_touch")
    if opt.get("touch", 1):
        g("s_mov_b64 exec, 0")
        g("s_cmp_eq_u32 s3, 4")
        g("s_cbranch_scc1 L_chain0")
        g("s_cmp_eq_u32 s3, 5")
        g("s_cbranch_scc1 L_chain1")
        g("s_cmp_eq_u32 s3, 6")
        g("s_cbranch_scc1 L_chain2")
        g("s_branch L_chain3")
    else:
        g("s_branch L_att")
    g.label("L_notln")
    g("s_cmp_eq_u32 s3, 0")
    g("s_cbranch_scc0 L_touch")
    g("s_setprio 2")
    tile_voff(g, 2, 3, 8192)
    g("s_lshr_b32 s6, s5, 3")
    g("s_lshl_b32 s38, s6, 20")
    g("s_lshl_b32 s39, s4, 10")
    g("s_add_u32 s38, s38, s39")
    g("s_and_b32 s7, s5, 7")
    g("s_lshl_b32 s39, s7, 7")
    g("s_add_u32 s38, s38, s39")
    g(f"s_mov_b32 s{SRD_A+2}, {hex(512*4096*2)}")
    g(f"s_mov_b32 s{SRD_A+3}, 0x20000")
    g("s_waitcnt lgkmcnt(0)")
    g(f"s_mov_b32 s{SRD_A}, s{P_WQ}")
    g(f"s_mov_b32 s{SRD_A+1}, s{P_WQ+1}")
    tile_dma(g, 16, 2, SRD_A, 38, L_WQ, 8192, NT)
    g(f"s_load_dword s{S_E}, s[{P_WS}:{P_WS+1}], 0")
    g.stamp(1)
    g.srd(SRD_W, P_WS, WS_BYTES)
    tile_raddr(g, 4, 3)
    g("v_and_b32 v8, 3, v0")
    g(f"v_mul_u32_u24 v8, {XN_STR}, v8")
    g("v_lshrrev_b32 v9, 4, v0")
    g("v_lshl_add_u32 v8, v9, 4, v8")
    g("s_lshl_b32 s39, s6, 8")
    g(f"s_add_u32 s39, s39, {L_XN}")
    g("v_add_u32 v8, s39, v8")
    g("v_and_b32 v10, 3, v0")
    g("v_lshlrev_b32 v10, 11, v10")
    g("v_lshl_add_u32 v10, v9, 4, v10")
    g("s_lshl_b32 s38, s4, 15")
    g("s_lshl_b32 s39, s6, 13")
    g("s_add_u32 s38, s38, s39")
    g("s_lshl_b32 s39, s7, 8")
    g("s_add_u32 s38, s38, s39")
    g(f"s_add_u32 s38, s38, {Q_WS}")
    g("s_waitcnt lgkmcnt(0)")
    g(f"s_add_u32 s{S_T}, s{S_E}, 1")
    g(f"s_and_b32 s{S_T}, s{S_T}, s{S_LO}")
    g(f"v_mov_b32 v11, s{S_T}")
    g("s_barrier")
    for t in range(4):
        g(f"ds_read_b128 v[{12+4*t}:{15+4*t}], v8 offset:{64*t}")
    for t in range(4):
        g(f"s_waitcnt vmcnt({12-4*t})")
        if t == 3: g.stamp(4)
        for u in range(4):
            g(f"ds_read_b64_tr_b16 v[{28+4*u}:{29+4*u}], v{4+u} offset:{L_WQ - 65536 + t*4096}")
            g(f"ds_read_b64_tr_b16 v[{30+4*u}:{31+4*u}], v{4+u} offset:{L_WQ - 65536 + t*4096 + 2048}")
        for u in range(4):
            g(f"s_waitcnt lgkmcnt({6-2*u})")
            c = "0" if t == 0 else f"v[{44+4*u}:{47+4*u}]"
            g(f"v_mfma_f32_16x16x32_bf16 v[{44+4*u}:{47+4*u}], v[{28+4*u}:{31+4*u}], v[{12+4*t}:{15+4*t}], {c}")
    g("s_mov_b32 exec_lo, 0x000f000f")
    g("s_mov_b32 exec_hi, 0x000f000f")
    g("s_nop 2")
    for u in range(4):
        for r in range(4):
            g(f"v_bfi_b32 v{44+4*u+r}, s{S_LO}, v11, v{44+4*u+r}")
        g(f"buffer_store_dwordx4 v[{44+4*u}:{47+4*u}], v10, s[{SRD_W}:{SRD_W+3}], s38 offen offset:{64*u} {SC}")
    g("s_mov_b64 exec, -1")
    g.stamp(2)
    g("s_setprio 0")
    g("s_branch L_wo_pre")
    g.label("L_att")
    g("s_mov_b64 exec, -1")
    g("s_sub_u32 s3, s3, 4")
    g("v_lshrrev_b32 v8, 4, v0")
    g("v_and_b32 v9, 15, v0")
    g("v_xor_b32 v2, v9, v8")
    g("v_lshlrev_b32 v2, 4, v2")
    g("v_lshl_add_u32 v2, v8, 8, v2")
    ROT = opt.get("rot", 1)
    if ROT:
        g("s_lshl_b32 s64, s3, 1")
        g("s_add_u32 s64, s64, s5")
        g("s_add_u32 s64, s64, s4")
        g("s_and_b32 s64, s64, 7")
    else:
        g("s_mov_b32 s64, 0")
    g("s_lshl_b32 s65, s64, 6")
    for i in (1, 2, 3, 0):
        g(f"s_add_u32 s66, s65, {64*i}")
        g("s_and_b32 s66, s66, 0xc0")
        g(f"v_xor_b32 v{2+i}, s66, v2")
    g("s_lshr_b32 s6, s5, 3")
    g("s_and_b32 s7, s5, 7")
    g("s_lshl_b32 s38, s6, 3")
    g("s_add_u32 s38, s38, s4")
    g("s_lshl_b32 s38, s38, 20")
    g("s_lshl_b32 s39, s7, 15")
    g("s_add_u32 s38, s38, s39")
    g("s_lshl_b32 s56, s3, 13")
    g("s_add_u32 s38, s38, s56")
    g(f"s_add_u32 s38, s38, {768*1024}")
    g("s_waitcnt lgkmcnt(0)")
    g(f"s_load_dword s{S_E}, s[{P_WS}:{P_WS+1}], 0")
    g.srd(SRD_A, P_K, 4*8*4096*128*2)
    g.stamp(1)
    g.srd(SRD_B, P_V, 4*8*4096*128*2)
    g.srd(SRD_W, P_WS, WS_BYTES)
    g("v_lshlrev_b32 v6, 1, v8")
    g("v_xor_b32 v6, v9, v6")
    g("v_lshlrev_b32 v6, 4, v6")
    g("v_lshl_add_u32 v6, v8, 8, v6")
    g("s_lshl_b32 s66, s64, 7")
    g("s_and_b32 s66, s66, 0x80")
    g("v_xor_b32 v6, s66, v6")
    g("v_xor_b32 v7, 128, v6")
    g("s_lshl_b32 s64, s64, 10")
    g("v_xor_b32 v10, v8, v9")
    g("v_lshlrev_b32 v10, 4, v10")
    g("v_lshl_add_u32 v10, v9, 8, v10")
    g("v_add_u32 v10, s56, v10")
    for t in (1, 2, 3):
        g(f"v_xor_b32 v{10+t}, {64*t}, v10")
    g("v_lshrrev_b32 v22, 2, v0")
    g("v_and_b32 v23, 7, v22")
    g("v_lshlrev_b32 v23, 5, v23")
    g("v_lshl_add_u32 v23, v22, 8, v23")
    g("v_and_b32 v14, 3, v0")
    g("v_lshl_add_u32 v14, v14, 3, v23")
    g(f"s_add_u32 s57, s56, {L_V}")
    g("v_add_u32 v14, s57, v14")
    for u in range(1, 8):
        g(f"v_xor_b32 v{14+u}, {32*u}, v14")
    g("v_lshrrev_b32 v23, 5, v0")
    g("v_and_b32 v24, 31, v0")
    g("v_lshlrev_b32 v22, 14, v23")
    g("v_lshl_add_u32 v22, v24, 4, v22")
    g("s_lshl_b32 s58, s4, 15")
    g("s_lshl_b32 s59, s6, 11")
    g("s_add_u32 s58, s58, s59")
    g("s_lshl_b32 s59, s3, 9")
    g("s_add_u32 s58, s58, s59")
    g(f"s_add_u32 s58, s58, {Q_WS}")
    g("s_add_u32 s59, s58, 8192")
    g("v_lshlrev_b32 v23, 2, v23")
    g("v_lshl_add_u32 v23, v24, 3, v23")
    g(f"s_mul_i32 s60, s3, {QL_STR}")
    g(f"s_add_u32 s60, s60, {L_QL}")
    g("v_add_u32 v23, s60, v23")
    g("v_and_b32 v25, 3, v0")
    g(f"v_mul_u32_u24 v24, {QL_STR}, v25")
    g("v_lshl_add_u32 v24, v8, 4, v24")
    g(f"v_add_u32 v24, {L_QL}, v24")
    g(f"v_mul_u32_u24 v26, {OC_H}, v25")
    g("v_lshl_add_u32 v26, v8, 4, v26")
    g(f"s_mul_i32 s60, s3, {OC_W}")
    g(f"s_add_u32 s60, s60, {L_OC}")
    g("v_add_u32 v26, s60, v26")
    g("v_lshlrev_b32 v27, 5, v25")
    g("s_lshl_b32 s60, s3, 2")
    g(f"s_add_u32 s60, s60, {L_ML}")
    g("v_add_u32 v27, s60, v27")
    g(f"s_mul_i32 s60, s3, {OC_H}")
    g(f"s_add_u32 s60, s60, {L_OC}")
    g("v_lshlrev_b32 v30, 3, v0")
    g("v_add_u32 v28, s60, v30")
    g("s_lshl_b32 s60, s3, 5")
    g(f"s_add_u32 s60, s60, {L_ML}")
    g("v_mov_b32 v29, s60")
    g("s_lshl_b32 s61, s4, 2")
    g("s_add_u32 s61, s61, s3")
    g("s_lshl_b32 s61, s61, 5")
    g("s_add_u32 s61, s61, s5")
    g("s_mul_i32 s61, s61, 640")
    g(f"s_add_u32 s61, s61, {O_WS}")
    for r in range(4):
        g(f"v_mov_b32 v{32+r}, 0x3f803f80")
    g(f"s_mov_b32 s62, {hex(f2u(1.4426950408889634 / (128 ** 0.5)))}")
    g("s_waitcnt lgkmcnt(0)")
    g(f"s_add_u32 s{S_T}, s{S_E}, 1")
    g(f"s_and_b32 s{S_T}, s{S_T}, s{S_LO}")
    g(f"v_mov_b32 v31, s{S_T}")
    g("s_barrier")
    g.stamp(2)
    THR = opt.get("thr", 6)
    for i in range(16):
        g(f"s_add_u32 m0, s64, s{56 if i < 8 else 57}")
        g("s_add_u32 s39, s64, s38")
        g("s_add_u32 s64, s64, 1024")
        g("s_and_b32 s64, s64, 0x1c00")
        if THR and i >= THR: g(f"s_waitcnt vmcnt({THR-1})")
        if i < 8:
            g(f"buffer_load_dwordx4 v{2+(i&3)}, s[{SRD_A}:{SRD_A+3}], s39 offen {NT} lds")
        else:
            g(f"buffer_load_dwordx4 v{6+(i&1)}, s[{SRD_B}:{SRD_B+3}], s39 offen {NT} lds")
    g.stamp(3)
    g(f"s_waitcnt vmcnt({QX})")
    g(f"buffer_load_dwordx4 v[36:39], v22, s[{SRD_W}:{SRD_W+3}], s58 offen {SC}")
    g(f"buffer_load_dwordx4 v[40:43], v22, s[{SRD_W}:{SRD_W+3}], s59 offen {SC}")
    g("s_barrier")
    g.stamp(4)
    for tau in range(2):
        for t in range(4):
            r = 48 + 16*tau + 4*t
            g(f"ds_read_b128 v[{r}:{r+3}], v{10+t} offset:{4096*tau}")
    g("s_waitcnt vmcnt(2)")
    g.stamp(5)
    for u in range(8):
        g(f"ds_read_b64_tr_b16 v[{80+4*u}:{81+4*u}], v{14+u}")
        g(f"ds_read_b64_tr_b16 v[{82+4*u}:{83+4*u}], v{14+u} offset:4096")
    g("s_mov_b32 s63, 0")
    g.label("L_qchk")
    g("s_waitcnt vmcnt(0)")
    tagcheck(g, list(range(36, 44)), 31, [44, 45, 46, 47])
    g("s_cbranch_vccz L_qok")
    g("s_add_u32 s63, s63, 1")
    g(f"s_cmp_gt_u32 s63, {SPIN_MAX}")
    g("s_cbranch_scc1 L_qok")
    g(f"buffer_load_dwordx4 v[36:39], v22, s[{SRD_W}:{SRD_W+3}], s58 offen {SC}")
    g(f"buffer_load_dwordx4 v[40:43], v22, s[{SRD_W}:{SRD_W+3}], s59 offen {SC}")
    g("s_branch L_qchk")
    g.label("L_qok")
    g.stamp(6)
    g("v_pk_add_f32 v[36:37], v[36:37], v[40:41]")
    g("v_pk_add_f32 v[38:39], v[38:39], v[42:43]")
    g("s_nop 1")
    g("v_permlane32_swap_b32 v36, v38")
    g("v_permlane32_swap_b32 v37, v39")
    g("s_nop 0")
    g("v_pk_add_f32 v[36:37], v[36:37], v[38:39]")
    g("v_cvt_pk_bf16_f32 v36, v36, v37")
    g("ds_write_b32 v23, v36")
    g("s_waitcnt lgkmcnt(0)")
    g("s_barrier")
    for t in range(4):
        g(f"ds_read_b128 v[{112+4*t}:{115+4*t}], v24 offset:{64*t}")
    for t in range(4):
        g(f"s_waitcnt lgkmcnt({3-t})")
        for tau in range(2):
            r = 48 + 16*tau + 4*t
            c = "0" if t == 0 else f"v[{36+4*tau}:{39+4*tau}]"
            g(f"v_mfma_f32_16x16x32_bf16 v[{36+4*tau}:{39+4*tau}], v[{r}:{r+3}], v[{112+4*t}:{115+4*t}], {c}")
    g("s_nop 6")
    g("v_max3_f32 v44, v36, v37, v38")
    g("v_max3_f32 v45, v39, v40, v41")
    g("v_max3_f32 v44, v44, v42, v43")
    g("v_max_f32 v44, v44, v45")
    g("v_mov_b32 v45, v44")
    g("s_nop 1")
    g("v_permlane32_swap_b32 v44, v45")
    g("s_nop 0")
    g("v_max_f32 v44, v44, v45")
    g("v_mov_b32 v45, v44")
    g("s_nop 1")
    g("v_permlane16_swap_b32 v44, v45")
    g("s_nop 0")
    g("v_max_f32 v44, v44, v45")
    g("v_mul_f32 v44, s62, v44")
    for i in range(8):
        g(f"v_fma_f32 v{36+i}, v{36+i}, s62, -v44")
    for i in range(8):
        g(f"v_exp_f32 v{36+i}, v{36+i}")
    for i in range(4):
        g(f"v_cvt_pk_bf16_f32 v{36+i}, v{36+2*i}, v{37+2*i}")
    g("s_nop 1")
    for u in range(8):
        g(f"v_mfma_f32_16x16x32_bf16 v[{48+4*u}:{51+4*u}], v[{80+4*u}:{83+4*u}], v[36:39], 0")
    g("v_mfma_f32_16x16x32_bf16 v[40:43], v[32:35], v[36:39], 0")
    g("s_mov_b32 exec_lo, 0x000f000f")
    g("s_mov_b32 exec_hi, 0x000f000f")
    for u in range(8):
        g(f"ds_write_b128 v26, v[{48+4*u}:{51+4*u}] offset:{64*u}")
    g("ds_write2_b32 v27, v44, v40 offset0:0 offset1:4")
    g("s_mov_b64 exec, -1")
    g("s_waitcnt lgkmcnt(0)")
    g("s_barrier")
    g.stamp(7)
    g("ds_read_b128 v[36:39], v29")
    g("ds_read_b128 v[40:43], v29 offset:16")
    for w in range(4):
        g(f"ds_read_b64 v[{48+2*w}:{49+2*w}], v28 offset:{OC_W*w}")
    g("s_waitcnt lgkmcnt(5)")
    g("v_max3_f32 v44, v36, v37, v38")
    g("v_max_f32 v44, v44, v39")
    g(f"v_bfi_b32 v44, s{S_LO}, v31, v44")
    for w in range(4):
        g(f"v_sub_f32 v{36+w}, v{36+w}, v44")
    for w in range(4):
        g(f"v_exp_f32 v{36+w}, v{36+w}")
    g("s_waitcnt lgkmcnt(0)")
    g("v_mul_f32 v56, v36, v48")
    g("v_mul_f32 v57, v36, v49")
    for w in range(1, 4):
        g(f"v_fmac_f32 v56, v{36+w}, v{48+2*w}")
        g(f"v_fmac_f32 v57, v{36+w}, v{49+2*w}")
    g(f"v_bfi_b32 v56, s{S_LO}, v31, v56")
    g(f"v_bfi_b32 v57, s{S_LO}, v31, v57")
    g(f"buffer_store_dwordx2 v[56:57], v30, s[{SRD_W}:{SRD_W+3}], s61 offen {SC}")
    g("v_mul_f32 v45, v36, v40")
    for w in range(1, 4):
        g(f"v_fmac_f32 v45, v{36+w}, v{40+w}")
    g("v_mov_b32 v46, v31")
    g("v_mov_b32 v47, v31")
    g(f"v_bfi_b32 v45, s{S_LO}, v31, v45")
    g("s_mov_b64 exec, 1")
    g(f"buffer_store_dwordx4 v[44:47], v30, s[{SRD_W}:{SRD_W+3}], s61 offen offset:512 {SC}")
    g.stamp(8)
    if opt.get("stamps"):
        g("s_add_u32 s3, s3, 4")
    g("s_branch L_end")
    g.label("L_ln")
    g(f"s_load_dword s{S_E}, s[{P_WS}:{P_WS+1}], 0")
    if opt.get("cpf", 0):
        g("s_cmp_eq_u32 s3, 8")
        g("s_cbranch_scc0 L_nopf")
        g("s_getpc_b64 s[64:65]")
        g.label("L_pc")
        g(f"s_sub_u32 s64, s64, L_pc-{NAME}_kernel")
        g("s_subb_u32 s65, s65, 0")
        g("v_lshlrev_b32 v3, 6, v0")
        g("global_load_dword v126, v3, s[64:65]")
        g("v_add_u32 v3, 4096, v3")
        g("global_load_dword v127, v3, s[64:65]")
        g("s_waitcnt vmcnt(2)")
        g("s_branch L_pfd")
        g.label("L_nopf")
        g("s_waitcnt vmcnt(0)")
        g.label("L_pfd")
    else:
        g("s_waitcnt vmcnt(0)")
    g.stamp(1)
    g.srd(SRD_W, P_WS, WS_BYTES)
    for i in range(4):
        g(f"v_lshlrev_b32 v{12+2*i}, 16, v{4+i}")
        g(f"v_and_b32 v{13+2*i}, 0xffff0000, v{4+i}")
    g("v_pk_add_f32 v[20:21], v[12:13], v[14:15]")
    g("v_pk_add_f32 v[22:23], v[16:17], v[18:19]")
    g("v_pk_add_f32 v[20:21], v[20:21], v[22:23]")
    g("v_add_f32 v20, v20, v21")
    wave_sum(g, 20, 38)
    g(f"v_mov_b32 v21, {hex(f2u(1.0/512))}")
    g("s_nop 0")
    g("v_mul_f32 v20, s38, v21")
    for i in range(8):
        g(f"v_sub_f32 v{24+i}, v{12+i}, v20")
    g("v_mul_f32 v22, v24, v24")
    g("v_mul_f32 v23, v25, v25")
    for i in range(1, 4):
        g(f"v_fmac_f32 v22, v{24+2*i}, v{24+2*i}")
        g(f"v_fmac_f32 v23, v{25+2*i}, v{25+2*i}")
    g("v_add_f32 v22, v22, v23")
    wave_sum(g, 22, 38)
    rnd(g, 20, 20)
    g("v_mul_f32 v22, s38, v21")
    rnd(g, 22, 22)
    g(f"v_add_f32 v22, {hex(f2u(1e-5))}, v22")
    rnd(g, 22, 22)
    g("v_sqrt_f32 v22, v22")
    g("s_nop 0")
    rnd(g, 22, 22)
    g("v_rcp_f32 v22, v22")
    for i in range(8):
        g(f"v_sub_f32 v{12+i}, v{12+i}, v20")
    for i in range(4):
        g(f"v_cvt_pk_bf16_f32 v{4+i}, v{12+2*i}, v{13+2*i}")
    for i in range(4):
        g(f"v_lshlrev_b32 v{12+2*i}, 16, v{4+i}")
        g(f"v_and_b32 v{13+2*i}, 0xffff0000, v{4+i}")
    for i in range(8):
        g(f"v_mul_f32 v{12+i}, v{12+i}, v22")
    for i in range(4):
        g(f"v_cvt_pk_bf16_f32 v{4+i}, v{12+2*i}, v{13+2*i}")
    g("v_lshrrev_b32 v12, 2, v0")
    g("v_lshlrev_b32 v12, 6, v12")
    g("v_and_b32 v13, 1, v0")
    g("v_lshl_add_u32 v12, v13, 5, v12")
    g("v_and_b32 v13, 2, v0")
    g("v_lshl_add_u32 v12, v13, 2, v12")
    g(f"s_mul_i32 s38, s6, {XN_STR}")
    g(f"s_add_u32 s38, s38, {L_XN}")
    g("v_add_u32 v12, s38, v12")
    g("ds_write2_b64 v12, v[4:5], v[6:7] offset0:0 offset1:2")
    g("s_waitcnt lgkmcnt(0)")
    g(f"s_add_u32 s{S_T}, s{S_E}, 1")
    g(f"s_and_b32 s{S_T}, s{S_T}, s{S_LO}")
    g(f"v_mov_b32 v11, s{S_T}")
    g("s_barrier")
    g.stamp(2)
    tile_raddr(g, 4, 3)
    g("s_cmp_eq_u32 s3, 8")
    g("s_cbranch_scc1 L_w8")
    g("s_cmp_eq_u32 s3, 2")
    g("s_cbranch_scc0 L_wo_pre")
    g("s_getreg_b32 s57, hwreg(HW_REG_XCC_ID, 0, 4)")
    g("s_lshl_b32 s57, s57, 10")
    g(f"s_or_b32 s57, s57, s{S_T}")
    for r in range(4):
        g(f"v_mov_b32 v{12+r}, s57")
    g("s_lshl_b32 s58, s4, 9")
    g(f"s_add_u32 s58, s58, {XC_WS}")
    g("s_lshl_b32 s59, s5, 4")
    g("s_add_u32 s59, s59, s58")
    g("v_mov_b32 v16, 0")
    g("s_mov_b64 exec, 1")
    g(f"buffer_store_dwordx4 v[12:15], v16, s[{SRD_W}:{SRD_W+3}], s59 offen {SC}")
    g("s_mov_b64 exec, -1")
    g("v_and_b32 v16, 31, v0")
    g("v_lshlrev_b32 v16, 4, v16")
    g("v_mov_b32 v17, s57")
    g("s_mov_b32 s63, 0")
    g.label("L_xc")
    g(f"s_sleep {opt.get('sx', 24)}")
    g(f"buffer_load_dwordx4 v[12:15], v16, s[{SRD_W}:{SRD_W+3}], s58 offen {SC}")
    g("s_add_u32 s63, s63, 1")
    g(f"s_cmp_gt_u32 s63, {SPIN_MAX}")
    g("s_cbranch_scc1 L_xcok")
    g("s_waitcnt vmcnt(0)")
    g("v_bitop3_b32 v18, v12, v13, v17 bitop3:0x7e")
    g("v_bitop3_b32 v19, v14, v15, v17 bitop3:0x7e")
    g("v_or_b32 v18, v18, v19")
    g("v_and_b32 v19, 0x3ff, v18")
    g("v_cmp_ne_u32 vcc, 0, v19")
    g("s_cbranch_vccnz L_xc")
    g.label("L_xcok")
    g("v_cmp_ne_u32 vcc, 0, v18")
    g("s_cmp_lg_u64 vcc, 0")
    g("s_cselect_b32 s59, 1, 0")
    if opt.get("force_remote"):
        g("s_mov_b32 s59, 1")
    g("v_mov_b32 v18, s59")
    g(f"v_mov_b32 v19, {L_FL}")
    g("ds_write_b32 v19, v18")
    g("s_waitcnt lgkmcnt(0)")
    g.stamp(4)
    g.label("L_wo_pre")
    g.srd(SRD_A, P_WO, 4096*512*2)
    tile_voff(g, 2, 3, 1024)
    g("s_lshl_b32 s38, s5, 17")
    g("s_lshl_b32 s39, s3, 15")
    g("s_add_u32 s38, s38, s39")
    g("s_lshl_b32 s39, s4, 7")
    g("s_add_u32 s38, s38, s39")
    g("s_lshl_b32 s56, s3, 12")
    g("v_and_b32 v9, 3, v0")
    g("v_and_b32 v10, 12, v0")
    g("v_lshl_add_u32 v9, v10, 1, v9")
    g("v_mul_u32_u24 v9, 640, v9")
    g("v_lshrrev_b32 v10, 4, v0")
    g("v_lshl_add_u32 v8, v10, 4, v9")
    g("s_mul_i32 s60, s5, 20480")
    g(f"s_add_u32 s60, s60, {O_WS + 512}")
    g("s_lshl_b32 s61, s3, 7")
    g("s_add_u32 s61, s61, s60")
    g("s_sub_u32 s61, s61, 512")
    g("v_lshrrev_b32 v10, 1, v0")
    g("v_mul_u32_u24 v10, 5120, v10")
    g("v_and_b32 v3, 1, v0")
    g("v_lshl_add_u32 v10, v3, 4, v10")
    g("s_mul_i32 s62, s4, 163840")
    g("s_lshl_b32 s39, s5, 2")
    g("s_add_u32 s39, s39, s3")
    g("s_lshl_b32 s39, s39, 5")
    g("s_add_u32 s62, s62, s39")
    g(f"s_add_u32 s62, s62, {P3_WS}")
    g("s_cmp_eq_u32 s3, 1")
    g("s_cbranch_scc0 L_wo_b2")
    g("s_cmp_lt_u32 s5, 28")
    g("s_cbranch_scc0 L_wo_b2")
    g.srd(SRD_B, P_W1, 512*1792*2)
    tile_voff(g, 12, 3, 3584)
    g(f"s_mul_i32 s57, s4, {64*3584}")
    g("s_lshl_b32 s39, s5, 7")
    g("s_add_u32 s57, s57, s39")
    g("v_and_b32 v13, 3, v0")
    g(f"v_mul_u32_u24 v14, {XN_STR}, v13")
    g("v_lshrrev_b32 v3, 4, v0")
    g("v_lshl_add_u32 v14, v3, 4, v14")
    g("s_lshl_b32 s39, s4, 7")
    g(f"s_add_u32 s39, s39, {L_XN}")
    g("v_add_u32 v14, s39, v14")
    g("ds_read_b128 v[16:19], v14")
    g("ds_read_b128 v[20:23], v14 offset:64")
    g("v_mul_u32_u24 v13, 7168, v13")
    g("v_lshl_add_u32 v13, v3, 4, v13")
    g("s_mul_i32 s58, s4, 28672")
    g("s_lshl_b32 s39, s5, 8")
    g("s_add_u32 s58, s58, s39")
    g(f"s_add_u32 s58, s58, {H_WS}")
    g("s_setprio 2")
    g("s_barrier")
    tile_dma(g, 8, 12, SRD_B, 57, L_W1, 3584, NT)
    g("s_setprio 0")
    tile_dma(g, 4, 2, SRD_A, 38, (56, L_WO), 1024, NT)
    g.stamp(3)
    g("s_barrier")
    g("s_barrier")
    g("s_waitcnt vmcnt(4)")
    g.stamp(4)
    for t in range(2):
        for u in range(4):
            r = 24 + 16*t + 4*u
            g(f"ds_read_b64_tr_b16 v[{r}:{r+1}], v{4+u} offset:{L_W1 - 65536 + t*4096}")
            g(f"ds_read_b64_tr_b16 v[{r+2}:{r+3}], v{4+u} offset:{L_W1 - 65536 + t*4096 + 2048}")
    for t in range(2):
        for u in range(4):
            r = 24 + 16*t + 4*u
            g(f"s_waitcnt lgkmcnt({14 - 8*t - 2*u})")
            c = "0" if t == 0 else f"v[{56+4*u}:{59+4*u}]"
            g(f"v_mfma_f32_16x16x32_bf16 v[{56+4*u}:{59+4*u}], v[{r}:{r+3}], v[{16+4*t}:{19+4*t}], {c}")
    g("s_mov_b32 exec_lo, 0x000f000f")
    g("s_mov_b32 exec_hi, 0x000f000f")
    g("s_nop 2")
    for u in range(4):
        for r in range(4):
            g(f"v_bfi_b32 v{56+4*u+r}, s{S_LO}, v11, v{56+4*u+r}")
        g(f"buffer_store_dwordx4 v[{56+4*u}:{59+4*u}], v13, s[{SRD_W}:{SRD_W+3}], s58 offen offset:{64*u} {SC}")
    g("s_mov_b64 exec, -1")
    g.stamp(1)
    g("s_waitcnt vmcnt(4)")
    g("s_branch L_wo_go")
    g.label("L_wo_b2")
    g("s_barrier")
    tile_dma(g, 4, 2, SRD_A, 38, (56, L_WO), 1024, NT)
    g.stamp(3)
    g("s_barrier")
    g("s_cmp_eq_u32 s3, 3")
    g("s_cbranch_scc0 L_wo_b3")
    g("s_lshl_b32 s57, s4, 5")
    g("s_add_u32 s57, s57, s5")
    g("s_lshl_b32 s57, s57, 7")
    g(f"s_add_u32 s57, s57, {PRE_WS}")
    g(f"s_add_u32 s58, s{S_E}, 1")
    g("v_mov_b32 v12, s58")
    g("v_mov_b32 v13, 0")
    g("s_mov_b64 exec, 1")
    g(f"buffer_store_dword v12, v13, s[{SRD_W}:{SRD_W+3}], s57 offen {SC}")
    g("s_mov_b64 exec, -1")
    g.label("L_wo_b3")
    g("s_barrier")
    g("s_waitcnt vmcnt(0)")
    g.label("L_wo_go")
    g.stamp(6)
    g(f"s_add_u32 s56, s56, {L_WO - 65536}")
    for u in range(4):
        g(f"v_add_u32 v{4+u}, s56, v{4+u}")
    g(f"v_mov_b32 v12, {L_FL}")
    g("ds_read_b32 v12, v12")
    for u in range(4):
        g(f"ds_read_b64_tr_b16 v[{16+4*u}:{17+4*u}], v{4+u}")
        g(f"ds_read_b64_tr_b16 v[{18+4*u}:{19+4*u}], v{4+u} offset:2048")
    g("s_mov_b32 s63, 0")
    g("s_waitcnt lgkmcnt(0)")
    g("v_readfirstlane_b32 s59, v12")
    if opt.get("pre", 1):
        g("v_and_b32 v12, 31, v0")
        g("v_lshlrev_b32 v12, 7, v12")
        g("s_lshr_b32 s57, s5, 2")
        g("s_lshl_b32 s57, s57, 12")
        g(f"s_add_u32 s57, s57, {PRE_WS}")
        g(f"s_add_u32 s58, s{S_E}, 1")
        g.label("L_opre")
        g(f"buffer_load_dword v13, v12, s[{SRD_W}:{SRD_W+3}], s57 offen {SC}")
        g("s_add_u32 s63, s63, 0x100")
        g(f"s_cmp_gt_u32 s63, {SPIN_MAX*256}")
        g("s_cbranch_scc1 L_opreok")
        g("s_waitcnt vmcnt(0)")
        g("v_cmp_ne_u32 vcc, s58, v13")
        g("s_cbranch_vccz L_opreok")
        g(f"s_sleep {opt.get('sp', 1)}")
        g("s_branch L_opre")
        g.label("L_opreok")
        g.stamp(5)
    if opt.get("d2", 0):
        g(f"s_sleep {opt['d2']}")
    g.label("L_o")
    W = f"s[{SRD_W}:{SRD_W+3}]"
    g(f"buffer_load_dwordx4 v[32:35], v9, {W}, s60 offen {SC}")
    g(f"buffer_load_dwordx4 v[36:39], v9, {W}, s60 offen offset:2560 {SC}")
    g(f"buffer_load_dwordx4 v[40:43], v8, {W}, s61 offen {SC}")
    g(f"buffer_load_dwordx4 v[44:47], v8, {W}, s61 offen offset:64 {SC}")
    g(f"buffer_load_dwordx4 v[48:51], v8, {W}, s61 offen offset:2560 {SC}")
    g(f"buffer_load_dwordx4 v[52:55], v8, {W}, s61 offen offset:2624 {SC}")
    g("s_add_u32 s63, s63, 1")
    g(f"s_cmp_gt_u32 s63, {SPIN_MAX*257}")
    g("s_cbranch_scc1 L_ook")
    g("s_waitcnt vmcnt(0)")
    tagcheck(g, list(range(32, 56)), 11, list(range(56, 68)))
    if opt.get("so", 0):
        g("s_cbranch_vccz L_ook")
        g(f"s_sleep {opt['so']}")
        g("s_branch L_o")
    else:
        g("s_cbranch_vccnz L_o")
    g.label("L_ook")
    g.stamp(7)
    g("v_max_f32 v56, v32, v36")
    g("s_nop 1")
    g("v_max_f32_dpp v56, v56, v56 quad_perm:[1,0,3,2] row_mask:0xf bank_mask:0xf")
    g("s_nop 1")
    g("v_max_f32_dpp v56, v56, v56 quad_perm:[2,3,0,1] row_mask:0xf bank_mask:0xf")
    g("v_sub_f32 v32, v32, v56")
    g("v_sub_f32 v36, v36, v56")
    g("v_exp_f32 v32, v32")
    g("v_exp_f32 v36, v36")
    g("s_nop 0")
    g("v_mul_f32 v57, v32, v33")
    g("v_fmac_f32 v57, v36, v37")
    g("s_nop 1")
    g("v_add_f32_dpp v57, v57, v57 quad_perm:[1,0,3,2] row_mask:0xf bank_mask:0xf")
    g("s_nop 1")
    g("v_add_f32_dpp v57, v57, v57 quad_perm:[2,3,0,1] row_mask:0xf bank_mask:0xf")
    g("v_rcp_f32 v57, v57")
    g("s_nop 0")
    g("v_mul_f32 v32, v32, v57")
    g("v_mul_f32 v36, v36, v57")
    for i in range(8):
        g(f"v_mul_f32 v{40+i}, v32, v{40+i}")
    for i in range(8):
        g(f"v_fmac_f32 v{40+i}, v36, v{48+i}")
    for i in range(4):
        g(f"v_cvt_pk_bf16_f32 v{40+i}, v{40+2*i}, v{41+2*i}")
    g("s_nop 1")
    for u in range(4):
        g(f"v_mfma_f32_16x16x32_bf16 v[{48+4*u}:{51+4*u}], v[40:43], v[{16+4*u}:{19+4*u}], 0")
    g("s_cmp_eq_u32 s59, 0")
    g("s_nop 3")
    for u in range(4):
        g(f"v_pk_add_f32 v[{48+4*u}:{49+4*u}], v[{48+4*u}:{49+4*u}], v[{50+4*u}:{51+4*u}]")
    for u in range(4):
        g(f"v_add_f32 v{32+u}, v{48+4*u}, v{49+4*u}")
    for u in range(4):
        g(f"v_bfi_b32 v{32+u}, s{S_LO}, v11, v{32+u}")
    g("s_cbranch_scc0 L_wo_rem")
    g(f"buffer_store_dwordx4 v[32:35], v10, {W}, s62 offen")
    g.stamp(8)
    if B4: g("s_barrier")
    g("s_branch L_end")
    g.label("L_wo_rem")
    g(f"buffer_store_dwordx4 v[32:35], v10, {W}, s62 offen {SC}")
    g.stamp(8)
    if B4: g("s_barrier")
    g("s_branch L_end")
    g.label("L_w8")
    g.srd(SRD_A, P_W2, 1792*512*2)
    g.srd(SRD_B, P_B1, 1792*2)
    tile_voff(g, 2, 3, 1024)
    g("s_lshl_b32 s38, s5, 16")
    g("s_lshl_b32 s39, s4, 7")
    g("s_add_u32 s38, s38, s39")
    g("v_lshrrev_b32 v12, 4, v0")
    g("v_bfe_u32 v13, v0, 1, 1")
    g("v_bfe_u32 v14, v0, 2, 2")
    g("v_and_b32 v15, 1, v0")
    g("v_lshlrev_b32 v8, 6, v13")
    g("v_lshl_add_u32 v8, v12, 3, v8")
    g("s_lshl_b32 s57, s5, 7")
    g("v_lshl_add_u32 v9, v15, 2, v14")
    g("v_mul_u32_u24 v9, 7168, v9")
    g("v_lshl_add_u32 v9, v8, 1, v9")
    g("s_lshl_b32 s58, s5, 8")
    g(f"s_add_u32 s58, s58, {H_WS}")
    for kk in range(1, 4):
        g(f"s_add_u32 s{58+kk}, s58, {kk*57344}")
    g("v_lshrrev_b32 v10, 1, v0")
    g("v_mul_u32_u24 v10, 5120, v10")
    g("v_lshl_add_u32 v10, v15, 4, v10")
    g("s_mul_i32 s62, s4, 163840")
    g(f"s_add_u32 s62, s62, {P3_WS}")
    g("s_mul_i32 s64, s5, 5120")
    g("s_add_u32 s64, s64, s62")
    g("s_add_u32 s65, s64, 4096")
    g("s_lshl_b32 s39, s5, 5")
    g("s_add_u32 s62, s62, s39")
    g("s_add_u32 s62, s62, 4096")
    g("v_lshlrev_b32 v3, 4, v0")
    g("v_and_b32 v16, 1, v12")
    g("v_lshl_add_u32 v16, v13, 1, v16")
    g("v_lshlrev_b32 v16, 5, v16")
    g("v_lshl_add_u32 v16, v15, 1, v16")
    g("s_and_b32 s39, s5, 7")
    g("s_lshl_b32 s39, s39, 2")
    g("s_lshl_b32 s66, s4, 7")
    g("s_add_u32 s66, s66, s39")
    g("s_lshr_b32 s39, s5, 3")
    g("s_lshl_b32 s39, s39, 10")
    g("s_add_u32 s67, s66, s39")
    g("s_barrier")
    g("s_cmp_lt_u32 s5, 28")
    g("s_cbranch_scc0 L_w8_nou")
    tile_dma(g, 8, 2, SRD_A, 38, L_W2, 1024, NT)
    g(f"buffer_load_dwordx2 v[20:21], v8, s[{SRD_B}:{SRD_B+3}], s57 offen")
    g(f"buffer_load_dwordx2 v[22:23], v8, s[{SRD_B}:{SRD_B+3}], s57 offen offset:32")
    g.label("L_w8_nou")
    g.srd(SRD_B, P_B2, 1024)
    g(f"buffer_load_ushort v17, v16, s[{SRD_C}:{SRD_C+3}], s67 offen")
    g(f"buffer_load_ushort v18, v16, s[{SRD_B}:{SRD_B+3}], s66 offen")
    if opt.get("prewarm", 1):
        for i in range(4):
            g(f"buffer_load_dwordx4 v[24:27], v3, {W}, s64 offen offset:{1024*i} {SC}")
        g(f"buffer_load_dwordx4 v[24:27], v3, {W}, s65 offen {SC}")
    g.srd(SRD_A, P_OUT, 4096)
    g.stamp(3)
    g("s_barrier")
    g("s_barrier")
    g(f"v_mov_b32 v12, {L_FL}")
    g("ds_read_b32 v12, v12")
    g("s_waitcnt vmcnt(0) lgkmcnt(0)")
    g.stamp(4)
    g("v_readfirstlane_b32 s56, v12")
    g("v_lshlrev_b32 v17, 16, v17")
    g("v_lshlrev_b32 v18, 16, v18")
    for r in range(4):
        g(f"v_mov_b32 v{96+r}, v11")
    g("s_cmp_lt_u32 s5, 28")
    g("s_cbranch_scc0 L_w8_pub")
    for t in range(2):
        for u in range(4):
            r = 24 + 16*t + 4*u
            g(f"ds_read_b64_tr_b16 v[{r}:{r+1}], v{4+u} offset:{L_W2 - 65536 + t*4096}")
            g(f"ds_read_b64_tr_b16 v[{r+2}:{r+3}], v{4+u} offset:{L_W2 - 65536 + t*4096 + 2048}")
    for i in range(4):
        g(f"v_lshlrev_b32 v{88+2*i}, 16, v{20+i}")
        g(f"v_and_b32 v{89+2*i}, 0xffff0000, v{20+i}")
    g("s_mov_b32 s63, 0")
    if opt.get("pre", 1):
        g("v_and_b32 v12, 7, v0")
        g("v_lshlrev_b32 v12, 12, v12")
        g("s_lshl_b32 s57, s5, 7")
        g(f"s_add_u32 s57, s57, {PRE_WS}")
        g(f"s_add_u32 s39, s{S_E}, 1")
        g.label("L_hpre")
        g(f"buffer_load_dword v13, v12, s[{SRD_W}:{SRD_W+3}], s57 offen {SC}")
        g("s_add_u32 s63, s63, 1")
        g(f"s_cmp_gt_u32 s63, {SPIN_MAX}")
        g("s_cbranch_scc1 L_hpreok")
        g("s_waitcnt vmcnt(0)")
        g("v_cmp_ne_u32 vcc, s39, v13")
        g("s_cbranch_vccz L_hpreok")
        g(f"s_sleep {opt.get('sp', 1)}")
        g("s_branch L_hpre")
        g.label("L_hpreok")
    if opt.get("dh", 0):
        g(f"s_sleep {opt['dh']}")
    g.label("L_h")
    for kk in range(4):
        g(f"buffer_load_dwordx4 v[{56+8*kk}:{59+8*kk}], v9, {W}, s{58+kk} offen {SC}")
        g(f"buffer_load_dwordx4 v[{60+8*kk}:{63+8*kk}], v9, {W}, s{58+kk} offen offset:64 {SC}")
    g("s_add_u32 s63, s63, 1")
    g(f"s_cmp_gt_u32 s63, {SPIN_MAX}")
    g("s_cbranch_scc1 L_hok")
    g("s_waitcnt vmcnt(0)")
    tagcheck(g, list(range(56, 88)), 11, list(range(100, 116)))
    g("s_cbranch_vccnz L_h")
    g.label("L_hok")
    g.stamp(5)
    for i in range(4):
        g(f"v_pk_add_f32 v[{56+2*i}:{57+2*i}], v[{56+2*i}:{57+2*i}], v[{64+2*i}:{65+2*i}]")
        g(f"v_pk_add_f32 v[{72+2*i}:{73+2*i}], v[{72+2*i}:{73+2*i}], v[{80+2*i}:{81+2*i}]")
    for i in range(4):
        g(f"v_pk_add_f32 v[{56+2*i}:{57+2*i}], v[{56+2*i}:{57+2*i}], v[{72+2*i}:{73+2*i}]")
    for i in range(8):
        g(f"v_add_f32_dpp v{56+i}, v{56+i}, v{56+i} quad_perm:[1,0,3,2] row_mask:0xf bank_mask:0xf")
    for i in range(4):
        g(f"v_cvt_pk_bf16_f32 v{64+i}, v{56+2*i}, v{57+2*i}")
    for i in range(4):
        g(f"v_lshlrev_b32 v{56+2*i}, 16, v{64+i}")
        g(f"v_and_b32 v{57+2*i}, 0xffff0000, v{64+i}")
    for i in range(4):
        g(f"v_pk_add_f32 v[{56+2*i}:{57+2*i}], v[{56+2*i}:{57+2*i}], v[{88+2*i}:{89+2*i}]")
    for i in range(4):
        g(f"v_cvt_pk_bf16_f32 v{64+i}, v{56+2*i}, v{57+2*i}")
    for i in range(4):
        g(f"v_lshlrev_b32 v{56+2*i}, 16, v{64+i}")
        g(f"v_and_b32 v{57+2*i}, 0xffff0000, v{64+i}")
    for i in range(8):
        g(f"v_max_f32 v{56+i}, 0, v{56+i}")
    for i in range(4):
        g(f"v_pk_mul_f32 v[{56+2*i}:{57+2*i}], v[{56+2*i}:{57+2*i}], v[{56+2*i}:{57+2*i}]")
    for i in range(4):
        g(f"v_cvt_pk_bf16_f32 v{64+i}, v{56+2*i}, v{57+2*i}")
    g("s_waitcnt lgkmcnt(0)")
    g("s_nop 0")
    for u in range(4):
        for t in range(2):
            r = 24 + 16*t + 4*u
            d = 68 + 8*u + 4*t
            g(f"v_mfma_f32_16x16x32_bf16 v[{d}:{d+3}], v[64:67], v[{r}:{r+3}], 0")
    g("s_nop 4")
    for u in range(4):
        g(f"v_add_f32 v{100+u}, v{68+8*u}, v{68+8*u+4+2}")
    for u in range(4):
        g(f"v_bfi_b32 v{96+u}, s{S_LO}, v11, v{100+u}")
    g.label("L_w8_pub")
    g("s_cmp_eq_u32 s56, 0")
    g("s_cbranch_scc0 L_w8_rem")
    g(f"buffer_store_dwordx4 v[96:99], v10, {W}, s62 offen")
    g("s_branch L_fin")
    g.label("L_w8_rem")
    g(f"buffer_store_dwordx4 v[96:99], v10, {W}, s62 offen {SC}")
    g.label("L_fin")
    g.stamp(6)
    g("s_mov_b32 s63, 0")
    g("v_and_b32 v19, 2, v0")
    g("v_cmp_ne_u32 s[68:69], 0, v19")
    g(f"s_mov_b32 s57, {hex(f2u(-1.4426950408889634))}")
    if B4: g("s_barrier")
    g.label("L_f")
    for i in range(4):
        g(f"buffer_load_dwordx4 v[{24+4*i}:{27+4*i}], v3, {W}, s64 offen offset:{1024*i} {SC}")
    g(f"buffer_load_dwordx4 v[40:43], v3, {W}, s65 offen {SC}")
    g("s_add_u32 s63, s63, 1")
    g(f"s_cmp_gt_u32 s63, {SPIN_MAX}")
    g("s_cbranch_scc1 L_fok")
    g("s_waitcnt vmcnt(0)")
    tagcheck(g, list(range(24, 44)), 11, list(range(44, 54)))
    g("s_cbranch_vccnz L_f")
    g.label("L_fok")
    g.stamp(7)
    g("v_pk_add_f32 v[24:25], v[24:25], v[28:29]")
    g("v_pk_add_f32 v[26:27], v[26:27], v[30:31]")
    g("v_pk_add_f32 v[32:33], v[32:33], v[36:37]")
    g("v_pk_add_f32 v[34:35], v[34:35], v[38:39]")
    g("v_pk_add_f32 v[24:25], v[24:25], v[32:33]")
    g("v_pk_add_f32 v[26:27], v[26:27], v[34:35]")
    g("s_nop 1")
    for i in range(4):
        g(f"v_permlane32_swap_b32 v{24+i}, v{40+i}")
    g("s_nop 0")
    g("v_pk_add_f32 v[24:25], v[24:25], v[40:41]")
    g("v_pk_add_f32 v[26:27], v[26:27], v[42:43]")
    g("s_nop 1")
    g("v_permlane16_swap_b32 v24, v25")
    g("v_permlane16_swap_b32 v26, v27")
    g("s_nop 0")
    g("v_add_f32 v24, v24, v25")
    g("v_add_f32 v26, v26, v27")
    for c in ("row_ror:8", "row_ror:4", "row_ror:2"):
        g("s_nop 0")
        g(f"v_add_f32_dpp v24, v24, v24 {c} row_mask:0xf bank_mask:0xf")
        g(f"v_add_f32_dpp v26, v26, v26 {c} row_mask:0xf bank_mask:0xf")
    g("v_cndmask_b32 v24, v24, v26, s[68:69]")
    rnd(g, 24, 24)
    g("v_add_f32 v25, v24, v18")
    rnd(g, 25, 25)
    g("v_mul_f32 v26, s57, v25")
    g("v_exp_f32 v26, v26")
    g("s_nop 0")
    g("v_add_f32 v26, 1.0, v26")
    g("v_rcp_f32 v26, v26")
    g("s_nop 0")
    g("v_mul_f32 v26, v25, v26")
    rnd(g, 26, 26)
    g("s_nop 1")
    g("v_permlane32_swap_b32 v26, v27")
    g("s_mov_b32 exec_lo, 0x000f000f")
    g("s_mov_b32 exec_hi, 0")
    g("v_mul_f32 v24, v24, v27")
    rnd(g, 24, 24)
    g("v_add_f32 v24, v24, v17")
    g("v_cvt_pk_bf16_f32 v24, v24, v24")
    g(f"buffer_store_short v24, v16, s[{SRD_A}:{SRD_A+3}], s67 offen")
    g.stamp(8)
    g("s_cmp_eq_u32 s2, 0")
    g("s_cbranch_scc0 L_end")
    g(f"s_add_u32 s{S_E}, s{S_E}, 1")
    g(f"v_mov_b32 v24, s{S_E}")
    g("v_mov_b32 v25, 0")
    g("s_mov_b64 exec, 1")
    g(f"buffer_store_dword v24, v25, {W}, 0 offen")
    g.label("L_end")
    if opt.get("stamps"):
        g("s_waitcnt vmcnt(0)")
        g("s_memrealtime s[88:89]")
        g("s_waitcnt lgkmcnt(0)")
        g("s_mov_b64 exec, 1")
        g("s_mul_i32 s38, s2, 9")
        g("s_add_u32 s38, s38, s3")
        g("s_lshl_b32 s38, s38, 6")
        g(f"s_add_u32 s38, s38, {ST_WS}")
        for k in range(10):
            g(f"v_mov_b32 v{4+k}, s{70+2*k}")
        g("v_mov_b32 v14, s63")
        g("v_mov_b32 v15, 0")
        g("v_mov_b32 v1, 0")
        g(f"buffer_store_dwordx4 v[4:7], v1, {W}, s38 offen")
        g(f"buffer_store_dwordx4 v[8:11], v1, {W}, s38 offen offset:16")
        g(f"buffer_store_dwordx4 v[12:15], v1, {W}, s38 offen offset:32")
    g.label("L_exit")
    lines = [x for x in g.L if x.strip()]
    return finish(lines, opt)

def text(lines):
    body = "\n".join(lines)
    hdr = open("cdna_kernels/" + NAME + ".s.ref").read().split("; Override launch")[0]
    VG = 128
    return f"""{hdr}; Override launch geometry by editing the next line (default: block=256,
; @launch grid=(256,1,1) block=(576,1,1) lds={LDS_BYTES}
.amdgcn_target "amdgcn-amd-amdhsa--gfx950"
.text
.p2align 10
.fill 64, 4, 0xbf800000
.globl {NAME}_kernel
.p2align 8
.type {NAME}_kernel,@function
{NAME}_kernel:
{body}
    s_endpgm
.section .rodata,"a"
.p2align 6
.amdhsa_kernel {NAME}_kernel
  .amdhsa_next_free_vgpr {VG}
  .amdhsa_next_free_sgpr 98
  .amdhsa_accum_offset {VG}
  .amdhsa_group_segment_fixed_size 0
  .amdhsa_kernarg_size 104
  .amdhsa_user_sgpr_count 2
  .amdhsa_user_sgpr_kernarg_segment_ptr 1
  .amdhsa_system_sgpr_workgroup_id_x 1
.end_amdhsa_kernel
"""

def sizes(lines):
    import subprocess, re, tempfile, os
    stub = [l for l in lines] + [f"L_chain{k}:" for k in range(4) if f"L_chain{k}:" not in lines]
    d = tempfile.mkdtemp()
    open(d + "/a.s", "w").write(text(stub))
    r = subprocess.run(["clang", "-x", "assembler", "-target", "amdgcn-amd-amdhsa", "-mcpu=gfx950", "-c", d + "/a.s", "-o", d + "/a.o"], capture_output=True, text=True)
    if r.returncode: print(r.stderr); sys.exit(1)
    o = subprocess.run(["llvm-objdump", "-d", "--mcpu=gfx950", d + "/a.o"], capture_output=True, text=True).stdout
    o = o[o.index("_kernel>:"):]
    sz = [len(m.group(1).split()) * 4 for m in re.finditer(r"// [0-9A-F]+: ([0-9A-F ]+)", o)]
    out = []; k = 0
    for l in lines:
        if l.strip().endswith(":"): out.append(0)
        else: out.append(sz[k]); k += 1
    return out

def finish(lines, opt):
    if not opt.get("touch", 1):
        return text(lines)
    sz = sizes(lines)
    out = []; pos = 0; nxt = 1024; pads = []
    for l, z in zip(lines, sz):
        if z and pos >= nxt:
            assert pos - nxt <= 56
            pads.append(len(out)); out.append(None); pos += 4; nxt += 1024
        out.append(l); pos += z
    n = len(pads)
    res = []
    k = 0
    for l in out:
        if l is None:
            tgt = f"L_pad{k+4}" if k + 4 < n else "L_att"
            if k < 4: res.append(f"L_chain{k}:")
            res.append(f"L_pad{k}:")
            res.append(f"    s_cbranch_execz {tgt}")
            k += 1
        else:
            res.append(l)
    return text(res)

if __name__ == "__main__":
    out = sys.argv[1]
    opt = {}
    for a in sys.argv[2:]:
        k, v = a.split("=")
        try: v = int(v)
        except ValueError: pass
        opt[k] = v
    open(out, "w").write(gen(opt))
```

```python
import sys, struct
from gen import f2u, G, tagcheck, rnd, wave_sum, tile_voff, tile_raddr, tile_dma, NAME, sizes as _sizes
import gen as G1

QA_WS  = 0x8000
QB_WS  = 0x48000
XC_WS  = 0x200000
M_WS   = 0x4000
H_WS   = 0x88000
O_WS   = 0xC0000
R3_WS  = 0x140000
ST_WS  = 0x300000
WS_BYTES = 0x400000

L_K, L_V, L_WQ, L_WO, L_W1, L_W2, L_XN = 0, 32768, 65536, 81920, 98304, 106496, 114688
XN_STR = 1088
L_QL = L_XN + 4352
QL_STR = 320
L_OC = L_QL + 1280
OC_H, OC_W = 528, 2112
L_ML = L_OC + 8448
L_FL = L_ML + 128
L_OL = L_FL + 128
L_HL = L_OL + 1280
HL_STR = 192
LDS_BYTES = L_HL + 768
G1.LDS_BYTES = LDS_BYTES

P_X, P_K, P_V, P_WQ, P_WO, P_BX, P_W1, P_B1, P_W2, P_B2, P_OUT, P_DBG, P_WS = 8, 10, 12, 14, 16, 18, 20, 22, 24, 26, 28, 30, 32
S_E, S_T, S_E1, S_LO = 34, 35, 36, 37
SRD_A, SRD_B, SRD_W, SRD_C = 40, 44, 48, 52
SPIN_MAX = 1 << 16
W = f"s[{SRD_W}:{SRD_W+3}]"
SC = "sc1"
DPPM = "row_mask:0xf bank_mask:0xf"

def epoch(g, vT):
    g(f"s_add_u32 s{S_E1}, s{S_E}, 1")
    g(f"s_and_b32 s{S_T}, s{S_E1}, s{S_LO}")
    g(f"v_mov_b32 v{vT}, s{S_T}")

def spin(g, lab_out, inc=1, mx=SPIN_MAX):
    g(f"s_add_u32 s63, s63, {inc}")
    g(f"s_cmp_gt_u32 s63, {mx}")
    g(f"s_cbranch_scc1 {lab_out}")

def selmasks(g, vsel):
    for k in (1, 2, 3):
        g(f"v_cmp_eq_u32 s[{88+2*k}:{89+2*k}], {k}, v{vsel}")

def select4(g, d, D, vT):
    for k in (1, 2, 3):
        for r in range(4):
            src = D + r if k == 1 else d + r
            g(f"v_cndmask_b32 v{d+r}, v{src}, v{D+4*k+r}, s[{88+2*k}:{89+2*k}]")
    for r in range(4):
        g(f"v_bfi_b32 v{d+r}, s{S_LO}, v{vT}, v{d+r}")

def ffn_ids(g):
    g("s_lshr_b32 s7, s5, 3")
    g("s_mul_i32 s68, s4, 3")
    g("s_min_u32 s69, s4, 4")
    g("s_add_u32 s68, s68, s69")
    g("s_add_u32 s68, s68, s7")
    g("s_cmp_lt_u32 s4, 4")
    g("s_cselect_b32 s69, 4, 3")
    g("s_cmp_lt_u32 s7, s69")
    g("s_cselect_b32 s69, 1, 0")


def flagwait4(g, lab, vbase, off, tmp, pre=None, n=0, sleep=0):
    g.label(lab)
    if sleep: g(f"s_sleep {sleep}")
    g(f"ds_read_b128 v[{tmp}:{tmp+3}], v{vbase} offset:{off}")
    if pre: pre()
    spin(g, lab + "ok", inc=0x10000, mx=0x7ff00000)
    g(f"s_waitcnt lgkmcnt({n})")
    g(f"v_and_b32 v{tmp}, v{tmp}, v{tmp+1}")
    g(f"v_and_b32 v{tmp+2}, v{tmp+2}, v{tmp+3}")
    g(f"v_and_b32 v{tmp}, v{tmp}, v{tmp+2}")
    g(f"v_cmp_eq_u32 vcc, 0, v{tmp}")
    g(f"s_cbranch_vccnz {lab}")
    g.label(lab + "ok")

def flagwait1(g, lab, vbase, off, tmp, sdst=None, sleep=1):
    g.label(lab)
    if sleep: g(f"s_sleep {sleep}")
    g(f"ds_read_b32 v{tmp}, v{vbase} offset:{off}")
    spin(g, lab + "ok", inc=0x10000, mx=0x7ff00000)
    g("s_waitcnt lgkmcnt(0)")
    g(f"v_cmp_eq_u32 vcc, 0, v{tmp}")
    g(f"s_cbranch_vccnz {lab}")
    g.label(lab + "ok")
    if sdst is not None: g(f"v_readfirstlane_b32 s{sdst}, v{tmp}")

F_LNA, F_XC, F_QP, F_OP, F_Q, F_LNB, F_P, F_K = 0, 16, 20, 32, 48, 64, 80, 96

def gen(opt):
    g = G(opt)
    NT = opt.get("nt", "nt")
    XF = opt.get("xflags", "")
    THR = opt.get("thr", 4)
    THR2 = opt.get("thr2", 6)
    THR3 = opt.get("thr3", THR2)
    TOUCH = opt.get("touch", 1)
    PWF = opt.get("pwf", "")
    g.stamp(0)
    if opt.get("hold"): g("s_memrealtime s[70:71]")
    g("s_cmp_ge_u32 s2, 256")
    g("s_cbranch_scc1 L_exit")
    g("s_load_dwordx16 s[8:23], s[0:1], 0")
    g("s_load_dwordx8 s[24:31], s[0:1], 64")
    g("s_load_dwordx2 s[32:33], s[0:1], 96")
    g("v_lshrrev_b32 v1, 6, v0")
    g("v_and_b32 v0, 63, v0")
    g("v_readfirstlane_b32 s3, v1")
    g("s_and_b32 s4, s2, 7")
    g("s_lshr_b32 s5, s2, 3")
    g(f"s_movk_i32 s{S_LO}, 0x3ff")
    g("s_cmp_lt_u32 s3, 4")
    g("s_cbranch_scc0 L_notln")
    g("v_lshlrev_b32 v12, 4, v0")
    g("s_lshl_b32 s39, s3, 10")
    tile_voff(g, 2, 3, 8192)
    g("s_lshr_b32 s7, s5, 3")
    g("s_lshl_b32 s38, s7, 20")
    g("s_lshl_b32 s56, s3, 18")
    g("s_add_u32 s38, s38, s56")
    g("s_lshl_b32 s56, s4, 10")
    g("s_add_u32 s38, s38, s56")
    g("s_and_b32 s56, s5, 7")
    g("s_lshl_b32 s56, s56, 7")
    g("s_add_u32 s38, s38, s56")
    g("s_lshl_b32 s56, s3, 12")
    g(f"s_mov_b32 s{SRD_C+2}, 4096")
    g(f"s_mov_b32 s{SRD_C+3}, 0x20000")
    g(f"s_mov_b32 s{SRD_A+2}, {hex(512*4096*2)}")
    g(f"s_mov_b32 s{SRD_A+3}, 0x20000")
    g("s_waitcnt lgkmcnt(0)")
    g(f"s_mov_b32 s{SRD_C}, s{P_X}")
    g(f"s_mov_b32 s{SRD_C+1}, s{P_X+1}")
    g(f"buffer_load_dwordx4 v[4:7], v12, s[{SRD_C}:{SRD_C+3}], s39 offen {XF}")
    g(f"s_mov_b32 s{SRD_A}, s{P_WQ}")
    g(f"s_mov_b32 s{SRD_A+1}, s{P_WQ+1}")
    tile_dma(g, 4, 2, SRD_A, 38, (56, L_WQ), 8192, NT)
    g("s_barrier")
    g("s_branch L_ln")
    g.label("L_notln")
    g("s_cmp_eq_u32 s3, 8")
    g("s_cbranch_scc0 L_kv")
    if opt.get("cpf", 1):
        g("s_getpc_b64 s[64:65]")
        g.label("L_pc")
        g("s_and_b32 s6, s5, 7")
        g(f"s_mul_i32 s6, s6, {22*64}")
        g(f"s_sub_u32 s6, s6, L_pc-{NAME}_kernel")
        g("s_ashr_i32 s7, s6, 31")
        g("s_add_u32 s64, s64, s6")
        g("s_addc_u32 s65, s65, s7")
        g("v_lshlrev_b32 v3, 6, v0")
        g("s_mov_b64 exec, 0x3fffff")
        g("global_load_dword v125, v3, s[64:65]")
        g("s_mov_b64 exec, -1")
    g("v_lshlrev_b32 v3, 2, v0")
    g(f"v_add_u32 v3, {L_ML}, v3")
    g("v_cmp_gt_u32 vcc, 16, v0")
    g("s_nop 1")
    g("v_cndmask_b32 v4, 0, -1, vcc")
    g("ds_write_b32 v3, v4")
    g("s_waitcnt lgkmcnt(0)")
    g("s_barrier")
    g("s_branch L_w0")
    g.label("L_kv")
    g("s_sub_u32 s3, s3, 4")
    g("v_lshrrev_b32 v8, 4, v0")
    g("v_and_b32 v9, 15, v0")
    g("v_xor_b32 v2, v9, v8")
    g("v_lshlrev_b32 v2, 4, v2")
    g("v_lshl_add_u32 v2, v8, 8, v2")
    for i in (1, 2, 3):
        g(f"v_xor_b32 v{2+i}, {64*i}, v2")
    g("s_lshr_b32 s6, s5, 3")
    g("s_and_b32 s7, s5, 7")
    g("s_lshl_b32 s38, s6, 3")
    g("s_add_u32 s38, s38, s4")
    g("s_lshl_b32 s38, s38, 20")
    g("s_lshl_b32 s56, s3, 10")
    g("s_add_u32 s38, s38, s56")
    g(f"s_add_u32 s38, s38, {768*1024}")
    g("s_lshl_b32 s56, s3, 13")
    g("s_lshl_b32 s64, s7, 12")
    g("s_mov_b32 s66, s38")
    g(f"s_mov_b32 s{SRD_A+2}, {hex(4*8*4096*128*2)}")
    g(f"s_mov_b32 s{SRD_A+3}, 0x20000")
    g("s_waitcnt lgkmcnt(0)")
    g(f"s_mov_b32 s{SRD_A}, s{P_K}")
    g(f"s_mov_b32 s{SRD_A+1}, s{P_K+1}")
    g(f"s_load_dword s{S_E}, s[{P_WS}:{P_WS+1}], 0")
    g("s_barrier")
    g.stamp(1)
    def kvld(i, isv, th):
        if i % 4 == 0: g(f"s_add_u32 m0, s56, {(L_V if isv else L_K) + i*1024}")
        g("s_add_u32 s39, s64, s66")
        g("s_add_u32 s64, s64, 4096")
        g("s_and_b32 s64, s64, 0x7000")
        g(f"s_add_u32 s66, s66, {32768 + (3072 if i % 4 == 3 else -1024)}")
        if th: g(f"s_waitcnt vmcnt({th-1})")
        vo = 6 + (i & 1) if isv else 2 + (i & 3)
        g(f"buffer_load_dwordx4 v{vo}, s[{SRD_A}:{SRD_A+3}], s39 offen offset:{(i&3)*1024} {NT} lds")
    for i in range(8): kvld(i, 0, THR if i >= THR else 0)
    g("s_branch L_att")
    g.label("L_ln")
    ffn_ids(g)
    g(f"s_mov_b32 s{SRD_B+3}, 0x20000")
    g(f"s_mul_i32 s{SRD_B+2}, s69, {512*1792*2}")
    g("v_lshrrev_b32 v3, 3, v0")
    g(f"v_mul_u32_u24 v3, {8192-3584}, v3")
    g("v_sub_u32 v2, v2, v3")
    g("s_and_b32 s38, s5, 7")
    g("s_lshl_b32 s38, s38, 2")
    g("s_add_u32 s38, s38, s3")
    g(f"s_mul_i32 s38, s38, {16*3584}")
    g("s_lshl_b32 s39, s68, 7")
    g("s_add_u32 s38, s38, s39")
    g("s_lshl_b32 s56, s3, 11")
    g(f"s_mov_b32 s{SRD_B}, s{P_W1}")
    g(f"s_mov_b32 s{SRD_B+1}, s{P_W1+1}")
    tile_dma(g, 2, 2, SRD_B, 38, (56, L_W1), 3584, NT)
    g(f"s_load_dword s{S_E}, s[{P_WS}:{P_WS+1}], 0")
    g.srd(SRD_W, P_WS, WS_BYTES)
    g("v_lshrrev_b32 v2, 2, v0")
    g("v_lshlrev_b32 v2, 6, v2")
    g("v_and_b32 v3, 1, v0")
    g("v_lshl_add_u32 v2, v3, 5, v2")
    g("v_and_b32 v3, 2, v0")
    g("v_lshl_add_u32 v2, v3, 2, v2")
    g(f"s_mul_i32 s38, s3, {XN_STR}")
    g(f"s_add_u32 s38, s38, {L_XN}")
    g("v_add_u32 v2, s38, v2")
    g("s_lshl_b32 s38, s3, 2")
    g(f"s_add_u32 s38, s38, {L_FL}")
    g("v_mov_b32 v9, s38")
    g("v_mov_b32 v10, 1")
    g(f"v_mov_b32 v21, {hex(f2u(1.0/512))}")
    g("s_waitcnt vmcnt(6)")
    g.stamp(1)
    for i in range(4):
        g(f"v_lshlrev_b32 v{12+2*i}, 16, v{4+i}")
        g(f"v_and_b32 v{13+2*i}, 0xffff0000, v{4+i}")
    g("v_pk_add_f32 v[22:23], v[12:13], v[14:15]")
    g("v_pk_add_f32 v[24:25], v[16:17], v[18:19]")
    g("v_pk_add_f32 v[22:23], v[22:23], v[24:25]")
    g("v_add_f32 v20, v22, v23")
    wave_sum(g, 20, 38)
    g("s_nop 1")
    g("v_mul_f32 v20, s38, v21")
    for i in range(8):
        g(f"v_sub_f32 v{24+i}, v{12+i}, v20")
    g("v_mul_f32 v22, v24, v24")
    g("v_mul_f32 v23, v25, v25")
    for i in range(1, 4):
        g(f"v_fmac_f32 v22, v{24+2*i}, v{24+2*i}")
        g(f"v_fmac_f32 v23, v{25+2*i}, v{25+2*i}")
    g("v_add_f32 v22, v22, v23")
    wave_sum(g, 22, 38)
    rnd(g, 20, 20)
    g("v_mul_f32 v22, s38, v21")
    rnd(g, 22, 22)
    g(f"v_add_f32 v22, {hex(f2u(1e-5))}, v22")
    rnd(g, 22, 22)
    g("v_sqrt_f32 v22, v22")
    for i in range(8):
        g(f"v_sub_f32 v{12+i}, v{12+i}, v20")
    rnd(g, 22, 22)
    g("v_rcp_f32 v22, v22")
    for i in range(4):
        g(f"v_cvt_pk_bf16_f32 v{4+i}, v{12+2*i}, v{13+2*i}")
    for i in range(4):
        g(f"v_lshlrev_b32 v{12+2*i}, 16, v{4+i}")
        g(f"v_and_b32 v{13+2*i}, 0xffff0000, v{4+i}")
    for i in range(8):
        g(f"v_mul_f32 v{12+i}, v{12+i}, v22")
    for i in range(4):
        g(f"v_cvt_pk_bf16_f32 v{4+i}, v{12+2*i}, v{13+2*i}")
    g("ds_write2_b64 v2, v[4:5], v[6:7] offset0:0 offset1:2")
    g("s_waitcnt vmcnt(2)")
    g(f"ds_write_b32 v9, v10 offset:{F_LNA}")
    g.stamp(2)
    g("s_waitcnt lgkmcnt(0)")
    epoch(g, 11)
    g("s_branch L_ln_done")
    g.label("L_w0")
    g(f"s_load_dword s{S_E}, s[{P_WS}:{P_WS+1}], 0")
    g.srd(SRD_W, P_WS, WS_BYTES)
    g("s_getreg_b32 s57, hwreg(HW_REG_XCC_ID, 0, 3)")
    g("s_lshl_b32 s58, s4, 5")
    g("s_add_u32 s58, s58, s5")
    g("s_lshl_b32 s67, s58, 10")
    g("s_lshl_b32 s58, s58, 2")
    g(f"s_add_u32 s58, s58, {XC_WS}")
    g("v_mov_b32 v16, 0")
    g(f"s_add_u32 s56, s67, {QA_WS}")
    g("v_lshlrev_b32 v1, 4, v0")
    if opt.get("prew", 1): g(f"buffer_load_dwordx4 v[124:127], v1, {W}, s56 offen {PWF}")
    g("s_waitcnt lgkmcnt(0)")
    epoch(g, 11)
    g(f"s_lshl_b32 s56, s{S_E1}, 3")
    g("s_or_b32 s57, s57, s56")
    g("v_mov_b32 v12, s57")
    g("s_mov_b64 exec, 1")
    if not opt.get("noxc"): g(f"buffer_store_dword v12, v16, {W}, s58 offen {SC}")
    if TOUCH:
        g("s_mov_b64 exec, 0")
        g("s_branch L_chain0")
        g.label("L_w8b")
    g("s_mov_b64 exec, -1")
    g.srd(SRD_C, P_X, 4096)
    ffn_ids(g)
    g("s_lshr_b32 s6, s5, 3")
    g("s_and_b32 s7, s5, 7")
    tile_raddr(g, 4, 3)
    g("v_bfe_u32 v10, v0, 2, 2")
    g(f"v_mul_u32_u24 v8, {XN_STR}, v10")
    g("v_lshrrev_b32 v9, 4, v0")
    g("v_lshl_add_u32 v8, v9, 4, v8")
    g("s_lshl_b32 s39, s6, 8")
    g(f"s_add_u32 s39, s39, {L_XN}")
    g("v_add_u32 v8, s39, v8")
    g("v_lshlrev_b32 v10, 11, v10")
    g("v_lshl_add_u32 v10, v9, 6, v10")
    g("v_and_b32 v9, 3, v0")
    g("v_lshl_add_u32 v10, v9, 4, v10")
    selmasks(g, 9)
    g("s_lshl_b32 s38, s4, 15")
    g("s_lshl_b32 s39, s6, 13")
    g("s_add_u32 s38, s38, s39")
    g("s_lshl_b32 s39, s7, 8")
    g("s_add_u32 s38, s38, s39")
    g(f"s_add_u32 s39, s38, {QB_WS}")
    g(f"s_add_u32 s38, s38, {QA_WS}")
    g("s_lshl_b32 s58, s4, 7")
    g(f"s_add_u32 s58, s58, {XC_WS}")
    g("v_and_b32 v3, 31, v0")
    g("v_lshlrev_b32 v3, 2, v3")
    g(f"v_mov_b32 v2, {L_FL}")
    g("v_mov_b32 v9, 1")
    g("s_mov_b32 s63, 0")
    g.stamp(1)
    flagwait4(g, "L_lnw", 2, F_LNA, 12)
    g("s_setprio 3")
    for t in range(4):
        g(f"ds_read_b128 v[{12+4*t}:{15+4*t}], v8 offset:{64*t}")
        for u in range(4):
            r = 60 + 16*t + 4*u
            g(f"ds_read_b64_tr_b16 v[{r}:{r+1}], v{4+u} offset:{L_WQ - 65536 + t*4096}")
            g(f"ds_read_b64_tr_b16 v[{r+2}:{r+3}], v{4+u} offset:{L_WQ - 65536 + t*4096 + 2048}")
        if t >= 1:
            tt = t - 1
            g("s_waitcnt lgkmcnt(9)")
            for u in range(4):
                r = 60 + 16*tt + 4*u
                c = "0" if tt == 0 else f"v[{44+4*u}:{47+4*u}]"
                g(f"v_mfma_f32_16x16x32_bf16 v[{44+4*u}:{47+4*u}], v[{r}:{r+3}], v[{12+4*tt}:{15+4*tt}], {c}")
    for u in range(4):
        r = 60 + 48 + 4*u
        g(f"s_waitcnt lgkmcnt({6-2*u})")
        g(f"v_mfma_f32_16x16x32_bf16 v[{44+4*u}:{47+4*u}], v[{r}:{r+3}], v[24:27], v[{44+4*u}:{47+4*u}]")
    g("s_nop 3")
    select4(g, 28, 44, 11)
    g(f"buffer_store_dwordx4 v[28:31], v10, {W}, s38 offen")
    g(f"ds_write_b32 v2, v9 offset:{F_QP}")
    g.stamp(2)
    g("s_setprio 0")
    g("s_mov_b32 s63, 0")
    pw0 = len(g.L)
    g("s_lshl_b32 s56, s67, 1")
    g(f"s_add_u32 s56, s56, {O_WS}")
    g(f"buffer_load_dwordx4 v[124:127], v1, {W}, s56 offen {PWF}")
    g(f"buffer_load_dwordx4 v[124:127], v1, {W}, s56 offen offset:1024 {PWF}")
    g("s_lshl_b32 s56, s68, 3")
    g("s_add_u32 s56, s56, s7")
    g("s_lshl_b32 s56, s56, 10")
    g(f"s_add_u32 s56, s56, {H_WS}")
    g("s_lshr_b32 s59, s67, 4")
    g(f"s_add_u32 s59, s59, {M_WS}")
    g("s_cmp_eq_u32 s69, 0")
    g("s_cselect_b32 s56, s59, s56")
    g(f"buffer_load_dwordx4 v[124:127], v1, {W}, s56 offen {PWF}")
    g("s_mov_b64 exec, 15")
    g(f"buffer_load_dwordx4 v[124:127], v1, {W}, s59 offen {PWF}")
    g("s_mov_b64 exec, -1")
    if not opt.get("prew", 1): del g.L[pw0:]
    if opt.get("sx", 12): g(f"s_sleep {opt.get('sx', 12)}")
    if opt.get("noxc"):
        g("v_mov_b32 v20, s57")
    else:
        g(f"buffer_load_dword v20, v3, {W}, s58 offen {SC}")
        g("s_waitcnt vmcnt(0)")
    g.label("L_xc")
    g("v_xor_b32 v20, s57, v20")
    g("v_cmp_lt_u32 vcc, 7, v20")
    g("s_cbranch_vccz L_xcok")
    spin(g, "L_xcok")
    g(f"buffer_load_dword v20, v3, {W}, s58 offen {SC}")
    g("s_waitcnt vmcnt(0)")
    g("s_branch L_xc")
    g.label("L_xcok")
    g("v_cmp_ne_u32 vcc, 0, v20")
    g("s_cmp_lg_u64 vcc, 0")
    g("s_cselect_b32 s59, 2, 1")
    if opt.get("force_remote"):
        g("s_mov_b32 s59, 2")
    g("s_cmp_eq_u32 s59, 1")
    g("s_cbranch_scc1 L_xcl")
    g(f"buffer_store_dwordx4 v[28:31], v10, {W}, s39 offen {SC}")
    g.label("L_xcl")
    g("v_mov_b32 v20, s59")
    g(f"ds_write_b32 v2, v20 offset:{F_XC}")
    g.stamp(3)
    g("s_branch L_w8")
    g.label("L_att")
    def tile_dma_thr(n, voff, srd, ss, lb, stride):
        for i in range(n):
            if i == 0: g(f"s_add_u32 m0, s{lb[0]}, {lb[1]}")
            else: g(f"s_add_u32 s{ss}, s{ss}, {8*stride - 1024}")
            g(f"s_waitcnt vmcnt({(THR2 or 64)-1})")
            g(f"buffer_load_dwordx4 v{voff}, s[{srd}:{srd+3}], s{ss} offen offset:{i*1024} {NT} lds")
    g.srd(SRD_C, P_WO, 4096*512*2)
    tile_voff(g, 1, 10, 1024)
    g("s_lshl_b32 s60, s4, 2")
    g("s_add_u32 s60, s60, s6")
    g("s_lshl_b32 s60, s60, 17")
    g("s_lshl_b32 s61, s3, 15")
    g("s_add_u32 s60, s60, s61")
    g("s_lshl_b32 s62, s7, 7")
    g("s_add_u32 s93, s60, s62")
    g("s_lshl_b32 s65, s3, 12")
    ld0 = len(g.L)
    tile_dma_thr(4, 1, SRD_C, 93, (65, L_WO), 1024)
    if opt.get("kf", 6) == 4:
        g("s_waitcnt vmcnt(4)")
        g(f"ds_write_b32 v18, v19 offset:{F_K}")
    tile_dma_thr(2, 1, SRD_B, 68, (69, L_W2), 1024)
    if opt.get("kf", 6) == 6:
        g("s_waitcnt vmcnt(6)")
        g(f"ds_write_b32 v18, v19 offset:{F_K}")
    g(f"s_mov_b32 s{SRD_A}, s{P_V}")
    g(f"s_mov_b32 s{SRD_A+1}, s{P_V+1}")
    g("s_mov_b32 s66, s38")
    g.stamp(4)
    for i in range(8): kvld(i, 1, (THR2 if i < 4 else THR3) or 64)
    loads = g.L[ld0:]; del g.L[ld0:]
    g("s_mov_b32 s60, s7")
    ffn_ids(g)
    g("s_mov_b32 s7, s60")
    g(f"s_mov_b32 s{SRD_B}, s{P_W2}")
    g(f"s_mov_b32 s{SRD_B+1}, s{P_W2+1}")
    g(f"s_mul_i32 s{SRD_B+2}, s69, {1792*512*2}")
    g(f"s_mov_b32 s{SRD_B+3}, 0x20000")
    g("s_lshl_b32 s68, s68, 2")
    g("s_add_u32 s68, s68, s3")
    g("s_lshl_b32 s68, s68, 14")
    g("s_add_u32 s68, s68, s62")
    g("s_lshl_b32 s69, s3, 11")
    g("v_lshlrev_b32 v6, 1, v8")
    g("v_xor_b32 v6, v9, v6")
    g("v_lshlrev_b32 v6, 4, v6")
    g("v_lshl_add_u32 v6, v8, 8, v6")
    g("v_xor_b32 v7, 128, v6")
    g(f"v_mov_b32 v17, {L_FL}")
    g("s_lshl_b32 s60, s3, 2")
    g("v_add_u32 v18, s60, v17")
    g("v_mov_b32 v19, 1")
    nfirst = len(g.L) - ld0
    g.srd(SRD_W, P_WS, WS_BYTES)
    g("v_lshrrev_b32 v25, 2, v0")
    g("v_and_b32 v26, 7, v25")
    g("v_lshlrev_b32 v26, 5, v26")
    g("v_lshl_add_u32 v26, v25, 8, v26")
    g("v_and_b32 v14, 3, v0")
    g("v_lshl_add_u32 v14, v14, 3, v26")
    g("s_lshl_b32 s60, s3, 6")
    g("v_xor_b32 v14, s60, v14")
    g("v_xor_b32 v15, 32, v14")
    g("v_bfe_u32 v25, v0, 2, 2")
    g("v_lshlrev_b32 v28, 6, v25")
    g("v_lshl_add_u32 v28, v8, 4, v28")
    g(f"v_add_u32 v28, {L_OC}, v28")
    g("v_lshlrev_b32 v30, 14, v25")
    g("v_lshl_add_u32 v30, v8, 5, v30")
    g("v_and_b32 v16, 1, v0")
    g("v_lshl_add_u32 v30, v16, 4, v30")
    g("s_lshl_b32 s61, s4, 5")
    g("s_add_u32 s61, s61, s7")
    g("s_lshl_b32 s61, s61, 2")
    g("s_add_u32 s61, s61, s6")
    g("s_lshl_b32 s61, s61, 2")
    g("s_add_u32 s61, s61, s3")
    g("s_lshl_b32 s61, s61, 7")
    g(f"s_add_u32 s61, s61, {O_WS}")
    for r in range(80, 112):
        g(f"v_mov_b32 v{r}, 0")
    g("s_mov_b32 s63, 0")
    g("s_waitcnt lgkmcnt(0)")
    epoch(g, 31)
    setup = g.L[ld0:]; del g.L[ld0:]
    per = -(-nfirst // 3)
    for x in loads:
        g.L.append(x)
        if "buffer_load" in x:
            g.L.extend(setup[:per]); setup = setup[per:]
    assert not setup
    g.stamp(3)
    flagwait4(g, "L_px", 17, F_P, 36, pre=lambda: g(f"ds_read_b32 v46, v17 offset:{F_XC}"), sleep=0)
    g("s_mov_b32 exec_lo, 0x55555555")
    g("s_mov_b32 exec_hi, 0x55555555")
    for t in range(4):
        g(f"ds_read_b128 v[{80+4*t}:{83+4*t}], v28 offset:{256*t}")
    g("s_not_b64 exec, exec")
    for t in range(4):
        g(f"ds_read_b128 v[{96+4*t}:{99+4*t}], v28 offset:{256*t}")
    g("s_mov_b64 exec, -1")
    g("v_readfirstlane_b32 s65, v46")
    g.stamp(2)
    g("s_waitcnt vmcnt(0) lgkmcnt(0)")
    g.stamp(5)
    g("s_cmp_eq_u32 s65, 1")
    g("s_barrier")
    g.stamp(7)
    for t in range(4):
        for p in range(2):
            r = 48 + 8*t + 4*p
            g(f"ds_read_b64_tr_b16 v[{r}:{r+1}], v{14+p} offset:{L_V + t*8192}")
            g(f"ds_read_b64_tr_b16 v[{r+2}:{r+3}], v{14+p} offset:{L_V + t*8192 + 4096}")
    for t in range(4):
        for p in range(2):
            r = 48 + 8*t + 4*p
            k = 2*t + p
            g(f"s_waitcnt lgkmcnt({14-2*k})")
            g(f"v_mfma_f32_16x16x32_bf16 v[36:39], v[{r}:{r+3}], v[{80+16*p+4*t}:{83+16*p+4*t}], {'0' if k == 0 else 'v[36:39]'}")
    g("s_mov_b32 exec_lo, 0x33333333")
    g("s_mov_b32 exec_hi, 0x33333333")
    g("s_nop 4")
    g("s_cbranch_scc0 L_opub_rem")
    for rem in (0, 1):
        if rem: g.label("L_opub_rem")
        for r in range(4):
            g(f"v_bfi_b32 v{36+r}, s{S_LO}, v31, v{36+r}")
        g(f"buffer_store_dwordx4 v[36:39], v30, {W}, s61 offen {SC if rem else ''}")
        g(f"ds_write_b32 v18, v19 offset:{F_OP}")
        g.stamp(8)
        if opt.get("stamps"):
            g("s_add_u32 s3, s3, 4")
            g("s_branch L_end")
        else:
            g("s_endpgm")
    g.label("L_ln_done")
    if TOUCH:
        g("s_cmp_eq_u32 s3, 3")
        g("s_cbranch_scc0 L_w3b")
        g("s_mov_b64 exec, 0")
        g("s_branch L_chain1")
        g.label("L_w3b")
        g("s_mov_b64 exec, -1")
    tile_raddr(g, 4, 3)
    g(f"v_mov_b32 v17, {L_FL}")
    g("v_mov_b32 v100, 0")
    g("s_mov_b32 s63, 0")
    g("s_waitcnt vmcnt(0)")
    g(f"ds_write_b32 v9, v10 offset:{F_LNB}")
    g("s_cmp_eq_u32 s3, 1")
    g("s_cbranch_scc0 L_qk")
    g("s_cmp_eq_u32 s69, 0")
    g("s_cbranch_scc1 L_qk")
    g("s_and_b32 s6, s5, 7")
    g("v_and_b32 v15, 3, v0")
    selmasks(g, 15)
    g("v_lshrrev_b32 v13, 4, v0")
    g("v_bfe_u32 v16, v0, 2, 2")
    g(f"v_mul_u32_u24 v14, {XN_STR}, v16")
    g("v_lshl_add_u32 v14, v13, 4, v14")
    g("s_lshl_b32 s39, s6, 7")
    g(f"s_add_u32 s39, s39, {L_XN}")
    g("v_add_u32 v14, s39, v14")
    g("v_lshlrev_b32 v13, 6, v13")
    g("v_lshl_add_u32 v13, v16, 8, v13")
    g("v_lshl_add_u32 v13, v15, 4, v13")
    g("s_lshl_b32 s58, s68, 3")
    g("s_add_u32 s58, s58, s6")
    g("s_lshl_b32 s58, s58, 10")
    g(f"s_add_u32 s58, s58, {H_WS}")
    flagwait4(g, "L_w1w", 17, F_LNB, 20, sleep=1)
    g("ds_read_b128 v[80:83], v14")
    g("ds_read_b128 v[84:87], v14 offset:64")
    for t in range(2):
        for u in range(4):
            r = 24 + 16*t + 4*u
            g(f"ds_read_b64_tr_b16 v[{r}:{r+1}], v{4+u} offset:{L_W1 - 65536 + t*4096}")
            g(f"ds_read_b64_tr_b16 v[{r+2}:{r+3}], v{4+u} offset:{L_W1 - 65536 + t*4096 + 2048}")
    for t in range(2):
        for u in range(4):
            r = 24 + 16*t + 4*u
            g(f"s_waitcnt lgkmcnt({14 - 8*t - 2*u})")
            c = "0" if t == 0 else f"v[{64+4*u}:{67+4*u}]"
            g(f"v_mfma_f32_16x16x32_bf16 v[{64+4*u}:{67+4*u}], v[{r}:{r+3}], v[{80+4*t}:{83+4*t}], {c}")
    g("s_nop 3")
    select4(g, 56, 64, 11)
    for r in range(4): g(f"v_mov_b32 v{96+r}, v{56+r}")
    g("v_mov_b32 v100, v13")
    g("s_mov_b32 s92, s58")
    g.label("L_qk")
    g("s_lshr_b32 s6, s5, 3")
    g("s_and_b32 s7, s5, 7")
    g("v_lshrrev_b32 v8, 4, v0")
    g("v_and_b32 v12, 15, v0")
    g("v_xor_b32 v20, v8, v12")
    g("v_lshlrev_b32 v20, 4, v20")
    g("v_lshl_add_u32 v20, v12, 8, v20")
    g("s_lshl_b32 s39, s3, 13")
    g("v_add_u32 v20, s39, v20")
    for t in (1, 2, 3):
        g(f"v_xor_b32 v{20+t}, {64*t}, v20")
    g("v_lshrrev_b32 v13, 5, v0")
    g("v_and_b32 v14, 31, v0")
    g("v_lshlrev_b32 v24, 14, v13")
    g("v_lshl_add_u32 v24, v14, 4, v24")
    g("s_lshl_b32 s58, s4, 15")
    g("s_lshl_b32 s59, s6, 11")
    g("s_add_u32 s58, s58, s59")
    g("s_lshl_b32 s59, s3, 9")
    g("s_add_u32 s65, s58, s59")
    g(f"s_add_u32 s65, s65, {QA_WS}")
    g("v_lshlrev_b32 v25, 2, v13")
    g("v_and_b32 v15, 16, v0")
    g("v_lshl_add_u32 v25, v15, 3, v25")
    g("v_and_b32 v15, 12, v0")
    g("v_lshl_add_u32 v25, v15, 1, v25")
    g("v_and_b32 v15, 3, v0")
    g("v_lshl_add_u32 v25, v15, 5, v25")
    g(f"s_mul_i32 s39, s3, {QL_STR}")
    g(f"s_add_u32 s38, s39, {L_QL}")
    g("v_add_u32 v25, s38, v25")
    g("v_bfe_u32 v16, v0, 2, 2")
    g(f"v_mul_u32_u24 v26, {QL_STR}, v16")
    g("v_lshl_add_u32 v26, v8, 4, v26")
    g(f"v_add_u32 v26, {L_QL}, v26")
    g("v_lshlrev_b32 v29, 4, v16")
    g(f"v_add_u32 v29, {L_ML}, v29")
    g("s_lshl_b32 s38, s3, 2")
    g("v_add_u32 v27, s38, v29")
    g("v_lshlrev_b32 v28, 6, v16")
    g("v_lshl_add_u32 v28, v8, 4, v28")
    g("s_lshl_b32 s38, s3, 8")
    g(f"s_add_u32 s38, s38, {L_OC}")
    g("v_add_u32 v28, s38, v28")
    g("v_lshlrev_b32 v30, 9, v16")
    g("s_lshl_b32 s67, s4, 7")
    g("s_add_u32 s67, s67, s5")
    g("s_lshl_b32 s67, s67, 4")
    g(f"s_add_u32 s67, s67, {M_WS}")
    for r in range(4):
        g(f"v_mov_b32 v{32+r}, 0x3f803f80")
    g(f"s_mov_b32 s66, {hex(f2u(1.4426950408889634 / (128 ** 0.5)))}")
    g("s_mov_b32 s57, 0x11111111")
    g("s_lshl_b32 s56, s4, 2")
    g("s_add_u32 s56, s56, s6")
    g("v_lshlrev_b32 v103, 13, v13")
    g("v_lshl_add_u32 v103, v14, 4, v103")
    g("s_lshl_b32 s61, s56, 14")
    g("s_add_u32 s61, s61, s59")
    g(f"s_add_u32 s61, s61, {O_WS}")
    g("s_add_u32 s64, s61, 4096")
    g("v_lshl_add_u32 v104, v13, 2, v15")
    g("v_lshlrev_b32 v104, 4, v104")
    g("s_lshl_b32 s60, s56, 2")
    g("s_add_u32 s60, s60, s3")
    g("s_lshl_b32 s60, s60, 7")
    g(f"s_add_u32 s60, s60, {M_WS}")
    g("v_lshlrev_b32 v102, 2, v13")
    g("v_lshl_add_u32 v102, v14, 3, v102")
    g(f"s_add_u32 s39, s39, {L_OL}")
    g("v_add_u32 v102, s39, v102")
    g(f"v_mul_u32_u24 v101, {QL_STR}, v15")
    g("v_lshl_add_u32 v101, v8, 4, v101")
    g(f"v_add_u32 v101, {L_OL}, v101")
    g("s_lshl_b32 s39, s3, 5")
    g("v_xor_b32 v107, s39, v4")
    g("v_lshlrev_b32 v105, 4, v0")
    g("s_lshl_b32 s62, s7, 6")
    g("s_add_u32 s62, s62, s56")
    g("s_lshl_b32 s62, s62, 2")
    g("s_add_u32 s62, s62, s3")
    g("s_lshl_b32 s62, s62, 8")
    g(f"s_add_u32 s62, s62, {R3_WS}")
    g.stamp(3)
    flagwait1(g, "L_qw", 17, F_QP, 12)
    flagwait1(g, "L_kw", 9, F_K, 12)
    if opt.get("dq", 0): g(f"s_sleep {opt.get('dq', 0)}")
    g("s_and_b32 s63, s63, 0xffff")
    g("s_mov_b32 s58, s65")
    g("s_add_u32 s59, s58, 8192")
    g(f"buffer_load_dwordx4 v[36:39], v24, {W}, s58 offen {SC}")
    g(f"buffer_load_dwordx4 v[40:43], v24, {W}, s59 offen {SC}")
    for tau in range(2):
        for t in range(4):
            r = 48 + 16*tau + 4*t
            g(f"ds_read_b128 v[{r}:{r+3}], v{20+t} offset:{4096*tau}")
    g("s_cmp_eq_u32 s3, 1")
    g("s_cbranch_scc0 L_qc")
    g("s_cmp_eq_u32 s69, 0")
    g("s_cbranch_scc1 L_qc")
    flagwait1(g, "L_w1x", 17, F_XC, 12, sdst=56)
    g("s_nop 2")
    g("s_cmp_eq_u32 s56, 1")
    g("s_cbranch_scc0 L_hpub_rem")
    g(f"buffer_store_dwordx4 v[96:99], v100, {W}, s92 offen")
    g("s_branch L_hp")
    g.label("L_hpub_rem")
    g(f"buffer_store_dwordx4 v[96:99], v100, {W}, s92 offen {SC}")
    g.label("L_hp")
    g.stamp(1)
    g("s_waitcnt vmcnt(1)")
    g("s_branch L_qc1")
    g.label("L_qc")
    g("s_waitcnt vmcnt(0)")
    g.label("L_qc1")
    tagcheck(g, list(range(36, 44)), 11, [44, 45, 46, 47])
    g("s_cbranch_vccz L_qok")
    g("s_add_u32 s63, s63, 1")
    g("s_bitcmp1_b32 s63, 15")
    g("s_cbranch_scc1 L_qok")
    g(f"ds_read_b32 v12, v17 offset:{F_XC}")
    g("s_waitcnt lgkmcnt(0)")
    g("v_readfirstlane_b32 s56, v12")
    g("s_nop 2")
    g("s_cmp_eq_u32 s56, 2")
    g(f"s_cselect_b32 s58, {QB_WS - QA_WS}, 0")
    g("s_add_u32 s58, s58, s65")
    g("s_add_u32 s59, s58, 8192")
    g(f"buffer_load_dwordx4 v[36:39], v24, {W}, s58 offen {SC}")
    g(f"buffer_load_dwordx4 v[40:43], v24, {W}, s59 offen {SC}")
    g("s_branch L_qc")
    g.label("L_qok")
    g.stamp(4)
    if opt.get("stamps"): g("s_and_b32 s96, s63, 0xff")
    g("v_pk_add_f32 v[36:37], v[36:37], v[40:41]")
    g("v_pk_add_f32 v[38:39], v[38:39], v[42:43]")
    g("s_nop 1")
    g("v_permlane32_swap_b32 v36, v38")
    g("v_permlane32_swap_b32 v37, v39")
    g("v_pk_add_f32 v[36:37], v[36:37], v[38:39]")
    g("v_cvt_pk_bf16_f32 v36, v36, v37")
    g("ds_write_b32 v25, v36")
    g(f"ds_write_b32 v9, v10 offset:{F_Q}")
    def qrd():
        for t in range(4):
            g(f"ds_read_b128 v[{80+4*t}:{83+4*t}], v26 offset:{64*t}")
    flagwait4(g, "L_qx", 17, F_Q, 36, pre=qrd, n=4)
    for t in range(4):
        g(f"s_waitcnt lgkmcnt({3-t})")
        for tau in range(2):
            r = 48 + 16*tau + 4*t
            c = "0" if t == 0 else f"v[{36+4*tau}:{39+4*tau}]"
            g(f"v_mfma_f32_16x16x32_bf16 v[{36+4*tau}:{39+4*tau}], v[{r}:{r+3}], v[{80+4*t}:{83+4*t}], {c}")
    g("s_nop 6")
    g("v_max3_f32 v44, v36, v37, v38")
    g("v_max3_f32 v45, v39, v40, v41")
    g("v_max3_f32 v44, v44, v42, v43")
    g("v_max_f32 v44, v44, v45")
    g("v_mov_b32 v45, v44")
    g("s_nop 1")
    g("v_permlane32_swap_b32 v44, v45")
    g("v_max_f32 v44, v44, v45")
    g("v_mov_b32 v45, v44")
    g("s_nop 1")
    g("v_permlane16_swap_b32 v44, v45")
    g("v_max_f32 v44, v44, v45")
    g("v_mul_f32 v44, s66, v44")
    g("s_mov_b64 exec, 0x1111")
    g("ds_write_b32 v27, v44")
    g("s_mov_b64 exec, -1")
    g.label("L_mx")
    g("ds_read_b128 v[48:51], v29")
    spin(g, "L_mxok", inc=0x10000, mx=0x7ff00000)
    g("s_waitcnt lgkmcnt(0)")
    g("v_max_u32 v45, v48, v49")
    g("v_max3_u32 v45, v45, v50, v51")
    g("v_cmp_eq_u32 vcc, -1, v45")
    g("s_cbranch_vccnz L_mx")
    g.label("L_mxok")
    g("v_max3_f32 v44, v48, v49, v50")
    g("v_max_f32 v44, v44, v51")
    g(f"v_bfi_b32 v44, s{S_LO}, v11, v44")
    for i in range(8):
        g(f"v_fma_f32 v{36+i}, v{36+i}, s66, -v44")
    for i in range(8):
        g(f"v_exp_f32 v{36+i}, v{36+i}")
    for i in range(4):
        g(f"v_cvt_pk_bf16_f32 v{36+i}, v{36+2*i}, v{37+2*i}")
    g("s_nop 1")
    g("v_mfma_f32_16x16x32_bf16 v[40:43], v[32:35], v[36:39], 0")
    g("s_mov_b32 exec_lo, s57")
    g("s_mov_b32 exec_hi, s57")
    g("ds_write_b128 v28, v[36:39]")
    g("s_mov_b64 exec, 0x1111")
    g("s_nop 3")
    g("ds_write_b32 v27, v40 offset:64")
    g("s_mov_b64 exec, -1")
    flagwait1(g, "L_xw", 17, F_XC, 12, sdst=56, sleep=0)
    g(f"ds_write_b32 v9, v10 offset:{F_P}")
    g.stamp(2)
    g("s_cmp_eq_u32 s3, 0")
    g("s_cbranch_scc0 L_wo_b3")
    flagwait4(g, "L_lx", 17, F_P, 36, pre=lambda: g("ds_read_b128 v[40:43], v29 offset:64"), n=0)
    g("v_pk_add_f32 v[40:41], v[40:41], v[42:43]")
    g("v_mov_b32 v46, v11")
    g("v_mov_b32 v47, v11")
    g("v_add_f32 v45, v40, v41")
    g("s_mov_b64 exec, 0x1111")
    g(f"v_bfi_b32 v45, s{S_LO}, v11, v45")
    g("s_cmp_eq_u32 s56, 1")
    g("s_cbranch_scc0 L_mlr")
    g(f"buffer_store_dwordx4 v[44:47], v30, {W}, s67 offen")
    g("s_branch L_ml1")
    g.label("L_mlr")
    g(f"buffer_store_dwordx4 v[44:47], v30, {W}, s67 offen {SC}")
    g.label("L_ml1")
    g("s_mov_b64 exec, -1")
    g.label("L_wo_b3")
    g("s_mov_b32 s63, 0")
    g("s_waitcnt lgkmcnt(0)")
    g("s_barrier")
    def oml():
        g(f"buffer_load_dwordx4 v[32:35], v104, {W}, s60 offen {SC}")
    def opl():
        g(f"buffer_load_dwordx4 v[40:43], v103, {W}, s61 offen {SC}")
        g(f"buffer_load_dwordx4 v[44:47], v103, {W}, s61 offen offset:2048 {SC}")
        g(f"buffer_load_dwordx4 v[48:51], v103, {W}, s64 offen {SC}")
        g(f"buffer_load_dwordx4 v[52:55], v103, {W}, s64 offen offset:2048 {SC}")
    oml()
    for t in range(4):
        g(f"ds_read_b64_tr_b16 v[{16+4*t}:{17+4*t}], v107 offset:{L_WO - 65536 + t*4096}")
        g(f"ds_read_b64_tr_b16 v[{18+4*t}:{19+4*t}], v107 offset:{L_WO - 65536 + t*4096 + 2048}")
    g(f"v_mov_b32 v106, {L_FL}")
    g("s_waitcnt vmcnt(0)")
    tagcheck(g, [32, 33, 34, 35], 11, [56, 57])
    g("s_cbranch_vccz L_o2")
    flagwait4(g, "L_wu", 106, F_OP, 36)
    g("s_mov_b32 s63, 0")
    g.label("L_o")
    oml()
    spin(g, "L_o2", inc=0x100, mx=SPIN_MAX*256)
    g("s_waitcnt vmcnt(0)")
    tagcheck(g, [32, 33, 34, 35], 11, [56, 57])
    g("s_cbranch_vccnz L_o")
    g.label("L_o2")
    g.stamp(5)
    g(f"v_max_f32_dpp v56, v32, v32 quad_perm:[1,0,3,2] {DPPM}")
    g("s_nop 1")
    g(f"v_max_f32_dpp v56, v56, v56 quad_perm:[2,3,0,1] {DPPM}")
    g("v_mov_b32 v57, v56")
    g("s_nop 1")
    g("v_permlane32_swap_b32 v56, v57")
    g("v_max_f32 v56, v56, v57")
    g("v_sub_f32 v32, v32, v56")
    g("v_exp_f32 v32, v32")
    g("s_nop 0")
    g("v_mul_f32 v57, v32, v33")
    g("s_nop 1")
    g(f"v_add_f32_dpp v57, v57, v57 quad_perm:[1,0,3,2] {DPPM}")
    g("s_nop 1")
    g(f"v_add_f32_dpp v57, v57, v57 quad_perm:[2,3,0,1] {DPPM}")
    g("v_mov_b32 v58, v57")
    g("s_nop 1")
    g("v_permlane32_swap_b32 v57, v58")
    g("v_add_f32 v57, v57, v58")
    g("v_rcp_f32 v57, v57")
    g("s_nop 0")
    g("v_mul_f32 v32, v32, v57")
    g("s_nop 1")
    for i in range(4):
        g(f"v_mov_b32_dpp v{64+2*i}, v32 quad_perm:[{i},{i},{i},{i}] {DPPM}")
    for i in range(4):
        g(f"v_mov_b32 v{65+2*i}, v{64+2*i}")
    flagwait4(g, "L_wt", 106, F_OP, 36)
    g("s_and_b32 s63, s63, 0xff00")
    g.stamp(6)
    if opt.get("d2", 0): g(f"s_sleep {opt['d2']}")
    g.label("L_o3")
    opl()
    g("s_add_u32 s63, s63, 1")
    g("s_bitcmp1_b32 s63, 24")
    g("s_cbranch_scc1 L_ook")
    g("s_waitcnt vmcnt(0)")
    if opt.get("omask", 1): g("s_mov_b64 exec, -1")
    tagcheck(g, list(range(40, 56)), 11, [56, 57, 58, 59, 36, 37, 38, 39])
    if opt.get("omask", 1):
        g("s_cbranch_vccz L_ook")
        g("s_mov_b64 exec, vcc")
        g("s_branch L_o3")
    else:
        g("s_cbranch_vccnz L_o3")
    g.label("L_ook")
    g.stamp(7)
    g("v_pk_mul_f32 v[36:37], v[64:65], v[40:41]")
    g("v_pk_mul_f32 v[38:39], v[64:65], v[42:43]")
    for i in range(1, 4):
        g(f"v_pk_fma_f32 v[36:37], v[{64+2*i}:{65+2*i}], v[{40+4*i}:{41+4*i}], v[36:37]")
        g(f"v_pk_fma_f32 v[38:39], v[{64+2*i}:{65+2*i}], v[{42+4*i}:{43+4*i}], v[38:39]")
    g("s_nop 1")
    g("v_permlane32_swap_b32 v36, v38")
    g("v_permlane32_swap_b32 v37, v39")
    g("v_pk_add_f32 v[36:37], v[36:37], v[38:39]")
    g("v_cvt_pk_bf16_f32 v36, v36, v37")
    g("ds_write_b32 v102, v36")
    g("s_waitcnt lgkmcnt(0)")
    g("s_barrier")
    for t in range(4):
        g(f"ds_read_b128 v[{40+4*t}:{43+4*t}], v101 offset:{64*t}")
    for t in range(4):
        g(f"s_waitcnt lgkmcnt({3-t})")
        c = "0" if t == 0 else "v[32:35]"
        g(f"v_mfma_f32_16x16x32_bf16 v[32:35], v[{40+4*t}:{43+4*t}], v[{16+4*t}:{19+4*t}], {c}")
    g("s_mov_b64 exec, 0xffff")
    g("s_nop 6")
    for u in range(4):
        g(f"v_bfi_b32 v{32+u}, s{S_LO}, v11, v{32+u}")
    g(f"buffer_store_dwordx4 v[32:35], v105, {W}, s62 offen {SC}")
    g.stamp(8)
    if opt.get("stamps"):
        g("s_lshl_b32 s96, s96, 16")
        g("s_and_b32 s63, s63, 0xffff")
        g("s_or_b32 s63, s63, s96")
    g("s_branch L_end" if opt.get("stamps") else "s_endpgm")
    g.label("L_w8")
    g.srd(SRD_B, P_B1, 1792*2)
    g("s_and_b32 s6, s5, 7")
    g("v_lshrrev_b32 v12, 4, v0")
    g("v_and_b32 v13, 3, v0")
    g("v_bfe_u32 v14, v0, 2, 2")
    selmasks(g, 12)
    g("v_lshlrev_b32 v8, 5, v13")
    g("v_lshl_add_u32 v8, v14, 3, v8")
    g("s_lshl_b32 s57, s68, 7")
    g(f"v_mul_u32_u24 v9, {HL_STR}, v12")
    g("v_lshl_add_u32 v9, v14, 4, v9")
    g("v_and_b32 v14, 2, v0")
    g("v_lshl_add_u32 v9, v14, 5, v9")
    g("v_cmp_ne_u32 s[60:61], 0, v14")
    g("v_and_b32 v15, 1, v0")
    g("v_lshl_add_u32 v9, v15, 3, v9")
    g(f"v_add_u32 v9, {L_HL}, v9")
    g(f"v_mul_u32_u24 v19, {HL_STR}, v13")
    g("v_lshl_add_u32 v19, v12, 4, v19")
    g(f"v_add_u32 v19, {L_HL}, v19")
    g("s_lshl_b32 s58, s68, 13")
    g(f"s_add_u32 s58, s58, {H_WS}")
    g("s_add_u32 s59, s58, 4096")
    g("v_lshlrev_b32 v10, 4, v0")
    g("s_add_u32 s39, s4, 24")
    g("s_cmp_eq_u32 s69, 0")
    g("s_cselect_b32 s39, s39, s68")
    g("s_lshl_b32 s62, s6, 6")
    g("s_add_u32 s62, s62, s39")
    g("s_add_u32 s62, s62, 32")
    g("s_lshl_b32 s62, s62, 10")
    g(f"s_add_u32 s62, s62, {R3_WS}")
    g("v_lshrrev_b32 v3, 1, v0")
    g("v_lshlrev_b32 v3, 10, v3")
    g("v_lshl_add_u32 v3, v15, 4, v3")
    g("s_lshl_b32 s64, s4, 16")
    g("s_lshl_b32 s39, s5, 5")
    g("s_add_u32 s64, s64, s39")
    g(f"s_add_u32 s64, s64, {R3_WS}")
    g("s_add_u32 s65, s64, 32768")
    g("v_and_b32 v16, 1, v12")
    g("v_add_u32 v16, v16, v14")
    g("v_lshlrev_b32 v1, 1, v15")
    g("v_lshl_add_u32 v16, v16, 10, v1")
    g("s_lshl_b32 s66, s4, 7")
    g("s_lshl_b32 s39, s5, 2")
    g("s_add_u32 s66, s66, s39")
    g(f"buffer_load_dwordx2 v[20:21], v8, s[{SRD_B}:{SRD_B+3}], s57 offen")
    g.srd(SRD_B, P_B2, 1024)
    g(f"buffer_load_ushort v17, v16, s[{SRD_C}:{SRD_C+3}], s66 offen")
    g(f"buffer_load_ushort v18, v1, s[{SRD_B}:{SRD_B+3}], s66 offen")
    g.srd(SRD_A, P_OUT, 4096)
    g(f"s_mov_b32 s57, {hex(f2u(-1.4426950408889634))}")
    g(f"v_mov_b32 v2, {L_FL}")
    for r in range(4):
        g(f"v_mov_b32 v{96+r}, v11")
    g("s_mov_b32 s63, 0")
    g("s_cmp_eq_u32 s69, 0")
    g("s_cbranch_scc0 L_w8_u")
    g(f"buffer_store_dwordx4 v[96:99], v10, {W}, s62 offen {SC}")
    g("s_barrier")
    g("s_branch L_w8_fin")
    g.label("L_w8_u")
    g(f"s_sleep {opt.get('dh', 36)}")
    def hld():
        for kp in range(8):
            g(f"buffer_load_dwordx4 v[{56+4*kp}:{59+4*kp}], v10, {W}, s{58+(kp>>2)} offen offset:{(kp&3)*1024} {SC}")
    if not opt.get("nohg"): hld()
    g("s_barrier")
    g.label("L_h")
    g("s_waitcnt vmcnt(0)")
    g("v_lshlrev_b32 v88, 16, v20")
    g("v_and_b32 v89, 0xffff0000, v20")
    g("v_lshlrev_b32 v90, 16, v21")
    g("v_and_b32 v91, 0xffff0000, v21")
    tagcheck(g, list(range(56, 88)), 11, list(range(100, 116)))
    g("s_cbranch_vccz L_hok")
    spin(g, "L_hok")
    hld()
    g("s_branch L_h")
    g.label("L_hok")
    g.stamp(5)
    for (a, b) in ((56, 60), (64, 68), (72, 76), (80, 84), (56, 64), (72, 80), (56, 72)):
        g(f"v_pk_add_f32 v[{a}:{a+1}], v[{a}:{a+1}], v[{b}:{b+1}]")
        g(f"v_pk_add_f32 v[{a+2}:{a+3}], v[{a+2}:{a+3}], v[{b+2}:{b+3}]")
    def unp():
        g("v_cvt_pk_bf16_f32 v60, v56, v57")
        g("v_cvt_pk_bf16_f32 v61, v58, v59")
        g("v_lshlrev_b32 v56, 16, v60")
        g("v_and_b32 v57, 0xffff0000, v60")
        g("v_lshlrev_b32 v58, 16, v61")
        g("v_and_b32 v59, 0xffff0000, v61")
    unp()
    g("v_pk_add_f32 v[56:57], v[56:57], v[88:89]")
    g("v_pk_add_f32 v[58:59], v[58:59], v[90:91]")
    unp()
    for i in range(4):
        g(f"v_max_f32 v{56+i}, 0, v{56+i}")
    g("v_pk_mul_f32 v[56:57], v[56:57], v[56:57]")
    g("v_pk_mul_f32 v[58:59], v[58:59], v[58:59]")
    g("v_cvt_pk_bf16_f32 v60, v56, v57")
    g("v_cvt_pk_bf16_f32 v61, v58, v59")
    g("ds_write_b64 v9, v[60:61]")
    g("ds_read_b128 v[64:67], v19")
    g("ds_read_b128 v[68:71], v19 offset:64")
    g.stamp(4)
    for t in range(2):
        for u in range(4):
            r = 24 + 16*t + 4*u
            g(f"ds_read_b64_tr_b16 v[{r}:{r+1}], v{4+u} offset:{L_W2 - 65536 + t*4096}")
            g(f"ds_read_b64_tr_b16 v[{r+2}:{r+3}], v{4+u} offset:{L_W2 - 65536 + t*4096 + 2048}")
    for t in range(2):
        for u in range(4):
            g(f"s_waitcnt lgkmcnt({14 - 8*t - 2*u})")
            r = 24 + 16*t + 4*u
            d = 72 + 4*u
            c = "0" if t == 0 else f"v[{d}:{d+3}]"
            g(f"v_mfma_f32_16x16x32_bf16 v[{d}:{d+3}], v[{64+4*t}:{67+4*t}], v[{r}:{r+3}], {c}")
    g("s_nop 3")
    select4(g, 96, 72, 11)
    g.stamp(6)
    g("s_barrier")
    g(f"buffer_store_dwordx4 v[96:99], v10, {W}, s62 offen {SC}")
    g("s_branch L_w8_f2")
    g.label("L_w8_fin")
    g.stamp(6)
    g("s_barrier")
    g.label("L_w8_f2")
    g("s_mov_b32 s63, 0")
    g("s_waitcnt vmcnt(1)")
    g("v_lshlrev_b32 v17, 16, v17")
    g("v_lshlrev_b32 v18, 16, v18")
    if opt.get("df", 10):
        g(f"s_sleep {opt.get('df', 10)}")
    g.label("L_f")
    g(f"buffer_load_dwordx4 v[24:27], v3, {W}, s64 offen {SC}")
    g(f"buffer_load_dwordx4 v[40:43], v3, {W}, s65 offen {SC}")
    spin(g, "L_fok")
    g("s_waitcnt vmcnt(0)")
    tagcheck(g, [24, 25, 26, 27, 40, 41, 42, 43], 11, list(range(44, 48)))
    g("s_cbranch_vccnz L_f")
    g.label("L_fok")
    g.stamp(7)
    for i in range(4):
        g(f"v_permlane32_swap_b32 v{24+i}, v{40+i}")
    g("v_pk_add_f32 v[24:25], v[24:25], v[40:41]")
    g("v_pk_add_f32 v[26:27], v[26:27], v[42:43]")
    g("s_nop 0")
    g("v_permlane16_swap_b32 v24, v25")
    g("v_permlane16_swap_b32 v26, v27")
    g("v_add_f32 v24, v24, v25")
    g("v_add_f32 v26, v26, v27")
    for c in ("row_ror:8", "row_ror:4", "row_ror:2"):
        g("s_nop 0")
        g(f"v_add_f32_dpp v24, v24, v24 {c} {DPPM}")
        g(f"v_add_f32_dpp v26, v26, v26 {c} {DPPM}")
    g("v_cndmask_b32 v24, v24, v26, s[60:61]")
    rnd(g, 24, 24)
    g("v_add_f32 v25, v24, v18")
    rnd(g, 25, 25)
    g("v_mul_f32 v26, s57, v25")
    g("v_exp_f32 v26, v26")
    g("s_nop 0")
    g("v_add_f32 v26, 1.0, v26")
    g("v_rcp_f32 v26, v26")
    g("s_nop 0")
    g("v_mul_f32 v26, v25, v26")
    rnd(g, 26, 26)
    g("s_nop 1")
    g("v_permlane32_swap_b32 v26, v27")
    g("s_mov_b32 exec_lo, 0x000f000f")
    g("s_mov_b32 exec_hi, 0")
    g("v_mul_f32 v24, v24, v27")
    rnd(g, 24, 24)
    g("v_add_f32 v24, v24, v17")
    g("v_cvt_pk_bf16_f32 v24, v24, v24")
    g(f"buffer_store_short v24, v16, s[{SRD_A}:{SRD_A+3}], s66 offen")
    g.stamp(8)
    g("s_cmp_eq_u32 s2, 0")
    g("s_cbranch_scc0 L_end")
    g(f"v_mov_b32 v24, s{S_E1}")
    g("v_mov_b32 v25, 0")
    g("s_mov_b64 exec, 1")
    g(f"buffer_store_dword v24, v25, {W}, 0 offen")
    if opt.get("hold"):
        g.label("L_hold")
        g("s_memrealtime s[72:73]")
        g("s_waitcnt lgkmcnt(0)")
        g("s_sub_u32 s72, s72, s70")
        g(f"s_cmp_lt_u32 s72, {opt['hold']}")
        g("s_cbranch_scc1 L_hold")
    g.label("L_end")
    if opt.get("stamps"):
        g("s_memrealtime s[88:89]")
        g("s_waitcnt lgkmcnt(0)")
        g("s_mov_b64 exec, 1")
        g("s_mul_i32 s38, s2, 9")
        g("s_add_u32 s38, s38, s3")
        g("s_lshl_b32 s38, s38, 6")
        g(f"s_add_u32 s38, s38, {ST_WS}")
        for k in range(10):
            g(f"v_mov_b32 v{4+k}, s{70+2*k}")
        g("v_mov_b32 v14, s63")
        g("v_mov_b32 v15, 0")
        g("v_mov_b32 v1, 0")
        g(f"buffer_store_dwordx4 v[4:7], v1, {W}, s38 offen")
        g(f"buffer_store_dwordx4 v[8:11], v1, {W}, s38 offen offset:16")
        g(f"buffer_store_dwordx4 v[12:15], v1, {W}, s38 offen offset:32")
    g.label("L_exit")
    lines = [x for x in g.L if x.strip()]
    return finish(lines, opt)

def finish(lines, opt):
    if not opt.get("touch", 1):
        return G1.text(lines)
    sz = _sizes(lines)
    out = []; pos = 0; nxt = 1024; n = 0
    for l, z in zip(lines, sz):
        if z and pos >= nxt:
            assert pos - nxt <= 56
            out.append(None); n += 1; pos += 4; nxt += 1024
        out.append(l); pos += z
    first = opt.get("pad0", 1)
    split = opt.get("pad1", 4)
    res = []; k = 0
    for l in out:
        if l is None:
            tgt = "L_w8b" if k + 1 == split else (f"L_pad{k+1}" if k + 1 < n else "L_w3b")
            if k == first: res.append("L_chain0:")
            if k == split: res.append("L_chain1:")
            res.append(f"L_pad{k}:")
            res.append(f"    s_cbranch_execz {tgt}")
            k += 1
        else:
            res.append(l)
    return G1.text(res)

if __name__ == "__main__":
    out = sys.argv[1]
    opt = {}
    for a in sys.argv[2:]:
        k, v = a.split("=")
        try: v = int(v)
        except ValueError: pass
        opt[k] = v
    open(out, "w").write(gen(opt))
```

```python
import sys, struct
from gen import f2u, G, tagcheck, rnd, wave_sum, tile_voff, tile_raddr, tile_dma, NAME, sizes as _sizes
import gen as G1

QA_WS  = 0x8000
QB_WS  = 0x48000
XC_WS  = 0x200000
M_WS   = 0x4000
H_WS   = 0x88000
O_WS   = 0xC0000
R3_WS  = 0x140000
ST_WS  = 0x300000
WS_BYTES = 0x400000

L_K, L_V, L_WQ, L_WO, L_W1, L_W2, L_XN = 0, 32768, 65536, 81920, 98304, 106496, 114688
XN_STR = 1088
L_QL = L_XN + 4352
QL_STR = 320
L_OC = L_QL + 1280
OC_H, OC_W = 528, 2112
L_ML = L_OC + 8448
L_FL = L_ML + 128
L_OL = L_FL + 128
L_HL = L_OL + 1280
HL_STR = 192
LDS_BYTES = L_HL + 768
G1.LDS_BYTES = LDS_BYTES

P_X, P_K, P_V, P_WQ, P_WO, P_BX, P_W1, P_B1, P_W2, P_B2, P_OUT, P_DBG, P_WS = 8, 10, 12, 14, 16, 18, 20, 22, 24, 26, 28, 30, 32
S_E, S_T, S_E1, S_LO = 34, 35, 36, 37
SRD_A, SRD_B, SRD_W, SRD_C = 40, 44, 48, 52
SPIN_MAX = 1 << 16
W = f"s[{SRD_W}:{SRD_W+3}]"
SC = "sc1"
DPPM = "row_mask:0xf bank_mask:0xf"

def epoch(g, vT):
    g(f"s_add_u32 s{S_E1}, s{S_E}, 1")
    g(f"s_and_b32 s{S_T}, s{S_E1}, s{S_LO}")
    g(f"v_mov_b32 v{vT}, s{S_T}")

def spin(g, lab_out, inc=1, mx=SPIN_MAX):
    g(f"s_add_u32 s63, s63, {inc}")
    g(f"s_cmp_gt_u32 s63, {mx}")
    g(f"s_cbranch_scc1 {lab_out}")

def selmasks(g, vsel):
    for k in (1, 2, 3):
        g(f"v_cmp_eq_u32 s[{88+2*k}:{89+2*k}], {k}, v{vsel}")

def select4(g, d, D, vT):
    for k in (1, 2, 3):
        for r in range(4):
            src = D + r if k == 1 else d + r
            g(f"v_cndmask_b32 v{d+r}, v{src}, v{D+4*k+r}, s[{88+2*k}:{89+2*k}]")
    for r in range(4):
        g(f"v_bfi_b32 v{d+r}, s{S_LO}, v{vT}, v{d+r}")

def ffn_ids(g):
    g("s_lshr_b32 s7, s5, 3")
    g("s_mul_i32 s68, s4, 3")
    g("s_min_u32 s69, s4, 4")
    g("s_add_u32 s68, s68, s69")
    g("s_add_u32 s68, s68, s7")
    g("s_cmp_lt_u32 s4, 4")
    g("s_cselect_b32 s69, 4, 3")
    g("s_cmp_lt_u32 s7, s69")
    g("s_cselect_b32 s69, 1, 0")


def flagwait4(g, lab, vbase, off, tmp, pre=None, n=0, sleep=0):
    g.label(lab)
    if sleep: g(f"s_sleep {sleep}")
    g(f"ds_read_b128 v[{tmp}:{tmp+3}], v{vbase} offset:{off}")
    if pre: pre()
    spin(g, lab + "ok", inc=0x10000, mx=0x7ff00000)
    g(f"s_waitcnt lgkmcnt({n})")
    g(f"v_and_b32 v{tmp}, v{tmp}, v{tmp+1}")
    g(f"v_and_b32 v{tmp+2}, v{tmp+2}, v{tmp+3}")
    g(f"v_and_b32 v{tmp}, v{tmp}, v{tmp+2}")
    g(f"v_cmp_eq_u32 vcc, 0, v{tmp}")
    g(f"s_cbranch_vccnz {lab}")
    g.label(lab + "ok")

def flagwait1(g, lab, vbase, off, tmp, sdst=None, sleep=1):
    g.label(lab)
    if sleep: g(f"s_sleep {sleep}")
    g(f"ds_read_b32 v{tmp}, v{vbase} offset:{off}")
    spin(g, lab + "ok", inc=0x10000, mx=0x7ff00000)
    g("s_waitcnt lgkmcnt(0)")
    g(f"v_cmp_eq_u32 vcc, 0, v{tmp}")
    g(f"s_cbranch_vccnz {lab}")
    g.label(lab + "ok")
    if sdst is not None: g(f"v_readfirstlane_b32 s{sdst}, v{tmp}")

F_LNA, F_XC, F_QP, F_H, F_OP, F_Q, F_LNB, F_P, F_K, F_K2 = 0, 16, 20, 24, 32, 48, 64, 80, 96, 112
L_HP = L_OC + 2048

def gen(opt):
    g = G(opt)
    NT = opt.get("nt", "nt")
    XF = opt.get("xflags", "")
    THR = opt.get("thr", 3)
    THR2 = opt.get("thr2", 6)
    THR3 = opt.get("thr3", THR2)
    TOUCH = opt.get("touch", 1)
    PWF = opt.get("pwf", "")
    g.stamp(0)
    if opt.get("hold"): g("s_memrealtime s[70:71]")
    g("s_cmp_ge_u32 s2, 256")
    g("s_cbranch_scc1 L_exit")
    g("s_load_dwordx16 s[8:23], s[0:1], 0")
    g("s_load_dwordx8 s[24:31], s[0:1], 64")
    g("s_load_dwordx2 s[32:33], s[0:1], 96")
    g("v_lshrrev_b32 v1, 6, v0")
    g("v_and_b32 v0, 63, v0")
    g("v_readfirstlane_b32 s3, v1")
    g("s_and_b32 s4, s2, 7")
    g("s_lshr_b32 s5, s2, 3")
    g(f"s_movk_i32 s{S_LO}, 0x3ff")
    g("s_cmp_lt_u32 s3, 4")
    g("s_cbranch_scc0 L_notln")
    g("v_lshlrev_b32 v12, 4, v0")
    g("s_lshl_b32 s39, s3, 10")
    tile_voff(g, 2, 3, 8192)
    g("s_lshr_b32 s7, s5, 3")
    g("s_lshl_b32 s38, s7, 20")
    g("s_lshl_b32 s56, s3, 18")
    g("s_add_u32 s38, s38, s56")
    g("s_lshl_b32 s56, s4, 10")
    g("s_add_u32 s38, s38, s56")
    g("s_and_b32 s56, s5, 7")
    g("s_lshl_b32 s56, s56, 7")
    g("s_add_u32 s38, s38, s56")
    g("s_lshl_b32 s56, s3, 12")
    g(f"s_mov_b32 s{SRD_C+2}, 4096")
    g(f"s_mov_b32 s{SRD_C+3}, 0x20000")
    g(f"s_mov_b32 s{SRD_A+2}, {hex(512*4096*2)}")
    g(f"s_mov_b32 s{SRD_A+3}, 0x20000")
    g("s_waitcnt lgkmcnt(0)")
    g(f"s_mov_b32 s{SRD_C}, s{P_X}")
    g(f"s_mov_b32 s{SRD_C+1}, s{P_X+1}")
    g(f"buffer_load_dwordx4 v[4:7], v12, s[{SRD_C}:{SRD_C+3}], s39 offen {XF}")
    g(f"s_mov_b32 s{SRD_A}, s{P_WQ}")
    g(f"s_mov_b32 s{SRD_A+1}, s{P_WQ+1}")
    tile_dma(g, 4, 2, SRD_A, 38, (56, L_WQ), 8192, NT)
    g("s_barrier")
    g("s_branch L_ln")
    g.label("L_notln")
    g("s_cmp_eq_u32 s3, 8")
    g("s_cbranch_scc0 L_kv")
    if opt.get("cpf", 1):
        g("s_getpc_b64 s[64:65]")
        g.label("L_pc")
        g("s_and_b32 s6, s5, 7")
        g(f"s_mul_i32 s6, s6, {22*64}")
        g(f"s_sub_u32 s6, s6, L_pc-{NAME}_kernel")
        g("s_ashr_i32 s7, s6, 31")
        g("s_add_u32 s64, s64, s6")
        g("s_addc_u32 s65, s65, s7")
        g("v_lshlrev_b32 v3, 6, v0")
        g("s_mov_b64 exec, 0x3fffff")
        g("global_load_dword v125, v3, s[64:65]")
        g("s_mov_b64 exec, -1")
    g("v_lshlrev_b32 v3, 2, v0")
    g(f"v_add_u32 v3, {L_ML}, v3")
    g("v_cmp_gt_u32 vcc, 16, v0")
    g("s_nop 1")
    g("v_cndmask_b32 v4, 0, -1, vcc")
    g("ds_write_b32 v3, v4")
    g("s_waitcnt lgkmcnt(0)")
    g(f"s_load_dword s{S_E}, s[{P_WS}:{P_WS+1}], 0")
    g("s_barrier")
    g("s_branch L_w0")
    g.label("L_kv")
    g("s_sub_u32 s3, s3, 4")
    g("v_lshrrev_b32 v8, 4, v0")
    g("v_and_b32 v9, 15, v0")
    g("v_xor_b32 v2, v9, v8")
    g("v_lshlrev_b32 v2, 4, v2")
    g("v_lshl_add_u32 v2, v8, 8, v2")
    for i in (1, 2, 3):
        g(f"v_xor_b32 v{2+i}, {64*i}, v2")
    g("s_lshr_b32 s6, s5, 3")
    g("s_and_b32 s7, s5, 7")
    g("s_lshl_b32 s38, s6, 3")
    g("s_add_u32 s38, s38, s4")
    g("s_lshl_b32 s38, s38, 20")
    g("s_lshl_b32 s56, s3, 10")
    g("s_add_u32 s38, s38, s56")
    g(f"s_add_u32 s38, s38, {768*1024}")
    g("s_lshl_b32 s56, s3, 13")
    g("s_lshl_b32 s64, s7, 12")
    g("s_mov_b32 s66, s38")
    g(f"s_mov_b32 s{SRD_A+2}, {hex(4*8*4096*128*2)}")
    g(f"s_mov_b32 s{SRD_A+3}, 0x20000")
    g("s_waitcnt lgkmcnt(0)")
    g(f"s_mov_b32 s{SRD_A}, s{P_K}")
    g(f"s_mov_b32 s{SRD_A+1}, s{P_K+1}")
    B0L = opt.get("b0l", 0)
    if not B0L:
        g(f"s_load_dword s{S_E}, s[{P_WS}:{P_WS+1}], 0")
        g("s_barrier")
    g.stamp(1)
    def kvld(i, isv, th):
        if i % 4 == 0: g(f"s_add_u32 m0, s56, {(L_V if isv else L_K) + i*1024}")
        g("s_add_u32 s39, s64, s66")
        g("s_add_u32 s64, s64, 4096")
        g("s_and_b32 s64, s64, 0x7000")
        g(f"s_add_u32 s66, s66, {32768 + (3072 if i % 4 == 3 else -1024)}")
        if th: g(f"s_waitcnt vmcnt({th-1})")
        vo = 6 + (i & 1) if isv else 2 + (i & 3)
        g(f"buffer_load_dwordx4 v{vo}, s[{SRD_A}:{SRD_A+3}], s39 offen offset:{(i&3)*1024} {NT} lds")
    for i in range(8):
        if B0L and i == THR:
            g(f"s_load_dword s{S_E}, s[{P_WS}:{P_WS+1}], 0")
            g("s_barrier")
        kvld(i, 0, THR if i >= THR else 0)
    g("s_branch L_att")
    g.label("L_ln")
    ffn_ids(g)
    g(f"s_mov_b32 s{SRD_B+3}, 0x20000")
    g(f"s_mul_i32 s{SRD_B+2}, s69, {512*1792*2}")
    g("v_lshrrev_b32 v3, 3, v0")
    g(f"v_mul_u32_u24 v3, {8192-3584}, v3")
    g("v_sub_u32 v2, v2, v3")
    g("s_and_b32 s38, s5, 7")
    g("s_lshl_b32 s38, s38, 2")
    g("s_add_u32 s38, s38, s3")
    g(f"s_mul_i32 s38, s38, {16*3584}")
    g("s_lshl_b32 s39, s68, 7")
    g("s_add_u32 s38, s38, s39")
    g("s_lshl_b32 s56, s3, 11")
    g(f"s_mov_b32 s{SRD_B}, s{P_W1}")
    g(f"s_mov_b32 s{SRD_B+1}, s{P_W1+1}")
    tile_dma(g, 2, 2, SRD_B, 38, (56, L_W1), 3584, NT)
    g(f"s_load_dword s{S_E}, s[{P_WS}:{P_WS+1}], 0")
    g.srd(SRD_W, P_WS, WS_BYTES)
    g("v_lshrrev_b32 v2, 2, v0")
    g("v_lshlrev_b32 v2, 6, v2")
    g("v_and_b32 v3, 1, v0")
    g("v_lshl_add_u32 v2, v3, 5, v2")
    g("v_and_b32 v3, 2, v0")
    g("v_lshl_add_u32 v2, v3, 2, v2")
    g(f"s_mul_i32 s38, s3, {XN_STR}")
    g(f"s_add_u32 s38, s38, {L_XN}")
    g("v_add_u32 v2, s38, v2")
    g("s_lshl_b32 s38, s3, 2")
    g(f"s_add_u32 s38, s38, {L_FL}")
    g("v_mov_b32 v9, s38")
    g("v_mov_b32 v10, 1")
    g(f"v_mov_b32 v21, {hex(f2u(1.0/512))}")
    g("s_waitcnt vmcnt(6)")
    g.stamp(1)
    for i in range(4):
        g(f"v_lshlrev_b32 v{12+2*i}, 16, v{4+i}")
        g(f"v_and_b32 v{13+2*i}, 0xffff0000, v{4+i}")
    g("v_pk_add_f32 v[22:23], v[12:13], v[14:15]")
    g("v_pk_add_f32 v[24:25], v[16:17], v[18:19]")
    g("v_pk_add_f32 v[22:23], v[22:23], v[24:25]")
    g("v_add_f32 v20, v22, v23")
    wave_sum(g, 20, 38)
    g("s_nop 1")
    g("v_mul_f32 v20, s38, v21")
    for i in range(8):
        g(f"v_sub_f32 v{24+i}, v{12+i}, v20")
    g("v_mul_f32 v22, v24, v24")
    g("v_mul_f32 v23, v25, v25")
    for i in range(1, 4):
        g(f"v_fmac_f32 v22, v{24+2*i}, v{24+2*i}")
        g(f"v_fmac_f32 v23, v{25+2*i}, v{25+2*i}")
    g("v_add_f32 v22, v22, v23")
    wave_sum(g, 22, 38)
    rnd(g, 20, 20)
    g("v_mul_f32 v22, s38, v21")
    rnd(g, 22, 22)
    g(f"v_add_f32 v22, {hex(f2u(1e-5))}, v22")
    rnd(g, 22, 22)
    g("v_sqrt_f32 v22, v22")
    for i in range(8):
        g(f"v_sub_f32 v{12+i}, v{12+i}, v20")
    rnd(g, 22, 22)
    g("v_rcp_f32 v22, v22")
    for i in range(4):
        g(f"v_cvt_pk_bf16_f32 v{4+i}, v{12+2*i}, v{13+2*i}")
    for i in range(4):
        g(f"v_lshlrev_b32 v{12+2*i}, 16, v{4+i}")
        g(f"v_and_b32 v{13+2*i}, 0xffff0000, v{4+i}")
    for i in range(8):
        g(f"v_mul_f32 v{12+i}, v{12+i}, v22")
    for i in range(4):
        g(f"v_cvt_pk_bf16_f32 v{4+i}, v{12+2*i}, v{13+2*i}")
    g("ds_write2_b64 v2, v[4:5], v[6:7] offset0:0 offset1:2")
    g("s_waitcnt vmcnt(2)")
    g(f"ds_write_b32 v9, v10 offset:{F_LNA}")
    g.stamp(2)
    g("s_waitcnt lgkmcnt(0)")
    epoch(g, 11)
    g("s_branch L_ln_done")
    g.label("L_w0")
    g.srd(SRD_W, P_WS, WS_BYTES)
    g("s_getreg_b32 s57, hwreg(HW_REG_XCC_ID, 0, 3)")
    g("s_lshl_b32 s58, s4, 5")
    g("s_add_u32 s58, s58, s5")
    g("s_lshl_b32 s67, s58, 10")
    g("s_lshl_b32 s58, s58, 2")
    g(f"s_add_u32 s58, s58, {XC_WS}")
    g("v_mov_b32 v16, 0")
    g(f"s_add_u32 s56, s67, {QA_WS}")
    g("v_lshlrev_b32 v1, 4, v0")
    if opt.get("prew", 1): g(f"buffer_load_dwordx4 v[124:127], v1, {W}, s56 offen {PWF}")
    g("s_waitcnt lgkmcnt(0)")
    epoch(g, 11)
    g(f"s_lshl_b32 s56, s{S_E1}, 3")
    g("s_or_b32 s57, s57, s56")
    g("v_mov_b32 v12, s57")
    g("s_mov_b64 exec, 1")
    if not opt.get("noxc"): g(f"buffer_store_dword v12, v16, {W}, s58 offen {SC}")
    if TOUCH:
        g("s_mov_b64 exec, 0")
        g("s_branch L_chain0")
        g.label("L_w8b")
    g("s_mov_b64 exec, -1")
    g.srd(SRD_C, P_X, 4096)
    ffn_ids(g)
    g("s_lshr_b32 s6, s5, 3")
    g("s_and_b32 s7, s5, 7")
    tile_raddr(g, 4, 3)
    g("v_bfe_u32 v10, v0, 2, 2")
    g(f"v_mul_u32_u24 v8, {XN_STR}, v10")
    g("v_lshrrev_b32 v9, 4, v0")
    g("v_lshl_add_u32 v8, v9, 4, v8")
    g("s_lshl_b32 s39, s6, 8")
    g(f"s_add_u32 s39, s39, {L_XN}")
    g("v_add_u32 v8, s39, v8")
    g("v_lshlrev_b32 v10, 11, v10")
    g("v_lshl_add_u32 v10, v9, 6, v10")
    g("v_and_b32 v9, 3, v0")
    g("v_lshl_add_u32 v10, v9, 4, v10")
    selmasks(g, 9)
    g("s_lshl_b32 s38, s4, 15")
    g("s_lshl_b32 s39, s6, 13")
    g("s_add_u32 s38, s38, s39")
    g("s_lshl_b32 s39, s7, 8")
    g("s_add_u32 s38, s38, s39")
    g(f"s_add_u32 s39, s38, {QB_WS}")
    g(f"s_add_u32 s38, s38, {QA_WS}")
    g("s_lshl_b32 s58, s4, 7")
    g(f"s_add_u32 s58, s58, {XC_WS}")
    g("v_and_b32 v3, 31, v0")
    g("v_lshlrev_b32 v3, 2, v3")
    g(f"v_mov_b32 v2, {L_FL}")
    g("v_mov_b32 v9, 1")
    g("s_mov_b32 s63, 0")
    g.stamp(1)
    flagwait4(g, "L_lnw", 2, F_LNA, 12)
    g("s_setprio 3")
    for t in range(4):
        g(f"ds_read_b128 v[{12+4*t}:{15+4*t}], v8 offset:{64*t}")
        for u in range(4):
            r = 60 + 16*t + 4*u
            g(f"ds_read_b64_tr_b16 v[{r}:{r+1}], v{4+u} offset:{L_WQ - 65536 + t*4096}")
            g(f"ds_read_b64_tr_b16 v[{r+2}:{r+3}], v{4+u} offset:{L_WQ - 65536 + t*4096 + 2048}")
        if t >= 1:
            tt = t - 1
            g("s_waitcnt lgkmcnt(9)")
            for u in range(4):
                r = 60 + 16*tt + 4*u
                c = "0" if tt == 0 else f"v[{44+4*u}:{47+4*u}]"
                g(f"v_mfma_f32_16x16x32_bf16 v[{44+4*u}:{47+4*u}], v[{r}:{r+3}], v[{12+4*tt}:{15+4*tt}], {c}")
    for u in range(4):
        r = 60 + 48 + 4*u
        g(f"s_waitcnt lgkmcnt({6-2*u})")
        g(f"v_mfma_f32_16x16x32_bf16 v[{44+4*u}:{47+4*u}], v[{r}:{r+3}], v[24:27], v[{44+4*u}:{47+4*u}]")
    g("s_nop 3")
    select4(g, 28, 44, 11)
    g(f"buffer_store_dwordx4 v[28:31], v10, {W}, s38 offen")
    g(f"ds_write_b32 v2, v9 offset:{F_QP}")
    g.stamp(2)
    g("s_setprio 0")
    g("s_mov_b32 s63, 0")
    pw0 = len(g.L)
    g("s_lshl_b32 s56, s67, 1")
    g(f"s_add_u32 s56, s56, {O_WS}")
    g(f"buffer_load_dwordx4 v[124:127], v1, {W}, s56 offen {PWF}")
    g(f"buffer_load_dwordx4 v[124:127], v1, {W}, s56 offen offset:1024 {PWF}")
    g("s_lshl_b32 s56, s68, 3")
    g("s_add_u32 s56, s56, s7")
    g("s_lshl_b32 s56, s56, 10")
    g(f"s_add_u32 s56, s56, {H_WS}")
    g("s_lshr_b32 s59, s67, 4")
    g(f"s_add_u32 s59, s59, {M_WS}")
    g("s_cmp_eq_u32 s69, 0")
    g("s_cselect_b32 s56, s59, s56")
    g(f"buffer_load_dwordx4 v[124:127], v1, {W}, s56 offen {PWF}")
    g("s_mov_b64 exec, 15")
    g(f"buffer_load_dwordx4 v[124:127], v1, {W}, s59 offen {PWF}")
    g("s_mov_b64 exec, -1")
    if not opt.get("prew", 1): del g.L[pw0:]
    if opt.get("sx", 2): g(f"s_sleep {opt.get('sx', 2)}")
    if opt.get("noxc"):
        g("v_mov_b32 v20, s57")
    else:
        g(f"buffer_load_dword v20, v3, {W}, s58 offen {SC}")
        g("s_waitcnt vmcnt(0)")
    g.label("L_xc")
    g("v_xor_b32 v20, s57, v20")
    g("v_cmp_lt_u32 vcc, 7, v20")
    g("s_cbranch_vccz L_xcok")
    spin(g, "L_xcok")
    g(f"buffer_load_dword v20, v3, {W}, s58 offen {SC}")
    g("s_waitcnt vmcnt(0)")
    g("s_branch L_xc")
    g.label("L_xcok")
    g("v_cmp_ne_u32 vcc, 0, v20")
    g("s_cmp_lg_u64 vcc, 0")
    g("s_cselect_b32 s59, 2, 1")
    if opt.get("force_remote"):
        g("s_mov_b32 s59, 2")
    g("s_cmp_eq_u32 s59, 1")
    g("s_cbranch_scc1 L_xcl")
    g(f"buffer_store_dwordx4 v[28:31], v10, {W}, s39 offen {SC}")
    g.label("L_xcl")
    g("v_mov_b32 v20, s59")
    g(f"ds_write_b32 v2, v20 offset:{F_XC}")
    g.stamp(3)
    g("s_cmp_eq_u32 s69, 0")
    g("s_cbranch_scc1 L_w8")
    g("v_lshrrev_b32 v12, 4, v0")
    g("v_bfe_u32 v13, v0, 2, 2")
    g("v_and_b32 v14, 3, v0")
    g("v_lshlrev_b32 v12, 6, v12")
    g("v_lshl_add_u32 v12, v13, 8, v12")
    g("v_lshl_add_u32 v12, v14, 4, v12")
    g(f"v_add_u32 v13, {L_HP}, v1")
    g("s_lshl_b32 s56, s68, 3")
    g("s_add_u32 s56, s56, s7")
    g("s_lshl_b32 s56, s56, 10")
    g(f"s_add_u32 s56, s56, {H_WS}")
    flagwait1(g, "L_hw", 2, F_H, 14)
    g("ds_read_b128 v[20:23], v13")
    g("s_cmp_eq_u32 s59, 1")
    g("s_waitcnt lgkmcnt(0)")
    g("s_cbranch_scc0 L_hpub_rem")
    g(f"buffer_store_dwordx4 v[20:23], v12, {W}, s56 offen")
    g("s_branch L_w8")
    g.label("L_hpub_rem")
    g(f"buffer_store_dwordx4 v[20:23], v12, {W}, s56 offen {SC}")
    g("s_branch L_w8")
    g.label("L_att")
    TRL = opt.get("trl", 2)
    def tile_dma_thr(n, voff, srd, ss, lb, stride, first=0):
        for i in range(first, n):
            if i == first: g(f"s_add_u32 m0, s{lb[0]}, {lb[1]}")
            if i: g(f"s_add_u32 s{ss}, s{ss}, {8*stride - 1024}")
            g(f"s_waitcnt vmcnt({(THR2 or 64)-1})")
            g(f"buffer_load_dwordx4 v{voff}, s[{srd}:{srd+3}], s{ss} offen offset:{i*1024} {NT} lds")
    g.srd(SRD_C, P_WO, 4096*512*2)
    tile_voff(g, 1, 10, 1024)
    g("s_lshl_b32 s60, s4, 2")
    g("s_add_u32 s60, s60, s6")
    g("s_lshl_b32 s60, s60, 17")
    g("s_lshl_b32 s61, s3, 15")
    g("s_add_u32 s60, s60, s61")
    g("s_lshl_b32 s62, s7, 7")
    g("s_add_u32 s93, s60, s62")
    g("s_lshl_b32 s65, s3, 12")
    QT = opt.get("qt", 6)
    if QT:
        g(f"v_mov_b32 v17, {L_FL}")
        g("s_lshl_b32 s60, s3, 2")
        g("v_add_u32 v18, s60, v17")
        g("v_mov_b32 v19, 1")
        g(f"s_waitcnt vmcnt({8-QT})")
        g(f"ds_write_b32 v18, v19 offset:{F_K2}")
    ld0 = len(g.L)
    tile_dma_thr(4, 1, SRD_C, 93, (65, L_WO), 1024)
    if opt.get("kf", 6) == 4:
        g("s_waitcnt vmcnt(4)")
        g(f"ds_write_b32 v18, v19 offset:{F_K}")
    tile_dma_thr(2 - TRL, 1, SRD_B, 68, (69, L_W2), 1024)
    if opt.get("kf", 6) == 6:
        g(f"s_waitcnt vmcnt({6 - TRL})")
        g(f"ds_write_b32 v18, v19 offset:{F_K}")
    g(f"s_mov_b32 s{SRD_A}, s{P_V}")
    g(f"s_mov_b32 s{SRD_A+1}, s{P_V+1}")
    g("s_mov_b32 s66, s38")
    g.stamp(4)
    for i in range(8): kvld(i, 1, (THR2 if i < 4 else THR3) or 64)
    if TRL: tile_dma_thr(2, 1, SRD_B, 68, (69, L_W2), 1024, first=2 - TRL)
    loads = g.L[ld0:]; del g.L[ld0:]
    g("s_mov_b32 s60, s7")
    ffn_ids(g)
    g("s_mov_b32 s7, s60")
    g(f"s_mov_b32 s{SRD_B}, s{P_W2}")
    g(f"s_mov_b32 s{SRD_B+1}, s{P_W2+1}")
    g(f"s_mul_i32 s{SRD_B+2}, s69, {1792*512*2}")
    g(f"s_mov_b32 s{SRD_B+3}, 0x20000")
    g("s_lshl_b32 s68, s68, 2")
    g("s_add_u32 s68, s68, s3")
    g("s_lshl_b32 s68, s68, 14")
    g("s_add_u32 s68, s68, s62")
    g("s_lshl_b32 s69, s3, 11")
    g("v_lshlrev_b32 v6, 1, v8")
    g("v_xor_b32 v6, v9, v6")
    g("v_lshlrev_b32 v6, 4, v6")
    g("v_lshl_add_u32 v6, v8, 8, v6")
    g("v_xor_b32 v7, 128, v6")
    g(f"v_mov_b32 v17, {L_FL}")
    g("s_lshl_b32 s60, s3, 2")
    g("v_add_u32 v18, s60, v17")
    g("v_mov_b32 v19, 1")
    nfirst = len(g.L) - ld0
    g.srd(SRD_W, P_WS, WS_BYTES)
    g("v_lshrrev_b32 v25, 2, v0")
    g("v_and_b32 v26, 7, v25")
    g("v_lshlrev_b32 v26, 5, v26")
    g("v_lshl_add_u32 v26, v25, 8, v26")
    g("v_and_b32 v14, 3, v0")
    g("v_lshl_add_u32 v14, v14, 3, v26")
    g("s_lshl_b32 s60, s3, 6")
    g("v_xor_b32 v14, s60, v14")
    g("v_xor_b32 v15, 32, v14")
    g("v_bfe_u32 v25, v0, 2, 2")
    g("v_lshlrev_b32 v28, 6, v25")
    g("v_lshl_add_u32 v28, v8, 4, v28")
    g(f"v_add_u32 v28, {L_OC}, v28")
    g("v_lshlrev_b32 v30, 14, v25")
    g("v_lshl_add_u32 v30, v8, 5, v30")
    g("v_and_b32 v16, 1, v0")
    g("v_lshl_add_u32 v30, v16, 4, v30")
    g("s_lshl_b32 s61, s4, 5")
    g("s_add_u32 s61, s61, s7")
    g("s_lshl_b32 s61, s61, 2")
    g("s_add_u32 s61, s61, s6")
    g("s_lshl_b32 s61, s61, 2")
    g("s_add_u32 s61, s61, s3")
    g("s_lshl_b32 s61, s61, 7")
    g(f"s_add_u32 s61, s61, {O_WS}")
    for r in range(80, 112):
        g(f"v_mov_b32 v{r}, 0")
    g("s_mov_b32 s63, 0")
    g("s_waitcnt lgkmcnt(0)")
    epoch(g, 31)
    setup = g.L[ld0:]; del g.L[ld0:]
    per = -(-nfirst // 3)
    for x in loads:
        g.L.append(x)
        if "buffer_load" in x:
            g.L.extend(setup[:per]); setup = setup[per:]
    assert not setup
    g.stamp(3)
    flagwait4(g, "L_px", 17, F_P, 36, pre=lambda: g(f"ds_read_b32 v46, v17 offset:{F_XC}"), sleep=0)
    g("s_mov_b32 exec_lo, 0x55555555")
    g("s_mov_b32 exec_hi, 0x55555555")
    for t in range(4):
        g(f"ds_read_b128 v[{80+4*t}:{83+4*t}], v28 offset:{256*t}")
    g("s_not_b64 exec, exec")
    for t in range(4):
        g(f"ds_read_b128 v[{96+4*t}:{99+4*t}], v28 offset:{256*t}")
    g("s_mov_b64 exec, -1")
    g("v_readfirstlane_b32 s65, v46")
    g.stamp(2)
    g(f"s_waitcnt vmcnt({TRL}) lgkmcnt(0)")
    g.stamp(5)
    g("s_cmp_eq_u32 s65, 1")
    g("s_barrier")
    g.stamp(7)
    for t in range(4):
        for p in range(2):
            r = 48 + 8*t + 4*p
            g(f"ds_read_b64_tr_b16 v[{r}:{r+1}], v{14+p} offset:{L_V + t*8192}")
            g(f"ds_read_b64_tr_b16 v[{r+2}:{r+3}], v{14+p} offset:{L_V + t*8192 + 4096}")
    for t in range(4):
        for p in range(2):
            r = 48 + 8*t + 4*p
            k = 2*t + p
            g(f"s_waitcnt lgkmcnt({14-2*k})")
            g(f"v_mfma_f32_16x16x32_bf16 v[36:39], v[{r}:{r+3}], v[{80+16*p+4*t}:{83+16*p+4*t}], {'0' if k == 0 else 'v[36:39]'}")
    g("s_mov_b32 exec_lo, 0x33333333")
    g("s_mov_b32 exec_hi, 0x33333333")
    g("s_nop 4")
    g("s_cbranch_scc0 L_opub_rem")
    for rem in (0, 1):
        if rem: g.label("L_opub_rem")
        for r in range(4):
            g(f"v_bfi_b32 v{36+r}, s{S_LO}, v31, v{36+r}")
        g(f"buffer_store_dwordx4 v[36:39], v30, {W}, s61 offen {SC if rem else ''}")
        if TRL: g("s_waitcnt vmcnt(1)")
        g(f"ds_write_b32 v18, v19 offset:{F_OP}")
        g.stamp(8)
        if opt.get("stamps"):
            g("s_add_u32 s3, s3, 4")
            g("s_branch L_end")
        else:
            g("s_endpgm")
    g.label("L_ln_done")
    if TOUCH:
        g("s_cmp_eq_u32 s3, 3")
        g("s_cbranch_scc0 L_w3b")
        g("s_mov_b64 exec, 0")
        g("s_branch L_chain1")
        g.label("L_w3b")
        g("s_mov_b64 exec, -1")
    tile_raddr(g, 4, 3)
    g(f"v_mov_b32 v17, {L_FL}")
    g("s_mov_b32 s63, 0")
    g("s_waitcnt vmcnt(0)")
    g(f"ds_write_b32 v9, v10 offset:{F_LNB}")
    g("s_cmp_eq_u32 s3, 1")
    g("s_cbranch_scc0 L_qk")
    g("s_cmp_eq_u32 s69, 0")
    g("s_cbranch_scc1 L_qk")
    g("s_and_b32 s6, s5, 7")
    g("v_and_b32 v15, 3, v0")
    selmasks(g, 15)
    g("v_lshrrev_b32 v13, 4, v0")
    g("v_bfe_u32 v16, v0, 2, 2")
    g(f"v_mul_u32_u24 v14, {XN_STR}, v16")
    g("v_lshl_add_u32 v14, v13, 4, v14")
    g("s_lshl_b32 s39, s6, 7")
    g(f"s_add_u32 s39, s39, {L_XN}")
    g("v_add_u32 v14, s39, v14")
    g("v_lshlrev_b32 v13, 4, v0")
    g(f"v_add_u32 v13, {L_HP}, v13")
    flagwait4(g, "L_w1w", 17, F_LNB, 20, sleep=1)
    g("ds_read_b128 v[80:83], v14")
    g("ds_read_b128 v[84:87], v14 offset:64")
    for t in range(2):
        for u in range(4):
            r = 24 + 16*t + 4*u
            g(f"ds_read_b64_tr_b16 v[{r}:{r+1}], v{4+u} offset:{L_W1 - 65536 + t*4096}")
            g(f"ds_read_b64_tr_b16 v[{r+2}:{r+3}], v{4+u} offset:{L_W1 - 65536 + t*4096 + 2048}")
    for t in range(2):
        for u in range(4):
            r = 24 + 16*t + 4*u
            g(f"s_waitcnt lgkmcnt({14 - 8*t - 2*u})")
            c = "0" if t == 0 else f"v[{64+4*u}:{67+4*u}]"
            g(f"v_mfma_f32_16x16x32_bf16 v[{64+4*u}:{67+4*u}], v[{r}:{r+3}], v[{80+4*t}:{83+4*t}], {c}")
    g("s_nop 3")
    select4(g, 56, 64, 11)
    g("ds_write_b128 v13, v[56:59]")
    g(f"ds_write_b32 v17, v10 offset:{F_H}")
    g.stamp(1)
    g.label("L_qk")
    g("s_lshr_b32 s6, s5, 3")
    g("s_and_b32 s7, s5, 7")
    g("v_lshrrev_b32 v8, 4, v0")
    g("v_and_b32 v12, 15, v0")
    g("v_xor_b32 v20, v8, v12")
    g("v_lshlrev_b32 v20, 4, v20")
    g("v_lshl_add_u32 v20, v12, 8, v20")
    g("s_lshl_b32 s39, s3, 13")
    g("v_add_u32 v20, s39, v20")
    for t in (1, 2, 3):
        g(f"v_xor_b32 v{20+t}, {64*t}, v20")
    g("v_lshrrev_b32 v13, 5, v0")
    g("v_and_b32 v14, 31, v0")
    g("v_lshlrev_b32 v24, 14, v13")
    g("v_lshl_add_u32 v24, v14, 4, v24")
    g("s_lshl_b32 s58, s4, 15")
    g("s_lshl_b32 s59, s6, 11")
    g("s_add_u32 s58, s58, s59")
    g("s_lshl_b32 s59, s3, 9")
    g("s_add_u32 s65, s58, s59")
    g(f"s_add_u32 s65, s65, {QA_WS}")
    g("v_lshlrev_b32 v25, 2, v13")
    g("v_and_b32 v15, 16, v0")
    g("v_lshl_add_u32 v25, v15, 3, v25")
    g("v_and_b32 v15, 12, v0")
    g("v_lshl_add_u32 v25, v15, 1, v25")
    g("v_and_b32 v15, 3, v0")
    g("v_lshl_add_u32 v25, v15, 5, v25")
    g(f"s_mul_i32 s39, s3, {QL_STR}")
    g(f"s_add_u32 s38, s39, {L_QL}")
    g("v_add_u32 v25, s38, v25")
    g("v_bfe_u32 v16, v0, 2, 2")
    g(f"v_mul_u32_u24 v26, {QL_STR}, v16")
    g("v_lshl_add_u32 v26, v8, 4, v26")
    g(f"v_add_u32 v26, {L_QL}, v26")
    g("v_lshlrev_b32 v29, 4, v16")
    g(f"v_add_u32 v29, {L_ML}, v29")
    g("s_lshl_b32 s38, s3, 2")
    g("v_add_u32 v27, s38, v29")
    g("v_lshlrev_b32 v28, 6, v16")
    g("v_lshl_add_u32 v28, v8, 4, v28")
    g("s_lshl_b32 s38, s3, 8")
    g(f"s_add_u32 s38, s38, {L_OC}")
    g("v_add_u32 v28, s38, v28")
    g("v_lshlrev_b32 v30, 9, v16")
    g("s_lshl_b32 s67, s4, 7")
    g("s_add_u32 s67, s67, s5")
    g("s_lshl_b32 s67, s67, 4")
    g(f"s_add_u32 s67, s67, {M_WS}")
    for r in range(4):
        g(f"v_mov_b32 v{32+r}, 0x3f803f80")
    g(f"s_mov_b32 s66, {hex(f2u(1.4426950408889634 / (128 ** 0.5)))}")
    g("s_mov_b32 s57, 0x11111111")
    g("s_lshl_b32 s56, s4, 2")
    g("s_add_u32 s56, s56, s6")
    g("v_lshlrev_b32 v103, 13, v13")
    g("v_lshl_add_u32 v103, v14, 4, v103")
    g("s_lshl_b32 s61, s56, 14")
    g("s_add_u32 s61, s61, s59")
    g(f"s_add_u32 s61, s61, {O_WS}")
    g("s_add_u32 s64, s61, 4096")
    g("v_lshl_add_u32 v104, v13, 2, v15")
    g("v_lshlrev_b32 v104, 4, v104")
    g("s_lshl_b32 s60, s56, 2")
    g("s_add_u32 s60, s60, s3")
    g("s_lshl_b32 s60, s60, 7")
    g(f"s_add_u32 s60, s60, {M_WS}")
    g("v_lshlrev_b32 v102, 2, v13")
    g("v_lshl_add_u32 v102, v14, 3, v102")
    g(f"s_add_u32 s39, s39, {L_OL}")
    g("v_add_u32 v102, s39, v102")
    g(f"v_mul_u32_u24 v101, {QL_STR}, v15")
    g("v_lshl_add_u32 v101, v8, 4, v101")
    g(f"v_add_u32 v101, {L_OL}, v101")
    g("s_lshl_b32 s39, s3, 5")
    g("v_xor_b32 v107, s39, v4")
    g("v_lshlrev_b32 v105, 4, v0")
    g("s_lshl_b32 s62, s7, 6")
    g("s_add_u32 s62, s62, s56")
    g("s_lshl_b32 s62, s62, 2")
    g("s_add_u32 s62, s62, s3")
    g("s_lshl_b32 s62, s62, 8")
    g(f"s_add_u32 s62, s62, {R3_WS}")
    g.stamp(3)
    flagwait1(g, "L_qw", 17, F_QP, 12)
    flagwait1(g, "L_kw", 9, F_K2 if opt.get("qt", 6) else F_K, 12)
    if opt.get("dq", 0): g(f"s_sleep {opt.get('dq', 0)}")
    g("s_and_b32 s63, s63, 0xffff")
    g("s_mov_b32 s58, s65")
    g("s_add_u32 s59, s58, 8192")
    g(f"buffer_load_dwordx4 v[36:39], v24, {W}, s58 offen {SC}")
    g(f"buffer_load_dwordx4 v[40:43], v24, {W}, s59 offen {SC}")
    if opt.get("qt", 6): flagwait1(g, "L_kv2", 9, F_K, 12)
    for tau in range(2):
        for t in range(4):
            r = 48 + 16*tau + 4*t
            g(f"ds_read_b128 v[{r}:{r+3}], v{20+t} offset:{4096*tau}")
    g.label("L_qc")
    g("s_waitcnt vmcnt(0)")
    tagcheck(g, list(range(36, 44)), 11, [44, 45, 46, 47])
    g("s_cbranch_vccz L_qok")
    g("s_add_u32 s63, s63, 1")
    g("s_bitcmp1_b32 s63, 15")
    g("s_cbranch_scc1 L_qok")
    g(f"ds_read_b32 v12, v17 offset:{F_XC}")
    g("s_waitcnt lgkmcnt(0)")
    g("v_readfirstlane_b32 s56, v12")
    g("s_nop 2")
    g("s_cmp_eq_u32 s56, 2")
    g(f"s_cselect_b32 s58, {QB_WS - QA_WS}, 0")
    g("s_add_u32 s58, s58, s65")
    g("s_add_u32 s59, s58, 8192")
    g(f"buffer_load_dwordx4 v[36:39], v24, {W}, s58 offen {SC}")
    g(f"buffer_load_dwordx4 v[40:43], v24, {W}, s59 offen {SC}")
    g("s_branch L_qc")
    g.label("L_qok")
    g.stamp(4)
    if opt.get("stamps"): g("s_and_b32 s96, s63, 0xff")
    g("v_pk_add_f32 v[36:37], v[36:37], v[40:41]")
    g("v_pk_add_f32 v[38:39], v[38:39], v[42:43]")
    g("s_nop 1")
    g("v_permlane32_swap_b32 v36, v38")
    g("v_permlane32_swap_b32 v37, v39")
    g("v_pk_add_f32 v[36:37], v[36:37], v[38:39]")
    g("v_cvt_pk_bf16_f32 v36, v36, v37")
    g("ds_write_b32 v25, v36")
    g(f"ds_write_b32 v9, v10 offset:{F_Q}")
    def qrd():
        for t in range(4):
            g(f"ds_read_b128 v[{80+4*t}:{83+4*t}], v26 offset:{64*t}")
    flagwait4(g, "L_qx", 17, F_Q, 36, pre=qrd, n=4)
    for t in range(4):
        g(f"s_waitcnt lgkmcnt({3-t})")
        for tau in range(2):
            r = 48 + 16*tau + 4*t
            c = "0" if t == 0 else f"v[{36+4*tau}:{39+4*tau}]"
            g(f"v_mfma_f32_16x16x32_bf16 v[{36+4*tau}:{39+4*tau}], v[{r}:{r+3}], v[{80+4*t}:{83+4*t}], {c}")
    g("s_nop 6")
    g("v_max3_f32 v44, v36, v37, v38")
    g("v_max3_f32 v45, v39, v40, v41")
    g("v_max3_f32 v44, v44, v42, v43")
    g("v_max_f32 v44, v44, v45")
    g("v_mov_b32 v45, v44")
    g("s_nop 1")
    g("v_permlane32_swap_b32 v44, v45")
    g("v_max_f32 v44, v44, v45")
    g("v_mov_b32 v45, v44")
    g("s_nop 1")
    g("v_permlane16_swap_b32 v44, v45")
    g("v_max_f32 v44, v44, v45")
    g("v_mul_f32 v44, s66, v44")
    g("s_mov_b64 exec, 0x1111")
    g("ds_write_b32 v27, v44")
    g("s_mov_b64 exec, -1")
    g.label("L_mx")
    g("ds_read_b128 v[48:51], v29")
    spin(g, "L_mxok", inc=0x10000, mx=0x7ff00000)
    g("s_waitcnt lgkmcnt(0)")
    g("v_max_u32 v45, v48, v49")
    g("v_max3_u32 v45, v45, v50, v51")
    g("v_cmp_eq_u32 vcc, -1, v45")
    g("s_cbranch_vccnz L_mx")
    g.label("L_mxok")
    g("v_max3_f32 v44, v48, v49, v50")
    g("v_max_f32 v44, v44, v51")
    g(f"v_bfi_b32 v44, s{S_LO}, v11, v44")
    for i in range(8):
        g(f"v_fma_f32 v{36+i}, v{36+i}, s66, -v44")
    for i in range(8):
        g(f"v_exp_f32 v{36+i}, v{36+i}")
    for i in range(4):
        g(f"v_cvt_pk_bf16_f32 v{36+i}, v{36+2*i}, v{37+2*i}")
    g("s_nop 1")
    g("v_mfma_f32_16x16x32_bf16 v[40:43], v[32:35], v[36:39], 0")
    g("s_mov_b32 exec_lo, s57")
    g("s_mov_b32 exec_hi, s57")
    g("ds_write_b128 v28, v[36:39]")
    g("s_mov_b64 exec, 0x1111")
    g("s_nop 3")
    g("ds_write_b32 v27, v40 offset:64")
    g("s_mov_b64 exec, -1")
    flagwait1(g, "L_xw", 17, F_XC, 12, sdst=56, sleep=0)
    g(f"ds_write_b32 v9, v10 offset:{F_P}")
    g.stamp(2)
    g("s_cmp_eq_u32 s3, 0")
    g("s_cbranch_scc0 L_wo_b3")
    flagwait4(g, "L_lx", 17, F_P, 36, pre=lambda: g("ds_read_b128 v[40:43], v29 offset:64"), n=0)
    g("v_pk_add_f32 v[40:41], v[40:41], v[42:43]")
    g("v_mov_b32 v46, v11")
    g("v_mov_b32 v47, v11")
    g("v_add_f32 v45, v40, v41")
    g("s_mov_b64 exec, 0x1111")
    g(f"v_bfi_b32 v45, s{S_LO}, v11, v45")
    g("s_cmp_eq_u32 s56, 1")
    g("s_cbranch_scc0 L_mlr")
    g(f"buffer_store_dwordx4 v[44:47], v30, {W}, s67 offen")
    g("s_branch L_ml1")
    g.label("L_mlr")
    g(f"buffer_store_dwordx4 v[44:47], v30, {W}, s67 offen {SC}")
    g.label("L_ml1")
    g("s_mov_b64 exec, -1")
    g.label("L_wo_b3")
    g("s_mov_b32 s63, 0")
    g("s_waitcnt lgkmcnt(0)")
    g("s_barrier")
    def oml():
        g(f"buffer_load_dwordx4 v[32:35], v104, {W}, s60 offen {SC}")
    def opl():
        g(f"buffer_load_dwordx4 v[40:43], v103, {W}, s61 offen {SC}")
        g(f"buffer_load_dwordx4 v[44:47], v103, {W}, s61 offen offset:2048 {SC}")
        g(f"buffer_load_dwordx4 v[48:51], v103, {W}, s64 offen {SC}")
        g(f"buffer_load_dwordx4 v[52:55], v103, {W}, s64 offen offset:2048 {SC}")
    oml()
    for t in range(4):
        g(f"ds_read_b64_tr_b16 v[{16+4*t}:{17+4*t}], v107 offset:{L_WO - 65536 + t*4096}")
        g(f"ds_read_b64_tr_b16 v[{18+4*t}:{19+4*t}], v107 offset:{L_WO - 65536 + t*4096 + 2048}")
    g(f"v_mov_b32 v106, {L_FL}")
    g("s_waitcnt vmcnt(0)")
    tagcheck(g, [32, 33, 34, 35], 11, [56, 57])
    g("s_cbranch_vccz L_o2")
    flagwait4(g, "L_wu", 106, F_OP, 36)
    g("s_mov_b32 s63, 0")
    g.label("L_o")
    oml()
    spin(g, "L_o2", inc=0x100, mx=SPIN_MAX*256)
    g("s_waitcnt vmcnt(0)")
    tagcheck(g, [32, 33, 34, 35], 11, [56, 57])
    g("s_cbranch_vccnz L_o")
    g.label("L_o2")
    g.stamp(5)
    g(f"v_max_f32_dpp v56, v32, v32 quad_perm:[1,0,3,2] {DPPM}")
    g("s_nop 1")
    g(f"v_max_f32_dpp v56, v56, v56 quad_perm:[2,3,0,1] {DPPM}")
    g("v_mov_b32 v57, v56")
    g("s_nop 1")
    g("v_permlane32_swap_b32 v56, v57")
    g("v_max_f32 v56, v56, v57")
    g("v_sub_f32 v32, v32, v56")
    g("v_exp_f32 v32, v32")
    g("s_nop 0")
    g("v_mul_f32 v57, v32, v33")
    g("s_nop 1")
    g(f"v_add_f32_dpp v57, v57, v57 quad_perm:[1,0,3,2] {DPPM}")
    g("s_nop 1")
    g(f"v_add_f32_dpp v57, v57, v57 quad_perm:[2,3,0,1] {DPPM}")
    g("v_mov_b32 v58, v57")
    g("s_nop 1")
    g("v_permlane32_swap_b32 v57, v58")
    g("v_add_f32 v57, v57, v58")
    g("v_rcp_f32 v57, v57")
    g("s_nop 0")
    g("v_mul_f32 v32, v32, v57")
    g("s_nop 1")
    for i in range(4):
        g(f"v_mov_b32_dpp v{64+2*i}, v32 quad_perm:[{i},{i},{i},{i}] {DPPM}")
    for i in range(4):
        g(f"v_mov_b32 v{65+2*i}, v{64+2*i}")
    flagwait4(g, "L_wt", 106, F_OP, 36)
    g("s_and_b32 s63, s63, 0xff00")
    g.stamp(6)
    if opt.get("d2", 0): g(f"s_sleep {opt['d2']}")
    g.label("L_o3")
    opl()
    g("s_add_u32 s63, s63, 1")
    g("s_bitcmp1_b32 s63, 24")
    g("s_cbranch_scc1 L_ook")
    g("s_waitcnt vmcnt(0)")
    if opt.get("omask", 1): g("s_mov_b64 exec, -1")
    tagcheck(g, list(range(40, 56)), 11, [56, 57, 58, 59, 36, 37, 38, 39])
    if opt.get("omask", 1):
        g("s_cbranch_vccz L_ook")
        g("s_mov_b64 exec, vcc")
        g("s_branch L_o3")
    else:
        g("s_cbranch_vccnz L_o3")
    g.label("L_ook")
    g.stamp(7)
    g("v_pk_mul_f32 v[36:37], v[64:65], v[40:41]")
    g("v_pk_mul_f32 v[38:39], v[64:65], v[42:43]")
    for i in range(1, 4):
        g(f"v_pk_fma_f32 v[36:37], v[{64+2*i}:{65+2*i}], v[{40+4*i}:{41+4*i}], v[36:37]")
        g(f"v_pk_fma_f32 v[38:39], v[{64+2*i}:{65+2*i}], v[{42+4*i}:{43+4*i}], v[38:39]")
    g("s_nop 1")
    g("v_permlane32_swap_b32 v36, v38")
    g("v_permlane32_swap_b32 v37, v39")
    g("v_pk_add_f32 v[36:37], v[36:37], v[38:39]")
    g("v_cvt_pk_bf16_f32 v36, v36, v37")
    g("ds_write_b32 v102, v36")
    g("s_waitcnt lgkmcnt(0)")
    g("s_barrier")
    for t in range(4):
        g(f"ds_read_b128 v[{40+4*t}:{43+4*t}], v101 offset:{64*t}")
    for t in range(4):
        g(f"s_waitcnt lgkmcnt({3-t})")
        c = "0" if t == 0 else "v[32:35]"
        g(f"v_mfma_f32_16x16x32_bf16 v[32:35], v[{40+4*t}:{43+4*t}], v[{16+4*t}:{19+4*t}], {c}")
    g("s_mov_b64 exec, 0xffff")
    g("s_nop 6")
    for u in range(4):
        g(f"v_bfi_b32 v{32+u}, s{S_LO}, v11, v{32+u}")
    g(f"buffer_store_dwordx4 v[32:35], v105, {W}, s62 offen {SC}")
    g.stamp(8)
    if opt.get("stamps"):
        g("s_lshl_b32 s96, s96, 16")
        g("s_and_b32 s63, s63, 0xffff")
        g("s_or_b32 s63, s63, s96")
    g("s_branch L_end" if opt.get("stamps") else "s_endpgm")
    g.label("L_w8")
    g.srd(SRD_B, P_B1, 1792*2)
    g("s_and_b32 s6, s5, 7")
    g("v_lshrrev_b32 v12, 4, v0")
    g("v_and_b32 v13, 3, v0")
    g("v_bfe_u32 v14, v0, 2, 2")
    selmasks(g, 12)
    g("v_lshlrev_b32 v8, 5, v13")
    g("v_lshl_add_u32 v8, v14, 3, v8")
    g("s_lshl_b32 s57, s68, 7")
    g(f"v_mul_u32_u24 v9, {HL_STR}, v12")
    g("v_lshl_add_u32 v9, v14, 4, v9")
    g("v_and_b32 v14, 2, v0")
    g("v_lshl_add_u32 v9, v14, 5, v9")
    g("v_cmp_ne_u32 s[60:61], 0, v14")
    g("v_and_b32 v15, 1, v0")
    g("v_lshl_add_u32 v9, v15, 3, v9")
    g(f"v_add_u32 v9, {L_HL}, v9")
    g(f"v_mul_u32_u24 v19, {HL_STR}, v13")
    g("v_lshl_add_u32 v19, v12, 4, v19")
    g(f"v_add_u32 v19, {L_HL}, v19")
    g("s_lshl_b32 s58, s68, 13")
    g(f"s_add_u32 s58, s58, {H_WS}")
    g("s_add_u32 s59, s58, 4096")
    g("v_lshlrev_b32 v10, 4, v0")
    g("s_add_u32 s39, s4, 24")
    g("s_cmp_eq_u32 s69, 0")
    g("s_cselect_b32 s39, s39, s68")
    g("s_lshl_b32 s62, s6, 6")
    g("s_add_u32 s62, s62, s39")
    g("s_add_u32 s62, s62, 32")
    g("s_lshl_b32 s62, s62, 10")
    g(f"s_add_u32 s62, s62, {R3_WS}")
    g("v_lshrrev_b32 v3, 1, v0")
    g("v_lshlrev_b32 v3, 10, v3")
    g("v_lshl_add_u32 v3, v15, 4, v3")
    g("s_lshl_b32 s64, s4, 16")
    g("s_lshl_b32 s39, s5, 5")
    g("s_add_u32 s64, s64, s39")
    g(f"s_add_u32 s64, s64, {R3_WS}")
    g("s_add_u32 s65, s64, 32768")
    g("v_and_b32 v16, 1, v12")
    g("v_add_u32 v16, v16, v14")
    g("v_lshlrev_b32 v1, 1, v15")
    g("v_lshl_add_u32 v16, v16, 10, v1")
    g("s_lshl_b32 s66, s4, 7")
    g("s_lshl_b32 s39, s5, 2")
    g("s_add_u32 s66, s66, s39")
    g(f"buffer_load_dwordx2 v[20:21], v8, s[{SRD_B}:{SRD_B+3}], s57 offen")
    g.srd(SRD_B, P_B2, 1024)
    g(f"buffer_load_ushort v17, v16, s[{SRD_C}:{SRD_C+3}], s66 offen")
    g(f"buffer_load_ushort v18, v1, s[{SRD_B}:{SRD_B+3}], s66 offen")
    g.srd(SRD_A, P_OUT, 4096)
    g(f"s_mov_b32 s57, {hex(f2u(-1.4426950408889634))}")
    g(f"v_mov_b32 v2, {L_FL}")
    for r in range(4):
        g(f"v_mov_b32 v{96+r}, v11")
    g("s_mov_b32 s63, 0")
    g("s_cmp_eq_u32 s69, 0")
    g("s_cbranch_scc0 L_w8_u")
    g(f"buffer_store_dwordx4 v[96:99], v10, {W}, s62 offen {SC}")
    g("s_barrier")
    g("s_branch L_w8_fin")
    g.label("L_w8_u")
    g(f"s_sleep {opt.get('dh', 36)}")
    def hld():
        for kp in range(8):
            g(f"buffer_load_dwordx4 v[{56+4*kp}:{59+4*kp}], v10, {W}, s{58+(kp>>2)} offen offset:{(kp&3)*1024} {SC}")
    if not opt.get("nohg"): hld()
    g("s_barrier")
    g.label("L_h")
    g("s_waitcnt vmcnt(0)")
    g("v_lshlrev_b32 v88, 16, v20")
    g("v_and_b32 v89, 0xffff0000, v20")
    g("v_lshlrev_b32 v90, 16, v21")
    g("v_and_b32 v91, 0xffff0000, v21")
    tagcheck(g, list(range(56, 88)), 11, list(range(100, 116)))
    g("s_cbranch_vccz L_hok")
    spin(g, "L_hok")
    hld()
    g("s_branch L_h")
    g.label("L_hok")
    g.stamp(5)
    for (a, b) in ((56, 60), (64, 68), (72, 76), (80, 84), (56, 64), (72, 80), (56, 72)):
        g(f"v_pk_add_f32 v[{a}:{a+1}], v[{a}:{a+1}], v[{b}:{b+1}]")
        g(f"v_pk_add_f32 v[{a+2}:{a+3}], v[{a+2}:{a+3}], v[{b+2}:{b+3}]")
    def unp():
        g("v_cvt_pk_bf16_f32 v60, v56, v57")
        g("v_cvt_pk_bf16_f32 v61, v58, v59")
        g("v_lshlrev_b32 v56, 16, v60")
        g("v_and_b32 v57, 0xffff0000, v60")
        g("v_lshlrev_b32 v58, 16, v61")
        g("v_and_b32 v59, 0xffff0000, v61")
    unp()
    g("v_pk_add_f32 v[56:57], v[56:57], v[88:89]")
    g("v_pk_add_f32 v[58:59], v[58:59], v[90:91]")
    unp()
    for i in range(4):
        g(f"v_max_f32 v{56+i}, 0, v{56+i}")
    g("v_pk_mul_f32 v[56:57], v[56:57], v[56:57]")
    g("v_pk_mul_f32 v[58:59], v[58:59], v[58:59]")
    g("v_cvt_pk_bf16_f32 v60, v56, v57")
    g("v_cvt_pk_bf16_f32 v61, v58, v59")
    g("ds_write_b64 v9, v[60:61]")
    g("ds_read_b128 v[64:67], v19")
    g("ds_read_b128 v[68:71], v19 offset:64")
    if opt.get("trl", 2): flagwait4(g, "L_w2w", 2, F_OP, 72)
    g.stamp(4)
    for t in range(2):
        for u in range(4):
            r = 24 + 16*t + 4*u
            g(f"ds_read_b64_tr_b16 v[{r}:{r+1}], v{4+u} offset:{L_W2 - 65536 + t*4096}")
            g(f"ds_read_b64_tr_b16 v[{r+2}:{r+3}], v{4+u} offset:{L_W2 - 65536 + t*4096 + 2048}")
    for t in range(2):
        for u in range(4):
            g(f"s_waitcnt lgkmcnt({14 - 8*t - 2*u})")
            r = 24 + 16*t + 4*u
            d = 72 + 4*u
            c = "0" if t == 0 else f"v[{d}:{d+3}]"
            g(f"v_mfma_f32_16x16x32_bf16 v[{d}:{d+3}], v[{64+4*t}:{67+4*t}], v[{r}:{r+3}], {c}")
    g("s_nop 3")
    select4(g, 96, 72, 11)
    g.stamp(6)
    g("s_barrier")
    g(f"buffer_store_dwordx4 v[96:99], v10, {W}, s62 offen {SC}")
    g("s_branch L_w8_f2")
    g.label("L_w8_fin")
    g.stamp(6)
    g("s_barrier")
    g.label("L_w8_f2")
    g("s_mov_b32 s63, 0")
    g("s_waitcnt vmcnt(1)")
    g("v_lshlrev_b32 v17, 16, v17")
    g("v_lshlrev_b32 v18, 16, v18")
    if opt.get("df", 14):
        g(f"s_sleep {opt.get('df', 14)}")
    g.label("L_f")
    g(f"buffer_load_dwordx4 v[24:27], v3, {W}, s64 offen {SC}")
    g(f"buffer_load_dwordx4 v[40:43], v3, {W}, s65 offen {SC}")
    spin(g, "L_fok")
    g("s_waitcnt vmcnt(0)")
    tagcheck(g, [24, 25, 26, 27, 40, 41, 42, 43], 11, list(range(44, 48)))
    g("s_cbranch_vccnz L_f")
    g.label("L_fok")
    g.stamp(7)
    for i in range(4):
        g(f"v_permlane32_swap_b32 v{24+i}, v{40+i}")
    g("v_pk_add_f32 v[24:25], v[24:25], v[40:41]")
    g("v_pk_add_f32 v[26:27], v[26:27], v[42:43]")
    g("s_nop 0")
    g("v_permlane16_swap_b32 v24, v25")
    g("v_permlane16_swap_b32 v26, v27")
    g("v_add_f32 v24, v24, v25")
    g("v_add_f32 v26, v26, v27")
    for c in ("row_ror:8", "row_ror:4", "row_ror:2"):
        g("s_nop 0")
        g(f"v_add_f32_dpp v24, v24, v24 {c} {DPPM}")
        g(f"v_add_f32_dpp v26, v26, v26 {c} {DPPM}")
    g("v_cndmask_b32 v24, v24, v26, s[60:61]")
    rnd(g, 24, 24)
    g("v_add_f32 v25, v24, v18")
    rnd(g, 25, 25)
    g("v_mul_f32 v26, s57, v25")
    g("v_exp_f32 v26, v26")
    g("s_nop 0")
    g("v_add_f32 v26, 1.0, v26")
    g("v_rcp_f32 v26, v26")
    g("s_nop 0")
    g("v_mul_f32 v26, v25, v26")
    rnd(g, 26, 26)
    g("s_nop 1")
    g("v_permlane32_swap_b32 v26, v27")
    g("s_mov_b32 exec_lo, 0x000f000f")
    g("s_mov_b32 exec_hi, 0")
    g("v_mul_f32 v24, v24, v27")
    rnd(g, 24, 24)
    g("v_add_f32 v24, v24, v17")
    g("v_cvt_pk_bf16_f32 v24, v24, v24")
    g(f"buffer_store_short v24, v16, s[{SRD_A}:{SRD_A+3}], s66 offen")
    g.stamp(8)
    g("s_cmp_eq_u32 s2, 0")
    g("s_cbranch_scc0 L_end")
    g(f"v_mov_b32 v24, s{S_E1}")
    g("v_mov_b32 v25, 0")
    g("s_mov_b64 exec, 1")
    g(f"buffer_store_dword v24, v25, {W}, 0 offen")
    if opt.get("hold"):
        g.label("L_hold")
        g("s_memrealtime s[72:73]")
        g("s_waitcnt lgkmcnt(0)")
        g("s_sub_u32 s72, s72, s70")
        g(f"s_cmp_lt_u32 s72, {opt['hold']}")
        g("s_cbranch_scc1 L_hold")
    g.label("L_end")
    if opt.get("stamps"):
        g("s_memrealtime s[88:89]")
        g("s_waitcnt lgkmcnt(0)")
        g("s_mov_b64 exec, 1")
        g("s_mul_i32 s38, s2, 9")
        g("s_add_u32 s38, s38, s3")
        g("s_lshl_b32 s38, s38, 6")
        g(f"s_add_u32 s38, s38, {ST_WS}")
        for k in range(10):
            g(f"v_mov_b32 v{4+k}, s{70+2*k}")
        g("v_mov_b32 v14, s63")
        g("v_mov_b32 v15, 0")
        g("v_mov_b32 v1, 0")
        g(f"buffer_store_dwordx4 v[4:7], v1, {W}, s38 offen")
        g(f"buffer_store_dwordx4 v[8:11], v1, {W}, s38 offen offset:16")
        g(f"buffer_store_dwordx4 v[12:15], v1, {W}, s38 offen offset:32")
    g.label("L_exit")
    lines = [x for x in g.L if x.strip()]
    return finish(lines, opt)

def finish(lines, opt):
    if not opt.get("touch", 1):
        return G1.text(lines)
    sz = _sizes(lines)
    out = []; pos = 0; nxt = 1024; n = 0
    for l, z in zip(lines, sz):
        if z and pos >= nxt:
            assert pos - nxt <= 56
            out.append(None); n += 1; pos += 4; nxt += 1024
        out.append(l); pos += z
    first = opt.get("pad0", 1)
    split = opt.get("pad1", 4)
    res = []; k = 0
    for l in out:
        if l is None:
            tgt = "L_w8b" if k + 1 == split else (f"L_pad{k+1}" if k + 1 < n else "L_w3b")
            if k == first: res.append("L_chain0:")
            if k == split: res.append("L_chain1:")
            res.append(f"L_pad{k}:")
            res.append(f"    s_cbranch_execz {tgt}")
            k += 1
        else:
            res.append(l)
    return G1.text(res)

if __name__ == "__main__":
    out = sys.argv[1]
    opt = {}
    for a in sys.argv[2:]:
        k, v = a.split("=")
        try: v = int(v)
        except ValueError: pass
        opt[k] = v
    open(out, "w").write(gen(opt))
```

```python
import sys, struct
from gen import f2u, G, tagcheck, rnd, wave_sum, tile_voff, tile_raddr, tile_dma, NAME, sizes as _sizes
import gen as G1

QA_WS  = 0x8000
QB_WS  = 0x48000
XC_WS  = 0x200000
M_WS   = 0x4000
H_WS   = 0x88000
O_WS   = 0xC0000
R3_WS  = 0x140000
ST_WS  = 0x300000
WS_BYTES = 0x400000

L_K, L_V, L_WQ, L_WO, L_W1, L_W2, L_XN = 0, 32768, 65536, 81920, 98304, 106496, 114688
XN_STR = 1088
L_QL = L_XN + 4352
QL_STR = 320
L_OC = L_QL + 1280
OC_H, OC_W = 528, 2112
L_ML = L_OC + 8448
L_FL = L_ML + 128
L_OL = L_FL + 192
L_HL = L_OL + 1280
HL_STR = 192
LDS_BYTES = L_HL + 768
G1.LDS_BYTES = LDS_BYTES

P_X, P_K, P_V, P_WQ, P_WO, P_BX, P_W1, P_B1, P_W2, P_B2, P_OUT, P_DBG, P_WS = 8, 10, 12, 14, 16, 18, 20, 22, 24, 26, 28, 30, 32
S_E, S_T, S_E1, S_LO = 34, 35, 36, 37
SRD_A, SRD_B, SRD_W, SRD_C = 40, 44, 48, 52
SPIN_MAX = 1 << 16
W = f"s[{SRD_W}:{SRD_W+3}]"
SC = "sc1"
DPPM = "row_mask:0xf bank_mask:0xf"

def epoch(g, vT):
    g(f"s_add_u32 s{S_E1}, s{S_E}, 1")
    g(f"s_and_b32 s{S_T}, s{S_E1}, s{S_LO}")
    g(f"v_mov_b32 v{vT}, s{S_T}")

def spin(g, lab_out, inc=1, mx=SPIN_MAX):
    g(f"s_add_u32 s63, s63, {inc}")
    g(f"s_cmp_gt_u32 s63, {mx}")
    g(f"s_cbranch_scc1 {lab_out}")

def selmasks(g, vsel):
    for k in (1, 2, 3):
        g(f"v_cmp_eq_u32 s[{88+2*k}:{89+2*k}], {k}, v{vsel}")

def select4(g, d, D, vT):
    for k in (1, 2, 3):
        for r in range(4):
            src = D + r if k == 1 else d + r
            g(f"v_cndmask_b32 v{d+r}, v{src}, v{D+4*k+r}, s[{88+2*k}:{89+2*k}]")
    for r in range(4):
        g(f"v_bfi_b32 v{d+r}, s{S_LO}, v{vT}, v{d+r}")

def ffn_ids(g):
    g("s_lshr_b32 s7, s5, 3")
    g("s_mul_i32 s68, s4, 3")
    g("s_min_u32 s69, s4, 4")
    g("s_add_u32 s68, s68, s69")
    g("s_add_u32 s68, s68, s7")
    g("s_cmp_lt_u32 s4, 4")
    g("s_cselect_b32 s69, 4, 3")
    g("s_cmp_lt_u32 s7, s69")
    g("s_cselect_b32 s69, 1, 0")


def flagwait4(g, lab, vbase, off, tmp, pre=None, n=0, sleep=0):
    g.label(lab)
    if sleep: g(f"s_sleep {sleep}")
    g(f"ds_read_b128 v[{tmp}:{tmp+3}], v{vbase} offset:{off}")
    if pre: pre()
    spin(g, lab + "ok", inc=0x10000, mx=0x7ff00000)
    g(f"s_waitcnt lgkmcnt({n})")
    g(f"v_and_b32 v{tmp}, v{tmp}, v{tmp+1}")
    g(f"v_and_b32 v{tmp+2}, v{tmp+2}, v{tmp+3}")
    g(f"v_and_b32 v{tmp}, v{tmp}, v{tmp+2}")
    g(f"v_cmp_eq_u32 vcc, 0, v{tmp}")
    g(f"s_cbranch_vccnz {lab}")
    g.label(lab + "ok")

def flagwait1(g, lab, vbase, off, tmp, sdst=None, sleep=1):
    g.label(lab)
    if sleep: g(f"s_sleep {sleep}")
    g(f"ds_read_b32 v{tmp}, v{vbase} offset:{off}")
    spin(g, lab + "ok", inc=0x10000, mx=0x7ff00000)
    g("s_waitcnt lgkmcnt(0)")
    g(f"v_cmp_eq_u32 vcc, 0, v{tmp}")
    g(f"s_cbranch_vccnz {lab}")
    g.label(lab + "ok")
    if sdst is not None: g(f"v_readfirstlane_b32 s{sdst}, v{tmp}")

F_LNA, F_XC, F_QP, F_H, F_OP, F_Q, F_LNB, F_P, F_K, F_K2, F_WO, F_V1 = 0, 16, 20, 24, 32, 48, 64, 80, 96, 112, 128, 144
L_HP = L_OC + 2048

def gen(opt):
    g = G(opt)
    NT = opt.get("nt", "nt")
    XF = opt.get("xflags", "")
    THR = opt.get("thr", 3)
    THR2 = opt.get("thr2", 6)
    THR3 = opt.get("thr3", THR2)
    TOUCH = opt.get("touch", 1)
    PWF = opt.get("pwf", "")
    g.stamp(0)
    if opt.get("hold"): g("s_memrealtime s[70:71]")
    g("s_cmp_ge_u32 s2, 256")
    g("s_cbranch_scc1 L_exit")
    g("s_load_dwordx16 s[8:23], s[0:1], 0")
    g("s_load_dwordx8 s[24:31], s[0:1], 64")
    g("s_load_dwordx2 s[32:33], s[0:1], 96")
    g("v_lshrrev_b32 v1, 6, v0")
    g("v_and_b32 v0, 63, v0")
    g("v_readfirstlane_b32 s3, v1")
    g("s_and_b32 s4, s2, 7")
    g("s_lshr_b32 s5, s2, 3")
    g(f"s_movk_i32 s{S_LO}, 0x3ff")
    g("s_cmp_lt_u32 s3, 4")
    g("s_cbranch_scc0 L_notln")
    g("v_lshlrev_b32 v12, 4, v0")
    g("s_lshl_b32 s39, s3, 10")
    tile_voff(g, 2, 3, 8192)
    g("s_lshr_b32 s7, s5, 3")
    g("s_lshl_b32 s38, s7, 20")
    g("s_lshl_b32 s56, s3, 18")
    g("s_add_u32 s38, s38, s56")
    g("s_lshl_b32 s56, s4, 10")
    g("s_add_u32 s38, s38, s56")
    g("s_and_b32 s56, s5, 7")
    g("s_lshl_b32 s56, s56, 7")
    g("s_add_u32 s38, s38, s56")
    g("s_lshl_b32 s56, s3, 12")
    g(f"s_mov_b32 s{SRD_C+2}, 4096")
    g(f"s_mov_b32 s{SRD_C+3}, 0x20000")
    g(f"s_mov_b32 s{SRD_A+2}, {hex(512*4096*2)}")
    g(f"s_mov_b32 s{SRD_A+3}, 0x20000")
    g("s_waitcnt lgkmcnt(0)")
    g(f"s_mov_b32 s{SRD_C}, s{P_X}")
    g(f"s_mov_b32 s{SRD_C+1}, s{P_X+1}")
    g(f"buffer_load_dwordx4 v[4:7], v12, s[{SRD_C}:{SRD_C+3}], s39 offen {XF}")
    g(f"s_mov_b32 s{SRD_A}, s{P_WQ}")
    g(f"s_mov_b32 s{SRD_A+1}, s{P_WQ+1}")
    tile_dma(g, 4, 2, SRD_A, 38, (56, L_WQ), 8192, NT)
    g("s_barrier")
    g("s_branch L_ln")
    g.label("L_notln")
    g("s_cmp_eq_u32 s3, 8")
    g("s_cbranch_scc0 L_kv")
    if opt.get("cpf", 1):
        g("s_getpc_b64 s[64:65]")
        g.label("L_pc")
        g("s_and_b32 s6, s5, 7")
        g(f"s_mul_i32 s6, s6, {22*64}")
        g(f"s_sub_u32 s6, s6, L_pc-{NAME}_kernel")
        g("s_ashr_i32 s7, s6, 31")
        g("s_add_u32 s64, s64, s6")
        g("s_addc_u32 s65, s65, s7")
        g("v_lshlrev_b32 v3, 6, v0")
        g("s_mov_b64 exec, 0x3fffff")
        g("global_load_dword v125, v3, s[64:65]")
        g("s_mov_b64 exec, -1")
    g("v_lshlrev_b32 v3, 2, v0")
    g(f"v_add_u32 v3, {L_ML}, v3")
    g("v_cmp_gt_u32 vcc, 16, v0")
    g("s_nop 1")
    g("v_cndmask_b32 v4, 0, -1, vcc")
    g("ds_write_b32 v3, v4")
    g("v_mov_b32 v4, 0")
    g("s_mov_b64 exec, 0xffff")
    g("ds_write_b32 v3, v4 offset:256")
    g("s_mov_b64 exec, -1")
    g("s_waitcnt lgkmcnt(0)")
    g(f"s_load_dword s{S_E}, s[{P_WS}:{P_WS+1}], 0")
    g("s_barrier")
    g("s_branch L_w0")
    g.label("L_kv")
    g("s_sub_u32 s3, s3, 4")
    g("v_lshrrev_b32 v8, 4, v0")
    g("v_and_b32 v9, 15, v0")
    g("v_xor_b32 v2, v9, v8")
    g("v_lshlrev_b32 v2, 4, v2")
    g("v_lshl_add_u32 v2, v8, 8, v2")
    for i in (1, 2, 3):
        g(f"v_xor_b32 v{2+i}, {64*i}, v2")
    g("s_lshr_b32 s6, s5, 3")
    g("s_and_b32 s7, s5, 7")
    g("s_lshl_b32 s38, s6, 3")
    g("s_add_u32 s38, s38, s4")
    g("s_lshl_b32 s38, s38, 20")
    g("s_lshl_b32 s56, s3, 10")
    g("s_add_u32 s38, s38, s56")
    g(f"s_add_u32 s38, s38, {768*1024}")
    g("s_lshl_b32 s56, s3, 13")
    g("s_lshl_b32 s64, s7, 12")
    g("s_mov_b32 s66, s38")
    g(f"s_mov_b32 s{SRD_A+2}, {hex(4*8*4096*128*2)}")
    g(f"s_mov_b32 s{SRD_A+3}, 0x20000")
    g("s_waitcnt lgkmcnt(0)")
    g(f"s_mov_b32 s{SRD_A}, s{P_K}")
    g(f"s_mov_b32 s{SRD_A+1}, s{P_K+1}")
    B0L = opt.get("b0l", 0)
    if not B0L:
        g(f"s_load_dword s{S_E}, s[{P_WS}:{P_WS+1}], 0")
        g("s_barrier")
    g.stamp(1)
    def kvld(i, isv, th):
        if i % 4 == 0: g(f"s_add_u32 m0, s56, {(L_V if isv else L_K) + i*1024}")
        g("s_add_u32 s39, s64, s66")
        g("s_add_u32 s64, s64, 4096")
        g("s_and_b32 s64, s64, 0x7000")
        g(f"s_add_u32 s66, s66, {32768 + (3072 if i % 4 == 3 else -1024)}")
        if th: g(f"s_waitcnt vmcnt({th-1})")
        vo = 6 + (i & 1) if isv else 2 + (i & 3)
        g(f"buffer_load_dwordx4 v{vo}, s[{SRD_A}:{SRD_A+3}], s39 offen offset:{(i&3)*1024} {NT} lds")
    for i in range(8):
        if B0L and i == THR:
            g(f"s_load_dword s{S_E}, s[{P_WS}:{P_WS+1}], 0")
            g("s_barrier")
        kvld(i, 0, THR if i >= THR else 0)
    g("s_branch L_att")
    g.label("L_ln")
    ffn_ids(g)
    g(f"s_mov_b32 s{SRD_B+3}, 0x20000")
    g(f"s_mul_i32 s{SRD_B+2}, s69, {512*1792*2}")
    g("v_lshrrev_b32 v3, 3, v0")
    g(f"v_mul_u32_u24 v3, {8192-3584}, v3")
    g("v_sub_u32 v2, v2, v3")
    g("s_and_b32 s38, s5, 7")
    g("s_lshl_b32 s38, s38, 2")
    g("s_add_u32 s38, s38, s3")
    g(f"s_mul_i32 s38, s38, {16*3584}")
    g("s_lshl_b32 s39, s68, 7")
    g("s_add_u32 s38, s38, s39")
    g("s_lshl_b32 s56, s3, 11")
    g(f"s_mov_b32 s{SRD_B}, s{P_W1}")
    g(f"s_mov_b32 s{SRD_B+1}, s{P_W1+1}")
    tile_dma(g, 2, 2, SRD_B, 38, (56, L_W1), 3584, NT)
    g(f"s_load_dword s{S_E}, s[{P_WS}:{P_WS+1}], 0")
    g.srd(SRD_W, P_WS, WS_BYTES)
    g("v_lshrrev_b32 v2, 2, v0")
    g("v_lshlrev_b32 v2, 6, v2")
    g("v_and_b32 v3, 1, v0")
    g("v_lshl_add_u32 v2, v3, 5, v2")
    g("v_and_b32 v3, 2, v0")
    g("v_lshl_add_u32 v2, v3, 2, v2")
    g(f"s_mul_i32 s38, s3, {XN_STR}")
    g(f"s_add_u32 s38, s38, {L_XN}")
    g("v_add_u32 v2, s38, v2")
    g("s_lshl_b32 s38, s3, 2")
    g(f"s_add_u32 s38, s38, {L_FL}")
    g("v_mov_b32 v9, s38")
    g("v_mov_b32 v10, 1")
    g(f"v_mov_b32 v21, {hex(f2u(1.0/512))}")
    g("s_waitcnt vmcnt(6)")
    g.stamp(1)
    for i in range(4):
        g(f"v_lshlrev_b32 v{12+2*i}, 16, v{4+i}")
        g(f"v_and_b32 v{13+2*i}, 0xffff0000, v{4+i}")
    g("v_pk_add_f32 v[22:23], v[12:13], v[14:15]")
    g("v_pk_add_f32 v[24:25], v[16:17], v[18:19]")
    g("v_pk_add_f32 v[22:23], v[22:23], v[24:25]")
    g("v_add_f32 v20, v22, v23")
    wave_sum(g, 20, 38)
    g("s_nop 1")
    g("v_mul_f32 v20, s38, v21")
    for i in range(8):
        g(f"v_sub_f32 v{24+i}, v{12+i}, v20")
    g("v_mul_f32 v22, v24, v24")
    g("v_mul_f32 v23, v25, v25")
    for i in range(1, 4):
        g(f"v_fmac_f32 v22, v{24+2*i}, v{24+2*i}")
        g(f"v_fmac_f32 v23, v{25+2*i}, v{25+2*i}")
    g("v_add_f32 v22, v22, v23")
    wave_sum(g, 22, 38)
    rnd(g, 20, 20)
    g("v_mul_f32 v22, s38, v21")
    rnd(g, 22, 22)
    g(f"v_add_f32 v22, {hex(f2u(1e-5))}, v22")
    rnd(g, 22, 22)
    g("v_sqrt_f32 v22, v22")
    for i in range(8):
        g(f"v_sub_f32 v{12+i}, v{12+i}, v20")
    rnd(g, 22, 22)
    g("v_rcp_f32 v22, v22")
    for i in range(4):
        g(f"v_cvt_pk_bf16_f32 v{4+i}, v{12+2*i}, v{13+2*i}")
    for i in range(4):
        g(f"v_lshlrev_b32 v{12+2*i}, 16, v{4+i}")
        g(f"v_and_b32 v{13+2*i}, 0xffff0000, v{4+i}")
    for i in range(8):
        g(f"v_mul_f32 v{12+i}, v{12+i}, v22")
    for i in range(4):
        g(f"v_cvt_pk_bf16_f32 v{4+i}, v{12+2*i}, v{13+2*i}")
    g("ds_write2_b64 v2, v[4:5], v[6:7] offset0:0 offset1:2")
    g("s_waitcnt vmcnt(2)")
    g(f"ds_write_b32 v9, v10 offset:{F_LNA}")
    g.stamp(2)
    g("s_waitcnt lgkmcnt(0)")
    epoch(g, 11)
    g("s_branch L_ln_done")
    g.label("L_w0")
    g.srd(SRD_W, P_WS, WS_BYTES)
    g("s_getreg_b32 s57, hwreg(HW_REG_XCC_ID, 0, 3)")
    g("s_lshl_b32 s58, s4, 5")
    g("s_add_u32 s58, s58, s5")
    g("s_lshl_b32 s67, s58, 10")
    g("s_lshl_b32 s58, s58, 2")
    g(f"s_add_u32 s58, s58, {XC_WS}")
    g("v_mov_b32 v16, 0")
    g(f"s_add_u32 s56, s67, {QA_WS}")
    g("v_lshlrev_b32 v1, 4, v0")
    if opt.get("prew", 1): g(f"buffer_load_dwordx4 v[124:127], v1, {W}, s56 offen {PWF}")
    g("s_waitcnt lgkmcnt(0)")
    epoch(g, 11)
    g(f"s_lshl_b32 s56, s{S_E1}, 3")
    g("s_or_b32 s57, s57, s56")
    g("v_mov_b32 v12, s57")
    g("s_mov_b64 exec, 1")
    if not opt.get("noxc"): g(f"buffer_store_dword v12, v16, {W}, s58 offen {SC}")
    if TOUCH:
        g("s_mov_b64 exec, 0")
        g("s_branch L_chain0")
        g.label("L_w8b")
    g("s_mov_b64 exec, -1")
    g.srd(SRD_C, P_X, 4096)
    ffn_ids(g)
    g("s_lshr_b32 s6, s5, 3")
    g("s_and_b32 s7, s5, 7")
    tile_raddr(g, 4, 3)
    g("v_bfe_u32 v10, v0, 2, 2")
    g(f"v_mul_u32_u24 v8, {XN_STR}, v10")
    g("v_lshrrev_b32 v9, 4, v0")
    g("v_lshl_add_u32 v8, v9, 4, v8")
    g("s_lshl_b32 s39, s6, 8")
    g(f"s_add_u32 s39, s39, {L_XN}")
    g("v_add_u32 v8, s39, v8")
    g("v_lshlrev_b32 v10, 11, v10")
    g("v_lshl_add_u32 v10, v9, 6, v10")
    g("v_and_b32 v9, 3, v0")
    g("v_lshl_add_u32 v10, v9, 4, v10")
    selmasks(g, 9)
    g("s_lshl_b32 s38, s4, 15")
    g("s_lshl_b32 s39, s6, 13")
    g("s_add_u32 s38, s38, s39")
    g("s_lshl_b32 s39, s7, 8")
    g("s_add_u32 s38, s38, s39")
    g(f"s_add_u32 s39, s38, {QB_WS}")
    g(f"s_add_u32 s38, s38, {QA_WS}")
    g("s_lshl_b32 s58, s4, 7")
    g(f"s_add_u32 s58, s58, {XC_WS}")
    g("v_and_b32 v3, 31, v0")
    g("v_lshlrev_b32 v3, 2, v3")
    g(f"v_mov_b32 v2, {L_FL}")
    g("v_mov_b32 v9, 1")
    g("s_mov_b32 s63, 0")
    g.stamp(1)
    flagwait4(g, "L_lnw", 2, F_LNA, 12)
    g("s_setprio 3")
    for t in range(4):
        g(f"ds_read_b128 v[{12+4*t}:{15+4*t}], v8 offset:{64*t}")
        for u in range(4):
            r = 60 + 16*t + 4*u
            g(f"ds_read_b64_tr_b16 v[{r}:{r+1}], v{4+u} offset:{L_WQ - 65536 + t*4096}")
            g(f"ds_read_b64_tr_b16 v[{r+2}:{r+3}], v{4+u} offset:{L_WQ - 65536 + t*4096 + 2048}")
        if t >= 1:
            tt = t - 1
            g("s_waitcnt lgkmcnt(9)")
            for u in range(4):
                r = 60 + 16*tt + 4*u
                c = "0" if tt == 0 else f"v[{44+4*u}:{47+4*u}]"
                g(f"v_mfma_f32_16x16x32_bf16 v[{44+4*u}:{47+4*u}], v[{r}:{r+3}], v[{12+4*tt}:{15+4*tt}], {c}")
    for u in range(4):
        r = 60 + 48 + 4*u
        g(f"s_waitcnt lgkmcnt({6-2*u})")
        g(f"v_mfma_f32_16x16x32_bf16 v[{44+4*u}:{47+4*u}], v[{r}:{r+3}], v[24:27], v[{44+4*u}:{47+4*u}]")
    g("s_nop 3")
    select4(g, 28, 44, 11)
    g(f"buffer_store_dwordx4 v[28:31], v10, {W}, s38 offen")
    g(f"ds_write_b32 v2, v9 offset:{F_QP}")
    g.stamp(2)
    g("s_setprio 0")
    g("s_mov_b32 s63, 0")
    pw0 = len(g.L)
    g("s_lshl_b32 s56, s67, 1")
    g(f"s_add_u32 s56, s56, {O_WS}")
    g(f"buffer_load_dwordx4 v[124:127], v1, {W}, s56 offen {PWF}")
    g(f"buffer_load_dwordx4 v[124:127], v1, {W}, s56 offen offset:1024 {PWF}")
    g("s_lshl_b32 s56, s68, 3")
    g("s_add_u32 s56, s56, s7")
    g("s_lshl_b32 s56, s56, 10")
    g(f"s_add_u32 s56, s56, {H_WS}")
    g("s_lshr_b32 s59, s67, 4")
    g(f"s_add_u32 s59, s59, {M_WS}")
    g("s_cmp_eq_u32 s69, 0")
    g("s_cselect_b32 s56, s59, s56")
    g(f"buffer_load_dwordx4 v[124:127], v1, {W}, s56 offen {PWF}")
    g("s_mov_b64 exec, 15")
    g(f"buffer_load_dwordx4 v[124:127], v1, {W}, s59 offen {PWF}")
    g("s_mov_b64 exec, -1")
    if not opt.get("prew", 1): del g.L[pw0:]
    if opt.get("sx", 2): g(f"s_sleep {opt.get('sx', 2)}")
    if opt.get("noxc"):
        g("v_mov_b32 v20, s57")
    else:
        g(f"buffer_load_dword v20, v3, {W}, s58 offen {SC}")
        g("s_waitcnt vmcnt(0)")
    g.label("L_xc")
    g("v_xor_b32 v20, s57, v20")
    g("v_cmp_lt_u32 vcc, 7, v20")
    g("s_cbranch_vccz L_xcok")
    spin(g, "L_xcok")
    g(f"buffer_load_dword v20, v3, {W}, s58 offen {SC}")
    g("s_waitcnt vmcnt(0)")
    g("s_branch L_xc")
    g.label("L_xcok")
    g("v_cmp_ne_u32 vcc, 0, v20")
    g("s_cmp_lg_u64 vcc, 0")
    g("s_cselect_b32 s59, 2, 1")
    if opt.get("force_remote"):
        g("s_mov_b32 s59, 2")
    g("s_cmp_eq_u32 s59, 1")
    g("s_cbranch_scc1 L_xcl")
    g(f"buffer_store_dwordx4 v[28:31], v10, {W}, s39 offen {SC}")
    g.label("L_xcl")
    g("v_mov_b32 v20, s59")
    g(f"ds_write_b32 v2, v20 offset:{F_XC}")
    g.stamp(3)
    g("s_cmp_eq_u32 s69, 0")
    g("s_cbranch_scc1 L_w8")
    g("v_lshrrev_b32 v12, 4, v0")
    g("v_bfe_u32 v13, v0, 2, 2")
    g("v_and_b32 v14, 3, v0")
    g("v_lshlrev_b32 v12, 6, v12")
    g("v_lshl_add_u32 v12, v13, 8, v12")
    g("v_lshl_add_u32 v12, v14, 4, v12")
    g(f"v_add_u32 v13, {L_HP}, v1")
    g("s_lshl_b32 s56, s68, 3")
    g("s_add_u32 s56, s56, s7")
    g("s_lshl_b32 s56, s56, 10")
    g(f"s_add_u32 s56, s56, {H_WS}")
    flagwait1(g, "L_hw", 2, F_H, 14)
    g("ds_read_b128 v[20:23], v13")
    g("s_cmp_eq_u32 s59, 1")
    g("s_waitcnt lgkmcnt(0)")
    g("s_cbranch_scc0 L_hpub_rem")
    g(f"buffer_store_dwordx4 v[20:23], v12, {W}, s56 offen")
    g("s_branch L_w8")
    g.label("L_hpub_rem")
    g(f"buffer_store_dwordx4 v[20:23], v12, {W}, s56 offen {SC}")
    g("s_branch L_w8")
    g.label("L_att")
    TRL = opt.get("trl", 2)
    def tile_dma_thr(n, voff, srd, ss, lb, stride, first=0):
        for i in range(first, n):
            if i == first: g(f"s_add_u32 m0, s{lb[0]}, {lb[1]}")
            if i: g(f"s_add_u32 s{ss}, s{ss}, {8*stride - 1024}")
            g(f"s_waitcnt vmcnt({(THR2 or 64)-1})")
            g(f"buffer_load_dwordx4 v{voff}, s[{srd}:{srd+3}], s{ss} offen offset:{i*1024} {NT} lds")
    g.srd(SRD_C, P_WO, 4096*512*2)
    tile_voff(g, 1, 10, 1024)
    g("s_lshl_b32 s60, s4, 2")
    g("s_add_u32 s60, s60, s6")
    g("s_lshl_b32 s60, s60, 17")
    g("s_lshl_b32 s61, s3, 15")
    g("s_add_u32 s60, s60, s61")
    g("s_lshl_b32 s62, s7, 7")
    g("s_add_u32 s93, s60, s62")
    g("s_lshl_b32 s65, s3, 12")
    QT = opt.get("qt", 6)
    if QT:
        g(f"v_mov_b32 v17, {L_FL}")
        g("s_lshl_b32 s60, s3, 2")
        g("v_add_u32 v18, s60, v17")
        g("v_mov_b32 v19, 1")
        g(f"s_waitcnt vmcnt({8-QT})")
        g(f"ds_write_b32 v18, v19 offset:{F_K2}")
    ld0 = len(g.L)
    tile_dma_thr(4, 1, SRD_C, 93, (65, L_WO), 1024)
    if opt.get("kf", 6) == 4:
        g("s_waitcnt vmcnt(4)")
        g(f"ds_write_b32 v18, v19 offset:{F_K}")
    tile_dma_thr(2 - TRL, 1, SRD_B, 68, (69, L_W2), 1024)
    if opt.get("kf", 6) == 6:
        g(f"s_waitcnt vmcnt({6 - TRL})")
        g(f"ds_write_b32 v18, v19 offset:{F_K}")
    g(f"s_mov_b32 s{SRD_A}, s{P_V}")
    g(f"s_mov_b32 s{SRD_A+1}, s{P_V+1}")
    g("s_mov_b32 s66, s38")
    g.stamp(4)
    PRE = opt.get("pre", 1)
    for i in range(8):
        kvld(i, 1, (THR2 if i < 4 else THR3) or 64)
        if PRE and i == 5:
            g("s_waitcnt vmcnt(6)")
            g(f"ds_write_b32 v18, v19 offset:{F_WO}")
    if TRL: tile_dma_thr(2, 1, SRD_B, 68, (69, L_W2), 1024, first=2 - TRL)
    loads = g.L[ld0:]; del g.L[ld0:]
    g("s_mov_b32 s60, s7")
    ffn_ids(g)
    g("s_mov_b32 s7, s60")
    g(f"s_mov_b32 s{SRD_B}, s{P_W2}")
    g(f"s_mov_b32 s{SRD_B+1}, s{P_W2+1}")
    g(f"s_mul_i32 s{SRD_B+2}, s69, {1792*512*2}")
    g(f"s_mov_b32 s{SRD_B+3}, 0x20000")
    g("s_lshl_b32 s68, s68, 2")
    g("s_add_u32 s68, s68, s3")
    g("s_lshl_b32 s68, s68, 14")
    g("s_add_u32 s68, s68, s62")
    g("s_lshl_b32 s69, s3, 11")
    g("v_lshlrev_b32 v6, 1, v8")
    g("v_xor_b32 v6, v9, v6")
    g("v_lshlrev_b32 v6, 4, v6")
    g("v_lshl_add_u32 v6, v8, 8, v6")
    g("v_xor_b32 v7, 128, v6")
    g(f"v_mov_b32 v17, {L_FL}")
    g("s_lshl_b32 s60, s3, 2")
    g("v_add_u32 v18, s60, v17")
    g("v_mov_b32 v19, 1")
    nfirst = len(g.L) - ld0
    g.srd(SRD_W, P_WS, WS_BYTES)
    g("v_lshrrev_b32 v25, 2, v0")
    g("v_and_b32 v26, 7, v25")
    g("v_lshlrev_b32 v26, 5, v26")
    g("v_lshl_add_u32 v26, v25, 8, v26")
    g("v_and_b32 v14, 3, v0")
    g("v_lshl_add_u32 v14, v14, 3, v26")
    g("s_lshl_b32 s60, s3, 6")
    g("v_xor_b32 v14, s60, v14")
    g("v_xor_b32 v15, 32, v14")
    g("v_bfe_u32 v25, v0, 2, 2")
    g("v_lshlrev_b32 v28, 6, v25")
    g("v_lshl_add_u32 v28, v8, 4, v28")
    g(f"v_add_u32 v28, {L_OC}, v28")
    g("v_lshlrev_b32 v30, 14, v25")
    g("v_lshl_add_u32 v30, v8, 5, v30")
    g("v_and_b32 v16, 1, v0")
    g("v_lshl_add_u32 v30, v16, 4, v30")
    g("s_lshl_b32 s61, s4, 5")
    g("s_add_u32 s61, s61, s7")
    g("s_lshl_b32 s61, s61, 2")
    g("s_add_u32 s61, s61, s6")
    g("s_lshl_b32 s61, s61, 2")
    g("s_add_u32 s61, s61, s3")
    g("s_lshl_b32 s61, s61, 7")
    g(f"s_add_u32 s61, s61, {O_WS}")
    for r in range(80, 112):
        g(f"v_mov_b32 v{r}, 0")
    g("s_mov_b32 s63, 0")
    g("s_waitcnt lgkmcnt(0)")
    epoch(g, 31)
    setup = g.L[ld0:]; del g.L[ld0:]
    per = -(-nfirst // 3)
    for x in loads:
        g.L.append(x)
        if "buffer_load" in x:
            g.L.extend(setup[:per]); setup = setup[per:]
    assert not setup
    g.stamp(3)
    flagwait4(g, "L_px", 17, F_P, 36, pre=lambda: g(f"ds_read_b32 v46, v17 offset:{F_XC}"), sleep=0)
    g("s_mov_b32 exec_lo, 0x55555555")
    g("s_mov_b32 exec_hi, 0x55555555")
    for t in range(4):
        g(f"ds_read_b128 v[{80+4*t}:{83+4*t}], v28 offset:{256*t}")
    g("s_not_b64 exec, exec")
    for t in range(4):
        g(f"ds_read_b128 v[{96+4*t}:{99+4*t}], v28 offset:{256*t}")
    g("s_mov_b64 exec, -1")
    g("v_readfirstlane_b32 s65, v46")
    g.stamp(2)
    def vrd(half):
        for t in range(4):
            for p in range(2):
                r = 48 + 8*t + 4*p + 2*half
                g(f"ds_read_b64_tr_b16 v[{r}:{r+1}], v{14+p} offset:{L_V + t*8192 + 4096*half}")
    if PRE:
        g(f"s_waitcnt vmcnt({TRL+4})")
        g(f"ds_write_b32 v18, v19 offset:{F_V1}")
        flagwait4(g, "L_v1", 17, F_V1, 36)
        vrd(0)
    g(f"s_waitcnt vmcnt({TRL}) lgkmcnt(0)")
    g.stamp(5)
    g("s_cmp_eq_u32 s65, 1")
    g("s_barrier")
    g.stamp(7)
    if not PRE: vrd(0)
    vrd(1)
    for t in range(4):
        for p in range(2):
            r = 48 + 8*t + 4*p
            k = 2*t + p
            g(f"s_waitcnt lgkmcnt({7-k})")
            g(f"v_mfma_f32_16x16x32_bf16 v[36:39], v[{r}:{r+3}], v[{80+16*p+4*t}:{83+16*p+4*t}], {'0' if k == 0 else 'v[36:39]'}")
    g("s_mov_b32 exec_lo, 0x33333333")
    g("s_mov_b32 exec_hi, 0x33333333")
    g("s_nop 4")
    g("s_cbranch_scc0 L_opub_rem")
    for rem in (0, 1):
        if rem: g.label("L_opub_rem")
        for r in range(4):
            g(f"v_bfi_b32 v{36+r}, s{S_LO}, v31, v{36+r}")
        g(f"buffer_store_dwordx4 v[36:39], v30, {W}, s61 offen {SC if rem else ''}")
        if TRL: g("s_waitcnt vmcnt(1)")
        g(f"ds_write_b32 v18, v19 offset:{F_OP}")
        g.stamp(8)
        if opt.get("stamps"):
            g("s_add_u32 s3, s3, 4")
            g("s_branch L_end")
        else:
            g("s_endpgm")
    g.label("L_ln_done")
    if TOUCH:
        g("s_cmp_eq_u32 s3, 3")
        g("s_cbranch_scc0 L_w3b")
        g("s_mov_b64 exec, 0")
        g("s_branch L_chain1")
        g.label("L_w3b")
        g("s_mov_b64 exec, -1")
    tile_raddr(g, 4, 3)
    g(f"v_mov_b32 v17, {L_FL}")
    g("s_mov_b32 s63, 0")
    g("s_waitcnt vmcnt(0)")
    g(f"ds_write_b32 v9, v10 offset:{F_LNB}")
    g("s_cmp_eq_u32 s3, 1")
    g("s_cbranch_scc0 L_qk")
    g("s_cmp_eq_u32 s69, 0")
    g("s_cbranch_scc1 L_qk")
    g("s_and_b32 s6, s5, 7")
    g("v_and_b32 v15, 3, v0")
    selmasks(g, 15)
    g("v_lshrrev_b32 v13, 4, v0")
    g("v_bfe_u32 v16, v0, 2, 2")
    g(f"v_mul_u32_u24 v14, {XN_STR}, v16")
    g("v_lshl_add_u32 v14, v13, 4, v14")
    g("s_lshl_b32 s39, s6, 7")
    g(f"s_add_u32 s39, s39, {L_XN}")
    g("v_add_u32 v14, s39, v14")
    g("v_lshlrev_b32 v13, 4, v0")
    g(f"v_add_u32 v13, {L_HP}, v13")
    flagwait4(g, "L_w1w", 17, F_LNB, 20, sleep=1)
    g("ds_read_b128 v[80:83], v14")
    g("ds_read_b128 v[84:87], v14 offset:64")
    for t in range(2):
        for u in range(4):
            r = 24 + 16*t + 4*u
            g(f"ds_read_b64_tr_b16 v[{r}:{r+1}], v{4+u} offset:{L_W1 - 65536 + t*4096}")
            g(f"ds_read_b64_tr_b16 v[{r+2}:{r+3}], v{4+u} offset:{L_W1 - 65536 + t*4096 + 2048}")
    for t in range(2):
        for u in range(4):
            r = 24 + 16*t + 4*u
            g(f"s_waitcnt lgkmcnt({14 - 8*t - 2*u})")
            c = "0" if t == 0 else f"v[{64+4*u}:{67+4*u}]"
            g(f"v_mfma_f32_16x16x32_bf16 v[{64+4*u}:{67+4*u}], v[{r}:{r+3}], v[{80+4*t}:{83+4*t}], {c}")
    g("s_nop 3")
    select4(g, 56, 64, 11)
    g("ds_write_b128 v13, v[56:59]")
    g(f"ds_write_b32 v17, v10 offset:{F_H}")
    g.stamp(1)
    g.label("L_qk")
    g("s_lshr_b32 s6, s5, 3")
    g("s_and_b32 s7, s5, 7")
    g("v_lshrrev_b32 v8, 4, v0")
    g("v_and_b32 v12, 15, v0")
    g("v_xor_b32 v20, v8, v12")
    g("v_lshlrev_b32 v20, 4, v20")
    g("v_lshl_add_u32 v20, v12, 8, v20")
    g("s_lshl_b32 s39, s3, 13")
    g("v_add_u32 v20, s39, v20")
    for t in (1, 2, 3):
        g(f"v_xor_b32 v{20+t}, {64*t}, v20")
    g("v_lshrrev_b32 v13, 5, v0")
    g("v_and_b32 v14, 31, v0")
    g("v_lshlrev_b32 v24, 14, v13")
    g("v_lshl_add_u32 v24, v14, 4, v24")
    g("s_lshl_b32 s58, s4, 15")
    g("s_lshl_b32 s59, s6, 11")
    g("s_add_u32 s58, s58, s59")
    g("s_lshl_b32 s59, s3, 9")
    g("s_add_u32 s65, s58, s59")
    g(f"s_add_u32 s65, s65, {QA_WS}")
    g("v_lshlrev_b32 v25, 2, v13")
    g("v_and_b32 v15, 16, v0")
    g("v_lshl_add_u32 v25, v15, 3, v25")
    g("v_and_b32 v15, 12, v0")
    g("v_lshl_add_u32 v25, v15, 1, v25")
    g("v_and_b32 v15, 3, v0")
    g("v_lshl_add_u32 v25, v15, 5, v25")
    g(f"s_mul_i32 s39, s3, {QL_STR}")
    g(f"s_add_u32 s38, s39, {L_QL}")
    g("v_add_u32 v25, s38, v25")
    g("v_bfe_u32 v16, v0, 2, 2")
    g(f"v_mul_u32_u24 v26, {QL_STR}, v16")
    g("v_lshl_add_u32 v26, v8, 4, v26")
    g(f"v_add_u32 v26, {L_QL}, v26")
    g("v_lshlrev_b32 v29, 4, v16")
    g(f"v_add_u32 v29, {L_ML}, v29")
    g("s_lshl_b32 s38, s3, 2")
    g("v_add_u32 v27, s38, v29")
    g("v_lshlrev_b32 v28, 6, v16")
    g("v_lshl_add_u32 v28, v8, 4, v28")
    g("s_lshl_b32 s38, s3, 8")
    g(f"s_add_u32 s38, s38, {L_OC}")
    g("v_add_u32 v28, s38, v28")
    g("v_lshlrev_b32 v30, 9, v16")
    g("s_lshl_b32 s67, s4, 7")
    g("s_add_u32 s67, s67, s5")
    g("s_lshl_b32 s67, s67, 4")
    g(f"s_add_u32 s67, s67, {M_WS}")
    for r in range(4):
        g(f"v_mov_b32 v{32+r}, 0x3f803f80")
    g(f"s_mov_b32 s66, {hex(f2u(1.4426950408889634 / (128 ** 0.5)))}")
    g("s_mov_b32 s57, 0x11111111")
    g("s_lshl_b32 s56, s4, 2")
    g("s_add_u32 s56, s56, s6")
    g("v_lshlrev_b32 v103, 13, v13")
    g("v_lshl_add_u32 v103, v14, 4, v103")
    g("s_lshl_b32 s61, s56, 14")
    g("s_add_u32 s61, s61, s59")
    g(f"s_add_u32 s61, s61, {O_WS}")
    g("s_add_u32 s64, s61, 4096")
    g("v_lshl_add_u32 v104, v13, 2, v15")
    g("v_lshlrev_b32 v104, 4, v104")
    g("s_lshl_b32 s60, s56, 2")
    g("s_add_u32 s60, s60, s3")
    g("s_lshl_b32 s60, s60, 7")
    g(f"s_add_u32 s60, s60, {M_WS}")
    g("v_lshlrev_b32 v102, 2, v13")
    g("v_lshl_add_u32 v102, v14, 3, v102")
    g(f"s_add_u32 s39, s39, {L_OL}")
    g("v_add_u32 v102, s39, v102")
    g(f"v_mul_u32_u24 v101, {QL_STR}, v15")
    g("v_lshl_add_u32 v101, v8, 4, v101")
    g(f"v_add_u32 v101, {L_OL}, v101")
    g("s_lshl_b32 s39, s3, 5")
    g("v_xor_b32 v107, s39, v4")
    g("v_lshlrev_b32 v105, 4, v0")
    g("s_lshl_b32 s62, s7, 6")
    g("s_add_u32 s62, s62, s56")
    g("s_lshl_b32 s62, s62, 2")
    g("s_add_u32 s62, s62, s3")
    g("s_lshl_b32 s62, s62, 8")
    g(f"s_add_u32 s62, s62, {R3_WS}")
    g.stamp(3)
    flagwait1(g, "L_qw", 17, F_QP, 12)
    flagwait1(g, "L_kw", 9, F_K2 if opt.get("qt", 6) else F_K, 12)
    if opt.get("dq", 0): g(f"s_sleep {opt.get('dq', 0)}")
    g("s_and_b32 s63, s63, 0xffff")
    g("s_mov_b32 s58, s65")
    g("s_add_u32 s59, s58, 8192")
    g(f"buffer_load_dwordx4 v[36:39], v24, {W}, s58 offen {SC}")
    g(f"buffer_load_dwordx4 v[40:43], v24, {W}, s59 offen {SC}")
    if opt.get("qt", 6): flagwait1(g, "L_kv2", 9, F_K, 12)
    for tau in range(2):
        for t in range(4):
            r = 48 + 16*tau + 4*t
            g(f"ds_read_b128 v[{r}:{r+3}], v{20+t} offset:{4096*tau}")
    g.label("L_qc")
    g("s_waitcnt vmcnt(0)")
    tagcheck(g, list(range(36, 44)), 11, [44, 45, 46, 47])
    g("s_cbranch_vccz L_qok")
    g("s_add_u32 s63, s63, 1")
    g("s_bitcmp1_b32 s63, 15")
    g("s_cbranch_scc1 L_qok")
    g(f"ds_read_b32 v12, v17 offset:{F_XC}")
    g("s_waitcnt lgkmcnt(0)")
    g("v_readfirstlane_b32 s56, v12")
    g("s_nop 2")
    g("s_cmp_eq_u32 s56, 2")
    g(f"s_cselect_b32 s58, {QB_WS - QA_WS}, 0")
    g("s_add_u32 s58, s58, s65")
    g("s_add_u32 s59, s58, 8192")
    g(f"buffer_load_dwordx4 v[36:39], v24, {W}, s58 offen {SC}")
    g(f"buffer_load_dwordx4 v[40:43], v24, {W}, s59 offen {SC}")
    g("s_branch L_qc")
    g.label("L_qok")
    g.stamp(4)
    if opt.get("stamps"): g("s_and_b32 s96, s63, 0xff")
    g("v_pk_add_f32 v[36:37], v[36:37], v[40:41]")
    g("v_pk_add_f32 v[38:39], v[38:39], v[42:43]")
    g("s_nop 1")
    g("v_permlane32_swap_b32 v36, v38")
    g("v_permlane32_swap_b32 v37, v39")
    g("v_pk_add_f32 v[36:37], v[36:37], v[38:39]")
    g("v_cvt_pk_bf16_f32 v36, v36, v37")
    g("ds_write_b32 v25, v36")
    g(f"ds_write_b32 v9, v10 offset:{F_Q}")
    def qrd():
        for t in range(4):
            g(f"ds_read_b128 v[{80+4*t}:{83+4*t}], v26 offset:{64*t}")
    flagwait4(g, "L_qx", 17, F_Q, 36, pre=qrd, n=4)
    for t in range(4):
        g(f"s_waitcnt lgkmcnt({3-t})")
        for tau in range(2):
            r = 48 + 16*tau + 4*t
            c = "0" if t == 0 else f"v[{36+4*tau}:{39+4*tau}]"
            g(f"v_mfma_f32_16x16x32_bf16 v[{36+4*tau}:{39+4*tau}], v[{r}:{r+3}], v[{80+4*t}:{83+4*t}], {c}")
    g("s_nop 6")
    g("v_max3_f32 v44, v36, v37, v38")
    g("v_max3_f32 v45, v39, v40, v41")
    g("v_max3_f32 v44, v44, v42, v43")
    g("v_max_f32 v44, v44, v45")
    g("v_mov_b32 v45, v44")
    g("s_nop 1")
    g("v_permlane32_swap_b32 v44, v45")
    g("v_max_f32 v44, v44, v45")
    g("v_mov_b32 v45, v44")
    g("s_nop 1")
    g("v_permlane16_swap_b32 v44, v45")
    g("v_max_f32 v44, v44, v45")
    g("v_mul_f32 v44, s66, v44")
    g("s_mov_b64 exec, 0x1111")
    g("ds_write_b32 v27, v44")
    g("s_mov_b64 exec, -1")
    g.label("L_mx")
    g("ds_read_b128 v[48:51], v29")
    spin(g, "L_mxok", inc=0x10000, mx=0x7ff00000)
    g("s_waitcnt lgkmcnt(0)")
    g("v_max_u32 v45, v48, v49")
    g("v_max3_u32 v45, v45, v50, v51")
    g("v_cmp_eq_u32 vcc, -1, v45")
    g("s_cbranch_vccnz L_mx")
    g.label("L_mxok")
    g("v_max3_f32 v44, v48, v49, v50")
    g("v_max_f32 v44, v44, v51")
    g(f"v_bfi_b32 v44, s{S_LO}, v11, v44")
    for i in range(8):
        g(f"v_fma_f32 v{36+i}, v{36+i}, s66, -v44")
    for i in range(8):
        g(f"v_exp_f32 v{36+i}, v{36+i}")
    for i in range(4):
        g(f"v_cvt_pk_bf16_f32 v{36+i}, v{36+2*i}, v{37+2*i}")
    g("s_nop 1")
    g("v_mfma_f32_16x16x32_bf16 v[40:43], v[32:35], v[36:39], 0")
    g("s_mov_b32 exec_lo, s57")
    g("s_mov_b32 exec_hi, s57")
    g("ds_write_b128 v28, v[36:39]")
    g("s_mov_b64 exec, 0x1111")
    g("s_nop 3")
    g("ds_write_b32 v27, v40 offset:64")
    g("s_mov_b64 exec, -1")
    flagwait1(g, "L_xw", 17, F_XC, 12, sdst=56, sleep=0)
    g(f"ds_write_b32 v9, v10 offset:{F_P}")
    g.stamp(2)
    g("s_cmp_eq_u32 s3, 0")
    g("s_cbranch_scc0 L_wo_b3")
    flagwait4(g, "L_lx", 17, F_P, 36, pre=lambda: g("ds_read_b128 v[40:43], v29 offset:64"), n=0)
    g("v_pk_add_f32 v[40:41], v[40:41], v[42:43]")
    g("v_mov_b32 v46, v11")
    g("v_mov_b32 v47, v11")
    g("v_add_f32 v45, v40, v41")
    g("s_mov_b64 exec, 0x1111")
    g(f"v_bfi_b32 v45, s{S_LO}, v11, v45")
    g("s_cmp_eq_u32 s56, 1")
    g("s_cbranch_scc0 L_mlr")
    g(f"buffer_store_dwordx4 v[44:47], v30, {W}, s67 offen")
    g("s_branch L_ml1")
    g.label("L_mlr")
    g(f"buffer_store_dwordx4 v[44:47], v30, {W}, s67 offen {SC}")
    g.label("L_ml1")
    g("s_mov_b64 exec, -1")
    g.label("L_wo_b3")
    g(f"v_mov_b32 v106, {L_FL}")
    def word():
        for t in range(4):
            g(f"ds_read_b64_tr_b16 v[{16+4*t}:{17+4*t}], v107 offset:{L_WO - 65536 + t*4096}")
            g(f"ds_read_b64_tr_b16 v[{18+4*t}:{19+4*t}], v107 offset:{L_WO - 65536 + t*4096 + 2048}")
    if opt.get("pre", 1):
        flagwait4(g, "L_wow", 106, F_WO, 36, sleep=1)
        word()
    g("s_mov_b32 s63, 0")
    g("s_waitcnt lgkmcnt(0)")
    g("s_barrier")
    def oml():
        g(f"buffer_load_dwordx4 v[32:35], v104, {W}, s60 offen {SC}")
    def opl():
        g(f"buffer_load_dwordx4 v[40:43], v103, {W}, s61 offen {SC}")
        g(f"buffer_load_dwordx4 v[44:47], v103, {W}, s61 offen offset:2048 {SC}")
        g(f"buffer_load_dwordx4 v[48:51], v103, {W}, s64 offen {SC}")
        g(f"buffer_load_dwordx4 v[52:55], v103, {W}, s64 offen offset:2048 {SC}")
    oml()
    if not opt.get("pre", 1): word()
    g("s_waitcnt vmcnt(0)")
    tagcheck(g, [32, 33, 34, 35], 11, [56, 57])
    g("s_cbranch_vccz L_o2")
    flagwait4(g, "L_wu", 106, F_OP, 36)
    g("s_mov_b32 s63, 0")
    g.label("L_o")
    oml()
    spin(g, "L_o2", inc=0x100, mx=SPIN_MAX*256)
    g("s_waitcnt vmcnt(0)")
    tagcheck(g, [32, 33, 34, 35], 11, [56, 57])
    g("s_cbranch_vccnz L_o")
    g.label("L_o2")
    g.stamp(5)
    g(f"v_max_f32_dpp v56, v32, v32 quad_perm:[1,0,3,2] {DPPM}")
    g("s_nop 1")
    g(f"v_max_f32_dpp v56, v56, v56 quad_perm:[2,3,0,1] {DPPM}")
    g("v_mov_b32 v57, v56")
    g("s_nop 1")
    g("v_permlane32_swap_b32 v56, v57")
    g("v_max_f32 v56, v56, v57")
    g("v_sub_f32 v32, v32, v56")
    g("v_exp_f32 v32, v32")
    g("s_nop 0")
    g("v_mul_f32 v57, v32, v33")
    g("s_nop 1")
    g(f"v_add_f32_dpp v57, v57, v57 quad_perm:[1,0,3,2] {DPPM}")
    g("s_nop 1")
    g(f"v_add_f32_dpp v57, v57, v57 quad_perm:[2,3,0,1] {DPPM}")
    g("v_mov_b32 v58, v57")
    g("s_nop 1")
    g("v_permlane32_swap_b32 v57, v58")
    g("v_add_f32 v57, v57, v58")
    g("v_rcp_f32 v57, v57")
    g("s_nop 0")
    g("v_mul_f32 v32, v32, v57")
    g("s_nop 1")
    for i in range(4):
        g(f"v_mov_b32_dpp v{64+2*i}, v32 quad_perm:[{i},{i},{i},{i}] {DPPM}")
    for i in range(4):
        g(f"v_mov_b32 v{65+2*i}, v{64+2*i}")
    flagwait4(g, "L_wt", 106, F_OP, 36)
    g("s_and_b32 s63, s63, 0xff00")
    g.stamp(6)
    if opt.get("d2", 0): g(f"s_sleep {opt['d2']}")
    g.label("L_o3")
    opl()
    g("s_add_u32 s63, s63, 1")
    g("s_bitcmp1_b32 s63, 24")
    g("s_cbranch_scc1 L_ook")
    g("s_waitcnt vmcnt(0)")
    if opt.get("omask", 1): g("s_mov_b64 exec, -1")
    tagcheck(g, list(range(40, 56)), 11, [56, 57, 58, 59, 36, 37, 38, 39])
    if opt.get("omask", 1):
        g("s_cbranch_vccz L_ook")
        g("s_mov_b64 exec, vcc")
        g("s_branch L_o3")
    else:
        g("s_cbranch_vccnz L_o3")
    g.label("L_ook")
    g.stamp(7)
    g("v_pk_mul_f32 v[36:37], v[64:65], v[40:41]")
    g("v_pk_mul_f32 v[38:39], v[64:65], v[42:43]")
    for i in range(1, 4):
        g(f"v_pk_fma_f32 v[36:37], v[{64+2*i}:{65+2*i}], v[{40+4*i}:{41+4*i}], v[36:37]")
        g(f"v_pk_fma_f32 v[38:39], v[{64+2*i}:{65+2*i}], v[{42+4*i}:{43+4*i}], v[38:39]")
    g("s_nop 1")
    g("v_permlane32_swap_b32 v36, v38")
    g("v_permlane32_swap_b32 v37, v39")
    g("v_pk_add_f32 v[36:37], v[36:37], v[38:39]")
    g("v_cvt_pk_bf16_f32 v36, v36, v37")
    g("ds_write_b32 v102, v36")
    g("s_waitcnt lgkmcnt(0)")
    g("s_barrier")
    for t in range(4):
        g(f"ds_read_b128 v[{40+4*t}:{43+4*t}], v101 offset:{64*t}")
    for t in range(4):
        g(f"s_waitcnt lgkmcnt({3-t})")
        c = "0" if t == 0 else "v[32:35]"
        g(f"v_mfma_f32_16x16x32_bf16 v[32:35], v[{40+4*t}:{43+4*t}], v[{16+4*t}:{19+4*t}], {c}")
    g("s_mov_b64 exec, 0xffff")
    g("s_nop 6")
    for u in range(4):
        g(f"v_bfi_b32 v{32+u}, s{S_LO}, v11, v{32+u}")
    g(f"buffer_store_dwordx4 v[32:35], v105, {W}, s62 offen {opt.get('fs', SC).replace('+', ' ')}")
    g.stamp(8)
    if opt.get("stamps"):
        g("s_lshl_b32 s96, s96, 16")
        g("s_and_b32 s63, s63, 0xffff")
        g("s_or_b32 s63, s63, s96")
    g("s_branch L_end" if opt.get("stamps") else "s_endpgm")
    g.label("L_w8")
    g.srd(SRD_B, P_B1, 1792*2)
    g("s_and_b32 s6, s5, 7")
    g("v_lshrrev_b32 v12, 4, v0")
    g("v_and_b32 v13, 3, v0")
    g("v_bfe_u32 v14, v0, 2, 2")
    selmasks(g, 12)
    g("v_lshlrev_b32 v8, 5, v13")
    g("v_lshl_add_u32 v8, v14, 3, v8")
    g("s_lshl_b32 s57, s68, 7")
    g(f"v_mul_u32_u24 v9, {HL_STR}, v12")
    g("v_lshl_add_u32 v9, v14, 4, v9")
    g("v_and_b32 v14, 2, v0")
    g("v_lshl_add_u32 v9, v14, 5, v9")
    g("v_cmp_ne_u32 s[60:61], 0, v14")
    g("v_and_b32 v15, 1, v0")
    g("v_lshl_add_u32 v9, v15, 3, v9")
    g(f"v_add_u32 v9, {L_HL}, v9")
    g(f"v_mul_u32_u24 v19, {HL_STR}, v13")
    g("v_lshl_add_u32 v19, v12, 4, v19")
    g(f"v_add_u32 v19, {L_HL}, v19")
    g("s_lshl_b32 s58, s68, 13")
    g(f"s_add_u32 s58, s58, {H_WS}")
    g("s_add_u32 s59, s58, 4096")
    g("v_lshlrev_b32 v10, 4, v0")
    g("s_add_u32 s39, s4, 24")
    g("s_cmp_eq_u32 s69, 0")
    g("s_cselect_b32 s39, s39, s68")
    g("s_lshl_b32 s62, s6, 6")
    g("s_add_u32 s62, s62, s39")
    g("s_add_u32 s62, s62, 32")
    g("s_lshl_b32 s62, s62, 10")
    g(f"s_add_u32 s62, s62, {R3_WS}")
    g("v_lshrrev_b32 v3, 1, v0")
    g("v_lshlrev_b32 v3, 10, v3")
    g("v_lshl_add_u32 v3, v15, 4, v3")
    g("s_lshl_b32 s64, s4, 16")
    g("s_lshl_b32 s39, s5, 5")
    g("s_add_u32 s64, s64, s39")
    g(f"s_add_u32 s64, s64, {R3_WS}")
    g("s_add_u32 s65, s64, 32768")
    g("v_and_b32 v16, 1, v12")
    g("v_add_u32 v16, v16, v14")
    g("v_lshlrev_b32 v1, 1, v15")
    g("v_lshl_add_u32 v16, v16, 10, v1")
    g("s_lshl_b32 s66, s4, 7")
    g("s_lshl_b32 s39, s5, 2")
    g("s_add_u32 s66, s66, s39")
    g(f"buffer_load_dwordx2 v[20:21], v8, s[{SRD_B}:{SRD_B+3}], s57 offen")
    g.srd(SRD_B, P_B2, 1024)
    g(f"buffer_load_ushort v17, v16, s[{SRD_C}:{SRD_C+3}], s66 offen")
    g(f"buffer_load_ushort v18, v1, s[{SRD_B}:{SRD_B+3}], s66 offen")
    g.srd(SRD_A, P_OUT, 4096)
    g(f"s_mov_b32 s57, {hex(f2u(-1.4426950408889634))}")
    g(f"v_mov_b32 v2, {L_FL}")
    for r in range(4):
        g(f"v_mov_b32 v{96+r}, v11")
    g("s_mov_b32 s63, 0")
    g("s_cmp_eq_u32 s69, 0")
    g("s_cbranch_scc0 L_w8_u")
    g(f"buffer_store_dwordx4 v[96:99], v10, {W}, s62 offen {SC}")
    g("s_barrier")
    g("s_branch L_w8_fin")
    g.label("L_w8_u")
    g(f"s_sleep {opt.get('dh', 36)}")
    def hld():
        for kp in range(8):
            g(f"buffer_load_dwordx4 v[{56+4*kp}:{59+4*kp}], v10, {W}, s{58+(kp>>2)} offen offset:{(kp&3)*1024} {SC}")
    if not opt.get("nohg"): hld()
    g("s_barrier")
    g.label("L_h")
    g("s_waitcnt vmcnt(0)")
    g("v_lshlrev_b32 v88, 16, v20")
    g("v_and_b32 v89, 0xffff0000, v20")
    g("v_lshlrev_b32 v90, 16, v21")
    g("v_and_b32 v91, 0xffff0000, v21")
    tagcheck(g, list(range(56, 88)), 11, list(range(100, 116)))
    g("s_cbranch_vccz L_hok")
    spin(g, "L_hok")
    hld()
    g("s_branch L_h")
    g.label("L_hok")
    g.stamp(5)
    for (a, b) in ((56, 60), (64, 68), (72, 76), (80, 84), (56, 64), (72, 80), (56, 72)):
        g(f"v_pk_add_f32 v[{a}:{a+1}], v[{a}:{a+1}], v[{b}:{b+1}]")
        g(f"v_pk_add_f32 v[{a+2}:{a+3}], v[{a+2}:{a+3}], v[{b+2}:{b+3}]")
    def unp():
        g("v_cvt_pk_bf16_f32 v60, v56, v57")
        g("v_cvt_pk_bf16_f32 v61, v58, v59")
        g("v_lshlrev_b32 v56, 16, v60")
        g("v_and_b32 v57, 0xffff0000, v60")
        g("v_lshlrev_b32 v58, 16, v61")
        g("v_and_b32 v59, 0xffff0000, v61")
    unp()
    g("v_pk_add_f32 v[56:57], v[56:57], v[88:89]")
    g("v_pk_add_f32 v[58:59], v[58:59], v[90:91]")
    unp()
    for i in range(4):
        g(f"v_max_f32 v{56+i}, 0, v{56+i}")
    g("v_pk_mul_f32 v[56:57], v[56:57], v[56:57]")
    g("v_pk_mul_f32 v[58:59], v[58:59], v[58:59]")
    g("v_cvt_pk_bf16_f32 v60, v56, v57")
    g("v_cvt_pk_bf16_f32 v61, v58, v59")
    g("ds_write_b64 v9, v[60:61]")
    g("ds_read_b128 v[64:67], v19")
    g("ds_read_b128 v[68:71], v19 offset:64")
    if opt.get("trl", 2): flagwait4(g, "L_w2w", 2, F_OP, 72)
    g.stamp(4)
    for t in range(2):
        for u in range(4):
            r = 24 + 16*t + 4*u
            g(f"ds_read_b64_tr_b16 v[{r}:{r+1}], v{4+u} offset:{L_W2 - 65536 + t*4096}")
            g(f"ds_read_b64_tr_b16 v[{r+2}:{r+3}], v{4+u} offset:{L_W2 - 65536 + t*4096 + 2048}")
    for t in range(2):
        for u in range(4):
            g(f"s_waitcnt lgkmcnt({14 - 8*t - 2*u})")
            r = 24 + 16*t + 4*u
            d = 72 + 4*u
            c = "0" if t == 0 else f"v[{d}:{d+3}]"
            g(f"v_mfma_f32_16x16x32_bf16 v[{d}:{d+3}], v[{64+4*t}:{67+4*t}], v[{r}:{r+3}], {c}")
    g("s_nop 3")
    select4(g, 96, 72, 11)
    g.stamp(6)
    g("s_barrier")
    g(f"buffer_store_dwordx4 v[96:99], v10, {W}, s62 offen {SC}")
    g("s_branch L_w8_f2")
    g.label("L_w8_fin")
    g.stamp(6)
    g("s_barrier")
    g.label("L_w8_f2")
    g("s_mov_b32 s63, 0")
    g("s_waitcnt vmcnt(1)")
    g("v_lshlrev_b32 v17, 16, v17")
    g("v_lshlrev_b32 v18, 16, v18")
    if opt.get("df", 14):
        g(f"s_sleep {opt.get('df', 14)}")
    FL = opt.get("fl", SC).replace("+", " ")
    g.label("L_f")
    g(f"buffer_load_dwordx4 v[24:27], v3, {W}, s64 offen {FL}")
    g(f"buffer_load_dwordx4 v[40:43], v3, {W}, s65 offen {FL}")
    spin(g, "L_fok")
    g("s_waitcnt vmcnt(0)")
    if opt.get("fmask"): g("s_mov_b64 exec, -1")
    tagcheck(g, [24, 25, 26, 27, 40, 41, 42, 43], 11, list(range(44, 48)))
    if opt.get("sf", 0) or opt.get("fmask"):
        g("s_cbranch_vccz L_fok")
        if opt.get("fmask"): g("s_mov_b64 exec, vcc")
        if opt.get("sf", 0): g(f"s_sleep {opt['sf']}")
        g("s_branch L_f")
    else:
        g("s_cbranch_vccnz L_f")
    g.label("L_fok")
    g.stamp(7)
    for i in range(4):
        g(f"v_permlane32_swap_b32 v{24+i}, v{40+i}")
    g("v_pk_add_f32 v[24:25], v[24:25], v[40:41]")
    g("v_pk_add_f32 v[26:27], v[26:27], v[42:43]")
    g("s_nop 0")
    g("v_permlane16_swap_b32 v24, v25")
    g("v_permlane16_swap_b32 v26, v27")
    g("v_add_f32 v24, v24, v25")
    g("v_add_f32 v26, v26, v27")
    for c in ("row_ror:8", "row_ror:4", "row_ror:2"):
        g("s_nop 0")
        g(f"v_add_f32_dpp v24, v24, v24 {c} {DPPM}")
        g(f"v_add_f32_dpp v26, v26, v26 {c} {DPPM}")
    g("v_cndmask_b32 v24, v24, v26, s[60:61]")
    rnd(g, 24, 24)
    g("v_add_f32 v25, v24, v18")
    rnd(g, 25, 25)
    g("v_mul_f32 v26, s57, v25")
    g("v_exp_f32 v26, v26")
    g("s_nop 0")
    g("v_add_f32 v26, 1.0, v26")
    g("v_rcp_f32 v26, v26")
    g("s_nop 0")
    g("v_mul_f32 v26, v25, v26")
    rnd(g, 26, 26)
    g("s_nop 1")
    g("v_permlane32_swap_b32 v26, v27")
    g("s_mov_b32 exec_lo, 0x000f000f")
    g("s_mov_b32 exec_hi, 0")
    g("v_mul_f32 v24, v24, v27")
    rnd(g, 24, 24)
    g("v_add_f32 v24, v24, v17")
    g("v_cvt_pk_bf16_f32 v24, v24, v24")
    g(f"buffer_store_short v24, v16, s[{SRD_A}:{SRD_A+3}], s66 offen")
    g.stamp(8)
    if opt.get("hold"):
        g(f"s_cmp_eq_u32 s2, {opt.get('holdwg', 0)}")
        g("s_cbranch_scc0 L_nohold")
        g.label("L_hold")
        g("s_memrealtime s[72:73]")
        g("s_waitcnt lgkmcnt(0)")
        g("s_sub_u32 s72, s72, s70")
        g(f"s_cmp_lt_u32 s72, {opt['hold']}")
        g("s_cbranch_scc1 L_hold")
        g.label("L_nohold")
    g("s_cmp_eq_u32 s2, 0")
    g("s_cbranch_scc0 L_end")
    g(f"v_mov_b32 v24, s{S_E1}")
    g("v_mov_b32 v25, 0")
    g("s_mov_b64 exec, 1")
    g(f"buffer_store_dword v24, v25, {W}, 0 offen")
    g.label("L_end")
    if opt.get("stamps"):
        g("s_memrealtime s[88:89]")
        g("s_waitcnt lgkmcnt(0)")
        g("s_mov_b64 exec, 1")
        g("s_mul_i32 s38, s2, 9")
        g("s_add_u32 s38, s38, s3")
        g("s_lshl_b32 s38, s38, 6")
        g(f"s_add_u32 s38, s38, {ST_WS}")
        for k in range(10):
            g(f"v_mov_b32 v{4+k}, s{70+2*k}")
        g("v_mov_b32 v14, s63")
        g("v_mov_b32 v15, 0")
        g("v_mov_b32 v1, 0")
        g(f"buffer_store_dwordx4 v[4:7], v1, {W}, s38 offen")
        g(f"buffer_store_dwordx4 v[8:11], v1, {W}, s38 offen offset:16")
        g(f"buffer_store_dwordx4 v[12:15], v1, {W}, s38 offen offset:32")
    g.label("L_exit")
    lines = [x for x in g.L if x.strip()]
    return finish(lines, opt)

def finish(lines, opt):
    if not opt.get("touch", 1):
        return G1.text(lines)
    sz = _sizes(lines)
    out = []; pos = 0; nxt = 1024; n = 0
    for l, z in zip(lines, sz):
        if z and pos >= nxt:
            assert pos - nxt <= 56
            out.append(None); n += 1; pos += 4; nxt += 1024
        out.append(l); pos += z
    first = opt.get("pad0", 1)
    split = opt.get("pad1", 4)
    res = []; k = 0
    for l in out:
        if l is None:
            tgt = "L_w8b" if k + 1 == split else (f"L_pad{k+1}" if k + 1 < n else "L_w3b")
            if k == first: res.append("L_chain0:")
            if k == split: res.append("L_chain1:")
            res.append(f"L_pad{k}:")
            res.append(f"    s_cbranch_execz {tgt}")
            k += 1
        else:
            res.append(l)
    return G1.text(res)

if __name__ == "__main__":
    out = sys.argv[1]
    opt = {}
    for a in sys.argv[2:]:
        k, v = a.split("=")
        try: v = int(v)
        except ValueError: pass
        opt[k] = v
    open(out, "w").write(gen(opt))
```

```python
import sys, struct
from gen import f2u, G, tagcheck, rnd, wave_sum, tile_voff, tile_raddr, tile_dma, NAME, sizes as _sizes
import gen as G1

QA_WS  = 0x8000
QB_WS  = 0x48000
XC_WS  = 0x200000
M_WS   = 0x4000
H_WS   = 0x88000
O_WS   = 0xC0000
R3_WS  = 0x140000
ST_WS  = 0x300000
WS_BYTES = 0x400000

L_K, L_V, L_WQ, L_WO, L_W1, L_W2, L_XN = 0, 32768, 65536, 81920, 98304, 106496, 114688
XN_STR = 1088
L_QL = L_XN + 4352
QL_STR = 320
L_OC = L_QL + 1280
OC_H, OC_W = 528, 2112
L_ML = L_OC + 8448
L_FL = L_ML + 128
L_OL = L_FL + 192
L_HL = L_OL + 1280
HL_STR = 192
LDS_BYTES = L_HL + 768
G1.LDS_BYTES = LDS_BYTES

P_X, P_K, P_V, P_WQ, P_WO, P_BX, P_W1, P_B1, P_W2, P_B2, P_OUT, P_DBG, P_WS = 8, 10, 12, 14, 16, 18, 20, 22, 24, 26, 28, 30, 32
S_E, S_T, S_E1, S_LO = 34, 35, 36, 37
SRD_A, SRD_B, SRD_W, SRD_C = 40, 44, 48, 52
SPIN_MAX = 1 << 16
W = f"s[{SRD_W}:{SRD_W+3}]"
SC = "sc1"
DPPM = "row_mask:0xf bank_mask:0xf"

def epoch(g, vT):
    g(f"s_add_u32 s{S_E1}, s{S_E}, 1")
    g(f"s_and_b32 s{S_T}, s{S_E1}, s{S_LO}")
    g(f"v_mov_b32 v{vT}, s{S_T}")

def spin(g, lab_out, inc=1, mx=SPIN_MAX):
    g(f"s_add_u32 s63, s63, {inc}")
    g(f"s_cmp_gt_u32 s63, {mx}")
    g(f"s_cbranch_scc1 {lab_out}")

def selmasks(g, vsel):
    for k in (1, 2, 3):
        g(f"v_cmp_eq_u32 s[{88+2*k}:{89+2*k}], {k}, v{vsel}")

def select4(g, d, D, vT):
    for k in (1, 2, 3):
        for r in range(4):
            src = D + r if k == 1 else d + r
            g(f"v_cndmask_b32 v{d+r}, v{src}, v{D+4*k+r}, s[{88+2*k}:{89+2*k}]")
    for r in range(4):
        g(f"v_bfi_b32 v{d+r}, s{S_LO}, v{vT}, v{d+r}")

def ffn_ids(g):
    g("s_lshr_b32 s7, s5, 3")
    g("s_mul_i32 s68, s4, 3")
    g("s_min_u32 s69, s4, 4")
    g("s_add_u32 s68, s68, s69")
    g("s_add_u32 s68, s68, s7")
    g("s_cmp_lt_u32 s4, 4")
    g("s_cselect_b32 s69, 4, 3")
    g("s_cmp_lt_u32 s7, s69")
    g("s_cselect_b32 s69, 1, 0")


def flagwait4(g, lab, vbase, off, tmp, pre=None, n=0, sleep=0):
    g.label(lab)
    if sleep: g(f"s_sleep {sleep}")
    g(f"ds_read_b128 v[{tmp}:{tmp+3}], v{vbase} offset:{off}")
    if pre: pre()
    spin(g, lab + "ok", inc=0x10000, mx=0x7ff00000)
    g(f"s_waitcnt lgkmcnt({n})")
    g(f"v_and_b32 v{tmp}, v{tmp}, v{tmp+1}")
    g(f"v_and_b32 v{tmp+2}, v{tmp+2}, v{tmp+3}")
    g(f"v_and_b32 v{tmp}, v{tmp}, v{tmp+2}")
    g(f"v_cmp_eq_u32 vcc, 0, v{tmp}")
    g(f"s_cbranch_vccnz {lab}")
    g.label(lab + "ok")

def flagwait1(g, lab, vbase, off, tmp, sdst=None, sleep=1):
    g.label(lab)
    if sleep: g(f"s_sleep {sleep}")
    g(f"ds_read_b32 v{tmp}, v{vbase} offset:{off}")
    spin(g, lab + "ok", inc=0x10000, mx=0x7ff00000)
    g("s_waitcnt lgkmcnt(0)")
    g(f"v_cmp_eq_u32 vcc, 0, v{tmp}")
    g(f"s_cbranch_vccnz {lab}")
    g.label(lab + "ok")
    if sdst is not None: g(f"v_readfirstlane_b32 s{sdst}, v{tmp}")

F_LNA, F_XC, F_QP, F_H, F_OP, F_Q, F_LNB, F_P, F_K, F_K2, F_WO, F_V1 = 0, 16, 20, 24, 32, 48, 64, 80, 96, 112, 128, 144
L_HP = L_OC + 2048

def gen(opt):
    g = G(opt)
    g.role = "-"
    HEV = opt.get("hev")
    if HEV:
        def st(k):
            if HEV == f"{g.role}{k}": g("s_memrealtime s[70:71]")
        g.stamp = st
    hcount = [0]
    def hevhold():
        if HEV and HEV[0] == g.role:
            hcount[0] += 1
            n = hcount[0]
            g(f"s_cmp_eq_u32 s2, {opt.get('holdwg', 9)}")
            g(f"s_cbranch_scc0 L_nh{n}")
            g.label(f"L_hh{n}")
            g("s_memrealtime s[72:73]")
            g("s_waitcnt lgkmcnt(0)")
            g("s_sub_u32 s72, s72, s70")
            g("s_cmp_lt_u32 s72, 1500")
            g(f"s_cbranch_scc1 L_hh{n}")
            g.label(f"L_nh{n}")
    NT = opt.get("nt", "nt")
    XF = opt.get("xflags", "")
    THR = opt.get("thr", 3)
    THR2 = opt.get("thr2", 6)
    THR3 = opt.get("thr3", THR2)
    TOUCH = opt.get("touch", 1)
    PWF = opt.get("pwf", "")
    g.stamp(0)
    if opt.get("hold"): g("s_memrealtime s[70:71]")
    g("s_cmp_ge_u32 s2, 256")
    g("s_cbranch_scc1 L_exit")
    g("s_load_dwordx16 s[8:23], s[0:1], 0")
    g("s_load_dwordx8 s[24:31], s[0:1], 64")
    g("s_load_dwordx2 s[32:33], s[0:1], 96")
    g("v_lshrrev_b32 v1, 6, v0")
    g("v_and_b32 v0, 63, v0")
    g("v_readfirstlane_b32 s3, v1")
    g("s_and_b32 s4, s2, 7")
    g("s_lshr_b32 s5, s2, 3")
    g(f"s_movk_i32 s{S_LO}, 0x3ff")
    g("s_cmp_lt_u32 s3, 4")
    g("s_cbranch_scc0 L_notln")
    g("v_lshlrev_b32 v12, 4, v0")
    g("s_lshl_b32 s39, s3, 10")
    tile_voff(g, 2, 3, 8192)
    g("s_lshr_b32 s7, s5, 3")
    g("s_lshl_b32 s38, s7, 20")
    g("s_lshl_b32 s56, s3, 18")
    g("s_add_u32 s38, s38, s56")
    g("s_lshl_b32 s56, s4, 10")
    g("s_add_u32 s38, s38, s56")
    g("s_and_b32 s56, s5, 7")
    g("s_lshl_b32 s56, s56, 7")
    g("s_add_u32 s38, s38, s56")
    g("s_lshl_b32 s56, s3, 12")
    g(f"s_mov_b32 s{SRD_C+2}, 4096")
    g(f"s_mov_b32 s{SRD_C+3}, 0x20000")
    g(f"s_mov_b32 s{SRD_A+2}, {hex(512*4096*2)}")
    g(f"s_mov_b32 s{SRD_A+3}, 0x20000")
    g("s_waitcnt lgkmcnt(0)")
    g(f"s_mov_b32 s{SRD_C}, s{P_X}")
    g(f"s_mov_b32 s{SRD_C+1}, s{P_X+1}")
    g(f"buffer_load_dwordx4 v[4:7], v12, s[{SRD_C}:{SRD_C+3}], s39 offen {XF}")
    g(f"s_mov_b32 s{SRD_A}, s{P_WQ}")
    g(f"s_mov_b32 s{SRD_A+1}, s{P_WQ+1}")
    tile_dma(g, 4, 2, SRD_A, 38, (56, L_WQ), 8192, NT)
    g("s_barrier")
    g("s_branch L_ln")
    g.label("L_notln")
    g("s_cmp_eq_u32 s3, 8")
    g("s_cbranch_scc0 L_kv")
    if opt.get("cpf", 1):
        g("s_getpc_b64 s[64:65]")
        g.label("L_pc")
        g("s_and_b32 s6, s5, 7")
        g(f"s_mul_i32 s6, s6, {22*64}")
        g(f"s_sub_u32 s6, s6, L_pc-{NAME}_kernel")
        g("s_ashr_i32 s7, s6, 31")
        g("s_add_u32 s64, s64, s6")
        g("s_addc_u32 s65, s65, s7")
        g("v_lshlrev_b32 v3, 6, v0")
        g("s_mov_b64 exec, 0x3fffff")
        g("global_load_dword v125, v3, s[64:65]")
        g("s_mov_b64 exec, -1")
    g("v_lshlrev_b32 v3, 2, v0")
    g(f"v_add_u32 v3, {L_ML}, v3")
    g("v_cmp_gt_u32 vcc, 16, v0")
    g("s_nop 1")
    g("v_cndmask_b32 v4, 0, -1, vcc")
    g("ds_write_b32 v3, v4")
    g("v_mov_b32 v4, 0")
    g("s_mov_b64 exec, 0xffff")
    g("ds_write_b32 v3, v4 offset:256")
    g("s_mov_b64 exec, -1")
    g("s_waitcnt lgkmcnt(0)")
    g(f"s_load_dword s{S_E}, s[{P_WS}:{P_WS+1}], 0")
    g("s_barrier")
    g("s_branch L_w0")
    g.role = "a"
    g.label("L_kv")
    g("s_sub_u32 s3, s3, 4")
    g("v_lshrrev_b32 v8, 4, v0")
    g("v_and_b32 v9, 15, v0")
    g("v_xor_b32 v2, v9, v8")
    g("v_lshlrev_b32 v2, 4, v2")
    g("v_lshl_add_u32 v2, v8, 8, v2")
    for i in (1, 2, 3):
        g(f"v_xor_b32 v{2+i}, {64*i}, v2")
    g("s_lshr_b32 s6, s5, 3")
    g("s_and_b32 s7, s5, 7")
    g("s_lshl_b32 s38, s6, 3")
    g("s_add_u32 s38, s38, s4")
    g("s_lshl_b32 s38, s38, 20")
    g("s_lshl_b32 s56, s3, 10")
    g("s_add_u32 s38, s38, s56")
    g(f"s_add_u32 s38, s38, {768*1024}")
    g("s_lshl_b32 s56, s3, 13")
    g("s_lshl_b32 s64, s7, 12")
    g("s_mov_b32 s66, s38")
    g(f"s_mov_b32 s{SRD_A+2}, {hex(4*8*4096*128*2)}")
    g(f"s_mov_b32 s{SRD_A+3}, 0x20000")
    g("s_waitcnt lgkmcnt(0)")
    g(f"s_mov_b32 s{SRD_A}, s{P_K}")
    g(f"s_mov_b32 s{SRD_A+1}, s{P_K+1}")
    B0L = opt.get("b0l", 0)
    if not B0L:
        g(f"s_load_dword s{S_E}, s[{P_WS}:{P_WS+1}], 0")
        g("s_barrier")
    g.stamp(1)
    def kvld(i, isv, th):
        if i % 4 == 0: g(f"s_add_u32 m0, s56, {(L_V if isv else L_K) + i*1024}")
        g("s_add_u32 s39, s64, s66")
        g("s_add_u32 s64, s64, 4096")
        g("s_and_b32 s64, s64, 0x7000")
        g(f"s_add_u32 s66, s66, {32768 + (3072 if i % 4 == 3 else -1024)}")
        if th: g(f"s_waitcnt vmcnt({th-1})")
        vo = 6 + (i & 1) if isv else 2 + (i & 3)
        g(f"buffer_load_dwordx4 v{vo}, s[{SRD_A}:{SRD_A+3}], s39 offen offset:{(i&3)*1024} {NT} lds")
    for i in range(8):
        if B0L and i == THR:
            g(f"s_load_dword s{S_E}, s[{P_WS}:{P_WS+1}], 0")
            g("s_barrier")
        kvld(i, 0, THR if i >= THR else 0)
    g("s_branch L_att")
    g.role = "l"
    g.label("L_ln")
    ffn_ids(g)
    g(f"s_mov_b32 s{SRD_B+3}, 0x20000")
    g(f"s_mul_i32 s{SRD_B+2}, s69, {512*1792*2}")
    g("v_lshrrev_b32 v3, 3, v0")
    g(f"v_mul_u32_u24 v3, {8192-3584}, v3")
    g("v_sub_u32 v2, v2, v3")
    g("s_and_b32 s38, s5, 7")
    g("s_lshl_b32 s38, s38, 2")
    g("s_add_u32 s38, s38, s3")
    g(f"s_mul_i32 s38, s38, {16*3584}")
    g("s_lshl_b32 s39, s68, 7")
    g("s_add_u32 s38, s38, s39")
    g("s_lshl_b32 s56, s3, 11")
    g(f"s_mov_b32 s{SRD_B}, s{P_W1}")
    g(f"s_mov_b32 s{SRD_B+1}, s{P_W1+1}")
    tile_dma(g, 2, 2, SRD_B, 38, (56, L_W1), 3584, NT)
    g(f"s_load_dword s{S_E}, s[{P_WS}:{P_WS+1}], 0")
    g.srd(SRD_W, P_WS, WS_BYTES)
    g("v_lshrrev_b32 v2, 2, v0")
    g("v_lshlrev_b32 v2, 6, v2")
    g("v_and_b32 v3, 1, v0")
    g("v_lshl_add_u32 v2, v3, 5, v2")
    g("v_and_b32 v3, 2, v0")
    g("v_lshl_add_u32 v2, v3, 2, v2")
    g(f"s_mul_i32 s38, s3, {XN_STR}")
    g(f"s_add_u32 s38, s38, {L_XN}")
    g("v_add_u32 v2, s38, v2")
    g("s_lshl_b32 s38, s3, 2")
    g(f"s_add_u32 s38, s38, {L_FL}")
    g("v_mov_b32 v9, s38")
    g("v_mov_b32 v10, 1")
    g(f"v_mov_b32 v21, {hex(f2u(1.0/512))}")
    g("s_waitcnt vmcnt(6)")
    g.stamp(1)
    for i in range(4):
        g(f"v_lshlrev_b32 v{12+2*i}, 16, v{4+i}")
        g(f"v_and_b32 v{13+2*i}, 0xffff0000, v{4+i}")
    g("v_pk_add_f32 v[22:23], v[12:13], v[14:15]")
    g("v_pk_add_f32 v[24:25], v[16:17], v[18:19]")
    g("v_pk_add_f32 v[22:23], v[22:23], v[24:25]")
    g("v_add_f32 v20, v22, v23")
    wave_sum(g, 20, 38)
    g("s_nop 1")
    g("v_mul_f32 v20, s38, v21")
    for i in range(8):
        g(f"v_sub_f32 v{24+i}, v{12+i}, v20")
    g("v_mul_f32 v22, v24, v24")
    g("v_mul_f32 v23, v25, v25")
    for i in range(1, 4):
        g(f"v_fmac_f32 v22, v{24+2*i}, v{24+2*i}")
        g(f"v_fmac_f32 v23, v{25+2*i}, v{25+2*i}")
    g("v_add_f32 v22, v22, v23")
    wave_sum(g, 22, 38)
    rnd(g, 20, 20)
    g("v_mul_f32 v22, s38, v21")
    rnd(g, 22, 22)
    g(f"v_add_f32 v22, {hex(f2u(1e-5))}, v22")
    rnd(g, 22, 22)
    g("v_sqrt_f32 v22, v22")
    for i in range(8):
        g(f"v_sub_f32 v{12+i}, v{12+i}, v20")
    rnd(g, 22, 22)
    g("v_rcp_f32 v22, v22")
    for i in range(4):
        g(f"v_cvt_pk_bf16_f32 v{4+i}, v{12+2*i}, v{13+2*i}")
    for i in range(4):
        g(f"v_lshlrev_b32 v{12+2*i}, 16, v{4+i}")
        g(f"v_and_b32 v{13+2*i}, 0xffff0000, v{4+i}")
    for i in range(8):
        g(f"v_mul_f32 v{12+i}, v{12+i}, v22")
    for i in range(4):
        g(f"v_cvt_pk_bf16_f32 v{4+i}, v{12+2*i}, v{13+2*i}")
    g("ds_write2_b64 v2, v[4:5], v[6:7] offset0:0 offset1:2")
    g("s_waitcnt vmcnt(2)")
    g(f"ds_write_b32 v9, v10 offset:{F_LNA}")
    g.stamp(2)
    g("s_waitcnt lgkmcnt(0)")
    epoch(g, 11)
    g("s_branch L_ln_done")
    g.role = "w"
    g.label("L_w0")
    g.srd(SRD_W, P_WS, WS_BYTES)
    g("s_getreg_b32 s57, hwreg(HW_REG_XCC_ID, 0, 3)")
    g("s_lshl_b32 s58, s4, 5")
    g("s_add_u32 s58, s58, s5")
    g("s_lshl_b32 s67, s58, 10")
    g("s_lshl_b32 s58, s58, 2")
    g(f"s_add_u32 s58, s58, {XC_WS}")
    g("v_mov_b32 v16, 0")
    g(f"s_add_u32 s56, s67, {QA_WS}")
    g("v_lshlrev_b32 v1, 4, v0")
    if opt.get("prew", 1): g(f"buffer_load_dwordx4 v[124:127], v1, {W}, s56 offen {PWF}")
    g("s_waitcnt lgkmcnt(0)")
    epoch(g, 11)
    g(f"s_lshl_b32 s56, s{S_E1}, 3")
    g("s_or_b32 s57, s57, s56")
    g("v_mov_b32 v12, s57")
    g("s_mov_b64 exec, 1")
    if not opt.get("noxc"): g(f"buffer_store_dword v12, v16, {W}, s58 offen {SC}")
    if TOUCH:
        g("s_mov_b64 exec, 0")
        g("s_branch L_chain0")
        g.label("L_w8b")
    g("s_mov_b64 exec, -1")
    g.srd(SRD_C, P_X, 4096)
    ffn_ids(g)
    g("s_lshr_b32 s6, s5, 3")
    g("s_and_b32 s7, s5, 7")
    tile_raddr(g, 4, 3)
    g("v_bfe_u32 v10, v0, 2, 2")
    g(f"v_mul_u32_u24 v8, {XN_STR}, v10")
    g("v_lshrrev_b32 v9, 4, v0")
    g("v_lshl_add_u32 v8, v9, 4, v8")
    g("s_lshl_b32 s39, s6, 8")
    g(f"s_add_u32 s39, s39, {L_XN}")
    g("v_add_u32 v8, s39, v8")
    g("v_lshlrev_b32 v10, 11, v10")
    g("v_lshl_add_u32 v10, v9, 6, v10")
    g("v_and_b32 v9, 3, v0")
    g("v_lshl_add_u32 v10, v9, 4, v10")
    selmasks(g, 9)
    g("s_lshl_b32 s38, s4, 15")
    g("s_lshl_b32 s39, s6, 13")
    g("s_add_u32 s38, s38, s39")
    g("s_lshl_b32 s39, s7, 8")
    g("s_add_u32 s38, s38, s39")
    g(f"s_add_u32 s39, s38, {QB_WS}")
    g(f"s_add_u32 s38, s38, {QA_WS}")
    g("s_lshl_b32 s58, s4, 7")
    g(f"s_add_u32 s58, s58, {XC_WS}")
    g("v_and_b32 v3, 31, v0")
    g("v_lshlrev_b32 v3, 2, v3")
    g(f"v_mov_b32 v2, {L_FL}")
    g("v_mov_b32 v9, 1")
    g("s_mov_b32 s63, 0")
    g.stamp(1)
    flagwait4(g, "L_lnw", 2, F_LNA, 12)
    g("s_setprio 3")
    for t in range(4):
        g(f"ds_read_b128 v[{12+4*t}:{15+4*t}], v8 offset:{64*t}")
        for u in range(4):
            r = 60 + 16*t + 4*u
            g(f"ds_read_b64_tr_b16 v[{r}:{r+1}], v{4+u} offset:{L_WQ - 65536 + t*4096}")
            g(f"ds_read_b64_tr_b16 v[{r+2}:{r+3}], v{4+u} offset:{L_WQ - 65536 + t*4096 + 2048}")
        if t >= 1:
            tt = t - 1
            g("s_waitcnt lgkmcnt(9)")
            for u in range(4):
                r = 60 + 16*tt + 4*u
                c = "0" if tt == 0 else f"v[{44+4*u}:{47+4*u}]"
                g(f"v_mfma_f32_16x16x32_bf16 v[{44+4*u}:{47+4*u}], v[{r}:{r+3}], v[{12+4*tt}:{15+4*tt}], {c}")
    for u in range(4):
        r = 60 + 48 + 4*u
        g(f"s_waitcnt lgkmcnt({6-2*u})")
        g(f"v_mfma_f32_16x16x32_bf16 v[{44+4*u}:{47+4*u}], v[{r}:{r+3}], v[24:27], v[{44+4*u}:{47+4*u}]")
    g("s_nop 3")
    select4(g, 28, 44, 11)
    g(f"buffer_store_dwordx4 v[28:31], v10, {W}, s38 offen")
    g(f"ds_write_b32 v2, v9 offset:{F_QP}")
    g.stamp(2)
    g("s_setprio 0")
    g("s_mov_b32 s63, 0")
    pw0 = len(g.L)
    g("s_lshl_b32 s56, s67, 1")
    g(f"s_add_u32 s56, s56, {O_WS}")
    g(f"buffer_load_dwordx4 v[124:127], v1, {W}, s56 offen {PWF}")
    g(f"buffer_load_dwordx4 v[124:127], v1, {W}, s56 offen offset:1024 {PWF}")
    g("s_lshl_b32 s56, s68, 3")
    g("s_add_u32 s56, s56, s7")
    g("s_lshl_b32 s56, s56, 10")
    g(f"s_add_u32 s56, s56, {H_WS}")
    g("s_lshr_b32 s59, s67, 4")
    g(f"s_add_u32 s59, s59, {M_WS}")
    g("s_cmp_eq_u32 s69, 0")
    g("s_cselect_b32 s56, s59, s56")
    g(f"buffer_load_dwordx4 v[124:127], v1, {W}, s56 offen {PWF}")
    g("s_mov_b64 exec, 15")
    g(f"buffer_load_dwordx4 v[124:127], v1, {W}, s59 offen {PWF}")
    g("s_mov_b64 exec, -1")
    if not opt.get("prew", 1): del g.L[pw0:]
    if opt.get("sx", 2): g(f"s_sleep {opt.get('sx', 2)}")
    if opt.get("noxc"):
        g("v_mov_b32 v20, s57")
    else:
        g(f"buffer_load_dword v20, v3, {W}, s58 offen {SC}")
        g("s_waitcnt vmcnt(0)")
    g.label("L_xc")
    g("v_xor_b32 v20, s57, v20")
    g("v_cmp_lt_u32 vcc, 7, v20")
    g("s_cbranch_vccz L_xcok")
    spin(g, "L_xcok")
    g(f"buffer_load_dword v20, v3, {W}, s58 offen {SC}")
    g("s_waitcnt vmcnt(0)")
    g("s_branch L_xc")
    g.label("L_xcok")
    g("v_cmp_ne_u32 vcc, 0, v20")
    g("s_cmp_lg_u64 vcc, 0")
    g("s_cselect_b32 s59, 2, 1")
    if opt.get("force_remote"):
        g("s_mov_b32 s59, 2")
    g("s_cmp_eq_u32 s59, 1")
    g("s_cbranch_scc1 L_xcl")
    g(f"buffer_store_dwordx4 v[28:31], v10, {W}, s39 offen {SC}")
    g.label("L_xcl")
    g("v_mov_b32 v20, s59")
    g(f"ds_write_b32 v2, v20 offset:{F_XC}")
    g.stamp(3)
    g("s_cmp_eq_u32 s69, 0")
    g("s_cbranch_scc1 L_w8")
    g("v_lshrrev_b32 v12, 4, v0")
    g("v_bfe_u32 v13, v0, 2, 2")
    g("v_and_b32 v14, 3, v0")
    g("v_lshlrev_b32 v12, 6, v12")
    g("v_lshl_add_u32 v12, v13, 8, v12")
    g("v_lshl_add_u32 v12, v14, 4, v12")
    g(f"v_add_u32 v13, {L_HP}, v1")
    g("s_lshl_b32 s56, s68, 3")
    g("s_add_u32 s56, s56, s7")
    g("s_lshl_b32 s56, s56, 10")
    g(f"s_add_u32 s56, s56, {H_WS}")
    flagwait1(g, "L_hw", 2, F_H, 14)
    g("ds_read_b128 v[20:23], v13")
    g("s_cmp_eq_u32 s59, 1")
    g("s_waitcnt lgkmcnt(0)")
    g("s_cbranch_scc0 L_hpub_rem")
    g(f"buffer_store_dwordx4 v[20:23], v12, {W}, s56 offen")
    g("s_branch L_w8")
    g.label("L_hpub_rem")
    g(f"buffer_store_dwordx4 v[20:23], v12, {W}, s56 offen {SC}")
    g("s_branch L_w8")
    g.role = "a"
    g.label("L_att")
    TRL = opt.get("trl", 2)
    def tile_dma_thr(n, voff, srd, ss, lb, stride, first=0):
        for i in range(first, n):
            if i == first: g(f"s_add_u32 m0, s{lb[0]}, {lb[1]}")
            if i: g(f"s_add_u32 s{ss}, s{ss}, {8*stride - 1024}")
            g(f"s_waitcnt vmcnt({(THR2 or 64)-1})")
            g(f"buffer_load_dwordx4 v{voff}, s[{srd}:{srd+3}], s{ss} offen offset:{i*1024} {NT} lds")
    g.srd(SRD_C, P_WO, 4096*512*2)
    tile_voff(g, 1, 10, 1024)
    g("s_lshl_b32 s60, s4, 2")
    g("s_add_u32 s60, s60, s6")
    g("s_lshl_b32 s60, s60, 17")
    g("s_lshl_b32 s61, s3, 15")
    g("s_add_u32 s60, s60, s61")
    g("s_lshl_b32 s62, s7, 7")
    g("s_add_u32 s93, s60, s62")
    g("s_lshl_b32 s65, s3, 12")
    QT = opt.get("qt", 6)
    if QT:
        g(f"v_mov_b32 v17, {L_FL}")
        g("s_lshl_b32 s60, s3, 2")
        g("v_add_u32 v18, s60, v17")
        g("v_mov_b32 v19, 1")
        g(f"s_waitcnt vmcnt({8-QT})")
        g(f"ds_write_b32 v18, v19 offset:{F_K2}")
    ld0 = len(g.L)
    tile_dma_thr(4, 1, SRD_C, 93, (65, L_WO), 1024)
    if opt.get("kf", 6) == 4:
        g("s_waitcnt vmcnt(4)")
        g(f"ds_write_b32 v18, v19 offset:{F_K}")
    tile_dma_thr(2 - TRL, 1, SRD_B, 68, (69, L_W2), 1024)
    if opt.get("kf", 6) == 6:
        g(f"s_waitcnt vmcnt({6 - TRL})")
        g(f"ds_write_b32 v18, v19 offset:{F_K}")
    g(f"s_mov_b32 s{SRD_A}, s{P_V}")
    g(f"s_mov_b32 s{SRD_A+1}, s{P_V+1}")
    g("s_mov_b32 s66, s38")
    g.stamp(4)
    PRE = opt.get("pre", 1)
    for i in range(8):
        kvld(i, 1, (THR2 if i < 4 else THR3) or 64)
        if PRE and i == 5:
            g("s_waitcnt vmcnt(6)")
            g(f"ds_write_b32 v18, v19 offset:{F_WO}")
    if TRL: tile_dma_thr(2, 1, SRD_B, 68, (69, L_W2), 1024, first=2 - TRL)
    loads = g.L[ld0:]; del g.L[ld0:]
    g("s_mov_b32 s60, s7")
    ffn_ids(g)
    g("s_mov_b32 s7, s60")
    g(f"s_mov_b32 s{SRD_B}, s{P_W2}")
    g(f"s_mov_b32 s{SRD_B+1}, s{P_W2+1}")
    g(f"s_mul_i32 s{SRD_B+2}, s69, {1792*512*2}")
    g(f"s_mov_b32 s{SRD_B+3}, 0x20000")
    g("s_lshl_b32 s68, s68, 2")
    g("s_add_u32 s68, s68, s3")
    g("s_lshl_b32 s68, s68, 14")
    g("s_add_u32 s68, s68, s62")
    g("s_lshl_b32 s69, s3, 11")
    g("v_lshlrev_b32 v6, 1, v8")
    g("v_xor_b32 v6, v9, v6")
    g("v_lshlrev_b32 v6, 4, v6")
    g("v_lshl_add_u32 v6, v8, 8, v6")
    g("v_xor_b32 v7, 128, v6")
    g(f"v_mov_b32 v17, {L_FL}")
    g("s_lshl_b32 s60, s3, 2")
    g("v_add_u32 v18, s60, v17")
    g("v_mov_b32 v19, 1")
    nfirst = len(g.L) - ld0
    g.srd(SRD_W, P_WS, WS_BYTES)
    g("v_lshrrev_b32 v25, 2, v0")
    g("v_and_b32 v26, 7, v25")
    g("v_lshlrev_b32 v26, 5, v26")
    g("v_lshl_add_u32 v26, v25, 8, v26")
    g("v_and_b32 v14, 3, v0")
    g("v_lshl_add_u32 v14, v14, 3, v26")
    g("s_lshl_b32 s60, s3, 6")
    g("v_xor_b32 v14, s60, v14")
    g("v_xor_b32 v15, 32, v14")
    g("v_bfe_u32 v25, v0, 2, 2")
    g("v_lshlrev_b32 v28, 6, v25")
    g("v_lshl_add_u32 v28, v8, 4, v28")
    g(f"v_add_u32 v28, {L_OC}, v28")
    g("v_lshlrev_b32 v30, 14, v25")
    g("v_lshl_add_u32 v30, v8, 5, v30")
    g("v_and_b32 v16, 1, v0")
    g("v_lshl_add_u32 v30, v16, 4, v30")
    g("s_lshl_b32 s61, s4, 5")
    g("s_add_u32 s61, s61, s7")
    g("s_lshl_b32 s61, s61, 2")
    g("s_add_u32 s61, s61, s6")
    g("s_lshl_b32 s61, s61, 2")
    g("s_add_u32 s61, s61, s3")
    g("s_lshl_b32 s61, s61, 7")
    g(f"s_add_u32 s61, s61, {O_WS}")
    for r in range(80, 112):
        g(f"v_mov_b32 v{r}, 0")
    g("s_mov_b32 s63, 0")
    g("s_waitcnt lgkmcnt(0)")
    epoch(g, 31)
    setup = g.L[ld0:]; del g.L[ld0:]
    per = -(-nfirst // 3)
    for x in loads:
        g.L.append(x)
        if "buffer_load" in x:
            g.L.extend(setup[:per]); setup = setup[per:]
    assert not setup
    g.stamp(3)
    flagwait4(g, "L_px", 17, F_P, 36, pre=lambda: g(f"ds_read_b32 v46, v17 offset:{F_XC}"), sleep=0)
    g("s_mov_b32 exec_lo, 0x55555555")
    g("s_mov_b32 exec_hi, 0x55555555")
    for t in range(4):
        g(f"ds_read_b128 v[{80+4*t}:{83+4*t}], v28 offset:{256*t}")
    g("s_not_b64 exec, exec")
    for t in range(4):
        g(f"ds_read_b128 v[{96+4*t}:{99+4*t}], v28 offset:{256*t}")
    g("s_mov_b64 exec, -1")
    g("v_readfirstlane_b32 s65, v46")
    g.stamp(2)
    def vrd(half):
        for t in range(4):
            for p in range(2):
                r = 48 + 8*t + 4*p + 2*half
                g(f"ds_read_b64_tr_b16 v[{r}:{r+1}], v{14+p} offset:{L_V + t*8192 + 4096*half}")
    if PRE:
        g(f"s_waitcnt vmcnt({TRL+4})")
        g(f"ds_write_b32 v18, v19 offset:{F_V1}")
        flagwait4(g, "L_v1", 17, F_V1, 36)
        vrd(0)
    g(f"s_waitcnt vmcnt({TRL}) lgkmcnt(0)")
    g.stamp(5)
    g("s_cmp_eq_u32 s65, 1")
    g("s_barrier")
    g.stamp(7)
    if not PRE: vrd(0)
    vrd(1)
    for t in range(4):
        for p in range(2):
            r = 48 + 8*t + 4*p
            k = 2*t + p
            g(f"s_waitcnt lgkmcnt({7-k})")
            g(f"v_mfma_f32_16x16x32_bf16 v[36:39], v[{r}:{r+3}], v[{80+16*p+4*t}:{83+16*p+4*t}], {'0' if k == 0 else 'v[36:39]'}")
    g("s_mov_b32 exec_lo, 0x33333333")
    g("s_mov_b32 exec_hi, 0x33333333")
    g("s_nop 4")
    g("s_cbranch_scc0 L_opub_rem")
    for rem in (0, 1):
        if rem: g.label("L_opub_rem")
        for r in range(4):
            g(f"v_bfi_b32 v{36+r}, s{S_LO}, v31, v{36+r}")
        g(f"buffer_store_dwordx4 v[36:39], v30, {W}, s61 offen {SC if rem else ''}")
        if TRL: g("s_waitcnt vmcnt(1)")
        g(f"ds_write_b32 v18, v19 offset:{F_OP}")
        g.stamp(8)
        if opt.get("stamps"):
            g("s_add_u32 s3, s3, 4")
            g("s_branch L_end")
        else:
            hevhold()
            g("s_endpgm")
    g.role = "l"
    g.label("L_ln_done")
    if TOUCH:
        g("s_cmp_eq_u32 s3, 3")
        g("s_cbranch_scc0 L_w3b")
        g("s_mov_b64 exec, 0")
        g("s_branch L_chain1")
        g.label("L_w3b")
        g("s_mov_b64 exec, -1")
    tile_raddr(g, 4, 3)
    g(f"v_mov_b32 v17, {L_FL}")
    g("s_mov_b32 s63, 0")
    g("s_waitcnt vmcnt(0)")
    g(f"ds_write_b32 v9, v10 offset:{F_LNB}")
    g("s_cmp_eq_u32 s3, 1")
    g("s_cbranch_scc0 L_qk")
    g("s_cmp_eq_u32 s69, 0")
    g("s_cbranch_scc1 L_qk")
    g("s_and_b32 s6, s5, 7")
    g("v_and_b32 v15, 3, v0")
    selmasks(g, 15)
    g("v_lshrrev_b32 v13, 4, v0")
    g("v_bfe_u32 v16, v0, 2, 2")
    g(f"v_mul_u32_u24 v14, {XN_STR}, v16")
    g("v_lshl_add_u32 v14, v13, 4, v14")
    g("s_lshl_b32 s39, s6, 7")
    g(f"s_add_u32 s39, s39, {L_XN}")
    g("v_add_u32 v14, s39, v14")
    g("v_lshlrev_b32 v13, 4, v0")
    g(f"v_add_u32 v13, {L_HP}, v13")
    flagwait4(g, "L_w1w", 17, F_LNB, 20, sleep=1)
    g("ds_read_b128 v[80:83], v14")
    g("ds_read_b128 v[84:87], v14 offset:64")
    for t in range(2):
        for u in range(4):
            r = 24 + 16*t + 4*u
            g(f"ds_read_b64_tr_b16 v[{r}:{r+1}], v{4+u} offset:{L_W1 - 65536 + t*4096}")
            g(f"ds_read_b64_tr_b16 v[{r+2}:{r+3}], v{4+u} offset:{L_W1 - 65536 + t*4096 + 2048}")
    for t in range(2):
        for u in range(4):
            r = 24 + 16*t + 4*u
            g(f"s_waitcnt lgkmcnt({14 - 8*t - 2*u})")
            c = "0" if t == 0 else f"v[{64+4*u}:{67+4*u}]"
            g(f"v_mfma_f32_16x16x32_bf16 v[{64+4*u}:{67+4*u}], v[{r}:{r+3}], v[{80+4*t}:{83+4*t}], {c}")
    g("s_nop 3")
    select4(g, 56, 64, 11)
    g("ds_write_b128 v13, v[56:59]")
    g(f"ds_write_b32 v17, v10 offset:{F_H}")
    g.stamp(1)
    g.label("L_qk")
    g("s_lshr_b32 s6, s5, 3")
    g("s_and_b32 s7, s5, 7")
    g("v_lshrrev_b32 v8, 4, v0")
    g("v_and_b32 v12, 15, v0")
    g("v_xor_b32 v20, v8, v12")
    g("v_lshlrev_b32 v20, 4, v20")
    g("v_lshl_add_u32 v20, v12, 8, v20")
    g("s_lshl_b32 s39, s3, 13")
    g("v_add_u32 v20, s39, v20")
    for t in (1, 2, 3):
        g(f"v_xor_b32 v{20+t}, {64*t}, v20")
    g("v_lshrrev_b32 v13, 5, v0")
    g("v_and_b32 v14, 31, v0")
    g("v_lshlrev_b32 v24, 14, v13")
    g("v_lshl_add_u32 v24, v14, 4, v24")
    g("s_lshl_b32 s58, s4, 15")
    g("s_lshl_b32 s59, s6, 11")
    g("s_add_u32 s58, s58, s59")
    g("s_lshl_b32 s59, s3, 9")
    g("s_add_u32 s65, s58, s59")
    g(f"s_add_u32 s65, s65, {QA_WS}")
    g("v_lshlrev_b32 v25, 2, v13")
    g("v_and_b32 v15, 16, v0")
    g("v_lshl_add_u32 v25, v15, 3, v25")
    g("v_and_b32 v15, 12, v0")
    g("v_lshl_add_u32 v25, v15, 1, v25")
    g("v_and_b32 v15, 3, v0")
    g("v_lshl_add_u32 v25, v15, 5, v25")
    g(f"s_mul_i32 s39, s3, {QL_STR}")
    g(f"s_add_u32 s38, s39, {L_QL}")
    g("v_add_u32 v25, s38, v25")
    g("v_bfe_u32 v16, v0, 2, 2")
    g(f"v_mul_u32_u24 v26, {QL_STR}, v16")
    g("v_lshl_add_u32 v26, v8, 4, v26")
    g(f"v_add_u32 v26, {L_QL}, v26")
    g("v_lshlrev_b32 v29, 4, v16")
    g(f"v_add_u32 v29, {L_ML}, v29")
    g("s_lshl_b32 s38, s3, 2")
    g("v_add_u32 v27, s38, v29")
    g("v_lshlrev_b32 v28, 6, v16")
    g("v_lshl_add_u32 v28, v8, 4, v28")
    g("s_lshl_b32 s38, s3, 8")
    g(f"s_add_u32 s38, s38, {L_OC}")
    g("v_add_u32 v28, s38, v28")
    g("v_lshlrev_b32 v30, 9, v16")
    g("s_lshl_b32 s67, s4, 7")
    g("s_add_u32 s67, s67, s5")
    g("s_lshl_b32 s67, s67, 4")
    g(f"s_add_u32 s67, s67, {M_WS}")
    for r in range(4):
        g(f"v_mov_b32 v{32+r}, 0x3f803f80")
    g(f"s_mov_b32 s66, {hex(f2u(1.4426950408889634 / (128 ** 0.5)))}")
    g("s_mov_b32 s57, 0x11111111")
    g("s_lshl_b32 s56, s4, 2")
    g("s_add_u32 s56, s56, s6")
    g("v_lshlrev_b32 v103, 13, v13")
    g("v_lshl_add_u32 v103, v14, 4, v103")
    g("s_lshl_b32 s61, s56, 14")
    g("s_add_u32 s61, s61, s59")
    g(f"s_add_u32 s61, s61, {O_WS}")
    g("s_add_u32 s64, s61, 4096")
    g("v_lshl_add_u32 v104, v13, 2, v15")
    g("v_lshlrev_b32 v104, 4, v104")
    g("s_lshl_b32 s60, s56, 2")
    g("s_add_u32 s60, s60, s3")
    g("s_lshl_b32 s60, s60, 7")
    g(f"s_add_u32 s60, s60, {M_WS}")
    g("v_lshlrev_b32 v102, 2, v13")
    g("v_lshl_add_u32 v102, v14, 3, v102")
    g(f"s_add_u32 s39, s39, {L_OL}")
    g("v_add_u32 v102, s39, v102")
    g(f"v_mul_u32_u24 v101, {QL_STR}, v15")
    g("v_lshl_add_u32 v101, v8, 4, v101")
    g(f"v_add_u32 v101, {L_OL}, v101")
    g("s_lshl_b32 s39, s3, 5")
    g("v_xor_b32 v107, s39, v4")
    g("v_lshlrev_b32 v105, 4, v0")
    g("s_lshl_b32 s62, s7, 6")
    g("s_add_u32 s62, s62, s56")
    g("s_lshl_b32 s62, s62, 2")
    g("s_add_u32 s62, s62, s3")
    g("s_lshl_b32 s62, s62, 8")
    g(f"s_add_u32 s62, s62, {R3_WS}")
    g.stamp(3)
    flagwait1(g, "L_qw", 17, F_QP, 12)
    flagwait1(g, "L_kw", 9, F_K2 if opt.get("qt", 6) else F_K, 12)
    if opt.get("dq", 0): g(f"s_sleep {opt.get('dq', 0)}")
    g("s_and_b32 s63, s63, 0xffff")
    g("s_mov_b32 s58, s65")
    g("s_add_u32 s59, s58, 8192")
    g(f"buffer_load_dwordx4 v[36:39], v24, {W}, s58 offen {SC}")
    g(f"buffer_load_dwordx4 v[40:43], v24, {W}, s59 offen {SC}")
    if opt.get("qt", 6): flagwait1(g, "L_kv2", 9, F_K, 12)
    for tau in range(2):
        for t in range(4):
            r = 48 + 16*tau + 4*t
            g(f"ds_read_b128 v[{r}:{r+3}], v{20+t} offset:{4096*tau}")
    g.label("L_qc")
    g("s_waitcnt vmcnt(0)")
    tagcheck(g, list(range(36, 44)), 11, [44, 45, 46, 47])
    g("s_cbranch_vccz L_qok")
    g("s_add_u32 s63, s63, 1")
    g("s_bitcmp1_b32 s63, 15")
    g("s_cbranch_scc1 L_qok")
    g(f"ds_read_b32 v12, v17 offset:{F_XC}")
    g("s_waitcnt lgkmcnt(0)")
    g("v_readfirstlane_b32 s56, v12")
    g("s_nop 2")
    g("s_cmp_eq_u32 s56, 2")
    g(f"s_cselect_b32 s58, {QB_WS - QA_WS}, 0")
    g("s_add_u32 s58, s58, s65")
    g("s_add_u32 s59, s58, 8192")
    g(f"buffer_load_dwordx4 v[36:39], v24, {W}, s58 offen {SC}")
    g(f"buffer_load_dwordx4 v[40:43], v24, {W}, s59 offen {SC}")
    g("s_branch L_qc")
    g.label("L_qok")
    g.stamp(4)
    if opt.get("stamps"): g("s_and_b32 s96, s63, 0xff")
    g("v_pk_add_f32 v[36:37], v[36:37], v[40:41]")
    g("v_pk_add_f32 v[38:39], v[38:39], v[42:43]")
    g("s_nop 1")
    g("v_permlane32_swap_b32 v36, v38")
    g("v_permlane32_swap_b32 v37, v39")
    g("v_pk_add_f32 v[36:37], v[36:37], v[38:39]")
    g("v_cvt_pk_bf16_f32 v36, v36, v37")
    g("ds_write_b32 v25, v36")
    g(f"ds_write_b32 v9, v10 offset:{F_Q}")
    def qrd():
        for t in range(4):
            g(f"ds_read_b128 v[{80+4*t}:{83+4*t}], v26 offset:{64*t}")
    flagwait4(g, "L_qx", 17, F_Q, 36, pre=qrd, n=4)
    for t in range(4):
        g(f"s_waitcnt lgkmcnt({3-t})")
        for tau in range(2):
            r = 48 + 16*tau + 4*t
            c = "0" if t == 0 else f"v[{36+4*tau}:{39+4*tau}]"
            g(f"v_mfma_f32_16x16x32_bf16 v[{36+4*tau}:{39+4*tau}], v[{r}:{r+3}], v[{80+4*t}:{83+4*t}], {c}")
    g("s_nop 6")
    g("v_max3_f32 v44, v36, v37, v38")
    g("v_max3_f32 v45, v39, v40, v41")
    g("v_max3_f32 v44, v44, v42, v43")
    g("v_max_f32 v44, v44, v45")
    g("v_mov_b32 v45, v44")
    g("s_nop 1")
    g("v_permlane32_swap_b32 v44, v45")
    g("v_max_f32 v44, v44, v45")
    g("v_mov_b32 v45, v44")
    g("s_nop 1")
    g("v_permlane16_swap_b32 v44, v45")
    g("v_max_f32 v44, v44, v45")
    g("v_mul_f32 v44, s66, v44")
    g("s_mov_b64 exec, 0x1111")
    g("ds_write_b32 v27, v44")
    g("s_mov_b64 exec, -1")
    g.label("L_mx")
    g("ds_read_b128 v[48:51], v29")
    spin(g, "L_mxok", inc=0x10000, mx=0x7ff00000)
    g("s_waitcnt lgkmcnt(0)")
    g("v_max_u32 v45, v48, v49")
    g("v_max3_u32 v45, v45, v50, v51")
    g("v_cmp_eq_u32 vcc, -1, v45")
    g("s_cbranch_vccnz L_mx")
    g.label("L_mxok")
    g("v_max3_f32 v44, v48, v49, v50")
    g("v_max_f32 v44, v44, v51")
    g(f"v_bfi_b32 v44, s{S_LO}, v11, v44")
    for i in range(8):
        g(f"v_fma_f32 v{36+i}, v{36+i}, s66, -v44")
    for i in range(8):
        g(f"v_exp_f32 v{36+i}, v{36+i}")
    for i in range(4):
        g(f"v_cvt_pk_bf16_f32 v{36+i}, v{36+2*i}, v{37+2*i}")
    g("s_nop 1")
    g("v_mfma_f32_16x16x32_bf16 v[40:43], v[32:35], v[36:39], 0")
    g("s_mov_b32 exec_lo, s57")
    g("s_mov_b32 exec_hi, s57")
    g("ds_write_b128 v28, v[36:39]")
    g("s_mov_b64 exec, 0x1111")
    g("s_nop 3")
    g("ds_write_b32 v27, v40 offset:64")
    g("s_mov_b64 exec, -1")
    flagwait1(g, "L_xw", 17, F_XC, 12, sdst=56, sleep=0)
    g(f"ds_write_b32 v9, v10 offset:{F_P}")
    g.stamp(2)
    g("s_cmp_eq_u32 s3, 0")
    g("s_cbranch_scc0 L_wo_b3")
    flagwait4(g, "L_lx", 17, F_P, 36, pre=lambda: g("ds_read_b128 v[40:43], v29 offset:64"), n=0)
    g("v_pk_add_f32 v[40:41], v[40:41], v[42:43]")
    g("v_mov_b32 v46, v11")
    g("v_mov_b32 v47, v11")
    g("v_add_f32 v45, v40, v41")
    g("s_mov_b64 exec, 0x1111")
    g(f"v_bfi_b32 v45, s{S_LO}, v11, v45")
    g("s_cmp_eq_u32 s56, 1")
    g("s_cbranch_scc0 L_mlr")
    g(f"buffer_store_dwordx4 v[44:47], v30, {W}, s67 offen")
    g("s_branch L_ml1")
    g.label("L_mlr")
    g(f"buffer_store_dwordx4 v[44:47], v30, {W}, s67 offen {SC}")
    g.label("L_ml1")
    g("s_mov_b64 exec, -1")
    g.label("L_wo_b3")
    g(f"v_mov_b32 v106, {L_FL}")
    def word():
        for t in range(4):
            g(f"ds_read_b64_tr_b16 v[{16+4*t}:{17+4*t}], v107 offset:{L_WO - 65536 + t*4096}")
            g(f"ds_read_b64_tr_b16 v[{18+4*t}:{19+4*t}], v107 offset:{L_WO - 65536 + t*4096 + 2048}")
    if opt.get("pre", 1):
        flagwait4(g, "L_wow", 106, F_WO, 36, sleep=1)
        word()
    g("s_mov_b32 s63, 0")
    g("s_waitcnt lgkmcnt(0)")
    g("s_barrier")
    def oml():
        g(f"buffer_load_dwordx4 v[32:35], v104, {W}, s60 offen {SC}")
    def opl():
        g(f"buffer_load_dwordx4 v[40:43], v103, {W}, s61 offen {SC}")
        g(f"buffer_load_dwordx4 v[44:47], v103, {W}, s61 offen offset:2048 {SC}")
        g(f"buffer_load_dwordx4 v[48:51], v103, {W}, s64 offen {SC}")
        g(f"buffer_load_dwordx4 v[52:55], v103, {W}, s64 offen offset:2048 {SC}")
    oml()
    if not opt.get("pre", 1): word()
    g("s_waitcnt vmcnt(0)")
    tagcheck(g, [32, 33, 34, 35], 11, [56, 57])
    g("s_cbranch_vccz L_o2")
    flagwait4(g, "L_wu", 106, F_OP, 36)
    g("s_mov_b32 s63, 0")
    g.label("L_o")
    oml()
    spin(g, "L_o2", inc=0x100, mx=SPIN_MAX*256)
    g("s_waitcnt vmcnt(0)")
    tagcheck(g, [32, 33, 34, 35], 11, [56, 57])
    g("s_cbranch_vccnz L_o")
    g.label("L_o2")
    g.stamp(5)
    g(f"v_max_f32_dpp v56, v32, v32 quad_perm:[1,0,3,2] {DPPM}")
    g("s_nop 1")
    g(f"v_max_f32_dpp v56, v56, v56 quad_perm:[2,3,0,1] {DPPM}")
    g("v_mov_b32 v57, v56")
    g("s_nop 1")
    g("v_permlane32_swap_b32 v56, v57")
    g("v_max_f32 v56, v56, v57")
    g("v_sub_f32 v32, v32, v56")
    g("v_exp_f32 v32, v32")
    g("s_nop 0")
    g("v_mul_f32 v57, v32, v33")
    g("s_nop 1")
    g(f"v_add_f32_dpp v57, v57, v57 quad_perm:[1,0,3,2] {DPPM}")
    g("s_nop 1")
    g(f"v_add_f32_dpp v57, v57, v57 quad_perm:[2,3,0,1] {DPPM}")
    g("v_mov_b32 v58, v57")
    g("s_nop 1")
    g("v_permlane32_swap_b32 v57, v58")
    g("v_add_f32 v57, v57, v58")
    g("v_rcp_f32 v57, v57")
    g("s_nop 0")
    g("v_mul_f32 v32, v32, v57")
    g("s_nop 1")
    for i in range(4):
        g(f"v_mov_b32_dpp v{64+2*i}, v32 quad_perm:[{i},{i},{i},{i}] {DPPM}")
    for i in range(4):
        g(f"v_mov_b32 v{65+2*i}, v{64+2*i}")
    flagwait4(g, "L_wt", 106, F_OP, 36)
    g("s_and_b32 s63, s63, 0xff00")
    g.stamp(6)
    if opt.get("d2", 0): g(f"s_sleep {opt['d2']}")
    g.label("L_o3")
    opl()
    g("s_add_u32 s63, s63, 1")
    g("s_bitcmp1_b32 s63, 24")
    g("s_cbranch_scc1 L_ook")
    g("s_waitcnt vmcnt(0)")
    if opt.get("omask", 1): g("s_mov_b64 exec, -1")
    tagcheck(g, list(range(40, 56)), 11, [56, 57, 58, 59, 36, 37, 38, 39])
    if opt.get("omask", 1):
        g("s_cbranch_vccz L_ook")
        g("s_mov_b64 exec, vcc")
        g("s_branch L_o3")
    else:
        g("s_cbranch_vccnz L_o3")
    g.label("L_ook")
    g.stamp(7)
    g("v_pk_mul_f32 v[36:37], v[64:65], v[40:41]")
    g("v_pk_mul_f32 v[38:39], v[64:65], v[42:43]")
    for i in range(1, 4):
        g(f"v_pk_fma_f32 v[36:37], v[{64+2*i}:{65+2*i}], v[{40+4*i}:{41+4*i}], v[36:37]")
        g(f"v_pk_fma_f32 v[38:39], v[{64+2*i}:{65+2*i}], v[{42+4*i}:{43+4*i}], v[38:39]")
    g("s_nop 1")
    g("v_permlane32_swap_b32 v36, v38")
    g("v_permlane32_swap_b32 v37, v39")
    g("v_pk_add_f32 v[36:37], v[36:37], v[38:39]")
    g("v_cvt_pk_bf16_f32 v36, v36, v37")
    g("ds_write_b32 v102, v36")
    g("s_waitcnt lgkmcnt(0)")
    g("s_barrier")
    for t in range(4):
        g(f"ds_read_b128 v[{40+4*t}:{43+4*t}], v101 offset:{64*t}")
    for t in range(4):
        g(f"s_waitcnt lgkmcnt({3-t})")
        c = "0" if t == 0 else "v[32:35]"
        g(f"v_mfma_f32_16x16x32_bf16 v[32:35], v[{40+4*t}:{43+4*t}], v[{16+4*t}:{19+4*t}], {c}")
    g("s_mov_b64 exec, 0xffff")
    g("s_nop 6")
    for u in range(4):
        g(f"v_bfi_b32 v{32+u}, s{S_LO}, v11, v{32+u}")
    g(f"buffer_store_dwordx4 v[32:35], v105, {W}, s62 offen {opt.get('fs', SC).replace('+', ' ')}")
    g.stamp(8)
    if opt.get("stamps"):
        g("s_lshl_b32 s96, s96, 16")
        g("s_and_b32 s63, s63, 0xffff")
        g("s_or_b32 s63, s63, s96")
    hevhold()
    g("s_branch L_end" if opt.get("stamps") else "s_endpgm")
    g.role = "w"
    g.label("L_w8")
    g.srd(SRD_B, P_B1, 1792*2)
    g("s_and_b32 s6, s5, 7")
    g("v_lshrrev_b32 v12, 4, v0")
    g("v_and_b32 v13, 3, v0")
    g("v_bfe_u32 v14, v0, 2, 2")
    selmasks(g, 12)
    g("v_lshlrev_b32 v8, 5, v13")
    g("v_lshl_add_u32 v8, v14, 3, v8")
    g("s_lshl_b32 s57, s68, 7")
    g(f"v_mul_u32_u24 v9, {HL_STR}, v12")
    g("v_lshl_add_u32 v9, v14, 4, v9")
    g("v_and_b32 v14, 2, v0")
    g("v_lshl_add_u32 v9, v14, 5, v9")
    g("v_cmp_ne_u32 s[60:61], 0, v14")
    g("v_and_b32 v15, 1, v0")
    g("v_lshl_add_u32 v9, v15, 3, v9")
    g(f"v_add_u32 v9, {L_HL}, v9")
    g(f"v_mul_u32_u24 v19, {HL_STR}, v13")
    g("v_lshl_add_u32 v19, v12, 4, v19")
    g(f"v_add_u32 v19, {L_HL}, v19")
    g("s_lshl_b32 s58, s68, 13")
    g(f"s_add_u32 s58, s58, {H_WS}")
    g("s_add_u32 s59, s58, 4096")
    g("v_lshlrev_b32 v10, 4, v0")
    g("s_add_u32 s39, s4, 24")
    g("s_cmp_eq_u32 s69, 0")
    g("s_cselect_b32 s39, s39, s68")
    g("s_lshl_b32 s62, s6, 6")
    g("s_add_u32 s62, s62, s39")
    g("s_add_u32 s62, s62, 32")
    g("s_lshl_b32 s62, s62, 10")
    g(f"s_add_u32 s62, s62, {R3_WS}")
    g("v_lshrrev_b32 v3, 1, v0")
    g("v_lshlrev_b32 v3, 10, v3")
    g("v_lshl_add_u32 v3, v15, 4, v3")
    g("s_lshl_b32 s64, s4, 16")
    g("s_lshl_b32 s39, s5, 5")
    g("s_add_u32 s64, s64, s39")
    g(f"s_add_u32 s64, s64, {R3_WS}")
    g("s_add_u32 s65, s64, 32768")
    g("v_and_b32 v16, 1, v12")
    g("v_add_u32 v16, v16, v14")
    g("v_lshlrev_b32 v1, 1, v15")
    g("v_lshl_add_u32 v16, v16, 10, v1")
    g("s_lshl_b32 s66, s4, 7")
    g("s_lshl_b32 s39, s5, 2")
    g("s_add_u32 s66, s66, s39")
    g(f"buffer_load_dwordx2 v[20:21], v8, s[{SRD_B}:{SRD_B+3}], s57 offen")
    g.srd(SRD_B, P_B2, 1024)
    g(f"buffer_load_ushort v17, v16, s[{SRD_C}:{SRD_C+3}], s66 offen")
    g(f"buffer_load_ushort v18, v1, s[{SRD_B}:{SRD_B+3}], s66 offen")
    g.srd(SRD_A, P_OUT, 4096)
    g(f"s_mov_b32 s57, {hex(f2u(-1.4426950408889634))}")
    g(f"v_mov_b32 v2, {L_FL}")
    for r in range(4):
        g(f"v_mov_b32 v{96+r}, v11")
    g("s_mov_b32 s63, 0")
    g("s_cmp_eq_u32 s69, 0")
    g("s_cbranch_scc0 L_w8_u")
    g(f"buffer_store_dwordx4 v[96:99], v10, {W}, s62 offen {SC}")
    g("s_barrier")
    g("s_branch L_w8_fin")
    g.label("L_w8_u")
    g(f"s_sleep {opt.get('dh', 36)}")
    def hld():
        for kp in range(8):
            g(f"buffer_load_dwordx4 v[{56+4*kp}:{59+4*kp}], v10, {W}, s{58+(kp>>2)} offen offset:{(kp&3)*1024} {SC}")
    if not opt.get("nohg"): hld()
    g("s_barrier")
    g.label("L_h")
    g("s_waitcnt vmcnt(0)")
    g("v_lshlrev_b32 v88, 16, v20")
    g("v_and_b32 v89, 0xffff0000, v20")
    g("v_lshlrev_b32 v90, 16, v21")
    g("v_and_b32 v91, 0xffff0000, v21")
    tagcheck(g, list(range(56, 88)), 11, list(range(100, 116)))
    g("s_cbranch_vccz L_hok")
    spin(g, "L_hok")
    hld()
    g("s_branch L_h")
    g.label("L_hok")
    g.stamp(5)
    for (a, b) in ((56, 60), (64, 68), (72, 76), (80, 84), (56, 64), (72, 80), (56, 72)):
        g(f"v_pk_add_f32 v[{a}:{a+1}], v[{a}:{a+1}], v[{b}:{b+1}]")
        g(f"v_pk_add_f32 v[{a+2}:{a+3}], v[{a+2}:{a+3}], v[{b+2}:{b+3}]")
    def unp():
        g("v_cvt_pk_bf16_f32 v60, v56, v57")
        g("v_cvt_pk_bf16_f32 v61, v58, v59")
        g("v_lshlrev_b32 v56, 16, v60")
        g("v_and_b32 v57, 0xffff0000, v60")
        g("v_lshlrev_b32 v58, 16, v61")
        g("v_and_b32 v59, 0xffff0000, v61")
    unp()
    g("v_pk_add_f32 v[56:57], v[56:57], v[88:89]")
    g("v_pk_add_f32 v[58:59], v[58:59], v[90:91]")
    unp()
    for i in range(4):
        g(f"v_max_f32 v{56+i}, 0, v{56+i}")
    g("v_pk_mul_f32 v[56:57], v[56:57], v[56:57]")
    g("v_pk_mul_f32 v[58:59], v[58:59], v[58:59]")
    g("v_cvt_pk_bf16_f32 v60, v56, v57")
    g("v_cvt_pk_bf16_f32 v61, v58, v59")
    g("ds_write_b64 v9, v[60:61]")
    g("ds_read_b128 v[64:67], v19")
    g("ds_read_b128 v[68:71], v19 offset:64")
    if opt.get("trl", 2): flagwait4(g, "L_w2w", 2, F_OP, 72)
    g.stamp(4)
    for t in range(2):
        for u in range(4):
            r = 24 + 16*t + 4*u
            g(f"ds_read_b64_tr_b16 v[{r}:{r+1}], v{4+u} offset:{L_W2 - 65536 + t*4096}")
            g(f"ds_read_b64_tr_b16 v[{r+2}:{r+3}], v{4+u} offset:{L_W2 - 65536 + t*4096 + 2048}")
    for t in range(2):
        for u in range(4):
            g(f"s_waitcnt lgkmcnt({14 - 8*t - 2*u})")
            r = 24 + 16*t + 4*u
            d = 72 + 4*u
            c = "0" if t == 0 else f"v[{d}:{d+3}]"
            g(f"v_mfma_f32_16x16x32_bf16 v[{d}:{d+3}], v[{64+4*t}:{67+4*t}], v[{r}:{r+3}], {c}")
    g("s_nop 3")
    select4(g, 96, 72, 11)
    g.stamp(6)
    g("s_barrier")
    g(f"buffer_store_dwordx4 v[96:99], v10, {W}, s62 offen {SC}")
    g("s_branch L_w8_f2")
    g.label("L_w8_fin")
    g.stamp(6)
    g("s_barrier")
    g.label("L_w8_f2")
    g("s_mov_b32 s63, 0")
    g("s_waitcnt vmcnt(1)")
    g("v_lshlrev_b32 v17, 16, v17")
    g("v_lshlrev_b32 v18, 16, v18")
    if opt.get("df", 14):
        g(f"s_sleep {opt.get('df', 14)}")
    FL = opt.get("fl", SC).replace("+", " ")
    g.label("L_f")
    g(f"buffer_load_dwordx4 v[24:27], v3, {W}, s64 offen {FL}")
    g(f"buffer_load_dwordx4 v[40:43], v3, {W}, s65 offen {FL}")
    spin(g, "L_fok")
    g("s_waitcnt vmcnt(0)")
    if opt.get("fmask"): g("s_mov_b64 exec, -1")
    tagcheck(g, [24, 25, 26, 27, 40, 41, 42, 43], 11, list(range(44, 48)))
    if opt.get("sf", 0) or opt.get("fmask"):
        g("s_cbranch_vccz L_fok")
        if opt.get("fmask"): g("s_mov_b64 exec, vcc")
        if opt.get("sf", 0): g(f"s_sleep {opt['sf']}")
        g("s_branch L_f")
    else:
        g("s_cbranch_vccnz L_f")
    g.label("L_fok")
    g.stamp(7)
    for i in range(4):
        g(f"v_permlane32_swap_b32 v{24+i}, v{40+i}")
    g("v_pk_add_f32 v[24:25], v[24:25], v[40:41]")
    g("v_pk_add_f32 v[26:27], v[26:27], v[42:43]")
    g("s_nop 0")
    g("v_permlane16_swap_b32 v24, v25")
    g("v_permlane16_swap_b32 v26, v27")
    g("v_add_f32 v24, v24, v25")
    g("v_add_f32 v26, v26, v27")
    for c in ("row_ror:8", "row_ror:4", "row_ror:2"):
        g("s_nop 0")
        g(f"v_add_f32_dpp v24, v24, v24 {c} {DPPM}")
        g(f"v_add_f32_dpp v26, v26, v26 {c} {DPPM}")
    g("v_cndmask_b32 v24, v24, v26, s[60:61]")
    rnd(g, 24, 24)
    g("v_add_f32 v25, v24, v18")
    rnd(g, 25, 25)
    g("v_mul_f32 v26, s57, v25")
    g("v_exp_f32 v26, v26")
    g("s_nop 0")
    g("v_add_f32 v26, 1.0, v26")
    g("v_rcp_f32 v26, v26")
    g("s_nop 0")
    g("v_mul_f32 v26, v25, v26")
    rnd(g, 26, 26)
    g("s_nop 1")
    g("v_permlane32_swap_b32 v26, v27")
    g("s_mov_b32 exec_lo, 0x000f000f")
    g("s_mov_b32 exec_hi, 0")
    g("v_mul_f32 v24, v24, v27")
    rnd(g, 24, 24)
    g("v_add_f32 v24, v24, v17")
    g("v_cvt_pk_bf16_f32 v24, v24, v24")
    g(f"buffer_store_short v24, v16, s[{SRD_A}:{SRD_A+3}], s66 offen")
    g.stamp(8)
    hevhold()
    if opt.get("hold"):
        g(f"s_cmp_eq_u32 s2, {opt.get('holdwg', 0)}")
        g("s_cbranch_scc0 L_nohold")
        g.label("L_hold")
        g("s_memrealtime s[72:73]")
        g("s_waitcnt lgkmcnt(0)")
        g("s_sub_u32 s72, s72, s70")
        g(f"s_cmp_lt_u32 s72, {opt['hold']}")
        g("s_cbranch_scc1 L_hold")
        g.label("L_nohold")
    g("s_cmp_eq_u32 s2, 0")
    g("s_cbranch_scc0 L_end")
    g(f"v_mov_b32 v24, s{S_E1}")
    g("v_mov_b32 v25, 0")
    g("s_mov_b64 exec, 1")
    g(f"buffer_store_dword v24, v25, {W}, 0 offen")
    g.label("L_end")
    if opt.get("stamps"):
        g("s_memrealtime s[88:89]")
        g("s_waitcnt lgkmcnt(0)")
        g("s_mov_b64 exec, 1")
        g("s_mul_i32 s38, s2, 9")
        g("s_add_u32 s38, s38, s3")
        g("s_lshl_b32 s38, s38, 6")
        g(f"s_add_u32 s38, s38, {ST_WS}")
        for k in range(10):
            g(f"v_mov_b32 v{4+k}, s{70+2*k}")
        g("v_mov_b32 v14, s63")
        g("v_mov_b32 v15, 0")
        g("v_mov_b32 v1, 0")
        g(f"buffer_store_dwordx4 v[4:7], v1, {W}, s38 offen")
        g(f"buffer_store_dwordx4 v[8:11], v1, {W}, s38 offen offset:16")
        g(f"buffer_store_dwordx4 v[12:15], v1, {W}, s38 offen offset:32")
    g.label("L_exit")
    lines = [x for x in g.L if x.strip()]
    return finish(lines, opt)

def finish(lines, opt):
    if not opt.get("touch", 1):
        return G1.text(lines)
    sz = _sizes(lines)
    out = []; pos = 0; nxt = 1024; n = 0
    for l, z in zip(lines, sz):
        if z and pos >= nxt:
            assert pos - nxt <= 56
            out.append(None); n += 1; pos += 4; nxt += 1024
        out.append(l); pos += z
    first = opt.get("pad0", 1)
    split = opt.get("pad1", 4)
    res = []; k = 0
    for l in out:
        if l is None:
            tgt = "L_w8b" if k + 1 == split else (f"L_pad{k+1}" if k + 1 < n else "L_w3b")
            if k == first: res.append("L_chain0:")
            if k == split: res.append("L_chain1:")
            res.append(f"L_pad{k}:")
            res.append(f"    s_cbranch_execz {tgt}")
            k += 1
        else:
            res.append(l)
    return G1.text(res)

if __name__ == "__main__":
    out = sys.argv[1]
    opt = {}
    for a in sys.argv[2:]:
        k, v = a.split("=")
        try: v = int(v)
        except ValueError: pass
        opt[k] = v
    open(out, "w").write(gen(opt))
```

```python
import sys, struct
from gen import f2u, G, tagcheck, rnd, wave_sum, tile_voff, tile_raddr, tile_dma, NAME, sizes as _sizes
import gen as G1

QA_WS  = 0x8000
QB_WS  = 0x48000
XC_WS  = 0x200000
M_WS   = 0x4000
H_WS   = 0x88000
O_WS   = 0xC0000
R3_WS  = 0x140000
ST_WS  = 0x300000
WS_BYTES = 0x400000

L_K, L_V, L_WQ, L_WO, L_W1, L_W2, L_XN = 0, 32768, 65536, 81920, 98304, 106496, 114688
XN_STR = 1088
L_QL = L_XN + 4352
QL_STR = 320
L_OC = L_QL + 1280
OC_H, OC_W = 528, 2112
L_ML = L_OC + 8448
L_FL = L_ML + 128
L_OL = L_FL + 192
L_HL = L_OL + 1280
HL_STR = 192
LDS_BYTES = L_HL + 768
G1.LDS_BYTES = LDS_BYTES

P_X, P_K, P_V, P_WQ, P_WO, P_BX, P_W1, P_B1, P_W2, P_B2, P_OUT, P_DBG, P_WS = 8, 10, 12, 14, 16, 18, 20, 22, 24, 26, 28, 30, 32
S_E, S_T, S_E1, S_LO = 34, 35, 36, 37
SRD_A, SRD_B, SRD_W, SRD_C = 40, 44, 48, 52
SPIN_MAX = 1 << 16
W = f"s[{SRD_W}:{SRD_W+3}]"
SC = "sc1"
DPPM = "row_mask:0xf bank_mask:0xf"

def epoch(g, vT):
    g(f"s_add_u32 s{S_E1}, s{S_E}, 1")
    g(f"s_and_b32 s{S_T}, s{S_E1}, s{S_LO}")
    g(f"v_mov_b32 v{vT}, s{S_T}")

def spin(g, lab_out, inc=1, mx=SPIN_MAX):
    g(f"s_add_u32 s63, s63, {inc}")
    g(f"s_cmp_gt_u32 s63, {mx}")
    g(f"s_cbranch_scc1 {lab_out}")

def selmasks(g, vsel):
    for k in (1, 2, 3):
        g(f"v_cmp_eq_u32 s[{88+2*k}:{89+2*k}], {k}, v{vsel}")

def select4(g, d, D, vT):
    for k in (1, 2, 3):
        for r in range(4):
            src = D + r if k == 1 else d + r
            g(f"v_cndmask_b32 v{d+r}, v{src}, v{D+4*k+r}, s[{88+2*k}:{89+2*k}]")
    for r in range(4):
        g(f"v_bfi_b32 v{d+r}, s{S_LO}, v{vT}, v{d+r}")

def ffn_ids(g):
    g("s_lshr_b32 s7, s5, 3")
    g("s_mul_i32 s68, s4, 3")
    g("s_min_u32 s69, s4, 4")
    g("s_add_u32 s68, s68, s69")
    g("s_add_u32 s68, s68, s7")
    g("s_cmp_lt_u32 s4, 4")
    g("s_cselect_b32 s69, 4, 3")
    g("s_cmp_lt_u32 s7, s69")
    g("s_cselect_b32 s69, 1, 0")


def flagwait4(g, lab, vbase, off, tmp, pre=None, n=0, sleep=0):
    g.label(lab)
    if sleep: g(f"s_sleep {sleep}")
    g(f"ds_read_b128 v[{tmp}:{tmp+3}], v{vbase} offset:{off}")
    if pre: pre()
    spin(g, lab + "ok", inc=0x10000, mx=0x7ff00000)
    g(f"s_waitcnt lgkmcnt({n})")
    g(f"v_and_b32 v{tmp}, v{tmp}, v{tmp+1}")
    g(f"v_and_b32 v{tmp+2}, v{tmp+2}, v{tmp+3}")
    g(f"v_and_b32 v{tmp}, v{tmp}, v{tmp+2}")
    g(f"v_cmp_eq_u32 vcc, 0, v{tmp}")
    g(f"s_cbranch_vccnz {lab}")
    g.label(lab + "ok")

def flagwait1(g, lab, vbase, off, tmp, sdst=None, sleep=1):
    g.label(lab)
    if sleep: g(f"s_sleep {sleep}")
    g(f"ds_read_b32 v{tmp}, v{vbase} offset:{off}")
    spin(g, lab + "ok", inc=0x10000, mx=0x7ff00000)
    g("s_waitcnt lgkmcnt(0)")
    g(f"v_cmp_eq_u32 vcc, 0, v{tmp}")
    g(f"s_cbranch_vccnz {lab}")
    g.label(lab + "ok")
    if sdst is not None: g(f"v_readfirstlane_b32 s{sdst}, v{tmp}")

F_LNA, F_XC, F_QP, F_H, F_OP, F_Q, F_LNB, F_P, F_K, F_K2, F_WO, F_V1 = 0, 16, 20, 24, 32, 48, 64, 80, 96, 112, 128, 144
L_HP = L_OC + 2048

def gen(opt):
    g = G(opt)
    g.role = "-"
    HEV = opt.get("hev")
    if HEV:
        def st(k):
            if HEV == f"{g.role}{k}": g("s_memrealtime s[70:71]")
        g.stamp = st
    hcount = [0]
    def hevhold():
        if HEV and HEV[0] == g.role:
            hcount[0] += 1
            n = hcount[0]
            g(f"s_cmp_eq_u32 s2, {opt.get('holdwg', 9)}")
            g(f"s_cbranch_scc0 L_nh{n}")
            g.label(f"L_hh{n}")
            g("s_memrealtime s[72:73]")
            g("s_waitcnt lgkmcnt(0)")
            g("s_sub_u32 s72, s72, s70")
            g("s_cmp_lt_u32 s72, 1500")
            g(f"s_cbranch_scc1 L_hh{n}")
            g.label(f"L_nh{n}")
    NT = opt.get("nt", "nt")
    XF = opt.get("xflags", "")
    THR = opt.get("thr", 3)
    THR2 = opt.get("thr2", 6)
    THR3 = opt.get("thr3", THR2)
    TOUCH = opt.get("touch", 1)
    PWF = opt.get("pwf", "")
    g.stamp(0)
    if opt.get("hold"): g("s_memrealtime s[70:71]")
    g("s_cmp_ge_u32 s2, 256")
    g("s_cbranch_scc1 L_exit")
    g("s_load_dwordx16 s[8:23], s[0:1], 0")
    g("s_load_dwordx8 s[24:31], s[0:1], 64")
    g("s_load_dwordx2 s[32:33], s[0:1], 96")
    g("v_lshrrev_b32 v1, 6, v0")
    g("v_and_b32 v0, 63, v0")
    g("v_readfirstlane_b32 s3, v1")
    g("s_and_b32 s4, s2, 7")
    g("s_lshr_b32 s5, s2, 3")
    g(f"s_movk_i32 s{S_LO}, 0x3ff")
    g("s_cmp_lt_u32 s3, 4")
    g("s_cbranch_scc0 L_notln")
    g("v_lshlrev_b32 v12, 4, v0")
    g("s_lshl_b32 s39, s3, 10")
    WIDE = opt.get("wide", 0)
    tile_voff(g, 2, 3, 8192)
    if WIDE & 1:
        g("v_lshrrev_b32 v3, 4, v0")
        g("v_and_b32 v100, 15, v0")
        g("v_lshlrev_b32 v100, 4, v100")
        g("v_lshl_add_u32 v100, v3, 13, v100")
        g("s_lshr_b32 s7, s5, 2")
        g("s_lshl_b32 s38, s7, 19")
        g("s_lshl_b32 s56, s3, 17")
        g("s_add_u32 s38, s38, s56")
        g("s_lshl_b32 s56, s4, 10")
        g("s_add_u32 s38, s38, s56")
        g("s_and_b32 s56, s5, 3")
        g("s_lshl_b32 s56, s56, 8")
        g("s_add_u32 s38, s38, s56")
    else:
        g("s_lshr_b32 s7, s5, 3")
        g("s_lshl_b32 s38, s7, 20")
        g("s_lshl_b32 s56, s3, 18")
        g("s_add_u32 s38, s38, s56")
        g("s_lshl_b32 s56, s4, 10")
        g("s_add_u32 s38, s38, s56")
        g("s_and_b32 s56, s5, 7")
        g("s_lshl_b32 s56, s56, 7")
        g("s_add_u32 s38, s38, s56")
    g("s_lshl_b32 s56, s3, 12")
    g(f"s_mov_b32 s{SRD_C+2}, 4096")
    g(f"s_mov_b32 s{SRD_C+3}, 0x20000")
    g(f"s_mov_b32 s{SRD_A+2}, {hex(512*4096*2)}")
    g(f"s_mov_b32 s{SRD_A+3}, 0x20000")
    g("s_waitcnt lgkmcnt(0)")
    g(f"s_mov_b32 s{SRD_C}, s{P_X}")
    g(f"s_mov_b32 s{SRD_C+1}, s{P_X+1}")
    g(f"buffer_load_dwordx4 v[4:7], v12, s[{SRD_C}:{SRD_C+3}], s39 offen {XF}")
    g(f"s_mov_b32 s{SRD_A}, s{P_WQ}")
    g(f"s_mov_b32 s{SRD_A+1}, s{P_WQ+1}")
    if WIDE & 1: tile_dma(g, 4, 100, SRD_A, 38, (56, L_WQ), 4096, NT)
    else: tile_dma(g, 4, 2, SRD_A, 38, (56, L_WQ), 8192, NT)
    g("s_barrier")
    g("s_branch L_ln")
    g.label("L_notln")
    g("s_cmp_eq_u32 s3, 8")
    g("s_cbranch_scc0 L_kv")
    if opt.get("cpf", 1):
        g("s_getpc_b64 s[64:65]")
        g.label("L_pc")
        g("s_and_b32 s6, s5, 7")
        g(f"s_mul_i32 s6, s6, {22*64}")
        g(f"s_sub_u32 s6, s6, L_pc-{NAME}_kernel")
        g("s_ashr_i32 s7, s6, 31")
        g("s_add_u32 s64, s64, s6")
        g("s_addc_u32 s65, s65, s7")
        g("v_lshlrev_b32 v3, 6, v0")
        g("s_mov_b64 exec, 0x3fffff")
        g("global_load_dword v125, v3, s[64:65]")
        g("s_mov_b64 exec, -1")
    g("v_lshlrev_b32 v3, 2, v0")
    g(f"v_add_u32 v3, {L_ML}, v3")
    g("v_cmp_gt_u32 vcc, 16, v0")
    g("s_nop 1")
    g("v_cndmask_b32 v4, 0, -1, vcc")
    g("ds_write_b32 v3, v4")
    g("v_mov_b32 v4, 0")
    g("s_mov_b64 exec, 0xffff")
    g("ds_write_b32 v3, v4 offset:256")
    g("s_mov_b64 exec, -1")
    g("s_waitcnt lgkmcnt(0)")
    g(f"s_load_dword s{S_E}, s[{P_WS}:{P_WS+1}], 0")
    g("s_barrier")
    g("s_branch L_w0")
    g.role = "a"
    g.label("L_kv")
    g("s_sub_u32 s3, s3, 4")
    g("v_lshrrev_b32 v8, 4, v0")
    g("v_and_b32 v9, 15, v0")
    g("v_xor_b32 v2, v9, v8")
    g("v_lshlrev_b32 v2, 4, v2")
    g("v_lshl_add_u32 v2, v8, 8, v2")
    for i in (1, 2, 3):
        g(f"v_xor_b32 v{2+i}, {64*i}, v2")
    g("s_lshr_b32 s6, s5, 3")
    g("s_and_b32 s7, s5, 7")
    g("s_lshl_b32 s38, s6, 3")
    g("s_add_u32 s38, s38, s4")
    g("s_lshl_b32 s38, s38, 20")
    g("s_lshl_b32 s56, s3, 10")
    g("s_add_u32 s38, s38, s56")
    g(f"s_add_u32 s38, s38, {768*1024}")
    g("s_lshl_b32 s56, s3, 13")
    g("s_lshl_b32 s64, s7, 12")
    g("s_mov_b32 s66, s38")
    g(f"s_mov_b32 s{SRD_A+2}, {hex(4*8*4096*128*2)}")
    g(f"s_mov_b32 s{SRD_A+3}, 0x20000")
    g("s_waitcnt lgkmcnt(0)")
    g(f"s_mov_b32 s{SRD_A}, s{P_K}")
    g(f"s_mov_b32 s{SRD_A+1}, s{P_K+1}")
    B0L = opt.get("b0l", 0)
    if not B0L:
        g(f"s_load_dword s{S_E}, s[{P_WS}:{P_WS+1}], 0")
        g("s_barrier")
    g.stamp(1)
    def kvld(i, isv, th):
        if i % 4 == 0: g(f"s_add_u32 m0, s56, {(L_V if isv else L_K) + i*1024}")
        g("s_add_u32 s39, s64, s66")
        g("s_add_u32 s64, s64, 4096")
        g("s_and_b32 s64, s64, 0x7000")
        g(f"s_add_u32 s66, s66, {32768 + (3072 if i % 4 == 3 else -1024)}")
        if th: g(f"s_waitcnt vmcnt({th-1})")
        vo = 6 + (i & 1) if isv else 2 + (i & 3)
        g(f"buffer_load_dwordx4 v{vo}, s[{SRD_A}:{SRD_A+3}], s39 offen offset:{(i&3)*1024} {NT} lds")
    for i in range(8):
        if B0L and i == THR:
            g(f"s_load_dword s{S_E}, s[{P_WS}:{P_WS+1}], 0")
            g("s_barrier")
        kvld(i, 0, THR if i >= THR else 0)
    g("s_branch L_att")
    g.role = "l"
    g.label("L_ln")
    ffn_ids(g)
    g(f"s_mov_b32 s{SRD_B+3}, 0x20000")
    g(f"s_mul_i32 s{SRD_B+2}, s69, {512*1792*2}")
    g("v_lshrrev_b32 v3, 3, v0")
    g(f"v_mul_u32_u24 v3, {8192-3584}, v3")
    g("v_sub_u32 v2, v2, v3")
    g("s_and_b32 s38, s5, 7")
    g("s_lshl_b32 s38, s38, 2")
    g("s_add_u32 s38, s38, s3")
    g(f"s_mul_i32 s38, s38, {16*3584}")
    g("s_lshl_b32 s39, s68, 7")
    g("s_add_u32 s38, s38, s39")
    g("s_lshl_b32 s56, s3, 11")
    g(f"s_mov_b32 s{SRD_B}, s{P_W1}")
    g(f"s_mov_b32 s{SRD_B+1}, s{P_W1+1}")
    tile_dma(g, 2, 2, SRD_B, 38, (56, L_W1), 3584, NT)
    g(f"s_load_dword s{S_E}, s[{P_WS}:{P_WS+1}], 0")
    g.srd(SRD_W, P_WS, WS_BYTES)
    g("v_lshrrev_b32 v2, 2, v0")
    g("v_lshlrev_b32 v2, 6, v2")
    g("v_and_b32 v3, 1, v0")
    g("v_lshl_add_u32 v2, v3, 5, v2")
    g("v_and_b32 v3, 2, v0")
    g("v_lshl_add_u32 v2, v3, 2, v2")
    g(f"s_mul_i32 s38, s3, {XN_STR}")
    g(f"s_add_u32 s38, s38, {L_XN}")
    g("v_add_u32 v2, s38, v2")
    g("s_lshl_b32 s38, s3, 2")
    g(f"s_add_u32 s38, s38, {L_FL}")
    g("v_mov_b32 v9, s38")
    g("v_mov_b32 v10, 1")
    g(f"v_mov_b32 v21, {hex(f2u(1.0/512))}")
    g("s_waitcnt vmcnt(6)")
    g.stamp(1)
    for i in range(4):
        g(f"v_lshlrev_b32 v{12+2*i}, 16, v{4+i}")
        g(f"v_and_b32 v{13+2*i}, 0xffff0000, v{4+i}")
    g("v_pk_add_f32 v[22:23], v[12:13], v[14:15]")
    g("v_pk_add_f32 v[24:25], v[16:17], v[18:19]")
    g("v_pk_add_f32 v[22:23], v[22:23], v[24:25]")
    g("v_add_f32 v20, v22, v23")
    wave_sum(g, 20, 38)
    g("s_nop 1")
    g("v_mul_f32 v20, s38, v21")
    for i in range(8):
        g(f"v_sub_f32 v{24+i}, v{12+i}, v20")
    g("v_mul_f32 v22, v24, v24")
    g("v_mul_f32 v23, v25, v25")
    for i in range(1, 4):
        g(f"v_fmac_f32 v22, v{24+2*i}, v{24+2*i}")
        g(f"v_fmac_f32 v23, v{25+2*i}, v{25+2*i}")
    g("v_add_f32 v22, v22, v23")
    wave_sum(g, 22, 38)
    rnd(g, 20, 20)
    g("v_mul_f32 v22, s38, v21")
    rnd(g, 22, 22)
    g(f"v_add_f32 v22, {hex(f2u(1e-5))}, v22")
    rnd(g, 22, 22)
    g("v_sqrt_f32 v22, v22")
    for i in range(8):
        g(f"v_sub_f32 v{12+i}, v{12+i}, v20")
    rnd(g, 22, 22)
    g("v_rcp_f32 v22, v22")
    for i in range(4):
        g(f"v_cvt_pk_bf16_f32 v{4+i}, v{12+2*i}, v{13+2*i}")
    for i in range(4):
        g(f"v_lshlrev_b32 v{12+2*i}, 16, v{4+i}")
        g(f"v_and_b32 v{13+2*i}, 0xffff0000, v{4+i}")
    for i in range(8):
        g(f"v_mul_f32 v{12+i}, v{12+i}, v22")
    for i in range(4):
        g(f"v_cvt_pk_bf16_f32 v{4+i}, v{12+2*i}, v{13+2*i}")
    g("ds_write2_b64 v2, v[4:5], v[6:7] offset0:0 offset1:2")
    g("s_waitcnt vmcnt(2)")
    g(f"ds_write_b32 v9, v10 offset:{F_LNA}")
    g.stamp(2)
    g("s_waitcnt lgkmcnt(0)")
    epoch(g, 11)
    g("s_branch L_ln_done")
    g.role = "w"
    g.label("L_w0")
    g.srd(SRD_W, P_WS, WS_BYTES)
    g("s_getreg_b32 s57, hwreg(HW_REG_XCC_ID, 0, 3)")
    g("s_lshl_b32 s58, s4, 5")
    g("s_add_u32 s58, s58, s5")
    g("s_lshl_b32 s67, s58, 10")
    g("s_lshl_b32 s58, s58, 2")
    g(f"s_add_u32 s58, s58, {XC_WS}")
    g("v_mov_b32 v16, 0")
    if opt.get("tlb", 0):
        g("s_lshr_b32 s6, s5, 3")
        g("s_lshl_b32 s7, s6, 3")
        g("s_add_u32 s7, s7, s4")
        g("s_lshl_b32 s7, s7, 20")
        g(f"s_add_u32 s7, s7, {768*1024}")
        g("v_mov_b32 v13, s7")
        g("s_mov_b64 exec, 1")
        g(f"global_load_dword v124, v13, s[{P_V}:{P_V+1}] nt")
        g("s_lshl_b32 s7, s4, 19")
        g("v_mov_b32 v13, s7")
        g(f"global_load_dword v124, v13, s[{P_WO}:{P_WO+1}] nt")
        g(f"global_load_dword v124, v16, s[{P_W2}:{P_W2+1}] nt")
        g("s_mov_b64 exec, -1")
    g(f"s_add_u32 s56, s67, {QA_WS}")
    g("v_lshlrev_b32 v1, 4, v0")
    if opt.get("prew", 1): g(f"buffer_load_dwordx4 v[124:127], v1, {W}, s56 offen {PWF}")
    g("s_waitcnt lgkmcnt(0)")
    epoch(g, 11)
    g(f"s_lshl_b32 s56, s{S_E1}, 3")
    g("s_or_b32 s57, s57, s56")
    g("v_mov_b32 v12, s57")
    g("s_mov_b64 exec, 1")
    if not opt.get("noxc"): g(f"buffer_store_dword v12, v16, {W}, s58 offen {SC}")
    if TOUCH:
        g("s_mov_b64 exec, 0")
        g("s_branch L_chain0")
        g.label("L_w8b")
    g("s_mov_b64 exec, -1")
    g.srd(SRD_C, P_X, 4096)
    ffn_ids(g)
    g("s_lshr_b32 s6, s5, 3")
    g("s_and_b32 s7, s5, 7")
    tile_raddr(g, 4, 3)
    g("v_bfe_u32 v10, v0, 2, 2")
    g(f"v_mul_u32_u24 v8, {XN_STR}, v10")
    g("v_lshrrev_b32 v9, 4, v0")
    g("v_lshl_add_u32 v8, v9, 4, v8")
    g("s_lshl_b32 s39, s6, 8")
    g(f"s_add_u32 s39, s39, {L_XN}")
    g("v_add_u32 v8, s39, v8")
    g("v_lshlrev_b32 v10, 11, v10")
    g("v_lshl_add_u32 v10, v9, 6, v10")
    g("v_and_b32 v9, 3, v0")
    g("v_lshl_add_u32 v10, v9, 4, v10")
    selmasks(g, 9)
    g("s_lshl_b32 s38, s4, 15")
    g("s_lshl_b32 s39, s6, 13")
    g("s_add_u32 s38, s38, s39")
    g("s_lshl_b32 s39, s7, 8")
    g("s_add_u32 s38, s38, s39")
    g(f"s_add_u32 s39, s38, {QB_WS}")
    g(f"s_add_u32 s38, s38, {QA_WS}")
    g("s_lshl_b32 s58, s4, 7")
    g(f"s_add_u32 s58, s58, {XC_WS}")
    g("v_and_b32 v3, 31, v0")
    g("v_lshlrev_b32 v3, 2, v3")
    g(f"v_mov_b32 v2, {L_FL}")
    g("v_mov_b32 v9, 1")
    g("s_mov_b32 s63, 0")
    g.stamp(1)
    flagwait4(g, "L_lnw", 2, F_LNA, 12)
    g("s_setprio 3")
    for t in range(4):
        g(f"ds_read_b128 v[{12+4*t}:{15+4*t}], v8 offset:{64*t}")
        for u in range(4):
            r = 60 + 16*t + 4*u
            g(f"ds_read_b64_tr_b16 v[{r}:{r+1}], v{4+u} offset:{L_WQ - 65536 + t*4096}")
            g(f"ds_read_b64_tr_b16 v[{r+2}:{r+3}], v{4+u} offset:{L_WQ - 65536 + t*4096 + 2048}")
        if t >= 1:
            tt = t - 1
            g("s_waitcnt lgkmcnt(9)")
            for u in range(4):
                r = 60 + 16*tt + 4*u
                c = "0" if tt == 0 else f"v[{44+4*u}:{47+4*u}]"
                g(f"v_mfma_f32_16x16x32_bf16 v[{44+4*u}:{47+4*u}], v[{r}:{r+3}], v[{12+4*tt}:{15+4*tt}], {c}")
    for u in range(4):
        r = 60 + 48 + 4*u
        g(f"s_waitcnt lgkmcnt({6-2*u})")
        g(f"v_mfma_f32_16x16x32_bf16 v[{44+4*u}:{47+4*u}], v[{r}:{r+3}], v[24:27], v[{44+4*u}:{47+4*u}]")
    g("s_nop 3")
    select4(g, 28, 44, 11)
    g(f"buffer_store_dwordx4 v[28:31], v10, {W}, s38 offen")
    g(f"ds_write_b32 v2, v9 offset:{F_QP}")
    g.stamp(2)
    g("s_setprio 0")
    g("s_mov_b32 s63, 0")
    pw0 = len(g.L)
    g("s_lshl_b32 s56, s67, 1")
    g(f"s_add_u32 s56, s56, {O_WS}")
    g(f"buffer_load_dwordx4 v[124:127], v1, {W}, s56 offen {PWF}")
    g(f"buffer_load_dwordx4 v[124:127], v1, {W}, s56 offen offset:1024 {PWF}")
    g("s_lshl_b32 s56, s68, 3")
    g("s_add_u32 s56, s56, s7")
    g("s_lshl_b32 s56, s56, 10")
    g(f"s_add_u32 s56, s56, {H_WS}")
    g("s_lshr_b32 s59, s67, 4")
    g(f"s_add_u32 s59, s59, {M_WS}")
    g("s_cmp_eq_u32 s69, 0")
    g("s_cselect_b32 s56, s59, s56")
    g(f"buffer_load_dwordx4 v[124:127], v1, {W}, s56 offen {PWF}")
    g("s_mov_b64 exec, 15")
    g(f"buffer_load_dwordx4 v[124:127], v1, {W}, s59 offen {PWF}")
    g("s_mov_b64 exec, -1")
    if not opt.get("prew", 1): del g.L[pw0:]
    if opt.get("sx", 2): g(f"s_sleep {opt.get('sx', 2)}")
    if opt.get("noxc"):
        g("v_mov_b32 v20, s57")
    else:
        g(f"buffer_load_dword v20, v3, {W}, s58 offen {SC}")
        g("s_waitcnt vmcnt(0)")
    g.label("L_xc")
    g("v_xor_b32 v20, s57, v20")
    g("v_cmp_lt_u32 vcc, 7, v20")
    g("s_cbranch_vccz L_xcok")
    spin(g, "L_xcok")
    g(f"buffer_load_dword v20, v3, {W}, s58 offen {SC}")
    g("s_waitcnt vmcnt(0)")
    g("s_branch L_xc")
    g.label("L_xcok")
    g("v_cmp_ne_u32 vcc, 0, v20")
    g("s_cmp_lg_u64 vcc, 0")
    g("s_cselect_b32 s59, 2, 1")
    if opt.get("force_remote"):
        g("s_mov_b32 s59, 2")
    g("s_cmp_eq_u32 s59, 1")
    g("s_cbranch_scc1 L_xcl")
    g(f"buffer_store_dwordx4 v[28:31], v10, {W}, s39 offen {SC}")
    g.label("L_xcl")
    g("v_mov_b32 v20, s59")
    g(f"ds_write_b32 v2, v20 offset:{F_XC}")
    g.stamp(3)
    g("s_cmp_eq_u32 s69, 0")
    g("s_cbranch_scc1 L_w8")
    g("v_lshrrev_b32 v12, 4, v0")
    g("v_bfe_u32 v13, v0, 2, 2")
    g("v_and_b32 v14, 3, v0")
    g("v_lshlrev_b32 v12, 6, v12")
    g("v_lshl_add_u32 v12, v13, 8, v12")
    g("v_lshl_add_u32 v12, v14, 4, v12")
    g(f"v_add_u32 v13, {L_HP}, v1")
    g("s_lshl_b32 s56, s68, 3")
    g("s_add_u32 s56, s56, s7")
    g("s_lshl_b32 s56, s56, 10")
    g(f"s_add_u32 s56, s56, {H_WS}")
    flagwait1(g, "L_hw", 2, F_H, 14)
    g("ds_read_b128 v[20:23], v13")
    g("s_cmp_eq_u32 s59, 1")
    g("s_waitcnt lgkmcnt(0)")
    g("s_cbranch_scc0 L_hpub_rem")
    g(f"buffer_store_dwordx4 v[20:23], v12, {W}, s56 offen")
    g("s_branch L_w8")
    g.label("L_hpub_rem")
    g(f"buffer_store_dwordx4 v[20:23], v12, {W}, s56 offen {SC}")
    g("s_branch L_w8")
    g.role = "a"
    g.label("L_att")
    TRL = opt.get("trl", 2)
    def tile_dma_thr(n, voff, srd, ss, lb, stride, first=0):
        for i in range(first, n):
            if i == first: g(f"s_add_u32 m0, s{lb[0]}, {lb[1]}")
            if i: g(f"s_add_u32 s{ss}, s{ss}, {8*stride - 1024}")
            g(f"s_waitcnt vmcnt({(THR2 or 64)-1})")
            g(f"buffer_load_dwordx4 v{voff}, s[{srd}:{srd+3}], s{ss} offen offset:{i*1024} {NT} lds")
    g.srd(SRD_C, P_WO, 4096*512*2)
    tile_voff(g, 1, 10, 1024)
    g("s_lshl_b32 s60, s4, 2")
    g("s_add_u32 s60, s60, s6")
    g("s_lshl_b32 s60, s60, 17")
    g("s_lshl_b32 s61, s3, 15")
    g("s_add_u32 s60, s60, s61")
    XO, XF2 = (4, 2) if opt.get("perm", 1) else (0, 0)
    g(f"s_xor_b32 s62, s7, {XO}")
    g("s_lshl_b32 s62, s62, 7")
    g("s_add_u32 s93, s60, s62")
    g(f"s_xor_b32 s62, s62, {(XO ^ XF2) << 7}")
    if WIDE & 2:
        g("v_lshrrev_b32 v10, 4, v0")
        g("v_and_b32 v20, 15, v0")
        g("v_lshlrev_b32 v20, 4, v20")
        g("v_lshl_add_u32 v20, v10, 10, v20")
        g("s_lshl_b32 s60, s4, 3")
        g("s_lshr_b32 s61, s5, 2")
        g("s_add_u32 s60, s60, s61")
        g("s_lshl_b32 s60, s60, 16")
        g("s_lshl_b32 s61, s3, 14")
        g("s_add_u32 s60, s60, s61")
        g("s_and_b32 s61, s5, 3")
        g("s_lshl_b32 s61, s61, 8")
        g("s_add_u32 s93, s60, s61")
    g("s_lshl_b32 s65, s3, 12")
    QT = opt.get("qt", 6)
    if QT:
        g(f"v_mov_b32 v17, {L_FL}")
        g("s_lshl_b32 s60, s3, 2")
        g("v_add_u32 v18, s60, v17")
        g("v_mov_b32 v19, 1")
        g(f"s_waitcnt vmcnt({8-QT})")
        g(f"ds_write_b32 v18, v19 offset:{F_K2}")
    ld0 = len(g.L)
    if WIDE & 2: tile_dma_thr(4, 20, SRD_C, 93, (65, L_WO), 512)
    else: tile_dma_thr(4, 1, SRD_C, 93, (65, L_WO), 1024)
    if opt.get("kf", 6) == 4:
        g("s_waitcnt vmcnt(4)")
        g(f"ds_write_b32 v18, v19 offset:{F_K}")
    tile_dma_thr(2 - TRL, 1, SRD_B, 68, (69, L_W2), 1024)
    if opt.get("kf", 6) == 6:
        g(f"s_waitcnt vmcnt({6 - TRL})")
        g(f"ds_write_b32 v18, v19 offset:{F_K}")
    g(f"s_mov_b32 s{SRD_A}, s{P_V}")
    g(f"s_mov_b32 s{SRD_A+1}, s{P_V+1}")
    g("s_mov_b32 s66, s38")
    g.stamp(4)
    PRE = opt.get("pre", 1)
    for i in range(8):
        kvld(i, 1, (THR2 if i < 4 else THR3) or 64)
        if PRE and i == 5:
            g("s_waitcnt vmcnt(6)")
            g(f"ds_write_b32 v18, v19 offset:{F_WO}")
    if TRL: tile_dma_thr(2, 1, SRD_B, 68, (69, L_W2), 1024, first=2 - TRL)
    loads = g.L[ld0:]; del g.L[ld0:]
    g("s_mov_b32 s60, s7")
    ffn_ids(g)
    g("s_mov_b32 s7, s60")
    g(f"s_mov_b32 s{SRD_B}, s{P_W2}")
    g(f"s_mov_b32 s{SRD_B+1}, s{P_W2+1}")
    g(f"s_mul_i32 s{SRD_B+2}, s69, {1792*512*2}")
    g(f"s_mov_b32 s{SRD_B+3}, 0x20000")
    g("s_lshl_b32 s68, s68, 2")
    g("s_add_u32 s68, s68, s3")
    g("s_lshl_b32 s68, s68, 14")
    g("s_add_u32 s68, s68, s62")
    g("s_lshl_b32 s69, s3, 11")
    g("v_lshlrev_b32 v6, 1, v8")
    g("v_xor_b32 v6, v9, v6")
    g("v_lshlrev_b32 v6, 4, v6")
    g("v_lshl_add_u32 v6, v8, 8, v6")
    g("v_xor_b32 v7, 128, v6")
    g(f"v_mov_b32 v17, {L_FL}")
    g("s_lshl_b32 s60, s3, 2")
    g("v_add_u32 v18, s60, v17")
    g("v_mov_b32 v19, 1")
    nfirst = len(g.L) - ld0
    g.srd(SRD_W, P_WS, WS_BYTES)
    g("v_lshrrev_b32 v25, 2, v0")
    g("v_and_b32 v26, 7, v25")
    g("v_lshlrev_b32 v26, 5, v26")
    g("v_lshl_add_u32 v26, v25, 8, v26")
    g("v_and_b32 v14, 3, v0")
    g("v_lshl_add_u32 v14, v14, 3, v26")
    g("s_lshl_b32 s60, s3, 6")
    g("v_xor_b32 v14, s60, v14")
    g("v_xor_b32 v15, 32, v14")
    g("v_bfe_u32 v25, v0, 2, 2")
    g("v_lshlrev_b32 v28, 6, v25")
    g("v_lshl_add_u32 v28, v8, 4, v28")
    g(f"v_add_u32 v28, {L_OC}, v28")
    g("v_lshlrev_b32 v30, 14, v25")
    g("v_lshl_add_u32 v30, v8, 5, v30")
    g("v_and_b32 v16, 1, v0")
    g("v_lshl_add_u32 v30, v16, 4, v30")
    g("s_lshl_b32 s61, s4, 5")
    g("s_add_u32 s61, s61, s7")
    g("s_lshl_b32 s61, s61, 2")
    g("s_add_u32 s61, s61, s6")
    g("s_lshl_b32 s61, s61, 2")
    g("s_add_u32 s61, s61, s3")
    g("s_lshl_b32 s61, s61, 7")
    g(f"s_add_u32 s61, s61, {O_WS}")
    for r in range(80, 112):
        g(f"v_mov_b32 v{r}, 0")
    g("s_mov_b32 s63, 0")
    g("s_waitcnt lgkmcnt(0)")
    epoch(g, 31)
    setup = g.L[ld0:]; del g.L[ld0:]
    per = -(-nfirst // 3)
    for x in loads:
        g.L.append(x)
        if "buffer_load" in x:
            g.L.extend(setup[:per]); setup = setup[per:]
    assert not setup
    g.stamp(3)
    flagwait4(g, "L_px", 17, F_P, 36, pre=lambda: g(f"ds_read_b32 v46, v17 offset:{F_XC}"), sleep=0)
    g("s_mov_b32 exec_lo, 0x55555555")
    g("s_mov_b32 exec_hi, 0x55555555")
    for t in range(4):
        g(f"ds_read_b128 v[{80+4*t}:{83+4*t}], v28 offset:{256*t}")
    g("s_not_b64 exec, exec")
    for t in range(4):
        g(f"ds_read_b128 v[{96+4*t}:{99+4*t}], v28 offset:{256*t}")
    g("s_mov_b64 exec, -1")
    g("v_readfirstlane_b32 s65, v46")
    g.stamp(2)
    def vrd(half):
        for t in range(4):
            for p in range(2):
                r = 48 + 8*t + 4*p + 2*half
                g(f"ds_read_b64_tr_b16 v[{r}:{r+1}], v{14+p} offset:{L_V + t*8192 + 4096*half}")
    if PRE:
        g(f"s_waitcnt vmcnt({TRL+4})")
        g(f"ds_write_b32 v18, v19 offset:{F_V1}")
        flagwait4(g, "L_v1", 17, F_V1, 36)
        vrd(0)
    g(f"s_waitcnt vmcnt({TRL}) lgkmcnt(0)")
    g.stamp(5)
    g("s_cmp_eq_u32 s65, 1")
    g("s_barrier")
    g.stamp(7)
    if not PRE: vrd(0)
    vrd(1)
    for t in range(4):
        for p in range(2):
            r = 48 + 8*t + 4*p
            k = 2*t + p
            g(f"s_waitcnt lgkmcnt({7-k})")
            g(f"v_mfma_f32_16x16x32_bf16 v[36:39], v[{r}:{r+3}], v[{80+16*p+4*t}:{83+16*p+4*t}], {'0' if k == 0 else 'v[36:39]'}")
    g("s_mov_b32 exec_lo, 0x33333333")
    g("s_mov_b32 exec_hi, 0x33333333")
    g("s_nop 4")
    g("s_cbranch_scc0 L_opub_rem")
    for rem in (0, 1):
        if rem: g.label("L_opub_rem")
        for r in range(4):
            g(f"v_bfi_b32 v{36+r}, s{S_LO}, v31, v{36+r}")
        g(f"buffer_store_dwordx4 v[36:39], v30, {W}, s61 offen {SC if rem else ''}")
        if TRL: g("s_waitcnt vmcnt(1)")
        g(f"ds_write_b32 v18, v19 offset:{F_OP}")
        g.stamp(8)
        if opt.get("stamps"):
            g("s_add_u32 s3, s3, 4")
            g("s_branch L_end")
        else:
            hevhold()
            g("s_endpgm")
    g.role = "l"
    g.label("L_ln_done")
    if TOUCH:
        g("s_cmp_eq_u32 s3, 3")
        g("s_cbranch_scc0 L_w3b")
        g("s_mov_b64 exec, 0")
        g("s_branch L_chain1")
        g.label("L_w3b")
        g("s_mov_b64 exec, -1")
    tile_raddr(g, 4, 3)
    g(f"v_mov_b32 v17, {L_FL}")
    g("s_mov_b32 s63, 0")
    g("s_waitcnt vmcnt(0)")
    g(f"ds_write_b32 v9, v10 offset:{F_LNB}")
    g("s_cmp_eq_u32 s3, 1")
    g("s_cbranch_scc0 L_qk")
    g("s_cmp_eq_u32 s69, 0")
    g("s_cbranch_scc1 L_qk")
    g("s_and_b32 s6, s5, 7")
    g("v_and_b32 v15, 3, v0")
    selmasks(g, 15)
    g("v_lshrrev_b32 v13, 4, v0")
    g("v_bfe_u32 v16, v0, 2, 2")
    g(f"v_mul_u32_u24 v14, {XN_STR}, v16")
    g("v_lshl_add_u32 v14, v13, 4, v14")
    g("s_lshl_b32 s39, s6, 7")
    g(f"s_add_u32 s39, s39, {L_XN}")
    g("v_add_u32 v14, s39, v14")
    g("v_lshlrev_b32 v13, 4, v0")
    g(f"v_add_u32 v13, {L_HP}, v13")
    flagwait4(g, "L_w1w", 17, F_LNB, 20, sleep=1)
    g("ds_read_b128 v[80:83], v14")
    g("ds_read_b128 v[84:87], v14 offset:64")
    for t in range(2):
        for u in range(4):
            r = 24 + 16*t + 4*u
            g(f"ds_read_b64_tr_b16 v[{r}:{r+1}], v{4+u} offset:{L_W1 - 65536 + t*4096}")
            g(f"ds_read_b64_tr_b16 v[{r+2}:{r+3}], v{4+u} offset:{L_W1 - 65536 + t*4096 + 2048}")
    for t in range(2):
        for u in range(4):
            r = 24 + 16*t + 4*u
            g(f"s_waitcnt lgkmcnt({14 - 8*t - 2*u})")
            c = "0" if t == 0 else f"v[{64+4*u}:{67+4*u}]"
            g(f"v_mfma_f32_16x16x32_bf16 v[{64+4*u}:{67+4*u}], v[{r}:{r+3}], v[{80+4*t}:{83+4*t}], {c}")
    g("s_nop 3")
    select4(g, 56, 64, 11)
    g("ds_write_b128 v13, v[56:59]")
    g(f"ds_write_b32 v17, v10 offset:{F_H}")
    g.stamp(1)
    g.label("L_qk")
    g("s_lshr_b32 s6, s5, 3")
    g("s_and_b32 s7, s5, 7")
    g("v_lshrrev_b32 v8, 4, v0")
    g("v_and_b32 v12, 15, v0")
    g("v_xor_b32 v20, v8, v12")
    g("v_lshlrev_b32 v20, 4, v20")
    g("v_lshl_add_u32 v20, v12, 8, v20")
    g("s_lshl_b32 s39, s3, 13")
    g("v_add_u32 v20, s39, v20")
    for t in (1, 2, 3):
        g(f"v_xor_b32 v{20+t}, {64*t}, v20")
    g("v_lshrrev_b32 v13, 5, v0")
    g("v_and_b32 v14, 31, v0")
    g("v_lshlrev_b32 v24, 14, v13")
    g("v_lshl_add_u32 v24, v14, 4, v24")
    g("s_lshl_b32 s58, s4, 15")
    g("s_lshl_b32 s59, s6, 11")
    g("s_add_u32 s58, s58, s59")
    g("s_lshl_b32 s59, s3, 9")
    g("s_add_u32 s65, s58, s59")
    g(f"s_add_u32 s65, s65, {QA_WS}")
    g("v_lshlrev_b32 v25, 2, v13")
    g("v_and_b32 v15, 16, v0")
    g("v_lshl_add_u32 v25, v15, 3, v25")
    g("v_and_b32 v15, 12, v0")
    g("v_lshl_add_u32 v25, v15, 1, v25")
    g("v_and_b32 v15, 3, v0")
    g("v_lshl_add_u32 v25, v15, 5, v25")
    g(f"s_mul_i32 s39, s3, {QL_STR}")
    g(f"s_add_u32 s38, s39, {L_QL}")
    g("v_add_u32 v25, s38, v25")
    g("v_bfe_u32 v16, v0, 2, 2")
    g(f"v_mul_u32_u24 v26, {QL_STR}, v16")
    g("v_lshl_add_u32 v26, v8, 4, v26")
    g(f"v_add_u32 v26, {L_QL}, v26")
    g("v_lshlrev_b32 v29, 4, v16")
    g(f"v_add_u32 v29, {L_ML}, v29")
    g("s_lshl_b32 s38, s3, 2")
    g("v_add_u32 v27, s38, v29")
    g("v_lshlrev_b32 v28, 6, v16")
    g("v_lshl_add_u32 v28, v8, 4, v28")
    g("s_lshl_b32 s38, s3, 8")
    g(f"s_add_u32 s38, s38, {L_OC}")
    g("v_add_u32 v28, s38, v28")
    g("v_lshlrev_b32 v30, 9, v16")
    g("s_lshl_b32 s67, s4, 7")
    g("s_add_u32 s67, s67, s5")
    g("s_lshl_b32 s67, s67, 4")
    g(f"s_add_u32 s67, s67, {M_WS}")
    for r in range(4):
        g(f"v_mov_b32 v{32+r}, 0x3f803f80")
    g(f"s_mov_b32 s66, {hex(f2u(1.4426950408889634 / (128 ** 0.5)))}")
    g("s_mov_b32 s57, 0x11111111")
    g("s_lshl_b32 s56, s4, 2")
    g("s_add_u32 s56, s56, s6")
    g("v_lshlrev_b32 v103, 13, v13")
    g("v_lshl_add_u32 v103, v14, 4, v103")
    g("s_lshl_b32 s61, s56, 14")
    g("s_add_u32 s61, s61, s59")
    g(f"s_add_u32 s61, s61, {O_WS}")
    g("s_add_u32 s64, s61, 4096")
    g("v_lshl_add_u32 v104, v13, 2, v15")
    g("v_lshlrev_b32 v104, 4, v104")
    g("s_lshl_b32 s60, s56, 2")
    g("s_add_u32 s60, s60, s3")
    g("s_lshl_b32 s60, s60, 7")
    g(f"s_add_u32 s60, s60, {M_WS}")
    g("v_lshlrev_b32 v102, 2, v13")
    g("v_lshl_add_u32 v102, v14, 3, v102")
    g(f"s_add_u32 s39, s39, {L_OL}")
    g("v_add_u32 v102, s39, v102")
    g(f"v_mul_u32_u24 v101, {QL_STR}, v15")
    g("v_lshl_add_u32 v101, v8, 4, v101")
    g(f"v_add_u32 v101, {L_OL}, v101")
    g("s_lshl_b32 s39, s3, 5")
    g("v_xor_b32 v107, s39, v4")
    g("v_lshlrev_b32 v105, 4, v0")
    g(f"s_xor_b32 s62, s7, {XO}")
    g("s_lshl_b32 s62, s62, 6")
    g("s_add_u32 s62, s62, s56")
    g("s_lshl_b32 s62, s62, 2")
    g("s_add_u32 s62, s62, s3")
    g("s_lshl_b32 s62, s62, 8")
    g(f"s_add_u32 s62, s62, {R3_WS}")
    g.stamp(3)
    flagwait1(g, "L_qw", 17, F_QP, 12)
    flagwait1(g, "L_kw", 9, F_K2 if opt.get("qt", 6) else F_K, 12)
    if opt.get("dq", 0): g(f"s_sleep {opt.get('dq', 0)}")
    g("s_and_b32 s63, s63, 0xffff")
    g("s_mov_b32 s58, s65")
    g("s_add_u32 s59, s58, 8192")
    g(f"buffer_load_dwordx4 v[36:39], v24, {W}, s58 offen {SC}")
    g(f"buffer_load_dwordx4 v[40:43], v24, {W}, s59 offen {SC}")
    if opt.get("qt", 6): flagwait1(g, "L_kv2", 9, F_K, 12)
    for tau in range(2):
        for t in range(4):
            r = 48 + 16*tau + 4*t
            g(f"ds_read_b128 v[{r}:{r+3}], v{20+t} offset:{4096*tau}")
    g.label("L_qc")
    g("s_waitcnt vmcnt(0)")
    tagcheck(g, list(range(36, 44)), 11, [44, 45, 46, 47])
    g("s_cbranch_vccz L_qok")
    g("s_add_u32 s63, s63, 1")
    g("s_bitcmp1_b32 s63, 15")
    g("s_cbranch_scc1 L_qok")
    g(f"ds_read_b32 v12, v17 offset:{F_XC}")
    g("s_waitcnt lgkmcnt(0)")
    g("v_readfirstlane_b32 s56, v12")
    g("s_nop 2")
    g("s_cmp_eq_u32 s56, 2")
    g(f"s_cselect_b32 s58, {QB_WS - QA_WS}, 0")
    g("s_add_u32 s58, s58, s65")
    g("s_add_u32 s59, s58, 8192")
    g(f"buffer_load_dwordx4 v[36:39], v24, {W}, s58 offen {SC}")
    g(f"buffer_load_dwordx4 v[40:43], v24, {W}, s59 offen {SC}")
    g("s_branch L_qc")
    g.label("L_qok")
    g.stamp(4)
    if opt.get("stamps"): g("s_and_b32 s96, s63, 0xff")
    g("v_pk_add_f32 v[36:37], v[36:37], v[40:41]")
    g("v_pk_add_f32 v[38:39], v[38:39], v[42:43]")
    g("s_nop 1")
    g("v_permlane32_swap_b32 v36, v38")
    g("v_permlane32_swap_b32 v37, v39")
    g("v_pk_add_f32 v[36:37], v[36:37], v[38:39]")
    g("v_cvt_pk_bf16_f32 v36, v36, v37")
    g("ds_write_b32 v25, v36")
    g(f"ds_write_b32 v9, v10 offset:{F_Q}")
    def qrd():
        for t in range(4):
            g(f"ds_read_b128 v[{80+4*t}:{83+4*t}], v26 offset:{64*t}")
    flagwait4(g, "L_qx", 17, F_Q, 36, pre=qrd, n=4)
    for t in range(4):
        g(f"s_waitcnt lgkmcnt({3-t})")
        for tau in range(2):
            r = 48 + 16*tau + 4*t
            c = "0" if t == 0 else f"v[{36+4*tau}:{39+4*tau}]"
            g(f"v_mfma_f32_16x16x32_bf16 v[{36+4*tau}:{39+4*tau}], v[{r}:{r+3}], v[{80+4*t}:{83+4*t}], {c}")
    g("s_nop 6")
    g("v_max3_f32 v44, v36, v37, v38")
    g("v_max3_f32 v45, v39, v40, v41")
    g("v_max3_f32 v44, v44, v42, v43")
    g("v_max_f32 v44, v44, v45")
    g("v_mov_b32 v45, v44")
    g("s_nop 1")
    g("v_permlane32_swap_b32 v44, v45")
    g("v_max_f32 v44, v44, v45")
    g("v_mov_b32 v45, v44")
    g("s_nop 1")
    g("v_permlane16_swap_b32 v44, v45")
    g("v_max_f32 v44, v44, v45")
    g("v_mul_f32 v44, s66, v44")
    g("s_mov_b64 exec, 0x1111")
    g("ds_write_b32 v27, v44")
    g("s_mov_b64 exec, -1")
    g.label("L_mx")
    g("ds_read_b128 v[48:51], v29")
    spin(g, "L_mxok", inc=0x10000, mx=0x7ff00000)
    g("s_waitcnt lgkmcnt(0)")
    g("v_max_u32 v45, v48, v49")
    g("v_max3_u32 v45, v45, v50, v51")
    g("v_cmp_eq_u32 vcc, -1, v45")
    g("s_cbranch_vccnz L_mx")
    g.label("L_mxok")
    g("v_max3_f32 v44, v48, v49, v50")
    g("v_max_f32 v44, v44, v51")
    g(f"v_bfi_b32 v44, s{S_LO}, v11, v44")
    for i in range(8):
        g(f"v_fma_f32 v{36+i}, v{36+i}, s66, -v44")
    for i in range(8):
        g(f"v_exp_f32 v{36+i}, v{36+i}")
    for i in range(4):
        g(f"v_cvt_pk_bf16_f32 v{36+i}, v{36+2*i}, v{37+2*i}")
    g("s_nop 1")
    g("v_mfma_f32_16x16x32_bf16 v[40:43], v[32:35], v[36:39], 0")
    g("s_mov_b32 exec_lo, s57")
    g("s_mov_b32 exec_hi, s57")
    g("ds_write_b128 v28, v[36:39]")
    g("s_mov_b64 exec, 0x1111")
    g("s_nop 3")
    g("ds_write_b32 v27, v40 offset:64")
    g("s_mov_b64 exec, -1")
    flagwait1(g, "L_xw", 17, F_XC, 12, sdst=56, sleep=0)
    g(f"ds_write_b32 v9, v10 offset:{F_P}")
    g.stamp(2)
    g("s_cmp_eq_u32 s3, 0")
    g("s_cbranch_scc0 L_wo_b3")
    flagwait4(g, "L_lx", 17, F_P, 36, pre=lambda: g("ds_read_b128 v[40:43], v29 offset:64"), n=0)
    g("v_pk_add_f32 v[40:41], v[40:41], v[42:43]")
    g("v_mov_b32 v46, v11")
    g("v_mov_b32 v47, v11")
    g("v_add_f32 v45, v40, v41")
    g("s_mov_b64 exec, 0x1111")
    g(f"v_bfi_b32 v45, s{S_LO}, v11, v45")
    g("s_cmp_eq_u32 s56, 1")
    g("s_cbranch_scc0 L_mlr")
    g(f"buffer_store_dwordx4 v[44:47], v30, {W}, s67 offen")
    g("s_branch L_ml1")
    g.label("L_mlr")
    g(f"buffer_store_dwordx4 v[44:47], v30, {W}, s67 offen {SC}")
    g.label("L_ml1")
    g("s_mov_b64 exec, -1")
    g.label("L_wo_b3")
    g(f"v_mov_b32 v106, {L_FL}")
    def word():
        for t in range(4):
            g(f"ds_read_b64_tr_b16 v[{16+4*t}:{17+4*t}], v107 offset:{L_WO - 65536 + t*4096}")
            g(f"ds_read_b64_tr_b16 v[{18+4*t}:{19+4*t}], v107 offset:{L_WO - 65536 + t*4096 + 2048}")
    if opt.get("pre", 1):
        flagwait4(g, "L_wow", 106, F_WO, 36, sleep=1)
        word()
    g("s_mov_b32 s63, 0")
    g("s_waitcnt lgkmcnt(0)")
    g("s_barrier")
    def oml():
        g(f"buffer_load_dwordx4 v[32:35], v104, {W}, s60 offen {SC}")
    def opl():
        g(f"buffer_load_dwordx4 v[40:43], v103, {W}, s61 offen {SC}")
        g(f"buffer_load_dwordx4 v[44:47], v103, {W}, s61 offen offset:2048 {SC}")
        g(f"buffer_load_dwordx4 v[48:51], v103, {W}, s64 offen {SC}")
        g(f"buffer_load_dwordx4 v[52:55], v103, {W}, s64 offen offset:2048 {SC}")
    oml()
    if not opt.get("pre", 1): word()
    g("s_waitcnt vmcnt(0)")
    tagcheck(g, [32, 33, 34, 35], 11, [56, 57])
    g("s_cbranch_vccz L_o2")
    flagwait4(g, "L_wu", 106, F_OP, 36)
    g("s_mov_b32 s63, 0")
    g.label("L_o")
    oml()
    spin(g, "L_o2", inc=0x100, mx=SPIN_MAX*256)
    g("s_waitcnt vmcnt(0)")
    tagcheck(g, [32, 33, 34, 35], 11, [56, 57])
    g("s_cbranch_vccnz L_o")
    g.label("L_o2")
    g.stamp(5)
    g(f"v_max_f32_dpp v56, v32, v32 quad_perm:[1,0,3,2] {DPPM}")
    g("s_nop 1")
    g(f"v_max_f32_dpp v56, v56, v56 quad_perm:[2,3,0,1] {DPPM}")
    g("v_mov_b32 v57, v56")
    g("s_nop 1")
    g("v_permlane32_swap_b32 v56, v57")
    g("v_max_f32 v56, v56, v57")
    g("v_sub_f32 v32, v32, v56")
    g("v_exp_f32 v32, v32")
    g("s_nop 0")
    g("v_mul_f32 v57, v32, v33")
    g("s_nop 1")
    g(f"v_add_f32_dpp v57, v57, v57 quad_perm:[1,0,3,2] {DPPM}")
    g("s_nop 1")
    g(f"v_add_f32_dpp v57, v57, v57 quad_perm:[2,3,0,1] {DPPM}")
    g("v_mov_b32 v58, v57")
    g("s_nop 1")
    g("v_permlane32_swap_b32 v57, v58")
    g("v_add_f32 v57, v57, v58")
    g("v_rcp_f32 v57, v57")
    g("s_nop 0")
    g("v_mul_f32 v32, v32, v57")
    g("s_nop 1")
    for i in range(4):
        g(f"v_mov_b32_dpp v{64+2*i}, v32 quad_perm:[{i},{i},{i},{i}] {DPPM}")
    for i in range(4):
        g(f"v_mov_b32 v{65+2*i}, v{64+2*i}")
    flagwait4(g, "L_wt", 106, F_OP, 36)
    g("s_and_b32 s63, s63, 0xff00")
    g.stamp(6)
    if opt.get("d2", 0): g(f"s_sleep {opt['d2']}")
    g.label("L_o3")
    opl()
    g("s_add_u32 s63, s63, 1")
    g("s_bitcmp1_b32 s63, 24")
    g("s_cbranch_scc1 L_ook")
    g("s_waitcnt vmcnt(0)")
    if opt.get("omask", 1): g("s_mov_b64 exec, -1")
    tagcheck(g, list(range(40, 56)), 11, [56, 57, 58, 59, 36, 37, 38, 39])
    if opt.get("omask", 1):
        g("s_cbranch_vccz L_ook")
        g("s_mov_b64 exec, vcc")
        g("s_branch L_o3")
    else:
        g("s_cbranch_vccnz L_o3")
    g.label("L_ook")
    g.stamp(7)
    g("v_pk_mul_f32 v[36:37], v[64:65], v[40:41]")
    g("v_pk_mul_f32 v[38:39], v[64:65], v[42:43]")
    for i in range(1, 4):
        g(f"v_pk_fma_f32 v[36:37], v[{64+2*i}:{65+2*i}], v[{40+4*i}:{41+4*i}], v[36:37]")
        g(f"v_pk_fma_f32 v[38:39], v[{64+2*i}:{65+2*i}], v[{42+4*i}:{43+4*i}], v[38:39]")
    g("s_nop 1")
    g("v_permlane32_swap_b32 v36, v38")
    g("v_permlane32_swap_b32 v37, v39")
    g("v_pk_add_f32 v[36:37], v[36:37], v[38:39]")
    g("v_cvt_pk_bf16_f32 v36, v36, v37")
    g("ds_write_b32 v102, v36")
    g("s_waitcnt lgkmcnt(0)")
    g("s_barrier")
    for t in range(4):
        g(f"ds_read_b128 v[{40+4*t}:{43+4*t}], v101 offset:{64*t}")
    for t in range(4):
        g(f"s_waitcnt lgkmcnt({3-t})")
        c = "0" if t == 0 else "v[32:35]"
        g(f"v_mfma_f32_16x16x32_bf16 v[32:35], v[{40+4*t}:{43+4*t}], v[{16+4*t}:{19+4*t}], {c}")
    g("s_mov_b64 exec, 0xffff")
    g("s_nop 6")
    for u in range(4):
        g(f"v_bfi_b32 v{32+u}, s{S_LO}, v11, v{32+u}")
    g(f"buffer_store_dwordx4 v[32:35], v105, {W}, s62 offen {opt.get('fs', SC).replace('+', ' ')}")
    g.stamp(8)
    if opt.get("stamps"):
        g("s_lshl_b32 s96, s96, 16")
        g("s_and_b32 s63, s63, 0xffff")
        g("s_or_b32 s63, s63, s96")
    hevhold()
    g("s_branch L_end" if opt.get("stamps") else "s_endpgm")
    g.role = "w"
    g.label("L_w8")
    g.srd(SRD_B, P_B1, 1792*2)
    g("s_and_b32 s6, s5, 7")
    g("v_lshrrev_b32 v12, 4, v0")
    g("v_and_b32 v13, 3, v0")
    g("v_bfe_u32 v14, v0, 2, 2")
    selmasks(g, 12)
    g("v_lshlrev_b32 v8, 5, v13")
    g("v_lshl_add_u32 v8, v14, 3, v8")
    g("s_lshl_b32 s57, s68, 7")
    g(f"v_mul_u32_u24 v9, {HL_STR}, v12")
    g("v_lshl_add_u32 v9, v14, 4, v9")
    g("v_and_b32 v14, 2, v0")
    g("v_lshl_add_u32 v9, v14, 5, v9")
    g("v_cmp_ne_u32 s[60:61], 0, v14")
    g("v_and_b32 v15, 1, v0")
    g("v_lshl_add_u32 v9, v15, 3, v9")
    g(f"v_add_u32 v9, {L_HL}, v9")
    g(f"v_mul_u32_u24 v19, {HL_STR}, v13")
    g("v_lshl_add_u32 v19, v12, 4, v19")
    g(f"v_add_u32 v19, {L_HL}, v19")
    g("s_lshl_b32 s58, s68, 13")
    g(f"s_add_u32 s58, s58, {H_WS}")
    g("s_add_u32 s59, s58, 4096")
    g("v_lshlrev_b32 v10, 4, v0")
    g("s_add_u32 s39, s4, 24")
    g("s_cmp_eq_u32 s69, 0")
    g("s_cselect_b32 s39, s39, s68")
    g(f"s_xor_b32 s62, s6, {XF2}")
    g("s_lshl_b32 s62, s62, 6")
    g("s_add_u32 s62, s62, s39")
    g("s_add_u32 s62, s62, 32")
    g("s_lshl_b32 s62, s62, 10")
    g(f"s_add_u32 s62, s62, {R3_WS}")
    g("v_lshrrev_b32 v3, 1, v0")
    g("v_lshlrev_b32 v3, 10, v3")
    g("v_lshl_add_u32 v3, v15, 4, v3")
    g("s_lshl_b32 s64, s4, 16")
    g("s_lshl_b32 s39, s5, 5")
    g("s_add_u32 s64, s64, s39")
    g(f"s_add_u32 s64, s64, {R3_WS}")
    g("s_add_u32 s65, s64, 32768")
    g("v_and_b32 v16, 1, v12")
    g("v_add_u32 v16, v16, v14")
    g("v_lshlrev_b32 v1, 1, v15")
    g("v_lshl_add_u32 v16, v16, 10, v1")
    g("s_lshl_b32 s66, s4, 7")
    g("s_lshl_b32 s39, s5, 2")
    g("s_add_u32 s66, s66, s39")
    g(f"buffer_load_dwordx2 v[20:21], v8, s[{SRD_B}:{SRD_B+3}], s57 offen")
    g.srd(SRD_B, P_B2, 1024)
    g(f"buffer_load_ushort v17, v16, s[{SRD_C}:{SRD_C+3}], s66 offen")
    g(f"buffer_load_ushort v18, v1, s[{SRD_B}:{SRD_B+3}], s66 offen")
    g.srd(SRD_A, P_OUT, 4096)
    if opt.get("otouch", 0):
        g(f"buffer_load_ushort v124, v16, s[{SRD_A}:{SRD_A+3}], s66 offen")
    g(f"s_mov_b32 s57, {hex(f2u(-1.4426950408889634))}")
    g(f"v_mov_b32 v2, {L_FL}")
    for r in range(4):
        g(f"v_mov_b32 v{96+r}, v11")
    g("s_mov_b32 s63, 0")
    g("s_cmp_eq_u32 s69, 0")
    g("s_cbranch_scc0 L_w8_u")
    g(f"buffer_store_dwordx4 v[96:99], v10, {W}, s62 offen {SC}")
    g("s_barrier")
    g("s_branch L_w8_fin")
    g.label("L_w8_u")
    g(f"s_sleep {opt.get('dh', 36)}")
    def hld():
        for kp in range(8):
            g(f"buffer_load_dwordx4 v[{56+4*kp}:{59+4*kp}], v10, {W}, s{58+(kp>>2)} offen offset:{(kp&3)*1024} {SC}")
    if not opt.get("nohg"): hld()
    g("s_barrier")
    g.label("L_h")
    g("s_waitcnt vmcnt(0)")
    g("v_lshlrev_b32 v88, 16, v20")
    g("v_and_b32 v89, 0xffff0000, v20")
    g("v_lshlrev_b32 v90, 16, v21")
    g("v_and_b32 v91, 0xffff0000, v21")
    tagcheck(g, list(range(56, 88)), 11, list(range(100, 116)))
    g("s_cbranch_vccz L_hok")
    spin(g, "L_hok")
    hld()
    g("s_branch L_h")
    g.label("L_hok")
    g.stamp(5)
    for (a, b) in ((56, 60), (64, 68), (72, 76), (80, 84), (56, 64), (72, 80), (56, 72)):
        g(f"v_pk_add_f32 v[{a}:{a+1}], v[{a}:{a+1}], v[{b}:{b+1}]")
        g(f"v_pk_add_f32 v[{a+2}:{a+3}], v[{a+2}:{a+3}], v[{b+2}:{b+3}]")
    def unp():
        g("v_cvt_pk_bf16_f32 v60, v56, v57")
        g("v_cvt_pk_bf16_f32 v61, v58, v59")
        g("v_lshlrev_b32 v56, 16, v60")
        g("v_and_b32 v57, 0xffff0000, v60")
        g("v_lshlrev_b32 v58, 16, v61")
        g("v_and_b32 v59, 0xffff0000, v61")
    unp()
    g("v_pk_add_f32 v[56:57], v[56:57], v[88:89]")
    g("v_pk_add_f32 v[58:59], v[58:59], v[90:91]")
    unp()
    for i in range(4):
        g(f"v_max_f32 v{56+i}, 0, v{56+i}")
    g("v_pk_mul_f32 v[56:57], v[56:57], v[56:57]")
    g("v_pk_mul_f32 v[58:59], v[58:59], v[58:59]")
    g("v_cvt_pk_bf16_f32 v60, v56, v57")
    g("v_cvt_pk_bf16_f32 v61, v58, v59")
    g("ds_write_b64 v9, v[60:61]")
    g("ds_read_b128 v[64:67], v19")
    g("ds_read_b128 v[68:71], v19 offset:64")
    if opt.get("trl", 2): flagwait4(g, "L_w2w", 2, F_OP, 72)
    g.stamp(4)
    for t in range(2):
        for u in range(4):
            r = 24 + 16*t + 4*u
            g(f"ds_read_b64_tr_b16 v[{r}:{r+1}], v{4+u} offset:{L_W2 - 65536 + t*4096}")
            g(f"ds_read_b64_tr_b16 v[{r+2}:{r+3}], v{4+u} offset:{L_W2 - 65536 + t*4096 + 2048}")
    for t in range(2):
        for u in range(4):
            g(f"s_waitcnt lgkmcnt({14 - 8*t - 2*u})")
            r = 24 + 16*t + 4*u
            d = 72 + 4*u
            c = "0" if t == 0 else f"v[{d}:{d+3}]"
            g(f"v_mfma_f32_16x16x32_bf16 v[{d}:{d+3}], v[{64+4*t}:{67+4*t}], v[{r}:{r+3}], {c}")
    g("s_nop 3")
    select4(g, 96, 72, 11)
    g.stamp(6)
    g("s_barrier")
    g(f"buffer_store_dwordx4 v[96:99], v10, {W}, s62 offen {SC}")
    g("s_branch L_w8_f2")
    g.label("L_w8_fin")
    g.stamp(6)
    g("s_barrier")
    g.label("L_w8_f2")
    g("s_mov_b32 s63, 0")
    g("s_waitcnt vmcnt(1)")
    g("v_lshlrev_b32 v17, 16, v17")
    g("v_lshlrev_b32 v18, 16, v18")
    if opt.get("df", 14):
        g(f"s_sleep {opt.get('df', 14)}")
    FL = opt.get("fl", SC).replace("+", " ")
    g.label("L_f")
    g(f"buffer_load_dwordx4 v[24:27], v3, {W}, s64 offen {FL}")
    g(f"buffer_load_dwordx4 v[40:43], v3, {W}, s65 offen {FL}")
    spin(g, "L_fok")
    g("s_waitcnt vmcnt(0)")
    if opt.get("fmask"): g("s_mov_b64 exec, -1")
    tagcheck(g, [24, 25, 26, 27, 40, 41, 42, 43], 11, list(range(44, 48)))
    if opt.get("sf", 0) or opt.get("fmask"):
        g("s_cbranch_vccz L_fok")
        if opt.get("fmask"): g("s_mov_b64 exec, vcc")
        if opt.get("sf", 0): g(f"s_sleep {opt['sf']}")
        g("s_branch L_f")
    else:
        g("s_cbranch_vccnz L_f")
    g.label("L_fok")
    g.stamp(7)
    for i in range(4):
        g(f"v_permlane32_swap_b32 v{24+i}, v{40+i}")
    g("v_pk_add_f32 v[24:25], v[24:25], v[40:41]")
    g("v_pk_add_f32 v[26:27], v[26:27], v[42:43]")
    g("s_nop 0")
    g("v_permlane16_swap_b32 v24, v25")
    g("v_permlane16_swap_b32 v26, v27")
    g("v_add_f32 v24, v24, v25")
    g("v_add_f32 v26, v26, v27")
    for c in ("row_ror:8", "row_ror:4", "row_ror:2"):
        g("s_nop 0")
        g(f"v_add_f32_dpp v24, v24, v24 {c} {DPPM}")
        g(f"v_add_f32_dpp v26, v26, v26 {c} {DPPM}")
    g("v_cndmask_b32 v24, v24, v26, s[60:61]")
    rnd(g, 24, 24)
    g("v_add_f32 v25, v24, v18")
    rnd(g, 25, 25)
    g("v_mul_f32 v26, s57, v25")
    g("v_exp_f32 v26, v26")
    g("s_nop 0")
    g("v_add_f32 v26, 1.0, v26")
    g("v_rcp_f32 v26, v26")
    g("s_nop 0")
    g("v_mul_f32 v26, v25, v26")
    rnd(g, 26, 26)
    g("s_nop 1")
    g("v_permlane32_swap_b32 v26, v27")
    g("s_mov_b32 exec_lo, 0x000f000f")
    g("s_mov_b32 exec_hi, 0")
    g("v_mul_f32 v24, v24, v27")
    rnd(g, 24, 24)
    g("v_add_f32 v24, v24, v17")
    g("v_cvt_pk_bf16_f32 v24, v24, v24")
    g(f"buffer_store_short v24, v16, s[{SRD_A}:{SRD_A+3}], s66 offen {opt.get('of', '').replace('+', ' ')}")
    g.stamp(8)
    hevhold()
    if opt.get("hold"):
        g(f"s_cmp_eq_u32 s2, {opt.get('holdwg', 0)}")
        g("s_cbranch_scc0 L_nohold")
        g.label("L_hold")
        g("s_memrealtime s[72:73]")
        g("s_waitcnt lgkmcnt(0)")
        g("s_sub_u32 s72, s72, s70")
        g(f"s_cmp_lt_u32 s72, {opt['hold']}")
        g("s_cbranch_scc1 L_hold")
        g.label("L_nohold")
    g("s_cmp_eq_u32 s2, 0")
    g("s_cbranch_scc0 L_end")
    g(f"v_mov_b32 v24, s{S_E1}")
    g("v_mov_b32 v25, 0")
    g("s_mov_b64 exec, 1")
    g(f"buffer_store_dword v24, v25, {W}, 0 offen {opt.get('ef', '')}")
    g.label("L_end")
    if opt.get("stamps"):
        g("s_memrealtime s[88:89]")
        g("s_waitcnt lgkmcnt(0)")
        g("s_mov_b64 exec, 1")
        g("s_mul_i32 s38, s2, 9")
        g("s_add_u32 s38, s38, s3")
        g("s_lshl_b32 s38, s38, 6")
        g(f"s_add_u32 s38, s38, {ST_WS}")
        for k in range(10):
            g(f"v_mov_b32 v{4+k}, s{70+2*k}")
        g("v_mov_b32 v14, s63")
        g("v_mov_b32 v15, 0")
        g("v_mov_b32 v1, 0")
        g(f"buffer_store_dwordx4 v[4:7], v1, {W}, s38 offen")
        g(f"buffer_store_dwordx4 v[8:11], v1, {W}, s38 offen offset:16")
        g(f"buffer_store_dwordx4 v[12:15], v1, {W}, s38 offen offset:32")
    g.label("L_exit")
    lines = [x for x in g.L if x.strip()]
    return finish(lines, opt)

def finish(lines, opt):
    if not opt.get("touch", 1):
        return G1.text(lines)
    sz = _sizes(lines)
    out = []; pos = 0; nxt = 1024; n = 0
    for l, z in zip(lines, sz):
        if z and pos >= nxt:
            assert pos - nxt <= 56
            out.append(None); n += 1; pos += 4; nxt += 1024
        out.append(l); pos += z
    first = opt.get("pad0", 1)
    split = opt.get("pad1", 4)
    res = []; k = 0
    for l in out:
        if l is None:
            tgt = "L_w8b" if k + 1 == split else (f"L_pad{k+1}" if k + 1 < n else "L_w3b")
            if k == first: res.append("L_chain0:")
            if k == split: res.append("L_chain1:")
            res.append(f"L_pad{k}:")
            res.append(f"    s_cbranch_execz {tgt}")
            k += 1
        else:
            res.append(l)
    return G1.text(res)

if __name__ == "__main__":
    out = sys.argv[1]
    opt = {}
    for a in sys.argv[2:]:
        k, v = a.split("=")
        try: v = int(v)
        except ValueError: pass
        opt[k] = v
    open(out, "w").write(gen(opt))
```

```python
import sys, json, struct

NAME = "recurrent_scan__sliding_block_cached__dense_activation_squared_relu__decode"

Q_WS   = 0x1000
XC_WS  = 0x41000
PRE_WS = 0x42000
H_WS   = 0x50000
O_WS   = 0x90000
P3_WS  = 0x140000
ST_WS  = 0x300000
WS_BYTES = 0x400000

L_K  = 0
L_V  = 32768
L_WQ = 65536
L_WO = 81920
L_W1 = 98304
L_W2 = 106496
L_XN = 114688
XN_STR = 1088
L_QL = L_XN + 4352
QL_STR = 320
L_OC = L_QL + 1280
OC_H = 528
OC_W = 2112
L_ML = L_OC + 8448
L_FL = L_ML + 128
LDS_BYTES = L_FL + 64

NWAVES = 9
DOC = '; ---------------------------------------------------------------------------------------------\n; ---------------------------------------------------------------------------------------------\n'
def f2u(x):
    return struct.unpack("<I", struct.pack("<f", x))[0]

class G:
    def __init__(self, opt):
        self.L = []
        self.opt = opt
        self.nst = 0
    def __call__(self, s):
        for line in s.strip().split("\n"):
            self.L.append("    " + line.strip())
    def label(self, n):
        self.L.append(n + ":")
    def stamp(self, k):
        if self.opt.get("stamps"):
            self(f"s_memrealtime s[{70+2*k}:{71+2*k}]")
    def srd(self, d, p, nbytes):
        self(f"s_mov_b32 s{d}, s{p}\ns_mov_b32 s{d+1}, s{p+1}\ns_mov_b32 s{d+2}, {hex(nbytes)}\ns_mov_b32 s{d+3}, 0x20000")

P_X, P_K, P_V, P_WQ, P_WO, P_BX, P_W1, P_B1, P_W2, P_B2, P_OUT, P_DBG, P_WS = 8, 10, 12, 14, 16, 18, 20, 22, 24, 26, 28, 30, 32
S_E, S_T, S_LO = 34, 35, 37
SRD_A, SRD_B, SRD_W, SRD_C = 40, 44, 48, 52
SPIN_MAX = 1 << 16

def tagcheck(g, regs, vT, tmp):
    ts = []
    i = 0
    k = 0
    while i + 1 < len(regs):
        g(f"v_bitop3_b32 v{tmp[k]}, v{regs[i]}, v{regs[i+1]}, v{vT} bitop3:0x7e")
        ts.append(tmp[k]); k += 1; i += 2
    assert i == len(regs)
    while len(ts) > 1:
        n = []
        i = 0
        while i < len(ts):
            if len(ts) - i >= 3:
                g(f"v_or3_b32 v{ts[i]}, v{ts[i]}, v{ts[i+1]}, v{ts[i+2]}"); n.append(ts[i]); i += 3
            elif len(ts) - i == 2:
                g(f"v_or_b32 v{ts[i]}, v{ts[i]}, v{ts[i+1]}"); n.append(ts[i]); i += 2
            else:
                n.append(ts[i]); i += 1
        ts = n
    g(f"v_and_b32 v{ts[0]}, 0x3ff, v{ts[0]}")
    g(f"v_cmp_ne_u32 vcc, 0, v{ts[0]}")

def rnd(g, d, s):
    g(f"v_cvt_pk_bf16_f32 v{d}, v{s}, v{s}")
    g(f"v_and_b32 v{d}, 0xffff0000, v{d}")

def wave_sum(g, v, sdst):
    for c in ("row_ror:8", "row_ror:4", "row_ror:2", "row_ror:1"):
        g("s_nop 1")
        g(f"v_add_f32_dpp v{v}, v{v}, v{v} {c} row_mask:0xf bank_mask:0xf")
    g("s_nop 1")
    g(f"v_add_f32_dpp v{v}, v{v}, v{v} row_bcast:15 row_mask:0xa bank_mask:0xf")
    g("s_nop 1")
    g(f"v_add_f32_dpp v{v}, v{v}, v{v} row_bcast:31 row_mask:0xc bank_mask:0xf")
    g("s_nop 0")
    g(f"v_readlane_b32 s{sdst}, v{v}, 63")

def tile_voff(g, d, t, rowstride):
    g(f"v_lshrrev_b32 v{t}, 4, v0")
    g(f"v_lshlrev_b32 v{t}, 1, v{t}")
    g(f"v_and_b32 v{d}, 7, v0")
    g(f"v_xor_b32 v{d}, v{d}, v{t}")
    g(f"v_lshlrev_b32 v{d}, 4, v{d}")
    g(f"v_lshrrev_b32 v{t}, 3, v0")
    g(f"v_mul_u32_u24 v{t}, {rowstride}, v{t}")
    g(f"v_add_u32 v{d}, v{d}, v{t}")

def tile_raddr(g, d, t):
    g(f"v_lshrrev_b32 v{t}, 3, v0")
    g(f"v_and_b32 v{t}, 3, v{t}")
    g(f"v_lshlrev_b32 v{t}, 5, v{t}")
    g(f"v_lshrrev_b32 v{d}, 2, v0")
    g(f"v_lshl_add_u32 v{t}, v{d}, 7, v{t}")
    g(f"v_and_b32 v{d}, 3, v0")
    g(f"v_lshl_add_u32 v{d}, v{d}, 3, v{t}")
    g(f"v_add_u32 v{d}, 0x10000, v{d}")
    for u in (1, 2, 3):
        g(f"v_xor_b32 v{d+u}, {32*u}, v{d}")

def tile_dma(g, n, voff, srd, ssoff, ldsbase, rowstride, flags):
    step = 8 * rowstride
    for i in range(n):
        if i % 4 == 0:
            g(f"s_mov_b32 m0, {ldsbase + i*1024}" if isinstance(ldsbase, int) else f"s_add_u32 m0, s{ldsbase[0]}, {ldsbase[1] + i*1024}")
        if i == 0:
            g("s_nop 0")
        elif i % 4 == 0:
            g(f"s_add_u32 s{ssoff}, s{ssoff}, {step + 3072}")
        else:
            g(f"s_add_u32 s{ssoff}, s{ssoff}, {step - 1024}")
        g(f"buffer_load_dwordx4 v{voff}, s[{srd}:{srd+3}], s{ssoff} offen offset:{(i%4)*1024} {flags} lds")

def gen(opt):
    g = G(opt)
    NT = opt.get("nt", "nt")
    XF = opt.get("xflags", "")
    SC = "sc1"
    B4 = opt.get("b4", 1)
    QX = opt.get("qx", 3)
    KPRE = 0
    g.stamp(0)
    g("s_cmp_ge_u32 s2, 256")
    g("s_cbranch_scc1 L_exit")
    g("s_load_dwordx16 s[8:23], s[0:1], 0")
    g("s_load_dwordx8 s[24:31], s[0:1], 64")
    g("s_load_dwordx2 s[32:33], s[0:1], 96")
    g("v_lshrrev_b32 v1, 6, v0")
    g("v_and_b32 v0, 63, v0")
    g("v_readfirstlane_b32 s3, v1")
    g("s_and_b32 s4, s2, 7")
    g("s_lshr_b32 s5, s2, 3")
    g(f"s_movk_i32 s{S_LO}, 0x3ff")
    g("s_movk_i32 s6, 0x10e")
    g("s_bitcmp1_b32 s6, s3")
    g("s_cbranch_scc0 L_notln")
    g("s_setprio 3")
    g("s_min_u32 s6, s3, 4")
    g("s_sub_u32 s6, s6, 1")
    g("v_lshlrev_b32 v2, 4, v0")
    g("s_lshl_b32 s38, s6, 10")
    g(f"s_mov_b32 s{SRD_C+2}, 4096")
    g(f"s_mov_b32 s{SRD_C+3}, 0x20000")
    g("s_waitcnt lgkmcnt(0)")
    g(f"s_mov_b32 s{SRD_C}, s{P_X}")
    g(f"s_mov_b32 s{SRD_C+1}, s{P_X+1}")
    g(f"buffer_load_dwordx4 v[4:7], v2, s[{SRD_C}:{SRD_C+3}], s38 offen {XF}")
    g("s_setprio 0")
    g("s_branch L_ln")
    g.label("L_touch")
    if opt.get("touch", 1):
        g("s_mov_b64 exec, 0")
        g("s_cmp_eq_u32 s3, 4")
        g("s_cbranch_scc1 L_chain0")
        g("s_cmp_eq_u32 s3, 5")
        g("s_cbranch_scc1 L_chain1")
        g("s_cmp_eq_u32 s3, 6")
        g("s_cbranch_scc1 L_chain2")
        g("s_branch L_chain3")
    else:
        g("s_branch L_att")
    g.label("L_notln")
    g("s_cmp_eq_u32 s3, 0")
    g("s_cbranch_scc0 L_touch")
    g("s_setprio 2")
    tile_voff(g, 2, 3, 8192)
    g("s_lshr_b32 s6, s5, 3")
    g("s_lshl_b32 s38, s6, 20")
    g("s_lshl_b32 s39, s4, 10")
    g("s_add_u32 s38, s38, s39")
    g("s_and_b32 s7, s5, 7")
    g("s_lshl_b32 s39, s7, 7")
    g("s_add_u32 s38, s38, s39")
    g(f"s_mov_b32 s{SRD_A+2}, {hex(512*4096*2)}")
    g(f"s_mov_b32 s{SRD_A+3}, 0x20000")
    g("s_waitcnt lgkmcnt(0)")
    g(f"s_mov_b32 s{SRD_A}, s{P_WQ}")
    g(f"s_mov_b32 s{SRD_A+1}, s{P_WQ+1}")
    tile_dma(g, 16, 2, SRD_A, 38, L_WQ, 8192, NT)
    g(f"s_load_dword s{S_E}, s[{P_WS}:{P_WS+1}], 0")
    g.stamp(1)
    g.srd(SRD_W, P_WS, WS_BYTES)
    tile_raddr(g, 4, 3)
    g("v_and_b32 v8, 3, v0")
    g(f"v_mul_u32_u24 v8, {XN_STR}, v8")
    g("v_lshrrev_b32 v9, 4, v0")
    g("v_lshl_add_u32 v8, v9, 4, v8")
    g("s_lshl_b32 s39, s6, 8")
    g(f"s_add_u32 s39, s39, {L_XN}")
    g("v_add_u32 v8, s39, v8")
    g("v_and_b32 v10, 3, v0")
    g("v_lshlrev_b32 v10, 11, v10")
    g("v_lshl_add_u32 v10, v9, 4, v10")
    g("s_lshl_b32 s38, s4, 15")
    g("s_lshl_b32 s39, s6, 13")
    g("s_add_u32 s38, s38, s39")
    g("s_lshl_b32 s39, s7, 8")
    g("s_add_u32 s38, s38, s39")
    g(f"s_add_u32 s38, s38, {Q_WS}")
    g("s_waitcnt lgkmcnt(0)")
    g(f"s_add_u32 s{S_T}, s{S_E}, 1")
    g(f"s_and_b32 s{S_T}, s{S_T}, s{S_LO}")
    g(f"v_mov_b32 v11, s{S_T}")
    g("s_barrier")
    for t in range(4):
        g(f"ds_read_b128 v[{12+4*t}:{15+4*t}], v8 offset:{64*t}")
    for t in range(4):
        g(f"s_waitcnt vmcnt({12-4*t})")
        if t == 3: g.stamp(4)
        for u in range(4):
            g(f"ds_read_b64_tr_b16 v[{28+4*u}:{29+4*u}], v{4+u} offset:{L_WQ - 65536 + t*4096}")
            g(f"ds_read_b64_tr_b16 v[{30+4*u}:{31+4*u}], v{4+u} offset:{L_WQ - 65536 + t*4096 + 2048}")
        for u in range(4):
            g(f"s_waitcnt lgkmcnt({6-2*u})")
            c = "0" if t == 0 else f"v[{44+4*u}:{47+4*u}]"
            g(f"v_mfma_f32_16x16x32_bf16 v[{44+4*u}:{47+4*u}], v[{28+4*u}:{31+4*u}], v[{12+4*t}:{15+4*t}], {c}")
    g("s_mov_b32 exec_lo, 0x000f000f")
    g("s_mov_b32 exec_hi, 0x000f000f")
    g("s_nop 2")
    for u in range(4):
        for r in range(4):
            g(f"v_bfi_b32 v{44+4*u+r}, s{S_LO}, v11, v{44+4*u+r}")
        g(f"buffer_store_dwordx4 v[{44+4*u}:{47+4*u}], v10, s[{SRD_W}:{SRD_W+3}], s38 offen offset:{64*u} {SC}")
    g("s_mov_b64 exec, -1")
    g.stamp(2)
    g("s_setprio 0")
    g("s_branch L_wo_pre")
    g.label("L_att")
    g("s_mov_b64 exec, -1")
    g("s_sub_u32 s3, s3, 4")
    g("v_lshrrev_b32 v8, 4, v0")
    g("v_and_b32 v9, 15, v0")
    g("v_xor_b32 v2, v9, v8")
    g("v_lshlrev_b32 v2, 4, v2")
    g("v_lshl_add_u32 v2, v8, 8, v2")
    ROT = opt.get("rot", 1)
    if ROT:
        g("s_lshl_b32 s64, s3, 1")
        g("s_add_u32 s64, s64, s5")
        g("s_add_u32 s64, s64, s4")
        g("s_and_b32 s64, s64, 7")
    else:
        g("s_mov_b32 s64, 0")
    g("s_lshl_b32 s65, s64, 6")
    for i in (1, 2, 3, 0):
        g(f"s_add_u32 s66, s65, {64*i}")
        g("s_and_b32 s66, s66, 0xc0")
        g(f"v_xor_b32 v{2+i}, s66, v2")
    g("s_lshr_b32 s6, s5, 3")
    g("s_and_b32 s7, s5, 7")
    g("s_lshl_b32 s38, s6, 3")
    g("s_add_u32 s38, s38, s4")
    g("s_lshl_b32 s38, s38, 20")
    g("s_lshl_b32 s39, s7, 15")
    g("s_add_u32 s38, s38, s39")
    g("s_lshl_b32 s56, s3, 13")
    g("s_add_u32 s38, s38, s56")
    g(f"s_add_u32 s38, s38, {768*1024}")
    g("s_waitcnt lgkmcnt(0)")
    g(f"s_load_dword s{S_E}, s[{P_WS}:{P_WS+1}], 0")
    g.srd(SRD_A, P_K, 4*8*4096*128*2)
    g.stamp(1)
    g.srd(SRD_B, P_V, 4*8*4096*128*2)
    g.srd(SRD_W, P_WS, WS_BYTES)
    g("v_lshlrev_b32 v6, 1, v8")
    g("v_xor_b32 v6, v9, v6")
    g("v_lshlrev_b32 v6, 4, v6")
    g("v_lshl_add_u32 v6, v8, 8, v6")
    g("s_lshl_b32 s66, s64, 7")
    g("s_and_b32 s66, s66, 0x80")
    g("v_xor_b32 v6, s66, v6")
    g("v_xor_b32 v7, 128, v6")
    g("s_lshl_b32 s64, s64, 10")
    g("v_xor_b32 v10, v8, v9")
    g("v_lshlrev_b32 v10, 4, v10")
    g("v_lshl_add_u32 v10, v9, 8, v10")
    g("v_add_u32 v10, s56, v10")
    for t in (1, 2, 3):
        g(f"v_xor_b32 v{10+t}, {64*t}, v10")
    g("v_lshrrev_b32 v22, 2, v0")
    g("v_and_b32 v23, 7, v22")
    g("v_lshlrev_b32 v23, 5, v23")
    g("v_lshl_add_u32 v23, v22, 8, v23")
    g("v_and_b32 v14, 3, v0")
    g("v_lshl_add_u32 v14, v14, 3, v23")
    g(f"s_add_u32 s57, s56, {L_V}")
    g("v_add_u32 v14, s57, v14")
    for u in range(1, 8):
        g(f"v_xor_b32 v{14+u}, {32*u}, v14")
    g("v_lshrrev_b32 v23, 5, v0")
    g("v_and_b32 v24, 31, v0")
    g("v_lshlrev_b32 v22, 14, v23")
    g("v_lshl_add_u32 v22, v24, 4, v22")
    g("s_lshl_b32 s58, s4, 15")
    g("s_lshl_b32 s59, s6, 11")
    g("s_add_u32 s58, s58, s59")
    g("s_lshl_b32 s59, s3, 9")
    g("s_add_u32 s58, s58, s59")
    g(f"s_add_u32 s58, s58, {Q_WS}")
    g("s_add_u32 s59, s58, 8192")
    g("v_lshlrev_b32 v23, 2, v23")
    g("v_lshl_add_u32 v23, v24, 3, v23")
    g(f"s_mul_i32 s60, s3, {QL_STR}")
    g(f"s_add_u32 s60, s60, {L_QL}")
    g("v_add_u32 v23, s60, v23")
    g("v_and_b32 v25, 3, v0")
    g(f"v_mul_u32_u24 v24, {QL_STR}, v25")
    g("v_lshl_add_u32 v24, v8, 4, v24")
    g(f"v_add_u32 v24, {L_QL}, v24")
    g(f"v_mul_u32_u24 v26, {OC_H}, v25")
    g("v_lshl_add_u32 v26, v8, 4, v26")
    g(f"s_mul_i32 s60, s3, {OC_W}")
    g(f"s_add_u32 s60, s60, {L_OC}")
    g("v_add_u32 v26, s60, v26")
    g("v_lshlrev_b32 v27, 5, v25")
    g("s_lshl_b32 s60, s3, 2")
    g(f"s_add_u32 s60, s60, {L_ML}")
    g("v_add_u32 v27, s60, v27")
    g(f"s_mul_i32 s60, s3, {OC_H}")
    g(f"s_add_u32 s60, s60, {L_OC}")
    g("v_lshlrev_b32 v30, 3, v0")
    g("v_add_u32 v28, s60, v30")
    g("s_lshl_b32 s60, s3, 5")
    g(f"s_add_u32 s60, s60, {L_ML}")
    g("v_mov_b32 v29, s60")
    g("s_lshl_b32 s61, s4, 2")
    g("s_add_u32 s61, s61, s3")
    g("s_lshl_b32 s61, s61, 5")
    g("s_add_u32 s61, s61, s5")
    g("s_mul_i32 s61, s61, 640")
    g(f"s_add_u32 s61, s61, {O_WS}")
    for r in range(4):
        g(f"v_mov_b32 v{32+r}, 0x3f803f80")
    g(f"s_mov_b32 s62, {hex(f2u(1.4426950408889634 / (128 ** 0.5)))}")
    g("s_waitcnt lgkmcnt(0)")
    g(f"s_add_u32 s{S_T}, s{S_E}, 1")
    g(f"s_and_b32 s{S_T}, s{S_T}, s{S_LO}")
    g(f"v_mov_b32 v31, s{S_T}")
    g("s_barrier")
    g.stamp(2)
    THR = opt.get("thr", 6)
    for i in range(16):
        g(f"s_add_u32 m0, s64, s{56 if i < 8 else 57}")
        g("s_add_u32 s39, s64, s38")
        g("s_add_u32 s64, s64, 1024")
        g("s_and_b32 s64, s64, 0x1c00")
        if THR and i >= THR: g(f"s_waitcnt vmcnt({THR-1})")
        if i < 8:
            g(f"buffer_load_dwordx4 v{2+(i&3)}, s[{SRD_A}:{SRD_A+3}], s39 offen {NT} lds")
        else:
            g(f"buffer_load_dwordx4 v{6+(i&1)}, s[{SRD_B}:{SRD_B+3}], s39 offen {NT} lds")
    g.stamp(3)
    g(f"s_waitcnt vmcnt({QX})")
    g(f"buffer_load_dwordx4 v[36:39], v22, s[{SRD_W}:{SRD_W+3}], s58 offen {SC}")
    g(f"buffer_load_dwordx4 v[40:43], v22, s[{SRD_W}:{SRD_W+3}], s59 offen {SC}")
    g("s_barrier")
    g.stamp(4)
    for tau in range(2):
        for t in range(4):
            r = 48 + 16*tau + 4*t
            g(f"ds_read_b128 v[{r}:{r+3}], v{10+t} offset:{4096*tau}")
    g("s_waitcnt vmcnt(2)")
    g.stamp(5)
    for u in range(8):
        g(f"ds_read_b64_tr_b16 v[{80+4*u}:{81+4*u}], v{14+u}")
        g(f"ds_read_b64_tr_b16 v[{82+4*u}:{83+4*u}], v{14+u} offset:4096")
    g("s_mov_b32 s63, 0")
    g.label("L_qchk")
    g("s_waitcnt vmcnt(0)")
    tagcheck(g, list(range(36, 44)), 31, [44, 45, 46, 47])
    g("s_cbranch_vccz L_qok")
    g("s_add_u32 s63, s63, 1")
    g(f"s_cmp_gt_u32 s63, {SPIN_MAX}")
    g("s_cbranch_scc1 L_qok")
    g(f"buffer_load_dwordx4 v[36:39], v22, s[{SRD_W}:{SRD_W+3}], s58 offen {SC}")
    g(f"buffer_load_dwordx4 v[40:43], v22, s[{SRD_W}:{SRD_W+3}], s59 offen {SC}")
    g("s_branch L_qchk")
    g.label("L_qok")
    g.stamp(6)
    g("v_pk_add_f32 v[36:37], v[36:37], v[40:41]")
    g("v_pk_add_f32 v[38:39], v[38:39], v[42:43]")
    g("s_nop 1")
    g("v_permlane32_swap_b32 v36, v38")
    g("v_permlane32_swap_b32 v37, v39")
    g("s_nop 0")
    g("v_pk_add_f32 v[36:37], v[36:37], v[38:39]")
    g("v_cvt_pk_bf16_f32 v36, v36, v37")
    g("ds_write_b32 v23, v36")
    g("s_waitcnt lgkmcnt(0)")
    g("s_barrier")
    for t in range(4):
        g(f"ds_read_b128 v[{112+4*t}:{115+4*t}], v24 offset:{64*t}")
    for t in range(4):
        g(f"s_waitcnt lgkmcnt({3-t})")
        for tau in range(2):
            r = 48 + 16*tau + 4*t
            c = "0" if t == 0 else f"v[{36+4*tau}:{39+4*tau}]"
            g(f"v_mfma_f32_16x16x32_bf16 v[{36+4*tau}:{39+4*tau}], v[{r}:{r+3}], v[{112+4*t}:{115+4*t}], {c}")
    g("s_nop 6")
    g("v_max3_f32 v44, v36, v37, v38")
    g("v_max3_f32 v45, v39, v40, v41")
    g("v_max3_f32 v44, v44, v42, v43")
    g("v_max_f32 v44, v44, v45")
    g("v_mov_b32 v45, v44")
    g("s_nop 1")
    g("v_permlane32_swap_b32 v44, v45")
    g("s_nop 0")
    g("v_max_f32 v44, v44, v45")
    g("v_mov_b32 v45, v44")
    g("s_nop 1")
    g("v_permlane16_swap_b32 v44, v45")
    g("s_nop 0")
    g("v_max_f32 v44, v44, v45")
    g("v_mul_f32 v44, s62, v44")
    for i in range(8):
        g(f"v_fma_f32 v{36+i}, v{36+i}, s62, -v44")
    for i in range(8):
        g(f"v_exp_f32 v{36+i}, v{36+i}")
    for i in range(4):
        g(f"v_cvt_pk_bf16_f32 v{36+i}, v{36+2*i}, v{37+2*i}")
    g("s_nop 1")
    for u in range(8):
        g(f"v_mfma_f32_16x16x32_bf16 v[{48+4*u}:{51+4*u}], v[{80+4*u}:{83+4*u}], v[36:39], 0")
    g("v_mfma_f32_16x16x32_bf16 v[40:43], v[32:35], v[36:39], 0")
    g("s_mov_b32 exec_lo, 0x000f000f")
    g("s_mov_b32 exec_hi, 0x000f000f")
    for u in range(8):
        g(f"ds_write_b128 v26, v[{48+4*u}:{51+4*u}] offset:{64*u}")
    g("ds_write2_b32 v27, v44, v40 offset0:0 offset1:4")
    g("s_mov_b64 exec, -1")
    g("s_waitcnt lgkmcnt(0)")
    g("s_barrier")
    g.stamp(7)
    g("ds_read_b128 v[36:39], v29")
    g("ds_read_b128 v[40:43], v29 offset:16")
    for w in range(4):
        g(f"ds_read_b64 v[{48+2*w}:{49+2*w}], v28 offset:{OC_W*w}")
    g("s_waitcnt lgkmcnt(5)")
    g("v_max3_f32 v44, v36, v37, v38")
    g("v_max_f32 v44, v44, v39")
    g(f"v_bfi_b32 v44, s{S_LO}, v31, v44")
    for w in range(4):
        g(f"v_sub_f32 v{36+w}, v{36+w}, v44")
    for w in range(4):
        g(f"v_exp_f32 v{36+w}, v{36+w}")
    g("s_waitcnt lgkmcnt(0)")
    g("v_mul_f32 v56, v36, v48")
    g("v_mul_f32 v57, v36, v49")
    for w in range(1, 4):
        g(f"v_fmac_f32 v56, v{36+w}, v{48+2*w}")
        g(f"v_fmac_f32 v57, v{36+w}, v{49+2*w}")
    g(f"v_bfi_b32 v56, s{S_LO}, v31, v56")
    g(f"v_bfi_b32 v57, s{S_LO}, v31, v57")
    g(f"buffer_store_dwordx2 v[56:57], v30, s[{SRD_W}:{SRD_W+3}], s61 offen {SC}")
    g("v_mul_f32 v45, v36, v40")
    for w in range(1, 4):
        g(f"v_fmac_f32 v45, v{36+w}, v{40+w}")
    g("v_mov_b32 v46, v31")
    g("v_mov_b32 v47, v31")
    g(f"v_bfi_b32 v45, s{S_LO}, v31, v45")
    g("s_mov_b64 exec, 1")
    g(f"buffer_store_dwordx4 v[44:47], v30, s[{SRD_W}:{SRD_W+3}], s61 offen offset:512 {SC}")
    g.stamp(8)
    if opt.get("stamps"):
        g("s_add_u32 s3, s3, 4")
    g("s_branch L_end")
    g.label("L_ln")
    g(f"s_load_dword s{S_E}, s[{P_WS}:{P_WS+1}], 0")
    if opt.get("cpf", 0):
        g("s_cmp_eq_u32 s3, 8")
        g("s_cbranch_scc0 L_nopf")
        g("s_getpc_b64 s[64:65]")
        g.label("L_pc")
        g(f"s_sub_u32 s64, s64, L_pc-{NAME}_kernel")
        g("s_subb_u32 s65, s65, 0")
        g("v_lshlrev_b32 v3, 6, v0")
        g("global_load_dword v126, v3, s[64:65]")
        g("v_add_u32 v3, 4096, v3")
        g("global_load_dword v127, v3, s[64:65]")
        g("s_waitcnt vmcnt(2)")
        g("s_branch L_pfd")
        g.label("L_nopf")
        g("s_waitcnt vmcnt(0)")
        g.label("L_pfd")
    else:
        g("s_waitcnt vmcnt(0)")
    g.stamp(1)
    g.srd(SRD_W, P_WS, WS_BYTES)
    for i in range(4):
        g(f"v_lshlrev_b32 v{12+2*i}, 16, v{4+i}")
        g(f"v_and_b32 v{13+2*i}, 0xffff0000, v{4+i}")
    g("v_pk_add_f32 v[20:21], v[12:13], v[14:15]")
    g("v_pk_add_f32 v[22:23], v[16:17], v[18:19]")
    g("v_pk_add_f32 v[20:21], v[20:21], v[22:23]")
    g("v_add_f32 v20, v20, v21")
    wave_sum(g, 20, 38)
    g(f"v_mov_b32 v21, {hex(f2u(1.0/512))}")
    g("s_nop 0")
    g("v_mul_f32 v20, s38, v21")
    for i in range(8):
        g(f"v_sub_f32 v{24+i}, v{12+i}, v20")
    g("v_mul_f32 v22, v24, v24")
    g("v_mul_f32 v23, v25, v25")
    for i in range(1, 4):
        g(f"v_fmac_f32 v22, v{24+2*i}, v{24+2*i}")
        g(f"v_fmac_f32 v23, v{25+2*i}, v{25+2*i}")
    g("v_add_f32 v22, v22, v23")
    wave_sum(g, 22, 38)
    rnd(g, 20, 20)
    g("v_mul_f32 v22, s38, v21")
    rnd(g, 22, 22)
    g(f"v_add_f32 v22, {hex(f2u(1e-5))}, v22")
    rnd(g, 22, 22)
    g("v_sqrt_f32 v22, v22")
    g("s_nop 0")
    rnd(g, 22, 22)
    g("v_rcp_f32 v22, v22")
    for i in range(8):
        g(f"v_sub_f32 v{12+i}, v{12+i}, v20")
    for i in range(4):
        g(f"v_cvt_pk_bf16_f32 v{4+i}, v{12+2*i}, v{13+2*i}")
    for i in range(4):
        g(f"v_lshlrev_b32 v{12+2*i}, 16, v{4+i}")
        g(f"v_and_b32 v{13+2*i}, 0xffff0000, v{4+i}")
    for i in range(8):
        g(f"v_mul_f32 v{12+i}, v{12+i}, v22")
    for i in range(4):
        g(f"v_cvt_pk_bf16_f32 v{4+i}, v{12+2*i}, v{13+2*i}")
    g("v_lshrrev_b32 v12, 2, v0")
    g("v_lshlrev_b32 v12, 6, v12")
    g("v_and_b32 v13, 1, v0")
    g("v_lshl_add_u32 v12, v13, 5, v12")
    g("v_and_b32 v13, 2, v0")
    g("v_lshl_add_u32 v12, v13, 2, v12")
    g(f"s_mul_i32 s38, s6, {XN_STR}")
    g(f"s_add_u32 s38, s38, {L_XN}")
    g("v_add_u32 v12, s38, v12")
    g("ds_write2_b64 v12, v[4:5], v[6:7] offset0:0 offset1:2")
    g("s_waitcnt lgkmcnt(0)")
    g(f"s_add_u32 s{S_T}, s{S_E}, 1")
    g(f"s_and_b32 s{S_T}, s{S_T}, s{S_LO}")
    g(f"v_mov_b32 v11, s{S_T}")
    g("s_barrier")
    g.stamp(2)
    tile_raddr(g, 4, 3)
    g("s_cmp_eq_u32 s3, 8")
    g("s_cbranch_scc1 L_w8")
    g("s_cmp_eq_u32 s3, 2")
    g("s_cbranch_scc0 L_wo_pre")
    g("s_getreg_b32 s57, hwreg(HW_REG_XCC_ID, 0, 4)")
    g("s_lshl_b32 s57, s57, 10")
    g(f"s_or_b32 s57, s57, s{S_T}")
    for r in range(4):
        g(f"v_mov_b32 v{12+r}, s57")
    g("s_lshl_b32 s58, s4, 9")
    g(f"s_add_u32 s58, s58, {XC_WS}")
    g("s_lshl_b32 s59, s5, 4")
    g("s_add_u32 s59, s59, s58")
    g("v_mov_b32 v16, 0")
    g("s_mov_b64 exec, 1")
    g(f"buffer_store_dwordx4 v[12:15], v16, s[{SRD_W}:{SRD_W+3}], s59 offen {SC}")
    g("s_mov_b64 exec, -1")
    g("v_and_b32 v16, 31, v0")
    g("v_lshlrev_b32 v16, 4, v16")
    g("v_mov_b32 v17, s57")
    g("s_mov_b32 s63, 0")
    g.label("L_xc")
    g(f"s_sleep {opt.get('sx', 24)}")
    g(f"buffer_load_dwordx4 v[12:15], v16, s[{SRD_W}:{SRD_W+3}], s58 offen {SC}")
    g("s_add_u32 s63, s63, 1")
    g(f"s_cmp_gt_u32 s63, {SPIN_MAX}")
    g("s_cbranch_scc1 L_xcok")
    g("s_waitcnt vmcnt(0)")
    g("v_bitop3_b32 v18, v12, v13, v17 bitop3:0x7e")
    g("v_bitop3_b32 v19, v14, v15, v17 bitop3:0x7e")
    g("v_or_b32 v18, v18, v19")
    g("v_and_b32 v19, 0x3ff, v18")
    g("v_cmp_ne_u32 vcc, 0, v19")
    g("s_cbranch_vccnz L_xc")
    g.label("L_xcok")
    g("v_cmp_ne_u32 vcc, 0, v18")
    g("s_cmp_lg_u64 vcc, 0")
    g("s_cselect_b32 s59, 1, 0")
    if opt.get("force_remote"):
        g("s_mov_b32 s59, 1")
    g("v_mov_b32 v18, s59")
    g(f"v_mov_b32 v19, {L_FL}")
    g("ds_write_b32 v19, v18")
    g("s_waitcnt lgkmcnt(0)")
    g.stamp(4)
    g.label("L_wo_pre")
    g.srd(SRD_A, P_WO, 4096*512*2)
    tile_voff(g, 2, 3, 1024)
    g("s_lshl_b32 s38, s5, 17")
    g("s_lshl_b32 s39, s3, 15")
    g("s_add_u32 s38, s38, s39")
    g("s_lshl_b32 s39, s4, 7")
    g("s_add_u32 s38, s38, s39")
    g("s_lshl_b32 s56, s3, 12")
    g("v_and_b32 v9, 3, v0")
    g("v_and_b32 v10, 12, v0")
    g("v_lshl_add_u32 v9, v10, 1, v9")
    g("v_mul_u32_u24 v9, 640, v9")
    g("v_lshrrev_b32 v10, 4, v0")
    g("v_lshl_add_u32 v8, v10, 4, v9")
    g("s_mul_i32 s60, s5, 20480")
    g(f"s_add_u32 s60, s60, {O_WS + 512}")
    g("s_lshl_b32 s61, s3, 7")
    g("s_add_u32 s61, s61, s60")
    g("s_sub_u32 s61, s61, 512")
    g("v_lshrrev_b32 v10, 1, v0")
    g("v_mul_u32_u24 v10, 5120, v10")
    g("v_and_b32 v3, 1, v0")
    g("v_lshl_add_u32 v10, v3, 4, v10")
    g("s_mul_i32 s62, s4, 163840")
    g("s_lshl_b32 s39, s5, 2")
    g("s_add_u32 s39, s39, s3")
    g("s_lshl_b32 s39, s39, 5")
    g("s_add_u32 s62, s62, s39")
    g(f"s_add_u32 s62, s62, {P3_WS}")
    g("s_cmp_eq_u32 s3, 1")
    g("s_cbranch_scc0 L_wo_b2")
    g("s_cmp_lt_u32 s5, 28")
    g("s_cbranch_scc0 L_wo_b2")
    g.srd(SRD_B, P_W1, 512*1792*2)
    tile_voff(g, 12, 3, 3584)
    g(f"s_mul_i32 s57, s4, {64*3584}")
    g("s_lshl_b32 s39, s5, 7")
    g("s_add_u32 s57, s57, s39")
    g("v_and_b32 v13, 3, v0")
    g(f"v_mul_u32_u24 v14, {XN_STR}, v13")
    g("v_lshrrev_b32 v3, 4, v0")
    g("v_lshl_add_u32 v14, v3, 4, v14")
    g("s_lshl_b32 s39, s4, 7")
    g(f"s_add_u32 s39, s39, {L_XN}")
    g("v_add_u32 v14, s39, v14")
    g("ds_read_b128 v[16:19], v14")
    g("ds_read_b128 v[20:23], v14 offset:64")
    g("v_mul_u32_u24 v13, 7168, v13")
    g("v_lshl_add_u32 v13, v3, 4, v13")
    g("s_mul_i32 s58, s4, 28672")
    g("s_lshl_b32 s39, s5, 8")
    g("s_add_u32 s58, s58, s39")
    g(f"s_add_u32 s58, s58, {H_WS}")
    g("s_setprio 2")
    g("s_barrier")
    tile_dma(g, 8, 12, SRD_B, 57, L_W1, 3584, NT)
    g("s_setprio 0")
    tile_dma(g, 4, 2, SRD_A, 38, (56, L_WO), 1024, NT)
    g.stamp(3)
    g("s_barrier")
    g("s_barrier")
    g("s_waitcnt vmcnt(4)")
    g.stamp(4)
    for t in range(2):
        for u in range(4):
            r = 24 + 16*t + 4*u
            g(f"ds_read_b64_tr_b16 v[{r}:{r+1}], v{4+u} offset:{L_W1 - 65536 + t*4096}")
            g(f"ds_read_b64_tr_b16 v[{r+2}:{r+3}], v{4+u} offset:{L_W1 - 65536 + t*4096 + 2048}")
    for t in range(2):
        for u in range(4):
            r = 24 + 16*t + 4*u
            g(f"s_waitcnt lgkmcnt({14 - 8*t - 2*u})")
            c = "0" if t == 0 else f"v[{56+4*u}:{59+4*u}]"
            g(f"v_mfma_f32_16x16x32_bf16 v[{56+4*u}:{59+4*u}], v[{r}:{r+3}], v[{16+4*t}:{19+4*t}], {c}")
    g("s_mov_b32 exec_lo, 0x000f000f")
    g("s_mov_b32 exec_hi, 0x000f000f")
    g("s_nop 2")
    for u in range(4):
        for r in range(4):
            g(f"v_bfi_b32 v{56+4*u+r}, s{S_LO}, v11, v{56+4*u+r}")
        g(f"buffer_store_dwordx4 v[{56+4*u}:{59+4*u}], v13, s[{SRD_W}:{SRD_W+3}], s58 offen offset:{64*u} {SC}")
    g("s_mov_b64 exec, -1")
    g.stamp(1)
    g("s_waitcnt vmcnt(4)")
    g("s_branch L_wo_go")
    g.label("L_wo_b2")
    g("s_barrier")
    tile_dma(g, 4, 2, SRD_A, 38, (56, L_WO), 1024, NT)
    g.stamp(3)
    g("s_barrier")
    g("s_cmp_eq_u32 s3, 3")
    g("s_cbranch_scc0 L_wo_b3")
    g("s_lshl_b32 s57, s4, 5")
    g("s_add_u32 s57, s57, s5")
    g("s_lshl_b32 s57, s57, 7")
    g(f"s_add_u32 s57, s57, {PRE_WS}")
    g(f"s_add_u32 s58, s{S_E}, 1")
    g("v_mov_b32 v12, s58")
    g("v_mov_b32 v13, 0")
    g("s_mov_b64 exec, 1")
    g(f"buffer_store_dword v12, v13, s[{SRD_W}:{SRD_W+3}], s57 offen {SC}")
    g("s_mov_b64 exec, -1")
    g.label("L_wo_b3")
    g("s_barrier")
    g("s_waitcnt vmcnt(0)")
    g.label("L_wo_go")
    g.stamp(6)
    g(f"s_add_u32 s56, s56, {L_WO - 65536}")
    for u in range(4):
        g(f"v_add_u32 v{4+u}, s56, v{4+u}")
    g(f"v_mov_b32 v12, {L_FL}")
    g("ds_read_b32 v12, v12")
    for u in range(4):
        g(f"ds_read_b64_tr_b16 v[{16+4*u}:{17+4*u}], v{4+u}")
        g(f"ds_read_b64_tr_b16 v[{18+4*u}:{19+4*u}], v{4+u} offset:2048")
    g("s_mov_b32 s63, 0")
    g("s_waitcnt lgkmcnt(0)")
    g("v_readfirstlane_b32 s59, v12")
    if opt.get("pre", 1):
        g("v_and_b32 v12, 31, v0")
        g("v_lshlrev_b32 v12, 7, v12")
        g("s_lshr_b32 s57, s5, 2")
        g("s_lshl_b32 s57, s57, 12")
        g(f"s_add_u32 s57, s57, {PRE_WS}")
        g(f"s_add_u32 s58, s{S_E}, 1")
        g.label("L_opre")
        g(f"buffer_load_dword v13, v12, s[{SRD_W}:{SRD_W+3}], s57 offen {SC}")
        g("s_add_u32 s63, s63, 0x100")
        g(f"s_cmp_gt_u32 s63, {SPIN_MAX*256}")
        g("s_cbranch_scc1 L_opreok")
        g("s_waitcnt vmcnt(0)")
        g("v_cmp_ne_u32 vcc, s58, v13")
        g("s_cbranch_vccz L_opreok")
        g(f"s_sleep {opt.get('sp', 1)}")
        g("s_branch L_opre")
        g.label("L_opreok")
        g.stamp(5)
    if opt.get("d2", 0):
        g(f"s_sleep {opt['d2']}")
    g.label("L_o")
    W = f"s[{SRD_W}:{SRD_W+3}]"
    g(f"buffer_load_dwordx4 v[32:35], v9, {W}, s60 offen {SC}")
    g(f"buffer_load_dwordx4 v[36:39], v9, {W}, s60 offen offset:2560 {SC}")
    g(f"buffer_load_dwordx4 v[40:43], v8, {W}, s61 offen {SC}")
    g(f"buffer_load_dwordx4 v[44:47], v8, {W}, s61 offen offset:64 {SC}")
    g(f"buffer_load_dwordx4 v[48:51], v8, {W}, s61 offen offset:2560 {SC}")
    g(f"buffer_load_dwordx4 v[52:55], v8, {W}, s61 offen offset:2624 {SC}")
    g("s_add_u32 s63, s63, 1")
    g(f"s_cmp_gt_u32 s63, {SPIN_MAX*257}")
    g("s_cbranch_scc1 L_ook")
    g("s_waitcnt vmcnt(0)")
    tagcheck(g, list(range(32, 56)), 11, list(range(56, 68)))
    if opt.get("so", 0):
        g("s_cbranch_vccz L_ook")
        g(f"s_sleep {opt['so']}")
        g("s_branch L_o")
    else:
        g("s_cbranch_vccnz L_o")
    g.label("L_ook")
    g.stamp(7)
    g("v_max_f32 v56, v32, v36")
    g("s_nop 1")
    g("v_max_f32_dpp v56, v56, v56 quad_perm:[1,0,3,2] row_mask:0xf bank_mask:0xf")
    g("s_nop 1")
    g("v_max_f32_dpp v56, v56, v56 quad_perm:[2,3,0,1] row_mask:0xf bank_mask:0xf")
    g("v_sub_f32 v32, v32, v56")
    g("v_sub_f32 v36, v36, v56")
    g("v_exp_f32 v32, v32")
    g("v_exp_f32 v36, v36")
    g("s_nop 0")
    g("v_mul_f32 v57, v32, v33")
    g("v_fmac_f32 v57, v36, v37")
    g("s_nop 1")
    g("v_add_f32_dpp v57, v57, v57 quad_perm:[1,0,3,2] row_mask:0xf bank_mask:0xf")
    g("s_nop 1")
    g("v_add_f32_dpp v57, v57, v57 quad_perm:[2,3,0,1] row_mask:0xf bank_mask:0xf")
    g("v_rcp_f32 v57, v57")
    g("s_nop 0")
    g("v_mul_f32 v32, v32, v57")
    g("v_mul_f32 v36, v36, v57")
    for i in range(8):
        g(f"v_mul_f32 v{40+i}, v32, v{40+i}")
    for i in range(8):
        g(f"v_fmac_f32 v{40+i}, v36, v{48+i}")
    for i in range(4):
        g(f"v_cvt_pk_bf16_f32 v{40+i}, v{40+2*i}, v{41+2*i}")
    g("s_nop 1")
    for u in range(4):
        g(f"v_mfma_f32_16x16x32_bf16 v[{48+4*u}:{51+4*u}], v[40:43], v[{16+4*u}:{19+4*u}], 0")
    g("s_cmp_eq_u32 s59, 0")
    g("s_nop 3")
    for u in range(4):
        g(f"v_pk_add_f32 v[{48+4*u}:{49+4*u}], v[{48+4*u}:{49+4*u}], v[{50+4*u}:{51+4*u}]")
    for u in range(4):
        g(f"v_add_f32 v{32+u}, v{48+4*u}, v{49+4*u}")
    for u in range(4):
        g(f"v_bfi_b32 v{32+u}, s{S_LO}, v11, v{32+u}")
    g("s_cbranch_scc0 L_wo_rem")
    g(f"buffer_store_dwordx4 v[32:35], v10, {W}, s62 offen")
    g.stamp(8)
    if B4: g("s_barrier")
    g("s_branch L_end")
    g.label("L_wo_rem")
    g(f"buffer_store_dwordx4 v[32:35], v10, {W}, s62 offen {SC}")
    g.stamp(8)
    if B4: g("s_barrier")
    g("s_branch L_end")
    g.label("L_w8")
    g.srd(SRD_A, P_W2, 1792*512*2)
    g.srd(SRD_B, P_B1, 1792*2)
    tile_voff(g, 2, 3, 1024)
    g("s_lshl_b32 s38, s5, 16")
    g("s_lshl_b32 s39, s4, 7")
    g("s_add_u32 s38, s38, s39")
    g("v_lshrrev_b32 v12, 4, v0")
    g("v_bfe_u32 v13, v0, 1, 1")
    g("v_bfe_u32 v14, v0, 2, 2")
    g("v_and_b32 v15, 1, v0")
    g("v_lshlrev_b32 v8, 6, v13")
    g("v_lshl_add_u32 v8, v12, 3, v8")
    g("s_lshl_b32 s57, s5, 7")
    g("v_lshl_add_u32 v9, v15, 2, v14")
    g("v_mul_u32_u24 v9, 7168, v9")
    g("v_lshl_add_u32 v9, v8, 1, v9")
    g("s_lshl_b32 s58, s5, 8")
    g(f"s_add_u32 s58, s58, {H_WS}")
    for kk in range(1, 4):
        g(f"s_add_u32 s{58+kk}, s58, {kk*57344}")
    g("v_lshrrev_b32 v10, 1, v0")
    g("v_mul_u32_u24 v10, 5120, v10")
    g("v_lshl_add_u32 v10, v15, 4, v10")
    g("s_mul_i32 s62, s4, 163840")
    g(f"s_add_u32 s62, s62, {P3_WS}")
    g("s_mul_i32 s64, s5, 5120")
    g("s_add_u32 s64, s64, s62")
    g("s_add_u32 s65, s64, 4096")
    g("s_lshl_b32 s39, s5, 5")
    g("s_add_u32 s62, s62, s39")
    g("s_add_u32 s62, s62, 4096")
    g("v_lshlrev_b32 v3, 4, v0")
    g("v_and_b32 v16, 1, v12")
    g("v_lshl_add_u32 v16, v13, 1, v16")
    g("v_lshlrev_b32 v16, 5, v16")
    g("v_lshl_add_u32 v16, v15, 1, v16")
    g("s_and_b32 s39, s5, 7")
    g("s_lshl_b32 s39, s39, 2")
    g("s_lshl_b32 s66, s4, 7")
    g("s_add_u32 s66, s66, s39")
    g("s_lshr_b32 s39, s5, 3")
    g("s_lshl_b32 s39, s39, 10")
    g("s_add_u32 s67, s66, s39")
    g("s_barrier")
    g("s_cmp_lt_u32 s5, 28")
    g("s_cbranch_scc0 L_w8_nou")
    tile_dma(g, 8, 2, SRD_A, 38, L_W2, 1024, NT)
    g(f"buffer_load_dwordx2 v[20:21], v8, s[{SRD_B}:{SRD_B+3}], s57 offen")
    g(f"buffer_load_dwordx2 v[22:23], v8, s[{SRD_B}:{SRD_B+3}], s57 offen offset:32")
    g.label("L_w8_nou")
    g.srd(SRD_B, P_B2, 1024)
    g(f"buffer_load_ushort v17, v16, s[{SRD_C}:{SRD_C+3}], s67 offen")
    g(f"buffer_load_ushort v18, v16, s[{SRD_B}:{SRD_B+3}], s66 offen")
    if opt.get("prewarm", 1):
        for i in range(4):
            g(f"buffer_load_dwordx4 v[24:27], v3, {W}, s64 offen offset:{1024*i} {SC}")
        g(f"buffer_load_dwordx4 v[24:27], v3, {W}, s65 offen {SC}")
    g.srd(SRD_A, P_OUT, 4096)
    g.stamp(3)
    g("s_barrier")
    g("s_barrier")
    g(f"v_mov_b32 v12, {L_FL}")
    g("ds_read_b32 v12, v12")
    g("s_waitcnt vmcnt(0) lgkmcnt(0)")
    g.stamp(4)
    g("v_readfirstlane_b32 s56, v12")
    g("v_lshlrev_b32 v17, 16, v17")
    g("v_lshlrev_b32 v18, 16, v18")
    for r in range(4):
        g(f"v_mov_b32 v{96+r}, v11")
    g("s_cmp_lt_u32 s5, 28")
    g("s_cbranch_scc0 L_w8_pub")
    for t in range(2):
        for u in range(4):
            r = 24 + 16*t + 4*u
            g(f"ds_read_b64_tr_b16 v[{r}:{r+1}], v{4+u} offset:{L_W2 - 65536 + t*4096}")
            g(f"ds_read_b64_tr_b16 v[{r+2}:{r+3}], v{4+u} offset:{L_W2 - 65536 + t*4096 + 2048}")
    for i in range(4):
        g(f"v_lshlrev_b32 v{88+2*i}, 16, v{20+i}")
        g(f"v_and_b32 v{89+2*i}, 0xffff0000, v{20+i}")
    g("s_mov_b32 s63, 0")
    if opt.get("pre", 1):
        g("v_and_b32 v12, 7, v0")
        g("v_lshlrev_b32 v12, 12, v12")
        g("s_lshl_b32 s57, s5, 7")
        g(f"s_add_u32 s57, s57, {PRE_WS}")
        g(f"s_add_u32 s39, s{S_E}, 1")
        g.label("L_hpre")
        g(f"buffer_load_dword v13, v12, s[{SRD_W}:{SRD_W+3}], s57 offen {SC}")
        g("s_add_u32 s63, s63, 1")
        g(f"s_cmp_gt_u32 s63, {SPIN_MAX}")
        g("s_cbranch_scc1 L_hpreok")
        g("s_waitcnt vmcnt(0)")
        g("v_cmp_ne_u32 vcc, s39, v13")
        g("s_cbranch_vccz L_hpreok")
        g(f"s_sleep {opt.get('sp', 1)}")
        g("s_branch L_hpre")
        g.label("L_hpreok")
    if opt.get("dh", 0):
        g(f"s_sleep {opt['dh']}")
    g.label("L_h")
    for kk in range(4):
        g(f"buffer_load_dwordx4 v[{56+8*kk}:{59+8*kk}], v9, {W}, s{58+kk} offen {SC}")
        g(f"buffer_load_dwordx4 v[{60+8*kk}:{63+8*kk}], v9, {W}, s{58+kk} offen offset:64 {SC}")
    g("s_add_u32 s63, s63, 1")
    g(f"s_cmp_gt_u32 s63, {SPIN_MAX}")
    g("s_cbranch_scc1 L_hok")
    g("s_waitcnt vmcnt(0)")
    tagcheck(g, list(range(56, 88)), 11, list(range(100, 116)))
    g("s_cbranch_vccnz L_h")
    g.label("L_hok")
    g.stamp(5)
    for i in range(4):
        g(f"v_pk_add_f32 v[{56+2*i}:{57+2*i}], v[{56+2*i}:{57+2*i}], v[{64+2*i}:{65+2*i}]")
        g(f"v_pk_add_f32 v[{72+2*i}:{73+2*i}], v[{72+2*i}:{73+2*i}], v[{80+2*i}:{81+2*i}]")
    for i in range(4):
        g(f"v_pk_add_f32 v[{56+2*i}:{57+2*i}], v[{56+2*i}:{57+2*i}], v[{72+2*i}:{73+2*i}]")
    for i in range(8):
        g(f"v_add_f32_dpp v{56+i}, v{56+i}, v{56+i} quad_perm:[1,0,3,2] row_mask:0xf bank_mask:0xf")
    for i in range(4):
        g(f"v_cvt_pk_bf16_f32 v{64+i}, v{56+2*i}, v{57+2*i}")
    for i in range(4):
        g(f"v_lshlrev_b32 v{56+2*i}, 16, v{64+i}")
        g(f"v_and_b32 v{57+2*i}, 0xffff0000, v{64+i}")
    for i in range(4):
        g(f"v_pk_add_f32 v[{56+2*i}:{57+2*i}], v[{56+2*i}:{57+2*i}], v[{88+2*i}:{89+2*i}]")
    for i in range(4):
        g(f"v_cvt_pk_bf16_f32 v{64+i}, v{56+2*i}, v{57+2*i}")
    for i in range(4):
        g(f"v_lshlrev_b32 v{56+2*i}, 16, v{64+i}")
        g(f"v_and_b32 v{57+2*i}, 0xffff0000, v{64+i}")
    for i in range(8):
        g(f"v_max_f32 v{56+i}, 0, v{56+i}")
    for i in range(4):
        g(f"v_pk_mul_f32 v[{56+2*i}:{57+2*i}], v[{56+2*i}:{57+2*i}], v[{56+2*i}:{57+2*i}]")
    for i in range(4):
        g(f"v_cvt_pk_bf16_f32 v{64+i}, v{56+2*i}, v{57+2*i}")
    g("s_waitcnt lgkmcnt(0)")
    g("s_nop 0")
    for u in range(4):
        for t in range(2):
            r = 24 + 16*t + 4*u
            d = 68 + 8*u + 4*t
            g(f"v_mfma_f32_16x16x32_bf16 v[{d}:{d+3}], v[64:67], v[{r}:{r+3}], 0")
    g("s_nop 4")
    for u in range(4):
        g(f"v_add_f32 v{100+u}, v{68+8*u}, v{68+8*u+4+2}")
    for u in range(4):
        g(f"v_bfi_b32 v{96+u}, s{S_LO}, v11, v{100+u}")
    g.label("L_w8_pub")
    g("s_cmp_eq_u32 s56, 0")
    g("s_cbranch_scc0 L_w8_rem")
    g(f"buffer_store_dwordx4 v[96:99], v10, {W}, s62 offen")
    g("s_branch L_fin")
    g.label("L_w8_rem")
    g(f"buffer_store_dwordx4 v[96:99], v10, {W}, s62 offen {SC}")
    g.label("L_fin")
    g.stamp(6)
    g("s_mov_b32 s63, 0")
    g("v_and_b32 v19, 2, v0")
    g("v_cmp_ne_u32 s[68:69], 0, v19")
    g(f"s_mov_b32 s57, {hex(f2u(-1.4426950408889634))}")
    if B4: g("s_barrier")
    g.label("L_f")
    for i in range(4):
        g(f"buffer_load_dwordx4 v[{24+4*i}:{27+4*i}], v3, {W}, s64 offen offset:{1024*i} {SC}")
    g(f"buffer_load_dwordx4 v[40:43], v3, {W}, s65 offen {SC}")
    g("s_add_u32 s63, s63, 1")
    g(f"s_cmp_gt_u32 s63, {SPIN_MAX}")
    g("s_cbranch_scc1 L_fok")
    g("s_waitcnt vmcnt(0)")
    tagcheck(g, list(range(24, 44)), 11, list(range(44, 54)))
    g("s_cbranch_vccnz L_f")
    g.label("L_fok")
    g.stamp(7)
    g("v_pk_add_f32 v[24:25], v[24:25], v[28:29]")
    g("v_pk_add_f32 v[26:27], v[26:27], v[30:31]")
    g("v_pk_add_f32 v[32:33], v[32:33], v[36:37]")
    g("v_pk_add_f32 v[34:35], v[34:35], v[38:39]")
    g("v_pk_add_f32 v[24:25], v[24:25], v[32:33]")
    g("v_pk_add_f32 v[26:27], v[26:27], v[34:35]")
    g("s_nop 1")
    for i in range(4):
        g(f"v_permlane32_swap_b32 v{24+i}, v{40+i}")
    g("s_nop 0")
    g("v_pk_add_f32 v[24:25], v[24:25], v[40:41]")
    g("v_pk_add_f32 v[26:27], v[26:27], v[42:43]")
    g("s_nop 1")
    g("v_permlane16_swap_b32 v24, v25")
    g("v_permlane16_swap_b32 v26, v27")
    g("s_nop 0")
    g("v_add_f32 v24, v24, v25")
    g("v_add_f32 v26, v26, v27")
    for c in ("row_ror:8", "row_ror:4", "row_ror:2"):
        g("s_nop 0")
        g(f"v_add_f32_dpp v24, v24, v24 {c} row_mask:0xf bank_mask:0xf")
        g(f"v_add_f32_dpp v26, v26, v26 {c} row_mask:0xf bank_mask:0xf")
    g("v_cndmask_b32 v24, v24, v26, s[68:69]")
    rnd(g, 24, 24)
    g("v_add_f32 v25, v24, v18")
    rnd(g, 25, 25)
    g("v_mul_f32 v26, s57, v25")
    g("v_exp_f32 v26, v26")
    g("s_nop 0")
    g("v_add_f32 v26, 1.0, v26")
    g("v_rcp_f32 v26, v26")
    g("s_nop 0")
    g("v_mul_f32 v26, v25, v26")
    rnd(g, 26, 26)
    g("s_nop 1")
    g("v_permlane32_swap_b32 v26, v27")
    g("s_mov_b32 exec_lo, 0x000f000f")
    g("s_mov_b32 exec_hi, 0")
    g("v_mul_f32 v24, v24, v27")
    rnd(g, 24, 24)
    g("v_add_f32 v24, v24, v17")
    g("v_cvt_pk_bf16_f32 v24, v24, v24")
    g(f"buffer_store_short v24, v16, s[{SRD_A}:{SRD_A+3}], s67 offen")
    g.stamp(8)
    g("s_cmp_eq_u32 s2, 0")
    g("s_cbranch_scc0 L_end")
    g(f"s_add_u32 s{S_E}, s{S_E}, 1")
    g(f"v_mov_b32 v24, s{S_E}")
    g("v_mov_b32 v25, 0")
    g("s_mov_b64 exec, 1")
    g(f"buffer_store_dword v24, v25, {W}, 0 offen")
    g.label("L_end")
    if opt.get("stamps"):
        g("s_waitcnt vmcnt(0)")
        g("s_memrealtime s[88:89]")
        g("s_waitcnt lgkmcnt(0)")
        g("s_mov_b64 exec, 1")
        g("s_mul_i32 s38, s2, 9")
        g("s_add_u32 s38, s38, s3")
        g("s_lshl_b32 s38, s38, 6")
        g(f"s_add_u32 s38, s38, {ST_WS}")
        for k in range(10):
            g(f"v_mov_b32 v{4+k}, s{70+2*k}")
        g("v_mov_b32 v14, s63")
        g("v_mov_b32 v15, 0")
        g("v_mov_b32 v1, 0")
        g(f"buffer_store_dwordx4 v[4:7], v1, {W}, s38 offen")
        g(f"buffer_store_dwordx4 v[8:11], v1, {W}, s38 offen offset:16")
        g(f"buffer_store_dwordx4 v[12:15], v1, {W}, s38 offen offset:32")
    g.label("L_exit")
    lines = [x for x in g.L if x.strip()]
    return finish(lines, opt)

def text(lines):
    body = "\n".join(lines)
    hdr = open("cdna_kernels/" + NAME + ".s.ref").read().split("; Override launch")[0]
    VG = 128
    return f"""{hdr}; Override launch geometry by editing the next line (default: block=256,
; @launch grid=(256,1,1) block=({NWAVES*64},1,1) lds={LDS_BYTES}
{DOC}.amdgcn_target "amdgcn-amd-amdhsa--gfx950"
.text
.p2align 10
.fill 64, 4, 0xbf800000
.globl {NAME}_kernel
.p2align 8
.type {NAME}_kernel,@function
{NAME}_kernel:
{body}
    s_endpgm
.fill (12288 - (. - {NAME}_kernel)) / 4, 4, 0xbf800000
.section .rodata,"a"
.p2align 6
.amdhsa_kernel {NAME}_kernel
  .amdhsa_next_free_vgpr {VG}
  .amdhsa_next_free_sgpr 100
  .amdhsa_accum_offset {VG}
  .amdhsa_group_segment_fixed_size 0
  .amdhsa_kernarg_size 104
  .amdhsa_user_sgpr_count 2
  .amdhsa_user_sgpr_kernarg_segment_ptr 1
  .amdhsa_system_sgpr_workgroup_id_x 1
.end_amdhsa_kernel
"""

def sizes(lines):
    import subprocess, re, tempfile, os
    stub = [l for l in lines] + [f"L_chain{k}:" for k in range(4) if f"L_chain{k}:" not in lines]
    d = tempfile.mkdtemp()
    open(d + "/a.s", "w").write(text(stub))
    r = subprocess.run(["clang", "-x", "assembler", "-target", "amdgcn-amd-amdhsa", "-mcpu=gfx950", "-c", d + "/a.s", "-o", d + "/a.o"], capture_output=True, text=True)
    if r.returncode: print(r.stderr); sys.exit(1)
    o = subprocess.run(["llvm-objdump", "-d", "--mcpu=gfx950", d + "/a.o"], capture_output=True, text=True).stdout
    o = o[o.index("_kernel>:"):]
    sz = [len(m.group(1).split()) * 4 for m in re.finditer(r"// [0-9A-F]+: ([0-9A-F ]+)", o)]
    out = []; k = 0
    for l in lines:
        if l.strip().endswith(":") or l.strip().startswith(";"): out.append(0)
        else: out.append(sz[k]); k += 1
    return out

def finish(lines, opt):
    if not opt.get("touch", 1):
        return text(lines)
    sz = sizes(lines)
    out = []; pos = 0; nxt = 1024; pads = []
    for l, z in zip(lines, sz):
        if z and pos >= nxt:
            assert pos - nxt <= 56
            pads.append(len(out)); out.append(None); pos += 4; nxt += 1024
        out.append(l); pos += z
    n = len(pads)
    res = []
    k = 0
    for l in out:
        if l is None:
            tgt = f"L_pad{k+4}" if k + 4 < n else "L_att"
            if k < 4: res.append(f"L_chain{k}:")
            res.append(f"L_pad{k}:")
            res.append(f"    s_cbranch_execz {tgt}")
            k += 1
        else:
            res.append(l)
    return text(res)

if __name__ == "__main__":
    out = sys.argv[1]
    opt = {}
    for a in sys.argv[2:]:
        k, v = a.split("=")
        try: v = int(v)
        except ValueError: pass
        opt[k] = v
    open(out, "w").write(gen(opt))
```

```python
import sys, struct
from gen import f2u, G, tagcheck, rnd, wave_sum, tile_voff, tile_raddr, tile_dma, NAME, sizes as _sizes
import gen as G1

PR_WS  = 0x2000
QA_WS  = 0x8000
H_WS   = 0x48000
O_WS   = 0x80000
R3_WS  = 0x100000
XC_WS  = 0x200000
PB_WS  = 0x201000
M_WS   = 0x204000
ST_WS  = 0x300000
WS_BYTES = 0x400000

L_K, L_V, L_WQ, L_WO, L_W1, L_W2, L_XN = 0, 32768, 65536, 81920, 98304, 106496, 114688
XN_STR = 1088
L_QL = L_XN + 4352
QL_STR = 320
L_OC = L_QL + 1280
OC_H, OC_W = 528, 2112
L_ML = L_OC + 8448
L_FL = L_ML + 128
L_OL = L_FL + 192
L_HL = L_OL + 1280
HL_STR = 192
LDS_BYTES = L_HL + 768
G1.LDS_BYTES = LDS_BYTES

P_X, P_K, P_V, P_WQ, P_WO, P_BX, P_W1, P_B1, P_W2, P_B2, P_OUT, P_DBG, P_WS = 8, 10, 12, 14, 16, 18, 20, 22, 24, 26, 28, 30, 32
S_E, S_T, S_E1, S_LO = 34, 35, 36, 37
SRD_A, SRD_B, SRD_W, SRD_C = 40, 44, 48, 52
SPIN_MAX = 1 << 16
W = f"s[{SRD_W}:{SRD_W+3}]"
SC = "sc1"
DPPM = "row_mask:0xf bank_mask:0xf"

def epoch(g, vT):
    g(f"s_add_u32 s{S_E1}, s{S_E}, 1")
    g(f"s_and_b32 s{S_T}, s{S_E1}, s{S_LO}")
    g(f"v_mov_b32 v{vT}, s{S_T}")

def spin(g, lab_out, inc=1, mx=SPIN_MAX):
    g(f"s_add_u32 s63, s63, {inc}")
    g(f"s_cmp_gt_u32 s63, {mx}")
    g(f"s_cbranch_scc1 {lab_out}")

def selmasks(g, vsel):
    for k in (1, 2, 3):
        g(f"v_cmp_eq_u32 s[{88+2*k}:{89+2*k}], {k}, v{vsel}")

def select4(g, d, D, vT):
    for k in (1, 2, 3):
        for r in range(4):
            src = D + r if k == 1 else d + r
            g(f"v_cndmask_b32 v{d+r}, v{src}, v{D+4*k+r}, s[{88+2*k}:{89+2*k}]")
    for r in range(4):
        g(f"v_bfi_b32 v{d+r}, s{S_LO}, v{vT}, v{d+r}")

def ffn_ids(g):
    g("s_lshr_b32 s7, s5, 3")
    g("s_mul_i32 s68, s4, 3")
    g("s_min_u32 s69, s4, 4")
    g("s_add_u32 s68, s68, s69")
    g("s_add_u32 s68, s68, s7")
    g("s_cmp_lt_u32 s4, 4")
    g("s_cselect_b32 s69, 4, 3")
    g("s_cmp_lt_u32 s7, s69")
    g("s_cselect_b32 s69, 1, 0")


def untag(g, regs):
    for r in regs:
        g(f"v_and_b32 v{r}, s98, v{r}")

def xorcheck(g, regs, vT, tmp):
    regs = list(regs)
    for r in regs:
        g(f"v_xor_b32 v{r}, v{vT}, v{r}")
    ts = regs; k = 0
    while len(ts) > 1:
        n = []; i = 0
        while i < len(ts):
            if len(ts) - i >= 3:
                g(f"v_or3_b32 v{tmp[k]}, v{ts[i]}, v{ts[i+1]}, v{ts[i+2]}"); n.append(tmp[k]); k += 1; i += 3
            elif len(ts) - i == 2 and len(n) != 2:
                g(f"v_or_b32 v{tmp[k]}, v{ts[i]}, v{ts[i+1]}"); n.append(tmp[k]); k += 1; i += 2
            else:
                n.append(ts[i]); i += 1
        ts = n
    g(f"v_and_b32 v{ts[0]}, 0x3ff, v{ts[0]}")
    g(f"v_cmp_ne_u32 vcc, 0, v{ts[0]}")

def r3addr(g, d, c, rec, tmp):
    g(f"s_lshl_b32 s{d}, s{c}, 17")
    if rec is not None:
        g(f"s_lshr_b32 s{tmp}, s{rec}, 3")
        g(f"s_lshl_b32 s{tmp}, s{tmp}, 14")
        g(f"s_add_u32 s{d}, s{d}, s{tmp}")
        g(f"s_and_b32 s{tmp}, s{rec}, 7")
        g(f"s_lshl_b32 s{tmp}, s{tmp}, 10")
        g(f"s_add_u32 s{d}, s{d}, s{tmp}")
    g(f"s_add_u32 s{d}, s{d}, {R3_WS}")

def r3par(g, d, c, mask, tmp):
    g(f"s_lshr_b32 s{tmp}, s{mask}, s{c}")
    g(f"s_and_b32 s{tmp}, s{tmp}, 1")
    g(f"s_lshl_b32 s{tmp}, s{tmp}, 13")
    g(f"s_add_u32 s{d}, s{d}, s{tmp}")

def flagwait4(g, lab, vbase, off, tmp, pre=None, n=0, sleep=0):
    g.label(lab)
    if sleep: g(f"s_sleep {sleep}")
    g(f"ds_read_b128 v[{tmp}:{tmp+3}], v{vbase} offset:{off}")
    if pre: pre()
    spin(g, lab + "ok", inc=0x10000, mx=0x7ff00000)
    g(f"s_waitcnt lgkmcnt({n})")
    g(f"v_and_b32 v{tmp}, v{tmp}, v{tmp+1}")
    g(f"v_and_b32 v{tmp+2}, v{tmp+2}, v{tmp+3}")
    g(f"v_and_b32 v{tmp}, v{tmp}, v{tmp+2}")
    g(f"v_cmp_eq_u32 vcc, 0, v{tmp}")
    g(f"s_cbranch_vccnz {lab}")
    g.label(lab + "ok")

def flagwait1(g, lab, vbase, off, tmp, sdst=None, sleep=1):
    g.label(lab)
    if sleep: g(f"s_sleep {sleep}")
    g(f"ds_read_b32 v{tmp}, v{vbase} offset:{off}")
    spin(g, lab + "ok", inc=0x10000, mx=0x7ff00000)
    g("s_waitcnt lgkmcnt(0)")
    g(f"v_cmp_eq_u32 vcc, 0, v{tmp}")
    g(f"s_cbranch_vccnz {lab}")
    g.label(lab + "ok")
    if sdst is not None: g(f"v_readfirstlane_b32 s{sdst}, v{tmp}")

F_LNA, F_XC, F_QP, F_H, F_OP, F_Q, F_LNB, F_P, F_K, F_K2, F_WO, F_V1, F_OS, F_NB = 0, 16, 20, 24, 32, 48, 64, 80, 96, 112, 128, 144, 160, 28
L_HP = L_OC + 2048

def gen(opt):
    g = G(opt)
    g.role = "-"
    HEV = opt.get("hev")
    if HEV:
        def st(k):
            if HEV == f"{g.role}{k}": g("s_memrealtime s[70:71]")
        g.stamp = st
    hcount = [0]
    def hevhold():
        if HEV and HEV[0] == g.role:
            hcount[0] += 1
            n = hcount[0]
            g(f"s_cmp_eq_u32 s2, {opt.get('holdwg', 9)}")
            g(f"s_cbranch_scc0 L_nh{n}")
            g.label(f"L_hh{n}")
            g("s_memrealtime s[72:73]")
            g("s_waitcnt lgkmcnt(0)")
            g("s_sub_u32 s72, s72, s70")
            g("s_cmp_lt_u32 s72, 1500")
            g(f"s_cbranch_scc1 L_hh{n}")
            g.label(f"L_nh{n}")
    NT = opt.get("nt", "nt")
    XF = opt.get("xflags", "")
    THR = opt.get("thr", 3)
    THR2 = opt.get("thr2", 6)
    THR3 = opt.get("thr3", THR2)
    TOUCH = opt.get("touch", 1)
    PWF = opt.get("pwf", "")
    NEAR = opt.get("near", 1)
    G1.NWAVES = 10 if NEAR else 9
    g.stamp(0)
    if opt.get("hold"): g("s_memrealtime s[70:71]")
    g("s_cmp_ge_u32 s2, 256")
    g("s_cbranch_scc1 L_exit")
    g("s_load_dwordx16 s[8:23], s[0:1], 0")
    g("s_load_dwordx8 s[24:31], s[0:1], 64")
    g("s_load_dwordx2 s[32:33], s[0:1], 96")
    g("v_lshrrev_b32 v1, 6, v0")
    g("v_and_b32 v0, 63, v0")
    g("v_readfirstlane_b32 s3, v1")
    g("s_and_b32 s4, s2, 7")
    g("s_lshr_b32 s5, s2, 3")
    g(f"s_movk_i32 s{S_LO}, 0x3ff")
    g("s_movk_i32 s98, 0xfc00")
    g("s_cmp_lt_u32 s3, 4")
    g("s_cbranch_scc0 L_notln")
    g("v_lshlrev_b32 v12, 4, v0")
    g("s_lshl_b32 s39, s3, 10")
    WIDE = opt.get("wide", 0)
    tile_voff(g, 2, 3, 8192)
    if WIDE & 1:
        g("v_lshrrev_b32 v3, 4, v0")
        g("v_and_b32 v100, 15, v0")
        g("v_lshlrev_b32 v100, 4, v100")
        g("v_lshl_add_u32 v100, v3, 13, v100")
        g("s_lshr_b32 s7, s5, 2")
        g("s_lshl_b32 s38, s7, 19")
        g("s_lshl_b32 s56, s3, 17")
        g("s_add_u32 s38, s38, s56")
        g("s_lshl_b32 s56, s4, 10")
        g("s_add_u32 s38, s38, s56")
        g("s_and_b32 s56, s5, 3")
        g("s_lshl_b32 s56, s56, 8")
        g("s_add_u32 s38, s38, s56")
    else:
        g("s_lshr_b32 s7, s5, 3")
        g("s_lshl_b32 s38, s7, 20")
        g("s_lshl_b32 s56, s3, 18")
        g("s_add_u32 s38, s38, s56")
        g("s_lshl_b32 s56, s4, 10")
        g("s_add_u32 s38, s38, s56")
        g("s_and_b32 s56, s5, 7")
        g("s_lshl_b32 s56, s56, 7")
        g("s_add_u32 s38, s38, s56")
    g("s_lshl_b32 s56, s3, 12")
    g(f"s_mov_b32 s{SRD_C+2}, 4096")
    g(f"s_mov_b32 s{SRD_C+3}, 0x20000")
    g(f"s_mov_b32 s{SRD_A+2}, {hex(512*4096*2)}")
    g(f"s_mov_b32 s{SRD_A+3}, 0x20000")
    g("s_waitcnt lgkmcnt(0)")
    g(f"s_mov_b32 s{SRD_C}, s{P_X}")
    g(f"s_mov_b32 s{SRD_C+1}, s{P_X+1}")
    g(f"buffer_load_dwordx4 v[4:7], v12, s[{SRD_C}:{SRD_C+3}], s39 offen {XF}")
    g(f"s_mov_b32 s{SRD_A}, s{P_WQ}")
    g(f"s_mov_b32 s{SRD_A+1}, s{P_WQ+1}")
    if WIDE & 1: tile_dma(g, 4, 100, SRD_A, 38, (56, L_WQ), 4096, NT)
    else: tile_dma(g, 4, 2, SRD_A, 38, (56, L_WQ), 8192, NT)
    g("s_barrier")
    g("s_branch L_ln")
    g.label("L_notln")
    g("s_cmp_lt_u32 s3, 8")
    g("s_cbranch_scc1 L_kv")
    if NEAR:
        g("s_cmp_eq_u32 s3, 8")
        g("s_cbranch_scc1 L_w8i")
        g("s_waitcnt lgkmcnt(0)")
        g(f"s_load_dword s{S_E}, s[{P_WS}:{P_WS+1}], 0")
        g("s_barrier")
        g("s_branch L_w9")
        g.label("L_w8i")
    if opt.get("cpf", 1):
        g("s_getpc_b64 s[64:65]")
        g.label("L_pc")
        g("s_and_b32 s6, s5, 7")
        g(f"s_mul_i32 s6, s6, {24*64}")
        g(f"s_sub_u32 s6, s6, L_pc-{NAME}_kernel")
        g("s_ashr_i32 s7, s6, 31")
        g("s_add_u32 s64, s64, s6")
        g("s_addc_u32 s65, s65, s7")
        g("v_lshlrev_b32 v3, 6, v0")
        g("s_mov_b64 exec, 0xffffff")
        g("global_load_dword v125, v3, s[64:65]")
        g("s_mov_b64 exec, -1")
    g("v_lshlrev_b32 v3, 2, v0")
    g(f"v_add_u32 v3, {L_ML}, v3")
    g("v_cmp_gt_u32 vcc, 16, v0")
    g("s_nop 1")
    g("v_cndmask_b32 v4, 0, -1, vcc")
    g("ds_write_b32 v3, v4")
    g("v_mov_b32 v4, 0")
    g("s_mov_b64 exec, 0xffff")
    g("ds_write_b32 v3, v4 offset:256")
    g("s_mov_b64 exec, -1")
    g("s_waitcnt lgkmcnt(0)")
    g(f"s_load_dword s{S_E}, s[{P_WS}:{P_WS+1}], 0")
    g("s_barrier")
    g("s_branch L_w0")
    g.role = "a"
    g.label("L_kv")
    g("s_sub_u32 s3, s3, 4")
    g("v_lshrrev_b32 v8, 4, v0")
    g("v_and_b32 v9, 15, v0")
    g("v_xor_b32 v2, v9, v8")
    g("v_lshlrev_b32 v2, 4, v2")
    g("v_lshl_add_u32 v2, v8, 8, v2")
    for i in (1, 2, 3):
        g(f"v_xor_b32 v{2+i}, {64*i}, v2")
    g("s_lshr_b32 s6, s5, 3")
    g("s_and_b32 s7, s5, 7")
    g("s_lshl_b32 s38, s6, 3")
    g("s_add_u32 s38, s38, s4")
    g("s_lshl_b32 s38, s38, 20")
    g("s_lshl_b32 s56, s3, 10")
    g("s_add_u32 s38, s38, s56")
    g(f"s_add_u32 s38, s38, {768*1024}")
    g("s_lshl_b32 s56, s3, 13")
    g("s_lshl_b32 s64, s7, 12")
    g("s_mov_b32 s66, s38")
    g(f"s_mov_b32 s{SRD_A+2}, {hex(4*8*4096*128*2)}")
    g(f"s_mov_b32 s{SRD_A+3}, 0x20000")
    g("s_waitcnt lgkmcnt(0)")
    g(f"s_mov_b32 s{SRD_A}, s{P_K}")
    g(f"s_mov_b32 s{SRD_A+1}, s{P_K+1}")
    B0L = opt.get("b0l", 0)
    if not B0L:
        g(f"s_load_dword s{S_E}, s[{P_WS}:{P_WS+1}], 0")
        g("s_barrier")
    g.stamp(1)
    def kvld(i, isv, th):
        if i % 4 == 0: g(f"s_add_u32 m0, s56, {(L_V if isv else L_K) + i*1024}")
        g("s_add_u32 s39, s64, s66")
        g("s_add_u32 s64, s64, 4096")
        g("s_and_b32 s64, s64, 0x7000")
        g(f"s_add_u32 s66, s66, {32768 + (3072 if i % 4 == 3 else -1024)}")
        if th: g(f"s_waitcnt vmcnt({th-1})")
        vo = 6 + (i & 1) if isv else 2 + (i & 3)
        g(f"buffer_load_dwordx4 v{vo}, s[{SRD_A}:{SRD_A+3}], s39 offen offset:{(i&3)*1024} {NT} lds")
    for i in range(8):
        if B0L and i == THR:
            g(f"s_load_dword s{S_E}, s[{P_WS}:{P_WS+1}], 0")
            g("s_barrier")
        kvld(i, 0, THR if i >= THR else 0)
    g("s_branch L_att")
    g.role = "l"
    g.label("L_ln")
    ffn_ids(g)
    g(f"s_mov_b32 s{SRD_B+3}, 0x20000")
    g(f"s_mul_i32 s{SRD_B+2}, s69, {512*1792*2}")
    g("v_lshrrev_b32 v3, 3, v0")
    g(f"v_mul_u32_u24 v3, {8192-3584}, v3")
    g("v_sub_u32 v2, v2, v3")
    g("s_and_b32 s38, s5, 7")
    g("s_lshl_b32 s38, s38, 2")
    g("s_add_u32 s38, s38, s3")
    g(f"s_mul_i32 s38, s38, {16*3584}")
    g("s_lshl_b32 s39, s68, 7")
    g("s_add_u32 s38, s38, s39")
    g("s_lshl_b32 s56, s3, 11")
    g(f"s_mov_b32 s{SRD_B}, s{P_W1}")
    g(f"s_mov_b32 s{SRD_B+1}, s{P_W1+1}")
    tile_dma(g, 2, 2, SRD_B, 38, (56, L_W1), 3584, NT)
    g(f"s_load_dword s{S_E}, s[{P_WS}:{P_WS+1}], 0")
    g.srd(SRD_W, P_WS, WS_BYTES)
    g("v_lshrrev_b32 v2, 2, v0")
    g("v_lshlrev_b32 v2, 6, v2")
    g("v_and_b32 v3, 1, v0")
    g("v_lshl_add_u32 v2, v3, 5, v2")
    g("v_and_b32 v3, 2, v0")
    g("v_lshl_add_u32 v2, v3, 2, v2")
    g(f"s_mul_i32 s38, s3, {XN_STR}")
    g(f"s_add_u32 s38, s38, {L_XN}")
    g("v_add_u32 v2, s38, v2")
    g("s_lshl_b32 s38, s3, 2")
    g(f"s_add_u32 s38, s38, {L_FL}")
    g("v_mov_b32 v9, s38")
    g("v_mov_b32 v10, 1")
    g(f"v_mov_b32 v21, {hex(f2u(1.0/512))}")
    g("s_waitcnt vmcnt(6)")
    g.stamp(1)
    for i in range(4):
        g(f"v_lshlrev_b32 v{12+2*i}, 16, v{4+i}")
        g(f"v_and_b32 v{13+2*i}, 0xffff0000, v{4+i}")
    g("v_pk_add_f32 v[22:23], v[12:13], v[14:15]")
    g("v_pk_add_f32 v[24:25], v[16:17], v[18:19]")
    g("v_pk_add_f32 v[22:23], v[22:23], v[24:25]")
    g("v_add_f32 v20, v22, v23")
    wave_sum(g, 20, 38)
    g("s_nop 1")
    g("v_mul_f32 v20, s38, v21")
    for i in range(8):
        g(f"v_sub_f32 v{24+i}, v{12+i}, v20")
    g("v_mul_f32 v22, v24, v24")
    g("v_mul_f32 v23, v25, v25")
    for i in range(1, 4):
        g(f"v_fmac_f32 v22, v{24+2*i}, v{24+2*i}")
        g(f"v_fmac_f32 v23, v{25+2*i}, v{25+2*i}")
    g("v_add_f32 v22, v22, v23")
    wave_sum(g, 22, 38)
    rnd(g, 20, 20)
    g("v_mul_f32 v22, s38, v21")
    rnd(g, 22, 22)
    g(f"v_add_f32 v22, {hex(f2u(1e-5))}, v22")
    rnd(g, 22, 22)
    g("v_sqrt_f32 v22, v22")
    for i in range(8):
        g(f"v_sub_f32 v{12+i}, v{12+i}, v20")
    rnd(g, 22, 22)
    g("v_rcp_f32 v22, v22")
    for i in range(4):
        g(f"v_cvt_pk_bf16_f32 v{4+i}, v{12+2*i}, v{13+2*i}")
    for i in range(4):
        g(f"v_lshlrev_b32 v{12+2*i}, 16, v{4+i}")
        g(f"v_and_b32 v{13+2*i}, 0xffff0000, v{4+i}")
    for i in range(8):
        g(f"v_mul_f32 v{12+i}, v{12+i}, v22")
    for i in range(4):
        g(f"v_cvt_pk_bf16_f32 v{4+i}, v{12+2*i}, v{13+2*i}")
    g("ds_write2_b64 v2, v[4:5], v[6:7] offset0:0 offset1:2")
    g("s_waitcnt vmcnt(2)")
    g(f"ds_write_b32 v9, v10 offset:{F_LNA}")
    g.stamp(2)
    g("s_waitcnt lgkmcnt(0)")
    epoch(g, 11)
    g("s_branch L_ln_done")
    g.role = "w"
    g.label("L_w0")
    g.srd(SRD_W, P_WS, WS_BYTES)
    g("s_getreg_b32 s57, hwreg(HW_REG_XCC_ID, 0, 3)")
    g("s_lshl_b32 s58, s4, 5")
    g("s_add_u32 s58, s58, s5")
    g("s_lshl_b32 s67, s58, 10")
    g("s_lshl_b32 s58, s58, 2")
    g(f"s_add_u32 s58, s58, {XC_WS}")
    g("v_mov_b32 v16, 0")
    if opt.get("tlb", 0):
        g("s_lshr_b32 s6, s5, 3")
        g("s_lshl_b32 s7, s6, 3")
        g("s_add_u32 s7, s7, s4")
        g("s_lshl_b32 s7, s7, 20")
        g(f"s_add_u32 s7, s7, {768*1024}")
        g("v_mov_b32 v13, s7")
        g("s_mov_b64 exec, 1")
        g(f"global_load_dword v124, v13, s[{P_V}:{P_V+1}] nt")
        g("s_lshl_b32 s7, s4, 19")
        g("v_mov_b32 v13, s7")
        g(f"global_load_dword v124, v13, s[{P_WO}:{P_WO+1}] nt")
        g(f"global_load_dword v124, v16, s[{P_W2}:{P_W2+1}] nt")
        g("s_mov_b64 exec, -1")
    g(f"s_add_u32 s56, s67, {QA_WS}")
    g("v_lshlrev_b32 v1, 4, v0")
    if opt.get("prew", 1): g(f"buffer_load_dwordx4 v[124:127], v1, {W}, s56 offen {PWF}")
    g("s_waitcnt lgkmcnt(0)")
    epoch(g, 11)
    g(f"s_and_b32 s56, s{S_E1}, 0x1fffffff")
    g("s_lshl_b32 s57, s57, 29")
    g("s_or_b32 s57, s57, s56")
    g("v_mov_b32 v12, s57")
    g("s_mov_b64 exec, 1")
    if not opt.get("noxc"): g(f"buffer_store_dword v12, v16, {W}, s58 offen {SC}")
    if TOUCH:
        g("s_mov_b64 exec, 0")
        g("s_branch L_chain0")
        g.label("L_w8b")
    g("s_mov_b64 exec, -1")
    g.srd(SRD_C, P_X, 4096)
    ffn_ids(g)
    g("s_lshr_b32 s6, s5, 3")
    g("s_and_b32 s7, s5, 7")
    tile_raddr(g, 4, 3)
    g("v_bfe_u32 v10, v0, 2, 2")
    g(f"v_mul_u32_u24 v8, {XN_STR}, v10")
    g("v_lshrrev_b32 v9, 4, v0")
    g("v_lshl_add_u32 v8, v9, 4, v8")
    g("s_lshl_b32 s39, s6, 8")
    g(f"s_add_u32 s39, s39, {L_XN}")
    g("v_add_u32 v8, s39, v8")
    g("v_lshlrev_b32 v10, 11, v10")
    g("v_lshl_add_u32 v10, v9, 6, v10")
    g("v_and_b32 v9, 3, v0")
    g("v_lshl_add_u32 v10, v9, 4, v10")
    selmasks(g, 9)
    g("s_lshl_b32 s38, s4, 15")
    g("s_lshl_b32 s39, s6, 13")
    g("s_add_u32 s38, s38, s39")
    g("s_lshl_b32 s39, s7, 8")
    g("s_add_u32 s38, s38, s39")
    g(f"s_add_u32 s38, s38, {QA_WS}")
    g("s_lshl_b32 s58, s4, 7")
    g(f"s_add_u32 s58, s58, {XC_WS}")
    g("v_and_b32 v3, 31, v0")
    g("v_lshlrev_b32 v3, 2, v3")
    g(f"v_mov_b32 v2, {L_FL}")
    g("v_mov_b32 v9, 1")
    g("s_mov_b32 s63, 0")
    g.stamp(1)
    flagwait4(g, "L_lnw", 2, F_LNA, 12)
    g("s_setprio 3")
    for t in range(4):
        g(f"ds_read_b128 v[{12+4*t}:{15+4*t}], v8 offset:{64*t}")
        for u in range(4):
            r = 60 + 16*t + 4*u
            g(f"ds_read_b64_tr_b16 v[{r}:{r+1}], v{4+u} offset:{L_WQ - 65536 + t*4096}")
            g(f"ds_read_b64_tr_b16 v[{r+2}:{r+3}], v{4+u} offset:{L_WQ - 65536 + t*4096 + 2048}")
        if t >= 1:
            tt = t - 1
            g("s_waitcnt lgkmcnt(9)")
            for u in range(4):
                r = 60 + 16*tt + 4*u
                c = "0" if tt == 0 else f"v[{44+4*u}:{47+4*u}]"
                g(f"v_mfma_f32_16x16x32_bf16 v[{44+4*u}:{47+4*u}], v[{r}:{r+3}], v[{12+4*tt}:{15+4*tt}], {c}")
    for u in range(4):
        r = 60 + 48 + 4*u
        g(f"s_waitcnt lgkmcnt({6-2*u})")
        g(f"v_mfma_f32_16x16x32_bf16 v[{44+4*u}:{47+4*u}], v[{r}:{r+3}], v[24:27], v[{44+4*u}:{47+4*u}]")
    g("s_nop 3")
    select4(g, 28, 44, 11)
    g(f"buffer_store_dwordx4 v[28:31], v10, {W}, s38 offen")
    g(f"ds_write_b32 v2, v9 offset:{F_QP}")
    g.stamp(2)
    g("s_setprio 0")
    g("s_mov_b32 s63, 0")
    pw0 = len(g.L)
    if opt.get("pwu", 0):
        g("s_and_b32 s56, s5, 3")
        g("s_cmp_eq_u32 s56, 3")
        g("s_cbranch_scc1 L_pwd")
        g("s_lshr_b32 s56, s5, 2")
        g("s_sub_u32 s59, s5, s56")
        g("s_mul_i32 s56, s59, 3072")
        g("s_min_u32 s56, s56, 62464")
        g("s_lshl_b32 s60, s4, 16")
        g("s_add_u32 s56, s56, s60")
        g(f"s_add_u32 s56, s56, {O_WS}")
        for i in range(3):
            g(f"buffer_load_dwordx4 v[124:127], v1, {W}, s56 offen offset:{1024*i} {PWF}")
        g("s_lshr_b32 s60, s5, 3")
        g("s_sub_u32 s60, s68, s60")
        g("s_lshl_b32 s60, s60, 13")
        g("s_mul_i32 s56, s59, 1408")
        g("s_cmp_lt_u32 s4, 4")
        g("s_cselect_b32 s61, 31360, 0")
        g("s_cselect_b32 s62, 0, 23168")
        g("s_or_b32 s61, s61, s62")
        g("s_min_u32 s56, s56, s61")
        g("s_add_u32 s56, s56, s60")
        g(f"s_add_u32 s56, s56, {H_WS}")
        g(f"buffer_load_dwordx4 v[124:127], v1, {W}, s56 offen {PWF}")
        g("s_mov_b64 exec, 0xffffff")
        g(f"buffer_load_dwordx4 v[124:127], v1, {W}, s56 offen offset:1024 {PWF}")
        g("s_and_b32 s59, s59, 15")
        g("s_lshl_b32 s59, s59, 7")
        g("s_lshl_b32 s60, s4, 11")
        g("s_add_u32 s59, s59, s60")
        g(f"s_add_u32 s59, s59, {M_WS}")
        g("s_mov_b64 exec, 0xff")
        g(f"buffer_load_dwordx4 v[124:127], v1, {W}, s59 offen {PWF}")
        g("s_mov_b64 exec, -1")
        g.label("L_pwd")
    else:
        g("s_lshl_b32 s56, s67, 1")
        g(f"s_add_u32 s56, s56, {O_WS}")
        g(f"buffer_load_dwordx4 v[124:127], v1, {W}, s56 offen {PWF}")
        g(f"buffer_load_dwordx4 v[124:127], v1, {W}, s56 offen offset:1024 {PWF}")
        g("s_lshl_b32 s56, s68, 3")
        g("s_add_u32 s56, s56, s7")
        g("s_lshl_b32 s56, s56, 10")
        g(f"s_add_u32 s56, s56, {H_WS}")
        g("s_lshr_b32 s59, s67, 4")
        g(f"s_add_u32 s59, s59, {M_WS}")
        g("s_cmp_eq_u32 s69, 0")
        g("s_cselect_b32 s56, s59, s56")
        g(f"buffer_load_dwordx4 v[124:127], v1, {W}, s56 offen {PWF}")
        g("s_mov_b64 exec, 15")
        g(f"buffer_load_dwordx4 v[124:127], v1, {W}, s59 offen {PWF}")
        g("s_mov_b64 exec, -1")
    if not opt.get("prew", 1): del g.L[pw0:]
    if opt.get("sx", 0): g(f"s_sleep {opt.get('sx', 0)}")
    if opt.get("noxc"):
        g("v_mov_b32 v20, s57")
    else:
        g(f"buffer_load_dword v20, v3, {W}, s58 offen {SC}")
        g("s_waitcnt vmcnt(0)")
    g.label("L_xc")
    g("v_xor_b32 v20, s57, v20")
    g("v_lshlrev_b32 v21, 3, v20")
    g("v_cmp_ne_u32 vcc, 0, v21")
    g("s_cbranch_vccz L_xcok")
    spin(g, "L_xcok")
    g(f"buffer_load_dword v20, v3, {W}, s58 offen {SC}")
    g("s_waitcnt vmcnt(0)")
    g("s_branch L_xc")
    g.label("L_xcok")
    g("v_cmp_ne_u32 vcc, 0, v20")
    g("s_cmp_lg_u64 vcc, 0")
    g("s_cselect_b32 s59, 2, 1")
    if opt.get("force_remote"):
        g("s_mov_b32 s59, 2")
    g("s_cmp_eq_u32 s59, 1")
    g("s_cbranch_scc1 L_xcl")
    g(f"buffer_store_dwordx4 v[28:31], v10, {W}, s38 offen {SC}")
    g.label("L_xcl")
    g("v_mov_b32 v20, s59")
    g(f"ds_write_b32 v2, v20 offset:{F_XC}")
    g.stamp(3)
    g("s_cmp_eq_u32 s69, 0")
    g("s_cbranch_scc1 L_w8")
    g("v_lshrrev_b32 v12, 4, v0")
    g("v_bfe_u32 v13, v0, 2, 2")
    g("v_and_b32 v14, 3, v0")
    g("v_lshlrev_b32 v12, 6, v12")
    g("v_lshl_add_u32 v12, v13, 8, v12")
    g("v_lshl_add_u32 v12, v14, 4, v12")
    g(f"v_add_u32 v13, {L_HP}, v1")
    g("s_lshl_b32 s56, s68, 3")
    g("s_add_u32 s56, s56, s7")
    g("s_lshl_b32 s56, s56, 10")
    g(f"s_add_u32 s56, s56, {H_WS}")
    flagwait1(g, "L_hw", 2, F_H, 14)
    g("ds_read_b128 v[20:23], v13")
    g("s_cmp_eq_u32 s59, 1")
    g("s_waitcnt lgkmcnt(0)")
    g("s_cbranch_scc0 L_hpub_rem")
    g(f"buffer_store_dwordx4 v[20:23], v12, {W}, s56 offen")
    g("s_branch L_w8")
    g.label("L_hpub_rem")
    g(f"buffer_store_dwordx4 v[20:23], v12, {W}, s56 offen {SC}")
    g("s_branch L_w8")
    g.role = "a"
    g.label("L_att")
    TRL = opt.get("trl", 2)
    def tile_dma_thr(n, voff, srd, ss, lb, stride, first=0):
        for i in range(first, n):
            if i == first: g(f"s_add_u32 m0, s{lb[0]}, {lb[1]}")
            if i: g(f"s_add_u32 s{ss}, s{ss}, {8*stride - 1024}")
            g(f"s_waitcnt vmcnt({(THR2 or 64)-1})")
            g(f"buffer_load_dwordx4 v{voff}, s[{srd}:{srd+3}], s{ss} offen offset:{i*1024} {NT} lds")
    g.srd(SRD_W, P_WS, WS_BYTES)
    g.srd(SRD_C, P_WO, 4096*512*2)
    tile_voff(g, 1, 10, 1024)
    g("s_lshl_b32 s60, s4, 2")
    g("s_add_u32 s60, s60, s6")
    g("s_lshl_b32 s60, s60, 17")
    g("s_lshl_b32 s61, s3, 15")
    g("s_add_u32 s60, s60, s61")
    XO, XF2 = (4, 2) if opt.get("perm", 1) else (0, 0)
    g(f"s_xor_b32 s62, s7, {XO}")
    g("s_lshl_b32 s62, s62, 7")
    g("s_add_u32 s93, s60, s62")
    g(f"s_xor_b32 s62, s62, {(XO ^ XF2) << 7}")
    if WIDE & 2:
        g("v_lshrrev_b32 v10, 4, v0")
        g("v_and_b32 v20, 15, v0")
        g("v_lshlrev_b32 v20, 4, v20")
        g("v_lshl_add_u32 v20, v10, 10, v20")
        g("s_lshl_b32 s60, s4, 3")
        g("s_lshr_b32 s61, s5, 2")
        g("s_add_u32 s60, s60, s61")
        g("s_lshl_b32 s60, s60, 16")
        g("s_lshl_b32 s61, s3, 14")
        g("s_add_u32 s60, s60, s61")
        g("s_and_b32 s61, s5, 3")
        g("s_lshl_b32 s61, s61, 8")
        g("s_add_u32 s93, s60, s61")
    g("s_lshl_b32 s65, s3, 12")
    QT = opt.get("qt", 6)
    if QT:
        g(f"v_mov_b32 v17, {L_FL}")
        g("s_lshl_b32 s60, s3, 2")
        g("v_add_u32 v18, s60, v17")
        g("v_mov_b32 v19, 1")
        g(f"s_waitcnt vmcnt({8-QT})")
        g(f"ds_write_b32 v18, v19 offset:{F_K2}")
    ld0 = len(g.L)
    if WIDE & 2: tile_dma_thr(4, 20, SRD_C, 93, (65, L_WO), 512)
    else: tile_dma_thr(4, 1, SRD_C, 93, (65, L_WO), 1024)
    if opt.get("kf", 6) == 4:
        g("s_waitcnt vmcnt(4)")
        g(f"ds_write_b32 v18, v19 offset:{F_K}")
    tile_dma_thr(2 - TRL, 1, SRD_B, 68, (69, L_W2), 1024)
    if opt.get("kf", 6) == 6:
        g(f"s_waitcnt vmcnt({6 - TRL})")
        g(f"ds_write_b32 v18, v19 offset:{F_K}")
    g(f"s_mov_b32 s{SRD_A}, s{P_V}")
    g(f"s_mov_b32 s{SRD_A+1}, s{P_V+1}")
    g("s_mov_b32 s66, s38")
    g.stamp(4)
    PRE = opt.get("pre", 1)
    for i in range(8):
        kvld(i, 1, (THR2 if i < 4 else THR3) or 64)
        if PRE and i == 5:
            g("s_waitcnt vmcnt(6)")
            g(f"ds_write_b32 v18, v19 offset:{F_WO}")
    if TRL: tile_dma_thr(2, 1, SRD_B, 68, (69, L_W2), 1024, first=2 - TRL)
    loads = g.L[ld0:]; del g.L[ld0:]
    g("s_mov_b32 s60, s7")
    ffn_ids(g)
    g("s_mov_b32 s7, s60")
    g(f"s_mov_b32 s{SRD_B}, s{P_W2}")
    g(f"s_mov_b32 s{SRD_B+1}, s{P_W2+1}")
    g(f"s_mul_i32 s{SRD_B+2}, s69, {1792*512*2}")
    g(f"s_mov_b32 s{SRD_B+3}, 0x20000")
    g("s_lshl_b32 s68, s68, 2")
    g("s_add_u32 s68, s68, s3")
    g("s_lshl_b32 s68, s68, 14")
    g("s_add_u32 s68, s68, s62")
    g("s_lshl_b32 s69, s3, 11")
    g("v_lshlrev_b32 v6, 1, v8")
    g("v_xor_b32 v6, v9, v6")
    g("v_lshlrev_b32 v6, 4, v6")
    g("v_lshl_add_u32 v6, v8, 8, v6")
    g("v_xor_b32 v7, 128, v6")
    g(f"v_mov_b32 v17, {L_FL}")
    g("s_lshl_b32 s60, s3, 2")
    g("v_add_u32 v18, s60, v17")
    g("v_mov_b32 v19, 1")
    nfirst = len(g.L) - ld0
    g("v_lshrrev_b32 v25, 2, v0")
    g("v_and_b32 v26, 7, v25")
    g("v_lshlrev_b32 v26, 5, v26")
    g("v_lshl_add_u32 v26, v25, 8, v26")
    g("v_and_b32 v14, 3, v0")
    g("v_lshl_add_u32 v14, v14, 3, v26")
    g("s_lshl_b32 s60, s3, 6")
    g("v_xor_b32 v14, s60, v14")
    g("v_xor_b32 v15, 32, v14")
    g("v_bfe_u32 v25, v0, 2, 2")
    g("v_lshlrev_b32 v28, 6, v25")
    g("v_lshl_add_u32 v28, v8, 4, v28")
    g(f"v_add_u32 v28, {L_OC}, v28")
    g("v_lshlrev_b32 v30, 14, v25")
    g("v_lshl_add_u32 v30, v8, 5, v30")
    g("v_and_b32 v16, 1, v0")
    g("v_lshl_add_u32 v30, v16, 4, v30")
    g("s_lshl_b32 s61, s4, 5")
    g("s_add_u32 s61, s61, s7")
    g("s_lshl_b32 s61, s61, 2")
    g("s_add_u32 s61, s61, s6")
    g("s_lshl_b32 s61, s61, 2")
    g("s_add_u32 s61, s61, s3")
    g("s_lshl_b32 s61, s61, 7")
    g(f"s_add_u32 s61, s61, {O_WS}")
    for r in range(80, 112):
        g(f"v_mov_b32 v{r}, 0")
    g("s_mov_b32 s63, 0")
    g("s_waitcnt lgkmcnt(0)")
    epoch(g, 31)
    setup = g.L[ld0:]; del g.L[ld0:]
    per = -(-nfirst // 3)
    for x in loads:
        g.L.append(x)
        if "buffer_load" in x:
            g.L.extend(setup[:per]); setup = setup[per:]
    assert not setup
    g.stamp(3)
    flagwait4(g, "L_px", 17, F_P, 36, pre=lambda: g(f"ds_read_b32 v46, v17 offset:{F_XC}"), sleep=0)
    g("s_mov_b32 exec_lo, 0x55555555")
    g("s_mov_b32 exec_hi, 0x55555555")
    for t in range(4):
        g(f"ds_read_b128 v[{80+4*t}:{83+4*t}], v28 offset:{256*t}")
    g("s_not_b64 exec, exec")
    for t in range(4):
        g(f"ds_read_b128 v[{96+4*t}:{99+4*t}], v28 offset:{256*t}")
    g("s_mov_b64 exec, -1")
    g("v_readfirstlane_b32 s65, v46")
    g.stamp(2)
    def vrd(half):
        for t in range(4):
            for p in range(2):
                r = 48 + 8*t + 4*p + 2*half
                g(f"ds_read_b64_tr_b16 v[{r}:{r+1}], v{14+p} offset:{L_V + t*8192 + 4096*half}")
    if PRE:
        g(f"s_waitcnt vmcnt({TRL+4})")
        g(f"ds_write_b32 v18, v19 offset:{F_V1}")
        flagwait4(g, "L_v1", 17, F_V1, 36)
        vrd(0)
    g(f"s_waitcnt vmcnt({TRL}) lgkmcnt(0)")
    g.stamp(5)
    g("s_cmp_eq_u32 s65, 1")
    if opt.get("prio", 1): g("s_setprio 3")
    g("s_barrier")
    g.stamp(7)
    if not PRE: vrd(0)
    vrd(1)
    for t in range(4):
        for p in range(2):
            r = 48 + 8*t + 4*p
            k = 2*t + p
            g(f"s_waitcnt lgkmcnt({7-k})")
            g(f"v_mfma_f32_16x16x32_bf16 v[36:39], v[{r}:{r+3}], v[{80+16*p+4*t}:{83+16*p+4*t}], {'0' if k == 0 else 'v[36:39]'}")
    g("s_mov_b32 exec_lo, 0x33333333")
    g("s_mov_b32 exec_hi, 0x33333333")
    g("s_nop 4")
    g("s_cbranch_scc0 L_opub_rem")
    for rem in (0, 1):
        if rem: g.label("L_opub_rem")
        for r in range(4):
            g(f"v_bfi_b32 v{36+r}, s{S_LO}, v31, v{36+r}")
        g(f"buffer_store_dwordx4 v[36:39], v30, {W}, s61 offen {SC if rem else ''}")
        g(f"ds_write_b32 v18, v19 offset:{F_OS}")
        if TRL:
            g("s_waitcnt vmcnt(1)")
            g(f"ds_write_b32 v18, v19 offset:{F_OP}")
        g.stamp(8)
        if opt.get("stamps"):
            g("s_add_u32 s3, s3, 4")
            g("s_branch L_end")
        else:
            hevhold()
            g("s_endpgm")
    if NEAR:
        g.label("L_w9")
        g("s_lshr_b32 s60, s2, 4")
        g("s_lshl_b32 s60, s60, 3")
        g("s_add_u32 s60, s60, s4")
        g("s_lshl_b32 s60, s60, 6")
        g("s_and_b32 s61, s5, 1")
        g("s_lshl_b32 s61, s61, 13")
        g("s_sub_u32 s60, s60, s61")
        g(f"s_add_u32 s60, s60, {PR_WS + 8192}")
        g.srd(SRD_W, P_WS, WS_BYTES)
        g("s_waitcnt lgkmcnt(0)")
        g("s_memtime s[90:91]")
        g("s_waitcnt lgkmcnt(0)")
        g(f"s_load_dword s61, s[{P_WS}:{P_WS+1}], s60")
        g("s_waitcnt lgkmcnt(0)")
        g("s_memtime s[94:95]")
        g(f"s_add_u32 s62, s{S_E}, 1")
        g("s_and_b32 s62, s62, 0x1fffff")
        g("s_lshl_b32 s63, s2, 2")
        g(f"s_add_u32 s63, s63, {PB_WS}")
        g("v_mov_b32 v21, 0")
        g("s_waitcnt lgkmcnt(0)")
        g("s_sub_u32 s94, s94, s90")
        g("s_lshr_b32 s94, s94, 3")
        g("s_min_u32 s94, s94, 0x7ff")
        g("s_lshl_b32 s94, s94, 21")
        g("s_or_b32 s94, s94, s62")
        g("v_mov_b32 v20, s94")
        g("s_mov_b64 exec, 1")
        g(f"buffer_store_dword v20, v21, {W}, s63 offen {SC}")
        if TOUCH:
            g("s_mov_b64 exec, 0")
            g("s_branch L_chain1")
            g.label("L_w3b")
        g("s_endpgm")
    g.role = "l"
    g.label("L_ln_done")
    if TOUCH and not NEAR:
        g("s_cmp_eq_u32 s3, 3")
        g("s_cbranch_scc0 L_w3b")
        g("s_mov_b64 exec, 0")
        g("s_branch L_chain1")
        g.label("L_w3b")
        g("s_mov_b64 exec, -1")
    tile_raddr(g, 4, 3)
    g(f"v_mov_b32 v17, {L_FL}")
    g("s_mov_b32 s63, 0")
    g("s_waitcnt vmcnt(0)")
    g(f"ds_write_b32 v9, v10 offset:{F_LNB}")
    g("s_cmp_eq_u32 s3, 1")
    g("s_cbranch_scc0 L_qk")
    g("s_cmp_eq_u32 s69, 0")
    g("s_cbranch_scc1 L_qk")
    g("s_and_b32 s6, s5, 7")
    g("v_and_b32 v15, 3, v0")
    selmasks(g, 15)
    g("v_lshrrev_b32 v13, 4, v0")
    g("v_bfe_u32 v16, v0, 2, 2")
    g(f"v_mul_u32_u24 v14, {XN_STR}, v16")
    g("v_lshl_add_u32 v14, v13, 4, v14")
    g("s_lshl_b32 s39, s6, 7")
    g(f"s_add_u32 s39, s39, {L_XN}")
    g("v_add_u32 v14, s39, v14")
    g("v_lshlrev_b32 v13, 4, v0")
    g(f"v_add_u32 v13, {L_HP}, v13")
    flagwait4(g, "L_w1w", 17, F_LNB, 20, sleep=1)
    g("ds_read_b128 v[80:83], v14")
    g("ds_read_b128 v[84:87], v14 offset:64")
    for t in range(2):
        for u in range(4):
            r = 24 + 16*t + 4*u
            g(f"ds_read_b64_tr_b16 v[{r}:{r+1}], v{4+u} offset:{L_W1 - 65536 + t*4096}")
            g(f"ds_read_b64_tr_b16 v[{r+2}:{r+3}], v{4+u} offset:{L_W1 - 65536 + t*4096 + 2048}")
    for t in range(2):
        for u in range(4):
            r = 24 + 16*t + 4*u
            g(f"s_waitcnt lgkmcnt({14 - 8*t - 2*u})")
            c = "0" if t == 0 else f"v[{64+4*u}:{67+4*u}]"
            g(f"v_mfma_f32_16x16x32_bf16 v[{64+4*u}:{67+4*u}], v[{r}:{r+3}], v[{80+4*t}:{83+4*t}], {c}")
    g("s_nop 3")
    select4(g, 56, 64, 11)
    g("ds_write_b128 v13, v[56:59]")
    g(f"ds_write_b32 v17, v10 offset:{F_H}")
    g.stamp(1)
    g.label("L_qk")
    g("s_lshr_b32 s6, s5, 3")
    g("s_and_b32 s7, s5, 7")
    g("v_lshrrev_b32 v8, 4, v0")
    g("v_and_b32 v12, 15, v0")
    g("v_xor_b32 v20, v8, v12")
    g("v_lshlrev_b32 v20, 4, v20")
    g("v_lshl_add_u32 v20, v12, 8, v20")
    g("s_lshl_b32 s39, s3, 13")
    g("v_add_u32 v20, s39, v20")
    for t in (1, 2, 3):
        g(f"v_xor_b32 v{20+t}, {64*t}, v20")
    g("v_lshrrev_b32 v13, 5, v0")
    g("v_and_b32 v14, 31, v0")
    g("v_lshlrev_b32 v24, 14, v13")
    g("v_lshl_add_u32 v24, v14, 4, v24")
    g("s_lshl_b32 s58, s4, 15")
    g("s_lshl_b32 s59, s6, 11")
    g("s_add_u32 s58, s58, s59")
    g("s_lshl_b32 s59, s3, 9")
    g("s_add_u32 s65, s58, s59")
    g(f"s_add_u32 s65, s65, {QA_WS}")
    g("v_lshlrev_b32 v25, 2, v13")
    g("v_and_b32 v15, 16, v0")
    g("v_lshl_add_u32 v25, v15, 3, v25")
    g("v_and_b32 v15, 12, v0")
    g("v_lshl_add_u32 v25, v15, 1, v25")
    g("v_and_b32 v15, 3, v0")
    g("v_lshl_add_u32 v25, v15, 5, v25")
    g(f"s_mul_i32 s39, s3, {QL_STR}")
    g(f"s_add_u32 s38, s39, {L_QL}")
    g("v_add_u32 v25, s38, v25")
    g("v_bfe_u32 v16, v0, 2, 2")
    g(f"v_mul_u32_u24 v26, {QL_STR}, v16")
    g("v_lshl_add_u32 v26, v8, 4, v26")
    g(f"v_add_u32 v26, {L_QL}, v26")
    g("v_lshlrev_b32 v29, 4, v16")
    g(f"v_add_u32 v29, {L_ML}, v29")
    g("s_lshl_b32 s38, s3, 2")
    g("v_add_u32 v27, s38, v29")
    g("v_lshlrev_b32 v28, 6, v16")
    g("v_lshl_add_u32 v28, v8, 4, v28")
    g("s_lshl_b32 s38, s3, 8")
    g(f"s_add_u32 s38, s38, {L_OC}")
    g("v_add_u32 v28, s38, v28")
    g("v_lshlrev_b32 v30, 9, v16")
    g("s_lshl_b32 s67, s4, 7")
    g("s_add_u32 s67, s67, s5")
    g("s_lshl_b32 s67, s67, 4")
    g(f"s_add_u32 s67, s67, {M_WS}")
    for r in range(4):
        g(f"v_mov_b32 v{32+r}, 0x3f803f80")
    g(f"s_mov_b32 s66, {hex(f2u(1.4426950408889634))}")
    g(f"s_mov_b32 s38, {hex(f2u(128 ** -0.5))}")
    g("v_mov_b32 v108, s38")
    g("v_mov_b32 v109, s38")
    g("s_mov_b32 s57, 0x11111111")
    g("s_lshl_b32 s56, s4, 2")
    g("s_add_u32 s56, s56, s6")
    g("v_lshlrev_b32 v103, 13, v13")
    g("v_lshl_add_u32 v103, v14, 4, v103")
    g("s_lshl_b32 s61, s56, 14")
    g("s_add_u32 s61, s61, s59")
    g(f"s_add_u32 s61, s61, {O_WS}")
    g("s_add_u32 s64, s61, 4096")
    g("v_lshl_add_u32 v104, v13, 2, v15")
    g("v_lshlrev_b32 v104, 4, v104")
    g("s_lshl_b32 s60, s56, 2")
    g("s_add_u32 s60, s60, s3")
    g("s_lshl_b32 s60, s60, 7")
    g(f"s_add_u32 s60, s60, {M_WS}")
    g("v_lshlrev_b32 v102, 2, v13")
    g("v_lshl_add_u32 v102, v14, 3, v102")
    g(f"s_add_u32 s39, s39, {L_OL}")
    g("v_add_u32 v102, s39, v102")
    g(f"v_mul_u32_u24 v101, {QL_STR}, v15")
    g("v_lshl_add_u32 v101, v8, 4, v101")
    g(f"v_add_u32 v101, {L_OL}, v101")
    g("s_lshl_b32 s39, s3, 5")
    g("v_xor_b32 v107, s39, v4")
    g("v_lshlrev_b32 v105, 4, v0")
    g(f"s_xor_b32 s92, s7, {XO}")
    r3addr(g, 62, 92, 56, 39)
    g("s_lshl_b32 s39, s3, 8")
    g("s_add_u32 s62, s62, s39")
    g.stamp(3)
    flagwait1(g, "L_qw", 17, F_QP, 12)
    flagwait1(g, "L_kw", 9, F_K2 if opt.get("qt", 6) else F_K, 12)
    if opt.get("dq", 0): g(f"s_sleep {opt.get('dq', 0)}")
    g("s_and_b32 s63, s63, 0xffff")
    g("s_mov_b32 s58, s65")
    g("s_add_u32 s59, s58, 8192")
    g(f"buffer_load_dwordx4 v[36:39], v24, {W}, s58 offen {SC}")
    g(f"buffer_load_dwordx4 v[40:43], v24, {W}, s59 offen {SC}")
    if opt.get("qt", 6): flagwait1(g, "L_kv2", 9, F_K, 12)
    for tau in range(2):
        for t in range(4):
            r = 48 + 16*tau + 4*t
            g(f"ds_read_b128 v[{r}:{r+3}], v{20+t} offset:{4096*tau}")
    g.label("L_qc")
    g("s_waitcnt vmcnt(0)")
    tagcheck(g, list(range(36, 44)), 11, [44, 45, 46, 47])
    g("s_cbranch_vccz L_qok")
    g("s_add_u32 s63, s63, 1")
    g("s_bitcmp1_b32 s63, 15")
    g("s_cbranch_scc1 L_qok")
    g(f"buffer_load_dwordx4 v[36:39], v24, {W}, s58 offen {SC}")
    g(f"buffer_load_dwordx4 v[40:43], v24, {W}, s59 offen {SC}")
    g("s_branch L_qc")
    g.label("L_qok")
    g.stamp(4)
    if opt.get("stamps"): g("s_and_b32 s96, s63, 0xff")
    untag(g, range(36, 44))
    g("v_pk_add_f32 v[36:37], v[36:37], v[40:41]")
    g("v_pk_add_f32 v[38:39], v[38:39], v[42:43]")
    g("s_nop 1")
    g("v_permlane32_swap_b32 v36, v38")
    g("v_permlane32_swap_b32 v37, v39")
    g("v_pk_add_f32 v[36:37], v[36:37], v[38:39]")
    g("v_cvt_pk_bf16_f32 v36, v36, v37")
    g("ds_write_b32 v25, v36")
    g(f"ds_write_b32 v9, v10 offset:{F_Q}")
    def qrd():
        for t in range(4):
            g(f"ds_read_b128 v[{80+4*t}:{83+4*t}], v26 offset:{64*t}")
    flagwait4(g, "L_qx", 17, F_Q, 36, pre=qrd, n=4)
    for t in range(4):
        g(f"s_waitcnt lgkmcnt({3-t})")
        for tau in range(2):
            r = 48 + 16*tau + 4*t
            c = "0" if t == 0 else f"v[{36+4*tau}:{39+4*tau}]"
            g(f"v_mfma_f32_16x16x32_bf16 v[{36+4*tau}:{39+4*tau}], v[{r}:{r+3}], v[{80+4*t}:{83+4*t}], {c}")
    g("s_nop 6")
    def rnd8():
        for i in range(4):
            g(f"v_cvt_pk_bf16_f32 v{48+i}, v{36+2*i}, v{37+2*i}")
        for i in range(4):
            g(f"v_lshlrev_b32 v{36+2*i}, 16, v{48+i}")
            g(f"v_and_b32 v{37+2*i}, 0xffff0000, v{48+i}")
    rnd8()
    for i in range(4):
        g(f"v_pk_mul_f32 v[{36+2*i}:{37+2*i}], v[{36+2*i}:{37+2*i}], v[108:109]")
    rnd8()
    g("v_max3_f32 v44, v36, v37, v38")
    g("v_max3_f32 v45, v39, v40, v41")
    g("v_max3_f32 v44, v44, v42, v43")
    g("v_max_f32 v44, v44, v45")
    g("v_mov_b32 v45, v44")
    g("s_nop 1")
    g("v_permlane32_swap_b32 v44, v45")
    g("v_max_f32 v44, v44, v45")
    g("v_mov_b32 v45, v44")
    g("s_nop 1")
    g("v_permlane16_swap_b32 v44, v45")
    g("v_max_f32 v44, v44, v45")
    g("v_mul_f32 v44, s66, v44")
    g("s_mov_b64 exec, 0x1111")
    g("ds_write_b32 v27, v44")
    g("s_mov_b64 exec, -1")
    g.label("L_mx")
    g("ds_read_b128 v[48:51], v29")
    spin(g, "L_mxok", inc=0x10000, mx=0x7ff00000)
    g("s_waitcnt lgkmcnt(0)")
    g("v_max_u32 v45, v48, v49")
    g("v_max3_u32 v45, v45, v50, v51")
    g("v_cmp_eq_u32 vcc, -1, v45")
    g("s_cbranch_vccnz L_mx")
    g.label("L_mxok")
    g("v_max3_f32 v44, v48, v49, v50")
    g("v_max_f32 v44, v44, v51")
    g("v_and_b32 v44, s98, v44")
    for i in range(8):
        g(f"v_fma_f32 v{36+i}, v{36+i}, s66, -v44")
    for i in range(8):
        g(f"v_exp_f32 v{36+i}, v{36+i}")
    for i in range(4):
        g(f"v_cvt_pk_bf16_f32 v{36+i}, v{36+2*i}, v{37+2*i}")
    g("s_nop 1")
    g("v_mfma_f32_16x16x32_bf16 v[40:43], v[32:35], v[36:39], 0")
    g("s_mov_b32 exec_lo, s57")
    g("s_mov_b32 exec_hi, s57")
    g("ds_write_b128 v28, v[36:39]")
    g("s_mov_b64 exec, 0x1111")
    g("s_nop 3")
    g("ds_write_b32 v27, v40 offset:64")
    g("s_mov_b64 exec, -1")
    flagwait1(g, "L_xw", 17, F_XC, 12, sdst=56, sleep=0)
    g(f"ds_write_b32 v9, v10 offset:{F_P}")
    g.stamp(2)
    g("s_cmp_eq_u32 s3, 0")
    g("s_cbranch_scc0 L_wo_b3")
    flagwait4(g, "L_lx", 17, F_P, 36, pre=lambda: g("ds_read_b128 v[40:43], v29 offset:64"), n=0)
    g("v_pk_add_f32 v[40:41], v[40:41], v[42:43]")
    g("v_mov_b32 v46, v11")
    g("v_mov_b32 v47, v11")
    g("v_or_b32 v44, v44, v11")
    g("v_add_f32 v45, v40, v41")
    g("s_mov_b64 exec, 0x1111")
    g(f"v_bfi_b32 v45, s{S_LO}, v11, v45")
    g("s_cmp_eq_u32 s56, 1")
    g("s_cbranch_scc0 L_mlr")
    g(f"buffer_store_dwordx4 v[44:47], v30, {W}, s67 offen")
    g("s_branch L_ml1")
    g.label("L_mlr")
    g(f"buffer_store_dwordx4 v[44:47], v30, {W}, s67 offen {SC}")
    g.label("L_ml1")
    g("s_mov_b64 exec, -1")
    g.label("L_wo_b3")
    g(f"v_mov_b32 v106, {L_FL}")
    def word():
        for t in range(4):
            g(f"ds_read_b64_tr_b16 v[{16+4*t}:{17+4*t}], v107 offset:{L_WO - 65536 + t*4096}")
            g(f"ds_read_b64_tr_b16 v[{18+4*t}:{19+4*t}], v107 offset:{L_WO - 65536 + t*4096 + 2048}")
    if opt.get("pre", 1):
        flagwait4(g, "L_wow", 106, F_WO, 36, sleep=1)
        word()
    g("s_mov_b32 s63, 0")
    g("s_waitcnt lgkmcnt(0)")
    g("s_barrier")
    def oml():
        g(f"buffer_load_dwordx4 v[32:35], v104, {W}, s60 offen {SC}")
    def opl():
        g(f"buffer_load_dwordx4 v[40:43], v103, {W}, s61 offen {SC}")
        g(f"buffer_load_dwordx4 v[44:47], v103, {W}, s61 offen offset:2048 {SC}")
        g(f"buffer_load_dwordx4 v[48:51], v103, {W}, s64 offen {SC}")
        g(f"buffer_load_dwordx4 v[52:55], v103, {W}, s64 offen offset:2048 {SC}")
    oml()
    if not opt.get("pre", 1): word()
    flagwait4(g, "L_wt", 106, F_OS, 36, pre=(lambda: g(f"ds_read_b32 v60, v106 offset:{F_NB}")) if NEAR else None)
    if opt.get("prio", 1): g("s_setprio 2")
    g("s_mov_b32 s63, 0")
    g.stamp(6)
    opl()
    if NEAR:
        g("v_readfirstlane_b32 s38, v60")
        g("s_nop 2")
        r3par(g, 62, 92, 38, 39)
    g("s_waitcnt vmcnt(4)")
    tagcheck(g, [32, 33, 34, 35], 11, [56, 57])
    g("s_cbranch_vccz L_o2")
    g.label("L_o")
    oml()
    spin(g, "L_o2", inc=0x100, mx=SPIN_MAX*256)
    g("s_waitcnt vmcnt(0)")
    tagcheck(g, [32, 33, 34, 35], 11, [56, 57])
    g("s_cbranch_vccnz L_o")
    g.label("L_o2")
    g.stamp(5)
    untag(g, (32, 33))
    g("s_nop 0")
    g(f"v_max_f32_dpp v56, v32, v32 quad_perm:[1,0,3,2] {DPPM}")
    g("s_nop 1")
    g(f"v_max_f32_dpp v56, v56, v56 quad_perm:[2,3,0,1] {DPPM}")
    g("v_mov_b32 v57, v56")
    g("s_nop 1")
    g("v_permlane32_swap_b32 v56, v57")
    g("v_max_f32 v56, v56, v57")
    g("v_sub_f32 v32, v32, v56")
    g("v_exp_f32 v32, v32")
    g("s_nop 0")
    g("v_mul_f32 v57, v32, v33")
    g("s_nop 1")
    g(f"v_add_f32_dpp v57, v57, v57 quad_perm:[1,0,3,2] {DPPM}")
    g("s_nop 1")
    g(f"v_add_f32_dpp v57, v57, v57 quad_perm:[2,3,0,1] {DPPM}")
    g("v_mov_b32 v58, v57")
    g("s_nop 1")
    g("v_permlane32_swap_b32 v57, v58")
    g("v_add_f32 v57, v57, v58")
    g("v_rcp_f32 v57, v57")
    g("s_nop 0")
    g("v_mul_f32 v32, v32, v57")
    g("s_nop 1")
    for i in range(4):
        g(f"v_mov_b32_dpp v{64+2*i}, v32 quad_perm:[{i},{i},{i},{i}] {DPPM}")
    for i in range(4):
        g(f"v_mov_b32 v{65+2*i}, v{64+2*i}")
    g("s_mov_b32 s97, 0")
    g.label("L_o4")
    g("s_waitcnt vmcnt(0)")
    xorcheck(g, range(40, 56), 11, [56, 57, 58, 59, 36, 37, 38, 39])
    g("s_cbranch_vccnz L_o3")
    g("s_mov_b64 exec, -1")
    g.label("L_ook")
    g.stamp(7)
    g("v_pk_mul_f32 v[36:37], v[64:65], v[40:41]")
    g("v_pk_mul_f32 v[38:39], v[64:65], v[42:43]")
    for i in range(1, 4):
        g(f"v_pk_fma_f32 v[36:37], v[{64+2*i}:{65+2*i}], v[{40+4*i}:{41+4*i}], v[36:37]")
        g(f"v_pk_fma_f32 v[38:39], v[{64+2*i}:{65+2*i}], v[{42+4*i}:{43+4*i}], v[38:39]")
    g("s_nop 1")
    g("v_permlane32_swap_b32 v36, v38")
    g("v_permlane32_swap_b32 v37, v39")
    g("v_pk_add_f32 v[36:37], v[36:37], v[38:39]")
    g("v_cvt_pk_bf16_f32 v36, v36, v37")
    g("ds_write_b32 v102, v36")
    g("s_waitcnt lgkmcnt(0)")
    g("s_barrier")
    for t in range(4):
        g(f"ds_read_b128 v[{40+4*t}:{43+4*t}], v101 offset:{64*t}")
    for t in range(4):
        g(f"s_waitcnt lgkmcnt({3-t})")
        c = "0" if t == 0 else "v[32:35]"
        g(f"v_mfma_f32_16x16x32_bf16 v[32:35], v[{40+4*t}:{43+4*t}], v[{16+4*t}:{19+4*t}], {c}")
    g("s_mov_b64 exec, 0xffff")
    g("s_nop 6")
    for u in range(4):
        g(f"v_bfi_b32 v{32+u}, s{S_LO}, v11, v{32+u}")
    g(f"buffer_store_dwordx4 v[32:35], v105, {W}, s62 offen {opt.get('fs', SC).replace('+', ' ')}")
    g.stamp(8)
    if opt.get("stamps"):
        g("s_lshl_b32 s96, s96, 16")
        g("s_and_b32 s63, s63, 0xff00")
        g("s_min_u32 s97, s97, 255")
        g("s_or_b32 s63, s63, s97")
        g("s_or_b32 s63, s63, s96")
    hevhold()
    g("s_branch L_end" if opt.get("stamps") else "s_endpgm")
    g.label("L_o3")
    g("s_add_u32 s97, s97, 1")
    g(f"s_cmp_gt_u32 s97, {SPIN_MAX}")
    g("s_cbranch_scc1 L_ook")
    g("s_mov_b64 exec, vcc")
    if opt.get("so", 0): g(f"s_sleep {opt['so']}")
    opl()
    g("s_branch L_o4")
    g.role = "w"
    g.label("L_w8")
    g.srd(SRD_B, P_B1, 1792*2)
    g("s_and_b32 s6, s5, 7")
    g("v_lshrrev_b32 v12, 4, v0")
    g("v_and_b32 v13, 3, v0")
    g("v_bfe_u32 v14, v0, 2, 2")
    selmasks(g, 12)
    g("v_lshlrev_b32 v8, 5, v13")
    g("v_lshl_add_u32 v8, v14, 3, v8")
    g("s_lshl_b32 s57, s68, 7")
    g(f"v_mul_u32_u24 v9, {HL_STR}, v12")
    g("v_lshl_add_u32 v9, v14, 4, v9")
    g("v_and_b32 v14, 2, v0")
    g("v_lshl_add_u32 v9, v14, 5, v9")
    g("v_cmp_ne_u32 s[60:61], 0, v14")
    g("v_and_b32 v15, 1, v0")
    g("v_lshl_add_u32 v9, v15, 3, v9")
    g(f"v_add_u32 v9, {L_HL}, v9")
    g(f"v_mul_u32_u24 v19, {HL_STR}, v13")
    g("v_lshl_add_u32 v19, v12, 4, v19")
    g(f"v_add_u32 v19, {L_HL}, v19")
    g("s_lshl_b32 s58, s68, 13")
    g(f"s_add_u32 s58, s58, {H_WS}")
    g("s_add_u32 s59, s58, 4096")
    g("v_lshlrev_b32 v10, 4, v0")
    g("s_add_u32 s39, s4, 24")
    g("s_cmp_eq_u32 s69, 0")
    g("s_cselect_b32 s39, s39, s68")
    g("s_add_u32 s64, s39, 32")
    g(f"s_xor_b32 s67, s6, {XF2}")
    r3addr(g, 62, 67, 64, 39)
    g("v_lshrrev_b32 v3, 4, v0")
    g("v_lshlrev_b32 v3, 14, v3")
    g("v_bfe_u32 v1, v0, 1, 3")
    g("v_lshl_add_u32 v3, v1, 10, v3")
    g("v_lshl_add_u32 v3, v15, 4, v3")
    r3addr(g, 64, 4, None, 39)
    g("s_lshl_b32 s39, s5, 5")
    g("s_add_u32 s64, s64, s39")
    g("v_and_b32 v16, 1, v12")
    g("v_add_u32 v16, v16, v14")
    g("v_lshlrev_b32 v1, 1, v15")
    g("v_lshl_add_u32 v16, v16, 10, v1")
    g("s_lshl_b32 s66, s4, 7")
    g("s_lshl_b32 s39, s5, 2")
    g("s_add_u32 s66, s66, s39")
    g(f"buffer_load_dwordx2 v[20:21], v8, s[{SRD_B}:{SRD_B+3}], s57 offen")
    g.srd(SRD_B, P_B2, 1024)
    g(f"buffer_load_ushort v17, v16, s[{SRD_C}:{SRD_C+3}], s66 offen")
    g(f"buffer_load_ushort v18, v1, s[{SRD_B}:{SRD_B+3}], s66 offen")
    g.srd(SRD_A, P_OUT, 4096)
    if opt.get("otouch", 0):
        g(f"buffer_load_ushort v124, v16, s[{SRD_A}:{SRD_A+3}], s66 offen")
    g(f"s_mov_b32 s57, {hex(f2u(-1.4426950408889634))}")
    g(f"v_mov_b32 v2, {L_FL}")
    for r in range(4):
        g(f"v_mov_b32 v{96+r}, v11")
    g("s_mov_b32 s63, 0")
    flagwait1(g, "L_hg", 2, F_P if opt.get("hgate", 0) else F_Q, 12)
    g("s_mov_b32 s63, 0")
    def hld():
        for kp in range(8):
            g(f"buffer_load_dwordx4 v[{56+4*kp}:{59+4*kp}], v10, {W}, s{58+(kp>>2)} offen offset:{(kp&3)*1024} {SC}")
    if NEAR:
        g(f"s_mov_b32 s56, {PB_WS}")
        g(f"buffer_load_dwordx4 v[24:27], v10, {W}, s56 offen {SC}")
    g("s_cmp_eq_u32 s69, 0")
    g("s_cbranch_scc1 L_noh")
    hld()
    g.label("L_noh")
    if NEAR:
        g(f"s_and_b32 s39, s{S_E1}, 0x1fffff")
        g("v_mov_b32 v28, s39")
        g("v_lshrrev_b32 v29, 1, v0")
        g("v_xor_b32 v29, v29, v0")
        g("v_and_b32 v29, 1, v29")
        g("v_cmp_ne_u32 s[38:39], 0, v29")
        g("s_cmp_eq_u32 s69, 0")
        g("s_cbranch_scc1 L_pb0")
        g("s_waitcnt vmcnt(8)")
        g("s_branch L_pb")
        g.label("L_pb0")
        g("s_waitcnt vmcnt(0)")
        g.label("L_pb")
        g("v_bitop3_b32 v29, v24, v25, v28 bitop3:0x7e")
        g("v_bitop3_b32 v30, v26, v27, v28 bitop3:0x7e")
        g("v_or_b32 v29, v29, v30")
        g("v_lshlrev_b32 v29, 11, v29")
        g("v_cmp_ne_u32 vcc, 0, v29")
        g("s_cbranch_vccz L_pbok")
        spin(g, "L_pbok")
        g("s_sleep 8")
        g(f"buffer_load_dwordx4 v[24:27], v10, {W}, s56 offen {SC}")
        g("s_branch L_pb0")
        g.label("L_pbok")
        for i in range(4):
            g(f"v_lshrrev_b32 v{24+i}, 21, v{24+i}")
        g("v_add3_u32 v24, v24, v25, v26")
        g("v_add_u32 v24, v24, v27")
        g("v_sub_u32 v25, 0, v24")
        g("v_cndmask_b32 v24, v24, v25, s[38:39]")
        for c in ("row_ror:8", "row_ror:4", "row_ror:2", "row_ror:1"):
            g("s_nop 1")
            g(f"v_add_u32_dpp v24, v24, v24 {c} {DPPM}")
        g("s_nop 1")
        g("v_add_u32_dpp v24, v24, v24 row_bcast:15 row_mask:0xa bank_mask:0xf")
        g("s_nop 1")
        g("v_add_u32_dpp v24, v24, v24 row_bcast:31 row_mask:0xc bank_mask:0xf")
        g("s_nop 0")
        g("v_readlane_b32 s56, v24, 63")
        g("s_nop 2")
        g("s_cmp_gt_i32 s56, 0")
        g("s_cselect_b32 s56, 0x10f, 0")
        g("s_cselect_b32 s39, 0, 0x1f0")
        g("s_or_b32 s56, s56, s39")
        if "fixnb" in opt: g(f"s_movk_i32 s56, {0x100 | opt['fixnb']}")
        if opt.get("stamps"): g("s_mov_b32 s99, s56")
        g("v_mov_b32 v24, s56")
        g(f"ds_write_b32 v2, v24 offset:{F_NB}")
        r3par(g, 62, 67, 56, 39)
        r3par(g, 64, 4, 56, 39)
        g("s_mov_b32 s63, 0")
        g("s_waitcnt lgkmcnt(0)")
    g("s_add_u32 s65, s64, 65536")
    g("s_cmp_eq_u32 s69, 0")
    g("s_barrier")
    g("s_cbranch_scc1 L_w8_fin")
    g.label("L_h")
    g("s_waitcnt vmcnt(0)")
    g("v_lshlrev_b32 v88, 16, v20")
    g("v_and_b32 v89, 0xffff0000, v20")
    g("v_lshlrev_b32 v90, 16, v21")
    g("v_and_b32 v91, 0xffff0000, v21")
    tagcheck(g, list(range(56, 88)), 11, list(range(100, 116)))
    g("s_cbranch_vccz L_hok")
    spin(g, "L_hok")
    hld()
    g("s_branch L_h")
    g.label("L_hok")
    g.stamp(5)
    untag(g, range(56, 88))
    for (a, b) in ((56, 60), (64, 68), (72, 76), (80, 84), (56, 64), (72, 80), (56, 72)):
        g(f"v_pk_add_f32 v[{a}:{a+1}], v[{a}:{a+1}], v[{b}:{b+1}]")
        g(f"v_pk_add_f32 v[{a+2}:{a+3}], v[{a+2}:{a+3}], v[{b+2}:{b+3}]")
    def unp():
        g("v_cvt_pk_bf16_f32 v60, v56, v57")
        g("v_cvt_pk_bf16_f32 v61, v58, v59")
        g("v_lshlrev_b32 v56, 16, v60")
        g("v_and_b32 v57, 0xffff0000, v60")
        g("v_lshlrev_b32 v58, 16, v61")
        g("v_and_b32 v59, 0xffff0000, v61")
    unp()
    g("v_pk_add_f32 v[56:57], v[56:57], v[88:89]")
    g("v_pk_add_f32 v[58:59], v[58:59], v[90:91]")
    unp()
    for i in range(4):
        g(f"v_max_f32 v{56+i}, 0, v{56+i}")
    g("v_pk_mul_f32 v[56:57], v[56:57], v[56:57]")
    g("v_pk_mul_f32 v[58:59], v[58:59], v[58:59]")
    g("v_cvt_pk_bf16_f32 v60, v56, v57")
    g("v_cvt_pk_bf16_f32 v61, v58, v59")
    g("ds_write_b64 v9, v[60:61]")
    g("ds_read_b128 v[64:67], v19")
    g("ds_read_b128 v[68:71], v19 offset:64")
    if opt.get("trl", 2): flagwait4(g, "L_w2w", 2, F_OP, 72)
    g.stamp(4)
    for t in range(2):
        for u in range(4):
            r = 24 + 16*t + 4*u
            g(f"ds_read_b64_tr_b16 v[{r}:{r+1}], v{4+u} offset:{L_W2 - 65536 + t*4096}")
            g(f"ds_read_b64_tr_b16 v[{r+2}:{r+3}], v{4+u} offset:{L_W2 - 65536 + t*4096 + 2048}")
    for t in range(2):
        for u in range(4):
            g(f"s_waitcnt lgkmcnt({14 - 8*t - 2*u})")
            r = 24 + 16*t + 4*u
            d = 72 + 4*u
            c = "0" if t == 0 else f"v[{d}:{d+3}]"
            g(f"v_mfma_f32_16x16x32_bf16 v[{d}:{d+3}], v[{64+4*t}:{67+4*t}], v[{r}:{r+3}], {c}")
    g("s_nop 3")
    select4(g, 96, 72, 11)
    g.label("L_w8_fin")
    g.stamp(6)
    g("s_barrier")
    g(f"buffer_store_dwordx4 v[96:99], v10, {W}, s62 offen {SC}")

    g("s_mov_b32 s63, 0")
    g("s_waitcnt vmcnt(1)")
    g("v_lshlrev_b32 v17, 16, v17")
    g("v_lshlrev_b32 v18, 16, v18")
    if opt.get("df", 13):
        g(f"s_sleep {opt.get('df', 13)}")
    else:
        g("s_waitcnt vmcnt(0)")
    FL = opt.get("fl", SC).replace("+", " ")
    g.label("L_f")
    g(f"buffer_load_dwordx4 v[24:27], v3, {W}, s64 offen {FL}")
    g(f"buffer_load_dwordx4 v[40:43], v3, {W}, s65 offen {FL}")
    spin(g, "L_fok")
    g("s_waitcnt vmcnt(0)")
    xorcheck(g, [24, 40, 25, 41, 26, 42, 27, 43], 11, list(range(44, 48)))
    if opt.get("sf", 0):
        g("s_cbranch_vccz L_fok")
        if opt.get("sf", 0): g(f"s_sleep {opt['sf']}")
        g("s_branch L_f")
    else:
        g("s_cbranch_vccnz L_f")
    g.label("L_fok")
    g.stamp(7)
    for i in range(4):
        g(f"v_permlane32_swap_b32 v{24+i}, v{40+i}")
    g("v_pk_add_f32 v[24:25], v[24:25], v[40:41]")
    g("v_pk_add_f32 v[26:27], v[26:27], v[42:43]")
    g("s_nop 0")
    g("v_permlane16_swap_b32 v24, v25")
    g("v_permlane16_swap_b32 v26, v27")
    g("v_add_f32 v24, v24, v25")
    g("v_add_f32 v26, v26, v27")
    for c in ("row_ror:8", "row_ror:4", "row_ror:2"):
        g("s_nop 0")
        g(f"v_add_f32_dpp v24, v24, v24 {c} {DPPM}")
        g(f"v_add_f32_dpp v26, v26, v26 {c} {DPPM}")
    g("v_cndmask_b32 v24, v24, v26, s[60:61]")
    rnd(g, 24, 24)
    g("v_add_f32 v25, v24, v18")
    rnd(g, 25, 25)
    g("v_mul_f32 v26, s57, v25")
    g("v_exp_f32 v26, v26")
    g("s_nop 0")
    g("v_add_f32 v26, 1.0, v26")
    g("v_rcp_f32 v26, v26")
    g("s_nop 0")
    g("v_mul_f32 v26, v25, v26")
    rnd(g, 26, 26)
    g("s_nop 1")
    g("v_permlane32_swap_b32 v26, v27")
    g("s_mov_b32 exec_lo, 0x000f000f")
    g("s_mov_b32 exec_hi, 0")
    g("v_mul_f32 v24, v24, v27")
    rnd(g, 24, 24)
    g("v_add_f32 v24, v24, v17")
    g("v_cvt_pk_bf16_f32 v24, v24, v24")
    if not opt.get("noout"): g(f"buffer_store_short v24, v16, s[{SRD_A}:{SRD_A+3}], s66 offen {opt.get('of', '').replace('+', ' ')}")
    g.stamp(8)
    hevhold()
    if opt.get("hold"):
        g(f"s_cmp_eq_u32 s2, {opt.get('holdwg', 0)}")
        g("s_cbranch_scc0 L_nohold")
        g.label("L_hold")
        g("s_memrealtime s[72:73]")
        g("s_waitcnt lgkmcnt(0)")
        g("s_sub_u32 s72, s72, s70")
        g(f"s_cmp_lt_u32 s72, {opt['hold']}")
        g("s_cbranch_scc1 L_hold")
        g.label("L_nohold")
    g("s_cmp_eq_u32 s2, 0")
    g("s_cbranch_scc0 L_end")
    g(f"v_mov_b32 v24, s{S_E1}")
    g("v_mov_b32 v25, 0")
    g("s_mov_b64 exec, 1")
    g(f"buffer_store_dword v24, v25, {W}, 0 offen {opt.get('ef', '')}")
    g.label("L_end")
    if opt.get("stamps"):
        g("s_memrealtime s[88:89]")
        g("s_waitcnt lgkmcnt(0)")
        g("s_mov_b64 exec, 1")
        g("s_mul_i32 s38, s2, 9")
        g("s_add_u32 s38, s38, s3")
        g("s_lshl_b32 s38, s38, 6")
        g(f"s_add_u32 s38, s38, {ST_WS}")
        for k in range(10):
            g(f"v_mov_b32 v{4+k}, s{70+2*k}")
        g("v_mov_b32 v14, s63")
        g("v_mov_b32 v15, s99")
        g("v_mov_b32 v1, 0")
        g(f"buffer_store_dwordx4 v[4:7], v1, {W}, s38 offen")
        g(f"buffer_store_dwordx4 v[8:11], v1, {W}, s38 offen offset:16")
        g(f"buffer_store_dwordx4 v[12:15], v1, {W}, s38 offen offset:32")
    g.label("L_exit")
    lines = [x for x in g.L if x.strip()]
    return finish(lines, opt)

def finish(lines, opt):
    if not opt.get("touch", 1):
        return G1.text(lines)
    sz = _sizes(lines)
    out = []; pos = 0; nxt = 1024; n = 0
    for l, z in zip(lines, sz):
        if z and pos >= nxt:
            assert pos - nxt <= 56
            out.append(None); n += 1; pos += 4; nxt += 1024
        out.append(l); pos += z
    first = opt.get("pad0", 1)
    split = opt.get("pad1", 4)
    res = []; k = 0
    for l in out:
        if l is None:
            tgt = "L_w8b" if k + 1 == split else (f"L_pad{k+1}" if k + 1 < n else "L_w3b")
            if k == first: res.append("L_chain0:")
            if k == split: res.append("L_chain1:")
            res.append(f"L_pad{k}:")
            res.append(f"    s_cbranch_execz {tgt}")
            k += 1
        else:
            res.append(l)
    return G1.text(res)

if __name__ == "__main__":
    out = sys.argv[1]
    opt = {}
    for a in sys.argv[2:]:
        k, v = a.split("=")
        try: v = int(v)
        except ValueError: pass
        opt[k] = v
    open(out, "w").write(gen(opt))
```

```python
import sys, struct
from gen import f2u, G, tagcheck, rnd, wave_sum, tile_voff, tile_raddr, tile_dma, NAME, sizes as _sizes
import gen as G1

PR_WS  = 0x2000
QA_WS  = 0x8000
H_WS   = 0x48000
O_WS   = 0x80000
R3_WS  = 0x100000
XC_WS  = 0x200000
PB_WS  = 0x201000
M_WS   = 0x204000
ST_WS  = 0x300000
WS_BYTES = 0x400000

L_K, L_V, L_WQ, L_WO, L_W1, L_W2, L_XN = 0, 32768, 65536, 81920, 98304, 106496, 114688
XN_STR = 1088
L_QL = L_XN + 4352
QL_STR = 320
L_OC = L_QL + 1280
OC_H, OC_W = 528, 2112
L_ML = L_OC + 8448
L_FL = L_ML + 128
L_OL = L_FL + 192
L_HL = L_OL + 1280
HL_STR = 192
LDS_BYTES = L_HL + 768
G1.LDS_BYTES = LDS_BYTES

P_X, P_K, P_V, P_WQ, P_WO, P_BX, P_W1, P_B1, P_W2, P_B2, P_OUT, P_DBG, P_WS = 8, 10, 12, 14, 16, 18, 20, 22, 24, 26, 28, 30, 32
S_E, S_T, S_E1, S_LO = 34, 35, 36, 37
SRD_A, SRD_B, SRD_W, SRD_C = 40, 44, 48, 52
SPIN_MAX = 1 << 18
W = f"s[{SRD_W}:{SRD_W+3}]"
SC = "sc1"
DPPM = "row_mask:0xf bank_mask:0xf"

def epoch(g, vT):
    g(f"s_add_u32 s{S_E1}, s{S_E}, 1")
    g(f"s_and_b32 s{S_T}, s{S_E1}, s{S_LO}")
    g(f"v_mov_b32 v{vT}, s{S_T}")

def spin(g, lab_out, lds=False):
    r, mx = (63, 1 << 22) if lds else (97, SPIN_MAX)
    g(f"s_add_u32 s{r}, s{r}, 1")
    g(f"s_cmp_gt_u32 s{r}, {mx}")
    g(f"s_cbranch_scc1 {lab_out}")

def selmasks(g, vsel):
    for k in (1, 2, 3):
        g(f"v_cmp_eq_u32 s[{88+2*k}:{89+2*k}], {k}, v{vsel}")

def select4(g, d, D, vT, tags=None):
    for k in (1, 2, 3):
        for r in range(4):
            src = D + r if k == 1 else d + r
            g(f"v_cndmask_b32 v{d+r}, v{src}, v{D+4*k+r}, s[{88+2*k}:{89+2*k}]")
    for r in range(4):
        g(f"v_bfi_b32 v{d+r}, s{S_LO}, v{tags[r] if tags else vT}, v{d+r}")

def ffn_ids(g):
    g("s_lshr_b32 s7, s5, 3")
    g("s_mul_i32 s68, s4, 3")
    g("s_min_u32 s69, s4, 4")
    g("s_add_u32 s68, s68, s69")
    g("s_add_u32 s68, s68, s7")
    g("s_cmp_lt_u32 s4, 4")
    g("s_cselect_b32 s69, 4, 3")
    g("s_cmp_lt_u32 s7, s69")
    g("s_cselect_b32 s69, 1, 0")


def untag(g, regs):
    for r in regs:
        g(f"v_and_b32 v{r}, s98, v{r}")

def xorcheck(g, regs, vT, tmp):
    regs = list(regs)
    for k, r in enumerate(regs):
        g(f"v_xor_b32 v{r}, v{vT[k] if isinstance(vT, (list, tuple)) else vT}, v{r}")
    ts = regs; k = 0
    while len(ts) > 1:
        n = []; i = 0
        while i < len(ts):
            if len(ts) - i >= 3:
                g(f"v_or3_b32 v{tmp[k]}, v{ts[i]}, v{ts[i+1]}, v{ts[i+2]}"); n.append(tmp[k]); k += 1; i += 3
            elif len(ts) - i == 2 and len(n) != 2:
                g(f"v_or_b32 v{tmp[k]}, v{ts[i]}, v{ts[i+1]}"); n.append(tmp[k]); k += 1; i += 2
            else:
                n.append(ts[i]); i += 1
        ts = n
    g(f"v_and_b32 v{ts[0]}, 0x3ff, v{ts[0]}")
    g(f"v_cmp_ne_u32 vcc, 0, v{ts[0]}")

def ffn_ids2(g, bal):
    ffn_ids(g)
    if bal:
        g("s_lshl_b32 s99, s4, 2")
        g("s_sub_u32 s99, s99, 13")
        g("s_cmp_eq_u32 s7, 3")
        g("s_cselect_b32 s68, s99, s68")
        g("s_cselect_b32 s99, 1, 0")
        g("s_xor_b32 s69, s69, s99")

def widetags(g, d):
    g(f"v_mov_b32 v{d}, s{S_E1}")
    g(f"v_bfe_u32 v{d+1}, v{d}, 20, 10")
    g(f"v_bfe_u32 v{d}, v{d}, 10, 10")

def r3addr(g, d, c, rec, tmp):
    g(f"s_lshl_b32 s{d}, s{c}, 17")
    if rec is not None:
        g(f"s_lshr_b32 s{tmp}, s{rec}, 3")
        g(f"s_lshl_b32 s{tmp}, s{tmp}, 14")
        g(f"s_add_u32 s{d}, s{d}, s{tmp}")
        g(f"s_and_b32 s{tmp}, s{rec}, 7")
        g(f"s_lshl_b32 s{tmp}, s{tmp}, 10")
        g(f"s_add_u32 s{d}, s{d}, s{tmp}")
    g(f"s_add_u32 s{d}, s{d}, {R3_WS}")

def r3par(g, d, c, mask, tmp):
    g(f"s_lshr_b32 s{tmp}, s{mask}, s{c}")
    g(f"s_and_b32 s{tmp}, s{tmp}, 1")
    g(f"s_lshl_b32 s{tmp}, s{tmp}, 13")
    g(f"s_add_u32 s{d}, s{d}, s{tmp}")

def flagwait4(g, lab, vbase, off, tmp, pre=None, n=0, sleep=0):
    g.label(lab)
    if sleep: g(f"s_sleep {sleep}")
    g(f"ds_read_b128 v[{tmp}:{tmp+3}], v{vbase} offset:{off}")
    if pre: pre()
    spin(g, lab + "ok", lds=True)
    g(f"s_waitcnt lgkmcnt({n})")
    g(f"v_and_b32 v{tmp}, v{tmp}, v{tmp+1}")
    g(f"v_and_b32 v{tmp+2}, v{tmp+2}, v{tmp+3}")
    g(f"v_and_b32 v{tmp}, v{tmp}, v{tmp+2}")
    g(f"v_cmp_eq_u32 vcc, 0, v{tmp}")
    g(f"s_cbranch_vccnz {lab}")
    g.label(lab + "ok")

def flagwait1(g, lab, vbase, off, tmp, sdst=None, sleep=1):
    g.label(lab)
    if sleep: g(f"s_sleep {sleep}")
    g(f"ds_read_b32 v{tmp}, v{vbase} offset:{off}")
    spin(g, lab + "ok", lds=True)
    g("s_waitcnt lgkmcnt(0)")
    g(f"v_cmp_eq_u32 vcc, 0, v{tmp}")
    g(f"s_cbranch_vccnz {lab}")
    g.label(lab + "ok")
    if sdst is not None: g(f"v_readfirstlane_b32 s{sdst}, v{tmp}")

F_LNA, F_XC, F_QP, F_H, F_OP, F_Q, F_LNB, F_P, F_K, F_K2, F_WO, F_V1, F_OS, F_NB = 0, 16, 20, 24, 32, 48, 64, 80, 96, 112, 128, 144, 160, 28
L_HP = L_OC + 2048

def gen(opt):
    g = G(opt)
    g.role = "-"
    HEV = opt.get("hev")
    if HEV:
        def st(k):
            if HEV == f"{g.role}{k}": g("s_memrealtime s[70:71]")
        g.stamp = st
    hcount = [0]
    def hevhold():
        if HEV and HEV[0] == g.role:
            hcount[0] += 1
            n = hcount[0]
            g(f"s_cmp_eq_u32 s2, {opt.get('holdwg', 9)}")
            g(f"s_cbranch_scc0 L_nh{n}")
            g.label(f"L_hh{n}")
            g("s_memrealtime s[72:73]")
            g("s_waitcnt lgkmcnt(0)")
            g("s_sub_u32 s72, s72, s70")
            g("s_cmp_lt_u32 s72, 1500")
            g(f"s_cbranch_scc1 L_hh{n}")
            g.label(f"L_nh{n}")
    NT = opt.get("nt", "nt")
    XF = opt.get("xflags", "")
    THR = opt.get("thr", 3)
    THR2 = opt.get("thr2", 6)
    THR3 = opt.get("thr3", THR2)
    TOUCH = opt.get("touch", 1)
    PWF = opt.get("pwf", "")
    NEAR = opt.get("near", 1)
    G1.NWAVES = 10 if NEAR else 9
    g.stamp(0)
    if opt.get("hold"): g("s_memrealtime s[70:71]")
    g("s_cmp_ge_u32 s2, 256")
    g("s_cbranch_scc1 L_exit")
    g("s_load_dwordx16 s[8:23], s[0:1], 0")
    g("s_load_dwordx8 s[24:31], s[0:1], 64")
    g("s_load_dwordx2 s[32:33], s[0:1], 96")
    g("v_lshrrev_b32 v1, 6, v0")
    g("v_and_b32 v0, 63, v0")
    g("v_readfirstlane_b32 s3, v1")
    g("s_and_b32 s4, s2, 7")
    g("s_lshr_b32 s5, s2, 3")
    g(f"s_movk_i32 s{S_LO}, 0x3ff")
    g("s_movk_i32 s98, 0xfc00")
    g("s_cmp_lt_u32 s3, 4")
    g("s_cbranch_scc0 L_notln")
    g("v_lshlrev_b32 v12, 4, v0")
    g("s_lshl_b32 s39, s3, 10")
    WIDE = opt.get("wide", 0)
    tile_voff(g, 2, 3, 8192)
    if WIDE & 1:
        g("v_lshrrev_b32 v3, 4, v0")
        g("v_and_b32 v100, 15, v0")
        g("v_lshlrev_b32 v100, 4, v100")
        g("v_lshl_add_u32 v100, v3, 13, v100")
        g("s_lshr_b32 s7, s5, 2")
        g("s_lshl_b32 s38, s7, 19")
        g("s_lshl_b32 s56, s3, 17")
        g("s_add_u32 s38, s38, s56")
        g("s_lshl_b32 s56, s4, 10")
        g("s_add_u32 s38, s38, s56")
        g("s_and_b32 s56, s5, 3")
        g("s_lshl_b32 s56, s56, 8")
        g("s_add_u32 s38, s38, s56")
    else:
        g("s_lshr_b32 s7, s5, 3")
        g("s_lshl_b32 s38, s7, 20")
        g("s_lshl_b32 s56, s3, 18")
        g("s_add_u32 s38, s38, s56")
        g("s_lshl_b32 s56, s4, 10")
        g("s_add_u32 s38, s38, s56")
        g("s_and_b32 s56, s5, 7")
        g("s_lshl_b32 s56, s56, 7")
        g("s_add_u32 s38, s38, s56")
    g("s_lshl_b32 s56, s3, 12")
    g(f"s_mov_b32 s{SRD_C+2}, 4096")
    g(f"s_mov_b32 s{SRD_C+3}, 0x20000")
    g(f"s_mov_b32 s{SRD_A+2}, {hex(512*4096*2)}")
    g(f"s_mov_b32 s{SRD_A+3}, 0x20000")
    g("s_waitcnt lgkmcnt(0)")
    g(f"s_mov_b32 s{SRD_C}, s{P_X}")
    g(f"s_mov_b32 s{SRD_C+1}, s{P_X+1}")
    g(f"buffer_load_dwordx4 v[4:7], v12, s[{SRD_C}:{SRD_C+3}], s39 offen {XF}")
    g(f"s_mov_b32 s{SRD_A}, s{P_WQ}")
    g(f"s_mov_b32 s{SRD_A+1}, s{P_WQ+1}")
    if WIDE & 1: tile_dma(g, 4, 100, SRD_A, 38, (56, L_WQ), 4096, NT)
    else: tile_dma(g, 4, 2, SRD_A, 38, (56, L_WQ), 8192, NT)
    g("s_barrier")
    g("s_branch L_ln")
    g.label("L_notln")
    g("s_cmp_lt_u32 s3, 8")
    g("s_cbranch_scc1 L_kv")
    if NEAR:
        g("s_cmp_eq_u32 s3, 8")
        g("s_cbranch_scc1 L_w8i")
        g("s_waitcnt lgkmcnt(0)")
        g(f"s_load_dword s{S_E}, s[{P_WS}:{P_WS+1}], 0")
        g("s_barrier")
        g("s_branch L_w9")
        g.label("L_w8i")
    if opt.get("cpf", 1):
        g("s_getpc_b64 s[64:65]")
        g.label("L_pc")
        g("s_and_b32 s6, s5, 7")
        g(f"s_mul_i32 s6, s6, {24*64}")
        g(f"s_sub_u32 s6, s6, L_pc-{NAME}_kernel")
        g("s_ashr_i32 s7, s6, 31")
        g("s_add_u32 s64, s64, s6")
        g("s_addc_u32 s65, s65, s7")
        g("v_lshlrev_b32 v3, 6, v0")
        g("s_mov_b64 exec, 0xffffff")
        g("global_load_dword v125, v3, s[64:65]")
        g("s_mov_b64 exec, -1")
    g("v_lshlrev_b32 v3, 2, v0")
    g(f"v_add_u32 v3, {L_ML}, v3")
    g("v_cmp_gt_u32 vcc, 16, v0")
    g("s_nop 1")
    g("v_cndmask_b32 v4, 0, -1, vcc")
    g("ds_write_b32 v3, v4")
    g("v_mov_b32 v4, 0")
    g("s_mov_b64 exec, 0xffff")
    g("ds_write_b32 v3, v4 offset:256")
    g("s_mov_b64 exec, -1")
    g("s_waitcnt lgkmcnt(0)")
    g(f"s_load_dword s{S_E}, s[{P_WS}:{P_WS+1}], 0")
    g("s_barrier")
    g("s_branch L_w0")
    g.role = "a"
    g.label("L_kv")
    g("s_sub_u32 s3, s3, 4")
    g("v_lshrrev_b32 v8, 4, v0")
    g("v_and_b32 v9, 15, v0")
    g("v_xor_b32 v2, v9, v8")
    g("v_lshlrev_b32 v2, 4, v2")
    g("v_lshl_add_u32 v2, v8, 8, v2")
    for i in (1, 2, 3):
        g(f"v_xor_b32 v{2+i}, {64*i}, v2")
    g("s_lshr_b32 s6, s5, 3")
    g("s_and_b32 s7, s5, 7")
    g("s_lshl_b32 s38, s6, 3")
    g("s_add_u32 s38, s38, s4")
    g("s_lshl_b32 s38, s38, 20")
    g("s_lshl_b32 s56, s3, 10")
    g("s_add_u32 s38, s38, s56")
    g(f"s_add_u32 s38, s38, {768*1024}")
    g("s_lshl_b32 s56, s3, 13")
    g("s_lshl_b32 s64, s7, 12")
    g("s_mov_b32 s66, s38")
    g(f"s_mov_b32 s{SRD_A+2}, {hex(4*8*4096*128*2)}")
    g(f"s_mov_b32 s{SRD_A+3}, 0x20000")
    g("s_waitcnt lgkmcnt(0)")
    g(f"s_mov_b32 s{SRD_A}, s{P_K}")
    g(f"s_mov_b32 s{SRD_A+1}, s{P_K+1}")
    B0L = opt.get("b0l", 0)
    if not B0L:
        g(f"s_load_dword s{S_E}, s[{P_WS}:{P_WS+1}], 0")
        g("s_barrier")
    g.stamp(1)
    def kvld(i, isv, th):
        if i % 4 == 0: g(f"s_add_u32 m0, s56, {(L_V if isv else L_K) + i*1024}")
        g("s_add_u32 s39, s64, s66")
        g("s_add_u32 s64, s64, 4096")
        g("s_and_b32 s64, s64, 0x7000")
        g(f"s_add_u32 s66, s66, {32768 + (3072 if i % 4 == 3 else -1024)}")
        if th: g(f"s_waitcnt vmcnt({th-1})")
        vo = 6 + (i & 1) if isv else 2 + (i & 3)
        g(f"buffer_load_dwordx4 v{vo}, s[{SRD_A}:{SRD_A+3}], s39 offen offset:{(i&3)*1024} {NT} lds")
    for i in range(8):
        if B0L and i == THR:
            g(f"s_load_dword s{S_E}, s[{P_WS}:{P_WS+1}], 0")
            g("s_barrier")
        kvld(i, 0, THR if i >= THR else 0)
    g("s_branch L_att")
    g.role = "l"
    g.label("L_ln")
    ffn_ids(g)
    g(f"s_mov_b32 s{SRD_B+3}, 0x20000")
    g(f"s_mul_i32 s{SRD_B+2}, s69, {512*1792*2}")
    g("v_lshrrev_b32 v3, 3, v0")
    g(f"v_mul_u32_u24 v3, {8192-3584}, v3")
    g("v_sub_u32 v2, v2, v3")
    g("s_and_b32 s38, s5, 7")
    g("s_lshl_b32 s38, s38, 2")
    g("s_add_u32 s38, s38, s3")
    g(f"s_mul_i32 s38, s38, {16*3584}")
    g("s_lshl_b32 s39, s68, 7")
    g("s_add_u32 s38, s38, s39")
    g("s_lshl_b32 s56, s3, 11")
    g(f"s_mov_b32 s{SRD_B}, s{P_W1}")
    g(f"s_mov_b32 s{SRD_B+1}, s{P_W1+1}")
    tile_dma(g, 2, 2, SRD_B, 38, (56, L_W1), 3584, NT)
    g(f"s_load_dword s{S_E}, s[{P_WS}:{P_WS+1}], 0")
    g.srd(SRD_W, P_WS, WS_BYTES)
    g("v_lshrrev_b32 v2, 2, v0")
    g("v_lshlrev_b32 v2, 6, v2")
    g("v_and_b32 v3, 1, v0")
    g("v_lshl_add_u32 v2, v3, 5, v2")
    g("v_and_b32 v3, 2, v0")
    g("v_lshl_add_u32 v2, v3, 2, v2")
    g(f"s_mul_i32 s38, s3, {XN_STR}")
    g(f"s_add_u32 s38, s38, {L_XN}")
    g("v_add_u32 v2, s38, v2")
    g("s_lshl_b32 s38, s3, 2")
    g(f"s_add_u32 s38, s38, {L_FL}")
    g("v_mov_b32 v9, s38")
    g("v_mov_b32 v10, 1")
    g(f"v_mov_b32 v21, {hex(f2u(1.0/512))}")
    g("s_waitcnt vmcnt(6)")
    g.stamp(1)
    for i in range(4):
        g(f"v_lshlrev_b32 v{12+2*i}, 16, v{4+i}")
        g(f"v_and_b32 v{13+2*i}, 0xffff0000, v{4+i}")
    g("v_pk_add_f32 v[22:23], v[12:13], v[14:15]")
    g("v_pk_add_f32 v[24:25], v[16:17], v[18:19]")
    g("v_pk_add_f32 v[22:23], v[22:23], v[24:25]")
    g("v_add_f32 v20, v22, v23")
    wave_sum(g, 20, 38)
    g("s_nop 1")
    g("v_mul_f32 v20, s38, v21")
    for i in range(8):
        g(f"v_sub_f32 v{24+i}, v{12+i}, v20")
    g("v_mul_f32 v22, v24, v24")
    g("v_mul_f32 v23, v25, v25")
    for i in range(1, 4):
        g(f"v_fmac_f32 v22, v{24+2*i}, v{24+2*i}")
        g(f"v_fmac_f32 v23, v{25+2*i}, v{25+2*i}")
    g("v_add_f32 v22, v22, v23")
    wave_sum(g, 22, 38)
    rnd(g, 20, 20)
    g("v_mul_f32 v22, s38, v21")
    rnd(g, 22, 22)
    g(f"v_add_f32 v22, {hex(f2u(1e-5))}, v22")
    rnd(g, 22, 22)
    g("v_sqrt_f32 v22, v22")
    for i in range(8):
        g(f"v_sub_f32 v{12+i}, v{12+i}, v20")
    rnd(g, 22, 22)
    g("v_rcp_f32 v22, v22")
    for i in range(4):
        g(f"v_cvt_pk_bf16_f32 v{4+i}, v{12+2*i}, v{13+2*i}")
    for i in range(4):
        g(f"v_lshlrev_b32 v{12+2*i}, 16, v{4+i}")
        g(f"v_and_b32 v{13+2*i}, 0xffff0000, v{4+i}")
    for i in range(8):
        g(f"v_mul_f32 v{12+i}, v{12+i}, v22")
    for i in range(4):
        g(f"v_cvt_pk_bf16_f32 v{4+i}, v{12+2*i}, v{13+2*i}")
    g("ds_write2_b64 v2, v[4:5], v[6:7] offset0:0 offset1:2")
    g("s_waitcnt vmcnt(2)")
    g(f"ds_write_b32 v9, v10 offset:{F_LNA}")
    g.stamp(2)
    g("s_waitcnt lgkmcnt(0)")
    epoch(g, 11)
    g("s_branch L_ln_done")
    if NEAR:
        g.label("L_w9")
        g("s_lshr_b32 s60, s2, 4")
        g("s_lshl_b32 s60, s60, 3")
        g("s_add_u32 s60, s60, s4")
        g("s_lshl_b32 s60, s60, 6")
        g("s_and_b32 s61, s5, 1")
        g("s_lshl_b32 s61, s61, 13")
        g("s_sub_u32 s60, s60, s61")
        g(f"s_add_u32 s60, s60, {PR_WS + 8192}")
        g.srd(SRD_W, P_WS, WS_BYTES)
        g("s_waitcnt lgkmcnt(0)")
        g("s_memtime s[90:91]")
        g("s_waitcnt lgkmcnt(0)")
        g(f"s_load_dword s61, s[{P_WS}:{P_WS+1}], s60")
        g("s_waitcnt lgkmcnt(0)")
        g("s_memtime s[94:95]")
        g(f"s_add_u32 s62, s{S_E}, 1")
        g("s_and_b32 s62, s62, 0x1fffff")
        g("s_lshl_b32 s63, s2, 2")
        g(f"s_add_u32 s63, s63, {PB_WS}")
        g("v_mov_b32 v21, 0")
        g("s_waitcnt lgkmcnt(0)")
        g("s_sub_u32 s94, s94, s90")
        g("s_lshr_b32 s94, s94, 3")
        g("s_min_u32 s94, s94, 0x7ff")
        g("s_lshl_b32 s94, s94, 21")
        g("s_or_b32 s94, s94, s62")
        g("v_mov_b32 v20, s94")
        g("s_mov_b64 exec, 1")
        g(f"buffer_store_dword v20, v21, {W}, s63 offen {SC}")
        if TOUCH:
            g("s_mov_b64 exec, 0")
            g("s_branch L_chain1")
            g.label("L_w3b")
        g("s_endpgm")
    g.role = "w"
    g.label("L_w0")
    g.srd(SRD_W, P_WS, WS_BYTES)
    g("s_getreg_b32 s57, hwreg(HW_REG_XCC_ID, 0, 3)")
    g("s_lshl_b32 s58, s4, 5")
    g("s_add_u32 s58, s58, s5")
    g("s_lshl_b32 s67, s58, 10")
    g("s_lshl_b32 s58, s58, 2")
    g(f"s_add_u32 s58, s58, {XC_WS}")
    g("v_mov_b32 v16, 0")
    if opt.get("tlb", 0):
        g("s_lshr_b32 s6, s5, 3")
        g("s_lshl_b32 s7, s6, 3")
        g("s_add_u32 s7, s7, s4")
        g("s_lshl_b32 s7, s7, 20")
        g(f"s_add_u32 s7, s7, {768*1024}")
        g("v_mov_b32 v13, s7")
        g("s_mov_b64 exec, 1")
        g(f"global_load_dword v124, v13, s[{P_V}:{P_V+1}] nt")
        g("s_lshl_b32 s7, s4, 19")
        g("v_mov_b32 v13, s7")
        g(f"global_load_dword v124, v13, s[{P_WO}:{P_WO+1}] nt")
        g(f"global_load_dword v124, v16, s[{P_W2}:{P_W2+1}] nt")
        g("s_mov_b64 exec, -1")
    g(f"s_add_u32 s56, s67, {QA_WS}")
    g("v_lshlrev_b32 v1, 4, v0")
    if opt.get("prew", 1): g(f"buffer_load_dwordx4 v[124:127], v1, {W}, s56 offen {PWF}")
    g("s_waitcnt lgkmcnt(0)")
    epoch(g, 11)
    g(f"s_and_b32 s56, s{S_E1}, 0x1fffffff")
    g("s_lshl_b32 s57, s57, 29")
    g("s_or_b32 s57, s57, s56")
    g("v_mov_b32 v12, s57")
    g("s_mov_b64 exec, 1")
    if not opt.get("noxc"): g(f"buffer_store_dword v12, v16, {W}, s58 offen {SC}")
    if TOUCH:
        g("s_mov_b64 exec, 0")
        g("s_branch L_chain0")
        g.label("L_w8b")
    g("s_mov_b64 exec, -1")
    g.srd(SRD_C, P_X, 4096)
    ffn_ids(g)
    g("s_lshr_b32 s6, s5, 3")
    g("s_and_b32 s7, s5, 7")
    tile_raddr(g, 4, 3)
    g("v_bfe_u32 v10, v0, 2, 2")
    g(f"v_mul_u32_u24 v8, {XN_STR}, v10")
    g("v_lshrrev_b32 v9, 4, v0")
    g("v_lshl_add_u32 v8, v9, 4, v8")
    g("s_lshl_b32 s39, s6, 8")
    g(f"s_add_u32 s39, s39, {L_XN}")
    g("v_add_u32 v8, s39, v8")
    g("v_lshlrev_b32 v10, 11, v10")
    g("v_lshl_add_u32 v10, v9, 6, v10")
    g("v_and_b32 v9, 3, v0")
    g("v_lshl_add_u32 v10, v9, 4, v10")
    selmasks(g, 9)
    g("s_lshl_b32 s38, s4, 15")
    g("s_lshl_b32 s39, s6, 13")
    g("s_add_u32 s38, s38, s39")
    g("s_lshl_b32 s39, s7, 8")
    g("s_add_u32 s38, s38, s39")
    g(f"s_add_u32 s38, s38, {QA_WS}")
    g("s_lshl_b32 s58, s4, 7")
    g(f"s_add_u32 s58, s58, {XC_WS}")
    g("v_and_b32 v3, 31, v0")
    g("v_lshlrev_b32 v3, 2, v3")
    g(f"v_mov_b32 v2, {L_FL}")
    g("v_mov_b32 v9, 1")
    g("s_mov_b32 s63, 0")
    g.stamp(1)
    flagwait4(g, "L_lnw", 2, F_LNA, 12)
    g("s_setprio 3")
    for t in range(4):
        g(f"ds_read_b128 v[{12+4*t}:{15+4*t}], v8 offset:{64*t}")
        for u in range(4):
            r = 60 + 16*t + 4*u
            g(f"ds_read_b64_tr_b16 v[{r}:{r+1}], v{4+u} offset:{L_WQ - 65536 + t*4096}")
            g(f"ds_read_b64_tr_b16 v[{r+2}:{r+3}], v{4+u} offset:{L_WQ - 65536 + t*4096 + 2048}")
        if t >= 1:
            tt = t - 1
            g("s_waitcnt lgkmcnt(9)")
            for u in range(4):
                r = 60 + 16*tt + 4*u
                c = "0" if tt == 0 else f"v[{44+4*u}:{47+4*u}]"
                g(f"v_mfma_f32_16x16x32_bf16 v[{44+4*u}:{47+4*u}], v[{r}:{r+3}], v[{12+4*tt}:{15+4*tt}], {c}")
    for u in range(4):
        r = 60 + 48 + 4*u
        g(f"s_waitcnt lgkmcnt({6-2*u})")
        g(f"v_mfma_f32_16x16x32_bf16 v[{44+4*u}:{47+4*u}], v[{r}:{r+3}], v[24:27], v[{44+4*u}:{47+4*u}]")
    g("s_nop 3")
    select4(g, 28, 44, 11)
    g(f"buffer_store_dwordx4 v[28:31], v10, {W}, s38 offen")
    g(f"ds_write_b32 v2, v9 offset:{F_QP}")
    g.stamp(2)
    g("s_setprio 0")
    g("s_mov_b32 s97, 0")
    pw0 = len(g.L)
    if opt.get("pwu", 0):
        g("s_and_b32 s56, s5, 3")
        g("s_cmp_eq_u32 s56, 3")
        g("s_cbranch_scc1 L_pwd")
        g("s_lshr_b32 s56, s5, 2")
        g("s_sub_u32 s59, s5, s56")
        g("s_mul_i32 s56, s59, 3072")
        g("s_min_u32 s56, s56, 62464")
        g("s_lshl_b32 s60, s4, 16")
        g("s_add_u32 s56, s56, s60")
        g(f"s_add_u32 s56, s56, {O_WS}")
        for i in range(3):
            g(f"buffer_load_dwordx4 v[124:127], v1, {W}, s56 offen offset:{1024*i} {PWF}")
        g("s_lshr_b32 s60, s5, 3")
        g("s_sub_u32 s60, s68, s60")
        g("s_lshl_b32 s60, s60, 13")
        g("s_mul_i32 s56, s59, 1408")
        g("s_cmp_lt_u32 s4, 4")
        g("s_cselect_b32 s61, 31360, 0")
        g("s_cselect_b32 s62, 0, 23168")
        g("s_or_b32 s61, s61, s62")
        g("s_min_u32 s56, s56, s61")
        g("s_add_u32 s56, s56, s60")
        g(f"s_add_u32 s56, s56, {H_WS}")
        g(f"buffer_load_dwordx4 v[124:127], v1, {W}, s56 offen {PWF}")
        g("s_mov_b64 exec, 0xffffff")
        g(f"buffer_load_dwordx4 v[124:127], v1, {W}, s56 offen offset:1024 {PWF}")
        g("s_and_b32 s59, s59, 15")
        g("s_lshl_b32 s59, s59, 7")
        g("s_lshl_b32 s60, s4, 11")
        g("s_add_u32 s59, s59, s60")
        g(f"s_add_u32 s59, s59, {M_WS}")
        g("s_mov_b64 exec, 0xff")
        g(f"buffer_load_dwordx4 v[124:127], v1, {W}, s59 offen {PWF}")
        g("s_mov_b64 exec, -1")
        g.label("L_pwd")
    else:
        g("s_lshl_b32 s56, s67, 1")
        g(f"s_add_u32 s56, s56, {O_WS}")
        g(f"buffer_load_dwordx4 v[124:127], v1, {W}, s56 offen {PWF}")
        g(f"buffer_load_dwordx4 v[124:127], v1, {W}, s56 offen offset:1024 {PWF}")
        g("s_lshl_b32 s56, s68, 3")
        g("s_add_u32 s56, s56, s7")
        g("s_lshl_b32 s56, s56, 10")
        g(f"s_add_u32 s56, s56, {H_WS}")
        g("s_lshr_b32 s59, s67, 4")
        g(f"s_add_u32 s59, s59, {M_WS}")
        g("s_cmp_ge_u32 s5, 24" if opt.get("bal", 0) else "s_cmp_eq_u32 s69, 0")
        g("s_cselect_b32 s56, s59, s56")
        g(f"buffer_load_dwordx4 v[124:127], v1, {W}, s56 offen {PWF}")
        g("s_mov_b64 exec, 15")
        g(f"buffer_load_dwordx4 v[124:127], v1, {W}, s59 offen {PWF}")
        g("s_mov_b64 exec, -1")
    if not opt.get("prew", 1): del g.L[pw0:]
    if opt.get("sx", 0): g(f"s_sleep {opt.get('sx', 0)}")
    if opt.get("noxc"):
        g("v_mov_b32 v20, s57")
    else:
        g(f"buffer_load_dword v20, v3, {W}, s58 offen {SC}")
        g("s_waitcnt vmcnt(0)")
    g.label("L_xc")
    g("v_xor_b32 v20, s57, v20")
    g("v_lshlrev_b32 v21, 3, v20")
    g("v_cmp_ne_u32 vcc, 0, v21")
    g("s_cbranch_vccz L_xcok")
    spin(g, "L_xcok")
    g(f"buffer_load_dword v20, v3, {W}, s58 offen {SC}")
    g("s_waitcnt vmcnt(0)")
    g("s_branch L_xc")
    g.label("L_xcok")
    g("v_cmp_ne_u32 vcc, 0, v20")
    g("s_cmp_lg_u64 vcc, 0")
    g("s_cselect_b32 s59, 2, 1")
    if opt.get("force_remote"):
        g("s_mov_b32 s59, 2")
    g("s_cmp_eq_u32 s59, 1")
    g("s_cbranch_scc1 L_xcl")
    g(f"buffer_store_dwordx4 v[28:31], v10, {W}, s38 offen {SC}")
    g.label("L_xcl")
    g("v_mov_b32 v20, s59")
    g(f"ds_write_b32 v2, v20 offset:{F_XC}")
    g.stamp(3)
    g("s_cmp_eq_u32 s69, 0")
    g("s_cbranch_scc1 L_w8")
    g("v_lshrrev_b32 v12, 4, v0")
    g("v_bfe_u32 v13, v0, 2, 2")
    g("v_and_b32 v14, 3, v0")
    g("v_lshlrev_b32 v12, 6, v12")
    g("v_lshl_add_u32 v12, v13, 8, v12")
    g("v_lshl_add_u32 v12, v14, 4, v12")
    g(f"v_add_u32 v13, {L_HP}, v1")
    g("s_lshl_b32 s56, s68, 3")
    g("s_add_u32 s56, s56, s7")
    g("s_lshl_b32 s56, s56, 10")
    g(f"s_add_u32 s56, s56, {H_WS}")
    flagwait1(g, "L_hw", 2, F_H, 14)
    g("ds_read_b128 v[20:23], v13")
    if opt.get("bal", 0):
        g("s_cmp_ge_u32 s5, 24")
        g("s_cselect_b32 s59, 2, s59")
    g("s_cmp_eq_u32 s59, 1")
    g("s_waitcnt lgkmcnt(0)")
    g("s_cbranch_scc0 L_hpub_rem")
    g(f"buffer_store_dwordx4 v[20:23], v12, {W}, s56 offen")
    g("s_branch L_w8")
    g.label("L_hpub_rem")
    g(f"buffer_store_dwordx4 v[20:23], v12, {W}, s56 offen {SC}")
    g("s_branch L_w8")
    g.role = "a"
    g.label("L_att")
    TRL = opt.get("trl", 2)
    def tile_dma_thr(n, voff, srd, ss, lb, stride, first=0):
        for i in range(first, n):
            if i == first: g(f"s_add_u32 m0, s{lb[0]}, {lb[1]}")
            if i: g(f"s_add_u32 s{ss}, s{ss}, {8*stride - 1024}")
            g(f"s_waitcnt vmcnt({(THR2 or 64)-1})")
            g(f"buffer_load_dwordx4 v{voff}, s[{srd}:{srd+3}], s{ss} offen offset:{i*1024} {NT} lds")
    g.srd(SRD_W, P_WS, WS_BYTES)
    g.srd(SRD_C, P_WO, 4096*512*2)
    tile_voff(g, 1, 10, 1024)
    g("s_lshl_b32 s60, s4, 2")
    g("s_add_u32 s60, s60, s6")
    g("s_lshl_b32 s60, s60, 17")
    g("s_lshl_b32 s61, s3, 15")
    g("s_add_u32 s60, s60, s61")
    XO, XF2 = (4, 2) if opt.get("perm", 1) else (0, 0)
    g(f"s_xor_b32 s62, s7, {XO}")
    g("s_lshl_b32 s62, s62, 7")
    g("s_add_u32 s93, s60, s62")
    g(f"s_xor_b32 s62, s62, {(XO ^ XF2) << 7}")
    if WIDE & 2:
        g("v_lshrrev_b32 v10, 4, v0")
        g("v_and_b32 v20, 15, v0")
        g("v_lshlrev_b32 v20, 4, v20")
        g("v_lshl_add_u32 v20, v10, 10, v20")
        g("s_lshl_b32 s60, s4, 3")
        g("s_lshr_b32 s61, s5, 2")
        g("s_add_u32 s60, s60, s61")
        g("s_lshl_b32 s60, s60, 16")
        g("s_lshl_b32 s61, s3, 14")
        g("s_add_u32 s60, s60, s61")
        g("s_and_b32 s61, s5, 3")
        g("s_lshl_b32 s61, s61, 8")
        g("s_add_u32 s93, s60, s61")
    g("s_lshl_b32 s65, s3, 12")
    QT = opt.get("qt", 6)
    if QT:
        g(f"v_mov_b32 v17, {L_FL}")
        g("s_lshl_b32 s60, s3, 2")
        g("v_add_u32 v18, s60, v17")
        g("v_mov_b32 v19, 1")
        g(f"s_waitcnt vmcnt({8-QT})")
        g(f"ds_write_b32 v18, v19 offset:{F_K2}")
    ld0 = len(g.L)
    if WIDE & 2: tile_dma_thr(4, 20, SRD_C, 93, (65, L_WO), 512)
    else: tile_dma_thr(4, 1, SRD_C, 93, (65, L_WO), 1024)
    if opt.get("kf", 6) == 4:
        g("s_waitcnt vmcnt(4)")
        g(f"ds_write_b32 v18, v19 offset:{F_K}")
    tile_dma_thr(2 - TRL, 1, SRD_B, 68, (69, L_W2), 1024)
    if opt.get("kf", 6) == 6:
        g(f"s_waitcnt vmcnt({6 - TRL})")
        g(f"ds_write_b32 v18, v19 offset:{F_K}")
    g(f"s_mov_b32 s{SRD_A}, s{P_V}")
    g(f"s_mov_b32 s{SRD_A+1}, s{P_V+1}")
    g("s_mov_b32 s66, s38")
    g.stamp(4)
    PRE = opt.get("pre", 1)
    for i in range(8):
        kvld(i, 1, (THR2 if i < 4 else THR3) or 64)
        if PRE and i == 5:
            g("s_waitcnt vmcnt(6)")
            g(f"ds_write_b32 v18, v19 offset:{F_WO}")
    if TRL: tile_dma_thr(2, 1, SRD_B, 68, (69, L_W2), 1024, first=2 - TRL)
    loads = g.L[ld0:]; del g.L[ld0:]
    g("s_mov_b32 s60, s7")
    ffn_ids2(g, opt.get("bal", 0))
    g("s_mov_b32 s7, s60")
    g(f"s_mov_b32 s{SRD_B}, s{P_W2}")
    g(f"s_mov_b32 s{SRD_B+1}, s{P_W2+1}")
    g(f"s_mul_i32 s{SRD_B+2}, s69, {1792*512*2}")
    g(f"s_mov_b32 s{SRD_B+3}, 0x20000")
    g("s_lshl_b32 s68, s68, 2")
    g("s_add_u32 s68, s68, s3")
    g("s_lshl_b32 s68, s68, 14")
    g("s_add_u32 s68, s68, s62")
    g("s_lshl_b32 s69, s3, 11")
    g("v_lshlrev_b32 v6, 1, v8")
    g("v_xor_b32 v6, v9, v6")
    g("v_lshlrev_b32 v6, 4, v6")
    g("v_lshl_add_u32 v6, v8, 8, v6")
    g("v_xor_b32 v7, 128, v6")
    g(f"v_mov_b32 v17, {L_FL}")
    g("s_lshl_b32 s60, s3, 2")
    g("v_add_u32 v18, s60, v17")
    g("v_mov_b32 v19, 1")
    nfirst = len(g.L) - ld0
    g("v_lshrrev_b32 v25, 2, v0")
    g("v_and_b32 v26, 7, v25")
    g("v_lshlrev_b32 v26, 5, v26")
    g("v_lshl_add_u32 v26, v25, 8, v26")
    g("v_and_b32 v14, 3, v0")
    g("v_lshl_add_u32 v14, v14, 3, v26")
    g("s_lshl_b32 s60, s3, 6")
    g("v_xor_b32 v14, s60, v14")
    g("v_xor_b32 v15, 32, v14")
    g("v_bfe_u32 v25, v0, 2, 2")
    g("v_lshlrev_b32 v28, 6, v25")
    g("v_lshl_add_u32 v28, v8, 4, v28")
    g(f"v_add_u32 v28, {L_OC}, v28")
    g("v_lshlrev_b32 v30, 14, v25")
    g("v_lshl_add_u32 v30, v8, 5, v30")
    g("v_and_b32 v16, 1, v0")
    g("v_lshl_add_u32 v30, v16, 4, v30")
    g("s_lshl_b32 s61, s4, 5")
    g("s_add_u32 s61, s61, s7")
    g("s_lshl_b32 s61, s61, 2")
    g("s_add_u32 s61, s61, s6")
    g("s_lshl_b32 s61, s61, 2")
    g("s_add_u32 s61, s61, s3")
    g("s_lshl_b32 s61, s61, 7")
    g(f"s_add_u32 s61, s61, {O_WS}")
    for r in range(80, 112):
        g(f"v_mov_b32 v{r}, 0")
    g("s_mov_b32 s63, 0"); g("s_mov_b32 s97, 0")
    g("s_waitcnt lgkmcnt(0)")
    epoch(g, 31)
    setup = g.L[ld0:]; del g.L[ld0:]
    per = -(-nfirst // 3)
    for x in loads:
        g.L.append(x)
        if "buffer_load" in x:
            g.L.extend(setup[:per]); setup = setup[per:]
    assert not setup
    g.stamp(3)
    flagwait4(g, "L_px", 17, F_P, 36, pre=lambda: g(f"ds_read_b32 v46, v17 offset:{F_XC}"), sleep=0)
    g("s_mov_b32 exec_lo, 0x55555555")
    g("s_mov_b32 exec_hi, 0x55555555")
    for t in range(4):
        g(f"ds_read_b128 v[{80+4*t}:{83+4*t}], v28 offset:{256*t}")
    g("s_not_b64 exec, exec")
    for t in range(4):
        g(f"ds_read_b128 v[{96+4*t}:{99+4*t}], v28 offset:{256*t}")
    g("s_mov_b64 exec, -1")
    g("v_readfirstlane_b32 s65, v46")
    g.stamp(2)
    def vrd(half):
        for t in range(4):
            for p in range(2):
                r = 48 + 8*t + 4*p + 2*half
                g(f"ds_read_b64_tr_b16 v[{r}:{r+1}], v{14+p} offset:{L_V + t*8192 + 4096*half}")
    if PRE:
        g(f"s_waitcnt vmcnt({TRL+4})")
        g(f"ds_write_b32 v18, v19 offset:{F_V1}")
        flagwait4(g, "L_v1", 17, F_V1, 36)
        vrd(0)
    g(f"s_waitcnt vmcnt({TRL}) lgkmcnt(0)")
    g.stamp(5)
    g("s_cmp_eq_u32 s65, 1")
    if opt.get("prio", 1): g("s_setprio 3")
    g("s_barrier")
    g.stamp(7)
    if not PRE: vrd(0)
    vrd(1)
    for t in range(4):
        for p in range(2):
            r = 48 + 8*t + 4*p
            k = 2*t + p
            g(f"s_waitcnt lgkmcnt({7-k})")
            g(f"v_mfma_f32_16x16x32_bf16 v[36:39], v[{r}:{r+3}], v[{80+16*p+4*t}:{83+16*p+4*t}], {'0' if k == 0 else 'v[36:39]'}")
    g("s_mov_b32 exec_lo, 0x33333333")
    g("s_mov_b32 exec_hi, 0x33333333")
    g("s_nop 4")
    g("s_cbranch_scc0 L_opub_rem")
    for rem in (0, 1):
        if rem: g.label("L_opub_rem")
        for r in range(4):
            g(f"v_bfi_b32 v{36+r}, s{S_LO}, v31, v{36+r}")
        g(f"buffer_store_dwordx4 v[36:39], v30, {W}, s61 offen {SC if rem else ''}")
        g(f"ds_write_b32 v18, v19 offset:{F_OS}")
        if TRL:
            g("s_waitcnt vmcnt(1)")
            g(f"ds_write_b32 v18, v19 offset:{F_OP}")
        g.stamp(8)
        if opt.get("stamps"):
            g("s_add_u32 s3, s3, 4")
            g("s_branch L_end")
        else:
            hevhold()
            g("s_endpgm")
    g.role = "l"
    g.label("L_ln_done")
    if TOUCH and not NEAR:
        g("s_cmp_eq_u32 s3, 3")
        g("s_cbranch_scc0 L_w3b")
        g("s_mov_b64 exec, 0")
        g("s_branch L_chain1")
        g.label("L_w3b")
        g("s_mov_b64 exec, -1")
    tile_raddr(g, 4, 3)
    g(f"v_mov_b32 v17, {L_FL}")
    g("s_mov_b32 s63, 0")
    g("s_waitcnt vmcnt(0)")
    g(f"ds_write_b32 v9, v10 offset:{F_LNB}")
    g("s_cmp_eq_u32 s3, 1")
    g("s_cbranch_scc0 L_qk")
    g("s_cmp_eq_u32 s69, 0")
    g("s_cbranch_scc1 L_qk")
    g("s_and_b32 s6, s5, 7")
    g("v_and_b32 v15, 3, v0")
    selmasks(g, 15)
    g("v_lshrrev_b32 v13, 4, v0")
    g("v_bfe_u32 v16, v0, 2, 2")
    g(f"v_mul_u32_u24 v14, {XN_STR}, v16")
    g("v_lshl_add_u32 v14, v13, 4, v14")
    g("s_lshl_b32 s39, s6, 7")
    g(f"s_add_u32 s39, s39, {L_XN}")
    g("v_add_u32 v14, s39, v14")
    g("v_lshlrev_b32 v13, 4, v0")
    g(f"v_add_u32 v13, {L_HP}, v13")
    flagwait4(g, "L_w1w", 17, F_LNB, 20, sleep=1)
    g("ds_read_b128 v[80:83], v14")
    g("ds_read_b128 v[84:87], v14 offset:64")
    for t in range(2):
        for u in range(4):
            r = 24 + 16*t + 4*u
            g(f"ds_read_b64_tr_b16 v[{r}:{r+1}], v{4+u} offset:{L_W1 - 65536 + t*4096}")
            g(f"ds_read_b64_tr_b16 v[{r+2}:{r+3}], v{4+u} offset:{L_W1 - 65536 + t*4096 + 2048}")
    for t in range(2):
        for u in range(4):
            r = 24 + 16*t + 4*u
            g(f"s_waitcnt lgkmcnt({14 - 8*t - 2*u})")
            c = "0" if t == 0 else f"v[{64+4*u}:{67+4*u}]"
            g(f"v_mfma_f32_16x16x32_bf16 v[{64+4*u}:{67+4*u}], v[{r}:{r+3}], v[{80+4*t}:{83+4*t}], {c}")
    g("s_nop 3")
    select4(g, 56, 64, 11)
    g("ds_write_b128 v13, v[56:59]")
    g(f"ds_write_b32 v17, v10 offset:{F_H}")
    g.stamp(1)
    g.label("L_qk")
    g("s_lshr_b32 s6, s5, 3")
    g("s_and_b32 s7, s5, 7")
    g("v_lshrrev_b32 v8, 4, v0")
    g("v_and_b32 v12, 15, v0")
    g("v_xor_b32 v20, v8, v12")
    g("v_lshlrev_b32 v20, 4, v20")
    g("v_lshl_add_u32 v20, v12, 8, v20")
    g("s_lshl_b32 s39, s3, 13")
    g("v_add_u32 v20, s39, v20")
    for t in (1, 2, 3):
        g(f"v_xor_b32 v{20+t}, {64*t}, v20")
    g("v_lshrrev_b32 v13, 5, v0")
    g("v_and_b32 v14, 31, v0")
    g("v_lshlrev_b32 v24, 14, v13")
    g("v_lshl_add_u32 v24, v14, 4, v24")
    g("s_lshl_b32 s58, s4, 15")
    g("s_lshl_b32 s59, s6, 11")
    g("s_add_u32 s58, s58, s59")
    g("s_lshl_b32 s59, s3, 9")
    g("s_add_u32 s65, s58, s59")
    g(f"s_add_u32 s65, s65, {QA_WS}")
    g("v_lshlrev_b32 v25, 2, v13")
    g("v_and_b32 v15, 16, v0")
    g("v_lshl_add_u32 v25, v15, 3, v25")
    g("v_and_b32 v15, 12, v0")
    g("v_lshl_add_u32 v25, v15, 1, v25")
    g("v_and_b32 v15, 3, v0")
    g("v_lshl_add_u32 v25, v15, 5, v25")
    g(f"s_mul_i32 s39, s3, {QL_STR}")
    g(f"s_add_u32 s38, s39, {L_QL}")
    g("v_add_u32 v25, s38, v25")
    g("v_bfe_u32 v16, v0, 2, 2")
    g(f"v_mul_u32_u24 v26, {QL_STR}, v16")
    g("v_lshl_add_u32 v26, v8, 4, v26")
    g(f"v_add_u32 v26, {L_QL}, v26")
    g("v_lshlrev_b32 v29, 4, v16")
    g(f"v_add_u32 v29, {L_ML}, v29")
    g("s_lshl_b32 s38, s3, 2")
    g("v_add_u32 v27, s38, v29")
    g("v_lshlrev_b32 v28, 6, v16")
    g("v_lshl_add_u32 v28, v8, 4, v28")
    g("s_lshl_b32 s38, s3, 8")
    g(f"s_add_u32 s38, s38, {L_OC}")
    g("v_add_u32 v28, s38, v28")
    g("v_lshlrev_b32 v30, 9, v16")
    g("s_lshl_b32 s67, s4, 7")
    g("s_add_u32 s67, s67, s5")
    g("s_lshl_b32 s67, s67, 4")
    g(f"s_add_u32 s67, s67, {M_WS}")
    for r in range(4):
        g(f"v_mov_b32 v{32+r}, 0x3f803f80")
    g(f"s_mov_b32 s66, {hex(f2u(1.4426950408889634))}")
    g(f"s_mov_b32 s38, {hex(f2u(128 ** -0.5))}")
    g("v_mov_b32 v108, s38")
    g("v_mov_b32 v109, s38")
    g("s_mov_b32 s57, 0x11111111")
    g("s_lshl_b32 s56, s4, 2")
    g("s_add_u32 s56, s56, s6")
    g("v_lshlrev_b32 v103, 13, v13")
    g("v_lshl_add_u32 v103, v14, 4, v103")
    g("s_lshl_b32 s61, s56, 14")
    g("s_add_u32 s61, s61, s59")
    g(f"s_add_u32 s61, s61, {O_WS}")
    g("s_add_u32 s64, s61, 4096")
    g("v_lshl_add_u32 v104, v13, 2, v15")
    g("v_lshlrev_b32 v104, 4, v104")
    g("s_lshl_b32 s60, s56, 2")
    g("s_add_u32 s60, s60, s3")
    g("s_lshl_b32 s60, s60, 7")
    g(f"s_add_u32 s60, s60, {M_WS}")
    g("v_lshlrev_b32 v102, 2, v13")
    g("v_lshl_add_u32 v102, v14, 3, v102")
    g(f"s_add_u32 s39, s39, {L_OL}")
    g("v_add_u32 v102, s39, v102")
    g(f"v_mul_u32_u24 v101, {QL_STR}, v15")
    g("v_lshl_add_u32 v101, v8, 4, v101")
    g(f"v_add_u32 v101, {L_OL}, v101")
    g("s_lshl_b32 s39, s3, 5")
    g("v_xor_b32 v107, s39, v4")
    g("v_lshlrev_b32 v105, 4, v0")
    widetags(g, 110)
    g(f"s_xor_b32 s92, s7, {XO}")
    r3addr(g, 62, 92, 56, 39)
    g("s_lshl_b32 s39, s3, 8")
    g("s_add_u32 s62, s62, s39")
    g.stamp(3)
    flagwait1(g, "L_qw", 17, F_QP, 12)
    flagwait1(g, "L_kw", 9, F_K2 if opt.get("qt", 6) else F_K, 12)
    if opt.get("dq", 0): g(f"s_sleep {opt.get('dq', 0)}")
    g("s_mov_b32 s97, 0")
    g("s_mov_b32 s58, s65")
    g("s_add_u32 s59, s58, 8192")
    g(f"buffer_load_dwordx4 v[36:39], v24, {W}, s58 offen {SC}")
    g(f"buffer_load_dwordx4 v[40:43], v24, {W}, s59 offen {SC}")
    if opt.get("qt", 6): flagwait1(g, "L_kv2", 9, F_K, 12)
    for tau in range(2):
        for t in range(4):
            r = 48 + 16*tau + 4*t
            g(f"ds_read_b128 v[{r}:{r+3}], v{20+t} offset:{4096*tau}")
    g.label("L_qc")
    g("s_waitcnt vmcnt(0)")
    tagcheck(g, list(range(36, 44)), 11, [44, 45, 46, 47])
    g("s_cbranch_vccz L_qok")
    spin(g, "L_qok")
    g(f"buffer_load_dwordx4 v[36:39], v24, {W}, s58 offen {SC}")
    g(f"buffer_load_dwordx4 v[40:43], v24, {W}, s59 offen {SC}")
    g("s_branch L_qc")
    g.label("L_qok")
    g.stamp(4)
    if opt.get("stamps"): g("s_min_u32 s96, s97, 0xff")
    untag(g, range(36, 44))
    g("v_pk_add_f32 v[36:37], v[36:37], v[40:41]")
    g("v_pk_add_f32 v[38:39], v[38:39], v[42:43]")
    g("s_nop 1")
    g("v_permlane32_swap_b32 v36, v38")
    g("v_permlane32_swap_b32 v37, v39")
    g("v_pk_add_f32 v[36:37], v[36:37], v[38:39]")
    g("v_cvt_pk_bf16_f32 v36, v36, v37")
    g("ds_write_b32 v25, v36")
    g(f"ds_write_b32 v9, v10 offset:{F_Q}")
    def qrd():
        for t in range(4):
            g(f"ds_read_b128 v[{80+4*t}:{83+4*t}], v26 offset:{64*t}")
    flagwait4(g, "L_qx", 17, F_Q, 36, pre=qrd, n=4)
    for t in range(4):
        g(f"s_waitcnt lgkmcnt({3-t})")
        for tau in range(2):
            r = 48 + 16*tau + 4*t
            c = "0" if t == 0 else f"v[{36+4*tau}:{39+4*tau}]"
            g(f"v_mfma_f32_16x16x32_bf16 v[{36+4*tau}:{39+4*tau}], v[{r}:{r+3}], v[{80+4*t}:{83+4*t}], {c}")
    g("s_nop 6")
    def rnd8():
        for i in range(4):
            g(f"v_cvt_pk_bf16_f32 v{48+i}, v{36+2*i}, v{37+2*i}")
        for i in range(4):
            g(f"v_lshlrev_b32 v{36+2*i}, 16, v{48+i}")
            g(f"v_and_b32 v{37+2*i}, 0xffff0000, v{48+i}")
    rnd8()
    for i in range(4):
        g(f"v_pk_mul_f32 v[{36+2*i}:{37+2*i}], v[{36+2*i}:{37+2*i}], v[108:109]")
    rnd8()
    g("v_max3_f32 v44, v36, v37, v38")
    g("v_max3_f32 v45, v39, v40, v41")
    g("v_max3_f32 v44, v44, v42, v43")
    g("v_max_f32 v44, v44, v45")
    g("v_mov_b32 v45, v44")
    g("s_nop 1")
    g("v_permlane32_swap_b32 v44, v45")
    g("v_max_f32 v44, v44, v45")
    g("v_mov_b32 v45, v44")
    g("s_nop 1")
    g("v_permlane16_swap_b32 v44, v45")
    g("v_max_f32 v44, v44, v45")
    g("v_mul_f32 v44, s66, v44")
    g("s_mov_b64 exec, 0x1111")
    g("ds_write_b32 v27, v44")
    g("s_mov_b64 exec, -1")
    g.label("L_mx")
    g("ds_read_b128 v[48:51], v29")
    spin(g, "L_mxok", lds=True)
    g("s_waitcnt lgkmcnt(0)")
    g("v_max_u32 v45, v48, v49")
    g("v_max3_u32 v45, v45, v50, v51")
    g("v_cmp_eq_u32 vcc, -1, v45")
    g("s_cbranch_vccnz L_mx")
    g.label("L_mxok")
    g("v_max3_f32 v44, v48, v49, v50")
    g("v_max_f32 v44, v44, v51")
    g("v_and_b32 v44, s98, v44")
    for i in range(8):
        g(f"v_fma_f32 v{36+i}, v{36+i}, s66, -v44")
    for i in range(8):
        g(f"v_exp_f32 v{36+i}, v{36+i}")
    for i in range(4):
        g(f"v_cvt_pk_bf16_f32 v{36+i}, v{36+2*i}, v{37+2*i}")
    g("s_nop 1")
    g("v_mfma_f32_16x16x32_bf16 v[40:43], v[32:35], v[36:39], 0")
    g("s_mov_b32 exec_lo, s57")
    g("s_mov_b32 exec_hi, s57")
    g("ds_write_b128 v28, v[36:39]")
    g("s_mov_b64 exec, 0x1111")
    g("s_nop 3")
    g("ds_write_b32 v27, v40 offset:64")
    g("s_mov_b64 exec, -1")
    flagwait1(g, "L_xw", 17, F_XC, 12, sdst=56, sleep=0)
    g(f"ds_write_b32 v9, v10 offset:{F_P}")
    g.stamp(2)
    g("s_cmp_eq_u32 s3, 0")
    g("s_cbranch_scc0 L_wo_b3")
    flagwait4(g, "L_lx", 17, F_P, 36, pre=lambda: g("ds_read_b128 v[40:43], v29 offset:64"), n=0)
    g("v_pk_add_f32 v[40:41], v[40:41], v[42:43]")
    g("v_mov_b32 v46, v11")
    g("v_mov_b32 v47, v11")
    g("v_or_b32 v44, v44, v11")
    g("v_add_f32 v45, v40, v41")
    g("s_mov_b64 exec, 0x1111")
    g(f"v_bfi_b32 v45, s{S_LO}, v11, v45")
    g("s_cmp_eq_u32 s56, 1")
    g("s_cbranch_scc0 L_mlr")
    g(f"buffer_store_dwordx4 v[44:47], v30, {W}, s67 offen")
    g("s_branch L_ml1")
    g.label("L_mlr")
    g(f"buffer_store_dwordx4 v[44:47], v30, {W}, s67 offen {SC}")
    g.label("L_ml1")
    g("s_mov_b64 exec, -1")
    g.label("L_wo_b3")
    g(f"v_mov_b32 v106, {L_FL}")
    def word():
        for t in range(4):
            g(f"ds_read_b64_tr_b16 v[{16+4*t}:{17+4*t}], v107 offset:{L_WO - 65536 + t*4096}")
            g(f"ds_read_b64_tr_b16 v[{18+4*t}:{19+4*t}], v107 offset:{L_WO - 65536 + t*4096 + 2048}")
    if opt.get("pre", 1):
        flagwait4(g, "L_wow", 106, F_WO, 36, sleep=1)
        word()
    pass
    g("s_waitcnt lgkmcnt(0)")
    g("s_barrier")
    def oml():
        g(f"buffer_load_dwordx4 v[32:35], v104, {W}, s60 offen {SC}")
    def opl():
        g(f"buffer_load_dwordx4 v[40:43], v103, {W}, s61 offen {SC}")
        g(f"buffer_load_dwordx4 v[44:47], v103, {W}, s61 offen offset:2048 {SC}")
        g(f"buffer_load_dwordx4 v[48:51], v103, {W}, s64 offen {SC}")
        g(f"buffer_load_dwordx4 v[52:55], v103, {W}, s64 offen offset:2048 {SC}")
    oml()
    if not opt.get("pre", 1): word()
    flagwait4(g, "L_wt", 106, F_OS, 36, pre=(lambda: g(f"ds_read_b32 v60, v106 offset:{F_NB}")) if NEAR else None)
    if opt.get("prio", 1): g("s_setprio 2")
    g("s_mov_b32 s97, 0")
    g.stamp(6)
    opl()
    if NEAR:
        g("v_readfirstlane_b32 s38, v60")
        g("s_nop 2")
        r3par(g, 62, 92, 38, 39)
    g("s_waitcnt vmcnt(4)")
    tagcheck(g, [32, 33, 34, 35], 11, [56, 57])
    g("s_cbranch_vccz L_o2")
    g.label("L_o")
    oml()
    spin(g, "L_o2")
    g("s_waitcnt vmcnt(0)")
    tagcheck(g, [32, 33, 34, 35], 11, [56, 57])
    g("s_cbranch_vccnz L_o")
    g.label("L_o2")
    g.stamp(5)
    untag(g, (32, 33))
    g("s_nop 0")
    g(f"v_max_f32_dpp v56, v32, v32 quad_perm:[1,0,3,2] {DPPM}")
    g("s_nop 1")
    g(f"v_max_f32_dpp v56, v56, v56 quad_perm:[2,3,0,1] {DPPM}")
    g("v_mov_b32 v57, v56")
    g("s_nop 1")
    g("v_permlane32_swap_b32 v56, v57")
    g("v_max_f32 v56, v56, v57")
    g("v_sub_f32 v32, v32, v56")
    g("v_exp_f32 v32, v32")
    g("s_nop 0")
    g("v_mul_f32 v57, v32, v33")
    g("s_nop 1")
    g(f"v_add_f32_dpp v57, v57, v57 quad_perm:[1,0,3,2] {DPPM}")
    g("s_nop 1")
    g(f"v_add_f32_dpp v57, v57, v57 quad_perm:[2,3,0,1] {DPPM}")
    g("v_mov_b32 v58, v57")
    g("s_nop 1")
    g("v_permlane32_swap_b32 v57, v58")
    g("v_add_f32 v57, v57, v58")
    g("v_rcp_f32 v57, v57")
    g("s_nop 0")
    g("v_mul_f32 v32, v32, v57")
    g("s_nop 1")
    for i in range(4):
        g(f"v_mov_b32_dpp v{64+2*i}, v32 quad_perm:[{i},{i},{i},{i}] {DPPM}")
    for i in range(4):
        g(f"v_mov_b32 v{65+2*i}, v{64+2*i}")
    g("s_mov_b32 s97, 0")
    g.label("L_o4")
    g("s_waitcnt vmcnt(0)")
    xorcheck(g, range(40, 56), 11, [56, 57, 58, 59, 36, 37, 38, 39])
    g("s_cbranch_vccnz L_o3")
    g("s_mov_b64 exec, -1")
    g.label("L_ook")
    g.stamp(7)
    g("v_pk_mul_f32 v[36:37], v[64:65], v[40:41]")
    g("v_pk_mul_f32 v[38:39], v[64:65], v[42:43]")
    for i in range(1, 4):
        g(f"v_pk_fma_f32 v[36:37], v[{64+2*i}:{65+2*i}], v[{40+4*i}:{41+4*i}], v[36:37]")
        g(f"v_pk_fma_f32 v[38:39], v[{64+2*i}:{65+2*i}], v[{42+4*i}:{43+4*i}], v[38:39]")
    g("s_nop 1")
    g("v_permlane32_swap_b32 v36, v38")
    g("v_permlane32_swap_b32 v37, v39")
    g("v_pk_add_f32 v[36:37], v[36:37], v[38:39]")
    g("v_cvt_pk_bf16_f32 v36, v36, v37")
    g("ds_write_b32 v102, v36")
    g("s_waitcnt lgkmcnt(0)")
    g("s_barrier")
    for t in range(4):
        g(f"ds_read_b128 v[{40+4*t}:{43+4*t}], v101 offset:{64*t}")
    for t in range(4):
        g(f"s_waitcnt lgkmcnt({3-t})")
        c = "0" if t == 0 else "v[32:35]"
        g(f"v_mfma_f32_16x16x32_bf16 v[32:35], v[{40+4*t}:{43+4*t}], v[{16+4*t}:{19+4*t}], {c}")
    g("s_mov_b64 exec, 0xffff")
    g("s_nop 6")
    for u in range(4):
        g(f"v_bfi_b32 v{32+u}, s{S_LO}, v{(11, 110, 111, 11)[u]}, v{32+u}")
    g(f"buffer_store_dwordx4 v[32:35], v105, {W}, s62 offen {opt.get('fs', SC).replace('+', ' ')}")
    g.stamp(8)
    if opt.get("stamps"):
        g("s_lshl_b32 s96, s96, 16")
        g("s_min_u32 s97, s97, 255")
        g("s_or_b32 s97, s97, s96")
    hevhold()
    g("s_branch L_end" if opt.get("stamps") else "s_endpgm")
    g.label("L_o3")
    g("s_add_u32 s97, s97, 1")
    g(f"s_cmp_gt_u32 s97, {SPIN_MAX}")
    g("s_cbranch_scc1 L_ook")
    g("s_mov_b64 exec, vcc")
    if opt.get("so", 0): g(f"s_sleep {opt['so']}")
    opl()
    g("s_branch L_o4")
    g.role = "w"
    g.label("L_w8")
    ffn_ids2(g, opt.get("bal", 0))
    g.srd(SRD_B, P_B1, 1792*2)
    g("s_and_b32 s6, s5, 7")
    g("v_lshrrev_b32 v12, 4, v0")
    g("v_and_b32 v13, 3, v0")
    g("v_bfe_u32 v14, v0, 2, 2")
    selmasks(g, 12)
    g("v_lshlrev_b32 v8, 5, v13")
    g("v_lshl_add_u32 v8, v14, 3, v8")
    g("s_lshl_b32 s57, s68, 7")
    g(f"v_mul_u32_u24 v9, {HL_STR}, v12")
    g("v_lshl_add_u32 v9, v14, 4, v9")
    g("v_and_b32 v14, 2, v0")
    g("v_lshl_add_u32 v9, v14, 5, v9")
    g("v_cmp_ne_u32 s[60:61], 0, v14")
    g("v_and_b32 v15, 1, v0")
    g("v_lshl_add_u32 v9, v15, 3, v9")
    g(f"v_add_u32 v9, {L_HL}, v9")
    g(f"v_mul_u32_u24 v19, {HL_STR}, v13")
    g("v_lshl_add_u32 v19, v12, 4, v19")
    g(f"v_add_u32 v19, {L_HL}, v19")
    g("s_lshl_b32 s58, s68, 13")
    g(f"s_add_u32 s58, s58, {H_WS}")
    g("s_add_u32 s59, s58, 4096")
    g("v_lshlrev_b32 v10, 4, v0")
    g(f"s_add_u32 s39, s4, {28 if opt.get('bal', 0) else 24}")
    g("s_cmp_eq_u32 s69, 0")
    g("s_cselect_b32 s39, s39, s68")
    g("s_add_u32 s64, s39, 32")
    g(f"s_xor_b32 s67, s6, {XF2}")
    r3addr(g, 62, 67, 64, 39)
    g("v_lshrrev_b32 v3, 4, v0")
    g("v_lshlrev_b32 v3, 14, v3")
    g("v_bfe_u32 v1, v0, 1, 3")
    g("v_lshl_add_u32 v3, v1, 10, v3")
    g("v_lshl_add_u32 v3, v15, 4, v3")
    r3addr(g, 64, 4, None, 39)
    g("s_lshl_b32 s39, s5, 5")
    g("s_add_u32 s64, s64, s39")
    g("v_and_b32 v16, 1, v12")
    g("v_add_u32 v16, v16, v14")
    g("v_lshlrev_b32 v1, 1, v15")
    g("v_lshl_add_u32 v16, v16, 10, v1")
    g("s_lshl_b32 s66, s4, 7")
    g("s_lshl_b32 s39, s5, 2")
    g("s_add_u32 s66, s66, s39")
    g(f"buffer_load_dwordx2 v[20:21], v8, s[{SRD_B}:{SRD_B+3}], s57 offen")
    g.srd(SRD_B, P_B2, 1024)
    g(f"buffer_load_ushort v17, v16, s[{SRD_C}:{SRD_C+3}], s66 offen")
    g(f"buffer_load_ushort v18, v1, s[{SRD_B}:{SRD_B+3}], s66 offen")
    g.srd(SRD_A, P_OUT, 4096)
    if opt.get("otouch", 0):
        g(f"buffer_load_ushort v124, v16, s[{SRD_A}:{SRD_A+3}], s66 offen {'nt' if opt.get('otouch') == 2 else ''}")
    g(f"s_mov_b32 s57, {hex(f2u(-1.4426950408889634))}")
    g(f"v_mov_b32 v2, {L_FL}")
    widetags(g, 116)
    for r in range(4):
        g(f"v_mov_b32 v{96+r}, v{(11, 116, 117, 11)[r]}")
    pass
    flagwait1(g, "L_hg", 2, F_P if opt.get("hgate", 0) else F_Q, 12)
    g("s_mov_b32 s97, 0")
    def hld():
        for kp in range(8):
            g(f"buffer_load_dwordx4 v[{56+4*kp}:{59+4*kp}], v10, {W}, s{58+(kp>>2)} offen offset:{(kp&3)*1024} {SC}")
    if NEAR:
        g(f"s_mov_b32 s56, {PB_WS}")
        g(f"buffer_load_dwordx4 v[24:27], v10, {W}, s56 offen {SC}")
    g("s_cmp_eq_u32 s69, 0")
    g("s_cbranch_scc1 L_noh")
    hld()
    g.label("L_noh")
    if NEAR:
        g(f"s_and_b32 s39, s{S_E1}, 0x1fffff")
        g("v_mov_b32 v28, s39")
        g("v_lshrrev_b32 v29, 1, v0")
        g("v_xor_b32 v29, v29, v0")
        g("v_and_b32 v29, 1, v29")
        g("v_cmp_ne_u32 s[38:39], 0, v29")
        g("s_cmp_eq_u32 s69, 0")
        g("s_cbranch_scc1 L_pb0")
        g("s_waitcnt vmcnt(8)")
        g("s_branch L_pb")
        g.label("L_pb0")
        g("s_waitcnt vmcnt(0)")
        g.label("L_pb")
        g("v_bitop3_b32 v29, v24, v25, v28 bitop3:0x7e")
        g("v_bitop3_b32 v30, v26, v27, v28 bitop3:0x7e")
        g("v_or_b32 v29, v29, v30")
        g("v_lshlrev_b32 v29, 11, v29")
        g("v_cmp_ne_u32 vcc, 0, v29")
        g("s_cbranch_vccz L_pbok")
        spin(g, "L_pbok")
        g("s_sleep 8")
        g(f"buffer_load_dwordx4 v[24:27], v10, {W}, s56 offen {SC}")
        g("s_branch L_pb0")
        g.label("L_pbok")
        for i in range(4):
            g(f"v_lshrrev_b32 v{24+i}, 21, v{24+i}")
        g("v_add3_u32 v24, v24, v25, v26")
        g("v_add_u32 v24, v24, v27")
        g("v_sub_u32 v25, 0, v24")
        g("v_cndmask_b32 v24, v24, v25, s[38:39]")
        for c in ("row_ror:8", "row_ror:4", "row_ror:2", "row_ror:1"):
            g("s_nop 1")
            g(f"v_add_u32_dpp v24, v24, v24 {c} {DPPM}")
        g("s_nop 1")
        g("v_add_u32_dpp v24, v24, v24 row_bcast:15 row_mask:0xa bank_mask:0xf")
        g("s_nop 1")
        g("v_add_u32_dpp v24, v24, v24 row_bcast:31 row_mask:0xc bank_mask:0xf")
        g("s_nop 0")
        g("v_readlane_b32 s56, v24, 63")
        g("s_nop 2")
        g("s_cmp_gt_i32 s56, 0")
        g("s_cselect_b32 s56, 0x10f, 0")
        g("s_cselect_b32 s39, 0, 0x1f0")
        g("s_or_b32 s56, s56, s39")
        if "fixnb" in opt: g(f"s_movk_i32 s56, {0x100 | opt['fixnb']}")
        if opt.get("stamps"): g("s_mov_b32 s99, s56")
        g("v_mov_b32 v24, s56")
        g(f"ds_write_b32 v2, v24 offset:{F_NB}")
        r3par(g, 62, 67, 56, 39)
        r3par(g, 64, 4, 56, 39)
        g("s_mov_b32 s97, 0")
        g("s_waitcnt lgkmcnt(0)")
    g("s_add_u32 s65, s64, 65536")
    g("s_cmp_eq_u32 s69, 0")
    g("s_barrier")
    g("s_cbranch_scc1 L_w8_fin")
    g.label("L_h")
    g("s_waitcnt vmcnt(0)")
    g("v_lshlrev_b32 v88, 16, v20")
    g("v_and_b32 v89, 0xffff0000, v20")
    g("v_lshlrev_b32 v90, 16, v21")
    g("v_and_b32 v91, 0xffff0000, v21")
    tagcheck(g, list(range(56, 88)), 11, list(range(100, 116)))
    g("s_cbranch_vccz L_hok")
    spin(g, "L_hok")
    hld()
    g("s_branch L_h")
    g.label("L_hok")
    g.stamp(5)
    untag(g, range(56, 88))
    for (a, b) in ((56, 60), (64, 68), (72, 76), (80, 84), (56, 64), (72, 80), (56, 72)):
        g(f"v_pk_add_f32 v[{a}:{a+1}], v[{a}:{a+1}], v[{b}:{b+1}]")
        g(f"v_pk_add_f32 v[{a+2}:{a+3}], v[{a+2}:{a+3}], v[{b+2}:{b+3}]")
    def unp():
        g("v_cvt_pk_bf16_f32 v60, v56, v57")
        g("v_cvt_pk_bf16_f32 v61, v58, v59")
        g("v_lshlrev_b32 v56, 16, v60")
        g("v_and_b32 v57, 0xffff0000, v60")
        g("v_lshlrev_b32 v58, 16, v61")
        g("v_and_b32 v59, 0xffff0000, v61")
    unp()
    g("v_pk_add_f32 v[56:57], v[56:57], v[88:89]")
    g("v_pk_add_f32 v[58:59], v[58:59], v[90:91]")
    unp()
    for i in range(4):
        g(f"v_max_f32 v{56+i}, 0, v{56+i}")
    g("v_pk_mul_f32 v[56:57], v[56:57], v[56:57]")
    g("v_pk_mul_f32 v[58:59], v[58:59], v[58:59]")
    g("v_cvt_pk_bf16_f32 v60, v56, v57")
    g("v_cvt_pk_bf16_f32 v61, v58, v59")
    g("ds_write_b64 v9, v[60:61]")
    g("ds_read_b128 v[64:67], v19")
    g("ds_read_b128 v[68:71], v19 offset:64")
    if opt.get("trl", 2): flagwait4(g, "L_w2w", 2, F_OP, 72)
    g.stamp(4)
    for t in range(2):
        for u in range(4):
            r = 24 + 16*t + 4*u
            g(f"ds_read_b64_tr_b16 v[{r}:{r+1}], v{4+u} offset:{L_W2 - 65536 + t*4096}")
            g(f"ds_read_b64_tr_b16 v[{r+2}:{r+3}], v{4+u} offset:{L_W2 - 65536 + t*4096 + 2048}")
    for t in range(2):
        for u in range(4):
            g(f"s_waitcnt lgkmcnt({14 - 8*t - 2*u})")
            r = 24 + 16*t + 4*u
            d = 72 + 4*u
            c = "0" if t == 0 else f"v[{d}:{d+3}]"
            g(f"v_mfma_f32_16x16x32_bf16 v[{d}:{d+3}], v[{64+4*t}:{67+4*t}], v[{r}:{r+3}], {c}")
    g("s_nop 3")
    select4(g, 96, 72, 11, tags=(11, 116, 117, 11))
    g.label("L_w8_fin")
    g.stamp(6)
    g("s_barrier")
    g(f"buffer_store_dwordx4 v[96:99], v10, {W}, s62 offen {SC}")

    g("s_mov_b32 s97, 0")
    g("s_waitcnt vmcnt(1)")
    g("v_lshlrev_b32 v17, 16, v17")
    g("v_lshlrev_b32 v18, 16, v18")
    if opt.get("df", 13):
        g(f"s_sleep {opt.get('df', 13)}")
    else:
        g("s_waitcnt vmcnt(0)")
    FL = opt.get("fl", SC).replace("+", " ")
    if opt.get("fp", 0):
        g(f"buffer_load_dwordx4 v[24:27], v3, {W}, s64 offen {FL}")
        g(f"buffer_load_dwordx4 v[40:43], v3, {W}, s65 offen {FL}")
        g(f"s_sleep {opt['fp']}")
        g(f"buffer_load_dwordx4 v[48:51], v3, {W}, s64 offen {FL}")
        g(f"buffer_load_dwordx4 v[52:55], v3, {W}, s65 offen {FL}")
        g("s_waitcnt vmcnt(2)")
        xorcheck(g, [24, 40, 25, 41, 26, 42, 27, 43], [11, 11, 116, 116, 117, 117, 11, 11], list(range(44, 48)))
        g("s_cbranch_vccz L_fok")
        g("s_waitcnt vmcnt(0)")
        for i in range(4):
            g(f"v_mov_b32 v{24+i}, v{48+i}")
            g(f"v_mov_b32 v{40+i}, v{52+i}")
        g("s_branch L_f2")
    g.label("L_f")
    g(f"buffer_load_dwordx4 v[24:27], v3, {W}, s64 offen {FL}")
    g(f"buffer_load_dwordx4 v[40:43], v3, {W}, s65 offen {FL}")
    spin(g, "L_fok")
    g("s_waitcnt vmcnt(0)")
    g.label("L_f2")
    xorcheck(g, [24, 40, 25, 41, 26, 42, 27, 43], [11, 11, 116, 116, 117, 117, 11, 11], list(range(44, 48)))
    if opt.get("sf", 0):
        g("s_cbranch_vccz L_fok")
        if opt.get("sf", 0): g(f"s_sleep {opt['sf']}")
        g("s_branch L_f")
    else:
        g("s_cbranch_vccnz L_f")
    g.label("L_fok")
    g.stamp(7)
    for i in range(4):
        g(f"v_permlane32_swap_b32 v{24+i}, v{40+i}")
    g("v_pk_add_f32 v[24:25], v[24:25], v[40:41]")
    g("v_pk_add_f32 v[26:27], v[26:27], v[42:43]")
    g("s_nop 0")
    g("v_permlane16_swap_b32 v24, v25")
    g("v_permlane16_swap_b32 v26, v27")
    g("v_add_f32 v24, v24, v25")
    g("v_add_f32 v26, v26, v27")
    for c in ("row_ror:8", "row_ror:4", "row_ror:2"):
        g("s_nop 0")
        g(f"v_add_f32_dpp v24, v24, v24 {c} {DPPM}")
        g(f"v_add_f32_dpp v26, v26, v26 {c} {DPPM}")
    g("v_cndmask_b32 v24, v24, v26, s[60:61]")
    rnd(g, 24, 24)
    g("v_add_f32 v25, v24, v18")
    rnd(g, 25, 25)
    g("v_mul_f32 v26, s57, v25")
    g("v_exp_f32 v26, v26")
    g("s_nop 0")
    g("v_add_f32 v26, 1.0, v26")
    g("v_rcp_f32 v26, v26")
    g("s_nop 0")
    g("v_mul_f32 v26, v25, v26")
    rnd(g, 26, 26)
    g("s_nop 1")
    g("v_permlane32_swap_b32 v26, v27")
    g("s_mov_b32 exec_lo, 0x000f000f")
    g("s_mov_b32 exec_hi, 0")
    g("v_mul_f32 v24, v24, v27")
    rnd(g, 24, 24)
    g("v_add_f32 v24, v24, v17")
    g("v_cvt_pk_bf16_f32 v24, v24, v24")
    if not opt.get("noout"): g(f"buffer_store_short v24, v16, s[{SRD_A}:{SRD_A+3}], s66 offen {opt.get('of', '').replace('+', ' ')}")
    g.stamp(8)
    hevhold()
    if opt.get("hold"):
        g(f"s_cmp_eq_u32 s2, {opt.get('holdwg', 0)}")
        g("s_cbranch_scc0 L_nohold")
        g.label("L_hold")
        g("s_memrealtime s[72:73]")
        g("s_waitcnt lgkmcnt(0)")
        g("s_sub_u32 s72, s72, s70")
        g(f"s_cmp_lt_u32 s72, {opt['hold']}")
        g("s_cbranch_scc1 L_hold")
        g.label("L_nohold")
    g("s_cmp_eq_u32 s2, 0")
    g("s_cbranch_scc0 L_end")
    g(f"v_mov_b32 v24, s{S_E1}")
    g("v_mov_b32 v25, 0")
    g("s_mov_b64 exec, 1")
    g(f"buffer_store_dword v24, v25, {W}, 0 offen {opt.get('ef', '')}")
    g.label("L_end")
    if opt.get("stamps"):
        g("s_memrealtime s[88:89]")
        g("s_waitcnt lgkmcnt(0)")
        g("s_mov_b64 exec, 1")
        g("s_mul_i32 s38, s2, 9")
        g("s_add_u32 s38, s38, s3")
        g("s_lshl_b32 s38, s38, 6")
        g(f"s_add_u32 s38, s38, {ST_WS}")
        for k in range(10):
            g(f"v_mov_b32 v{4+k}, s{70+2*k}")
        g("v_mov_b32 v14, s97")
        g("v_mov_b32 v15, s99")
        g("v_mov_b32 v1, 0")
        g(f"buffer_store_dwordx4 v[4:7], v1, {W}, s38 offen")
        g(f"buffer_store_dwordx4 v[8:11], v1, {W}, s38 offen offset:16")
        g(f"buffer_store_dwordx4 v[12:15], v1, {W}, s38 offen offset:32")
    g.label("L_exit")
    C = {'L_notln': 'waves 4..9', 'L_w8i': 'W8 start: pull a share of the kernel text into L2, clear the LDS flags', 'L_kv': 'W4-7: K stream (page-rotated linear sweep over the 1024-key window)', 'L_ln': 'W0-3: w1 quarter, LayerNorm of row w -> LDS', 'L_w9': 'W9: latency of one cold line, then walk the instruction-cache pads', 'L_w0': 'W8: XCD id out, q partial = xn @ wq tile', 'L_xc': 'W8: are all workgroups of the group on this XCD?', 'L_att': 'W4-7: wo, V, w2 stream; P.V for 32 of the 128 dims; publish o', 'L_ln_done': 'W0-3 after LayerNorm; W1: h partial = xn @ w1 tile', 'L_qk': 'W0-3: gather q, scores, max exchange, probabilities', 'L_wo_b3': 'W0-3: combine the 8 splits of batch w, multiply by the wo tile, publish', 'L_w8': 'W8: FFN second half and final reduction', 'L_f': 'W8: gather 32 attention + 32 FFN partials, out = x + s * silu(ffn + b2)'}
    lines = []
    for x in g.L:
        if not x.strip(): continue
        if x.endswith(":") and x[:-1] in C: lines.append("; ---- " + C[x[:-1]])
        lines.append(x)
    return finish(lines, opt)

def finish(lines, opt):
    if not opt.get("touch", 1):
        return G1.text(lines)
    sz = _sizes(lines)
    out = []; pos = 0; nxt = 1024; n = 0
    for l, z in zip(lines, sz):
        if z and pos >= nxt:
            assert pos - nxt <= 56
            out.append(None); n += 1; pos += 4; nxt += 1024
        out.append(l); pos += z
    first = opt.get("pad0", 1)
    split = opt.get("pad1", 4)
    res = []; k = 0
    for l in out:
        if l is None:
            tgt = "L_w8b" if k + 1 == split else (f"L_pad{k+1}" if k + 1 < n else "L_w3b")
            if k == first: res.append("L_chain0:")
            if k == split: res.append("L_chain1:")
            res.append(f"L_pad{k}:")
            res.append(f"    s_cbranch_execz {tgt}")
            k += 1
        else:
            res.append(l)
    return G1.text(res)

if __name__ == "__main__":
    out = sys.argv[1]
    opt = {}
    for a in sys.argv[2:]:
        k, v = a.split("=")
        try: v = int(v)
        except ValueError: pass
        opt[k] = v
    open(out, "w").write(gen(opt))
```

```python
import sys, struct
from gen import f2u, G, tagcheck, rnd, wave_sum, tile_voff, tile_raddr, tile_dma, NAME, sizes as _sizes
import gen as G1

PR_WS  = 0x2000
QA_WS  = 0x8000
H_WS   = 0x48000
O_WS   = 0x80000
R3_WS  = 0x100000
XC_WS  = 0x200000
PB_WS  = 0x201000
M_WS   = 0x204000
ST_WS  = 0x300000
WS_BYTES = 0x400000

L_K, L_V, L_WQ, L_WO, L_W1, L_W2, L_XN = 0, 32768, 65536, 81920, 98304, 106496, 114688
XN_STR = 1088
L_QL = L_XN + 4352
QL_STR = 320
L_OC = L_QL + 1280
OC_H, OC_W = 528, 2112
L_ML = L_OC + 8448
L_FL = L_ML + 128
L_OL = L_FL + 192
L_HL = L_OL + 1280
HL_STR = 192
LDS_BYTES = L_HL + 768
G1.LDS_BYTES = LDS_BYTES

P_X, P_K, P_V, P_WQ, P_WO, P_BX, P_W1, P_B1, P_W2, P_B2, P_OUT, P_DBG, P_WS = 8, 10, 12, 14, 16, 18, 20, 22, 24, 26, 28, 30, 32
S_E, S_T, S_E1, S_LO = 34, 35, 36, 37
SRD_A, SRD_B, SRD_W, SRD_C = 40, 44, 48, 52
SPIN_MAX = 1 << 18
W = f"s[{SRD_W}:{SRD_W+3}]"
SC = "sc1"
DPPM = "row_mask:0xf bank_mask:0xf"

def epoch(g, vT):
    g(f"s_add_u32 s{S_E1}, s{S_E}, 1")
    g(f"s_and_b32 s{S_T}, s{S_E1}, s{S_LO}")
    g(f"v_mov_b32 v{vT}, s{S_T}")

def spin(g, lab_out, lds=False):
    r, mx = (63, 1 << 22) if lds else (97, SPIN_MAX)
    g(f"s_add_u32 s{r}, s{r}, 1")
    g(f"s_cmp_gt_u32 s{r}, {mx}")
    g(f"s_cbranch_scc1 {lab_out}")

def selmasks(g, vsel):
    for k in (1, 2, 3):
        g(f"v_cmp_eq_u32 s[{88+2*k}:{89+2*k}], {k}, v{vsel}")

def select4(g, d, D, vT, tags=None):
    for k in (1, 2, 3):
        for r in range(4):
            src = D + r if k == 1 else d + r
            g(f"v_cndmask_b32 v{d+r}, v{src}, v{D+4*k+r}, s[{88+2*k}:{89+2*k}]")
    for r in range(4):
        g(f"v_bfi_b32 v{d+r}, s{S_LO}, v{tags[r] if tags else vT}, v{d+r}")

def ffn_ids(g):
    g("s_lshr_b32 s7, s5, 3")
    g("s_mul_i32 s68, s4, 3")
    g("s_min_u32 s69, s4, 4")
    g("s_add_u32 s68, s68, s69")
    g("s_add_u32 s68, s68, s7")
    g("s_cmp_lt_u32 s4, 4")
    g("s_cselect_b32 s69, 4, 3")
    g("s_cmp_lt_u32 s7, s69")
    g("s_cselect_b32 s69, 1, 0")


def untag(g, regs):
    for r in regs:
        g(f"v_and_b32 v{r}, s98, v{r}")

def xorcheck(g, regs, vT, tmp):
    regs = list(regs)
    for k, r in enumerate(regs):
        g(f"v_xor_b32 v{r}, v{vT[k] if isinstance(vT, (list, tuple)) else vT}, v{r}")
    ts = regs; k = 0
    while len(ts) > 1:
        n = []; i = 0
        while i < len(ts):
            if len(ts) - i >= 3:
                g(f"v_or3_b32 v{tmp[k]}, v{ts[i]}, v{ts[i+1]}, v{ts[i+2]}"); n.append(tmp[k]); k += 1; i += 3
            elif len(ts) - i == 2 and len(n) != 2:
                g(f"v_or_b32 v{tmp[k]}, v{ts[i]}, v{ts[i+1]}"); n.append(tmp[k]); k += 1; i += 2
            else:
                n.append(ts[i]); i += 1
        ts = n
    g(f"v_and_b32 v{ts[0]}, 0x3ff, v{ts[0]}")
    g(f"v_cmp_ne_u32 vcc, 0, v{ts[0]}")

def ffn_ids2(g, bal):
    ffn_ids(g)
    if bal:
        g("s_lshl_b32 s99, s4, 2")
        g("s_sub_u32 s99, s99, 13")
        g("s_cmp_eq_u32 s7, 3")
        g("s_cselect_b32 s68, s99, s68")
        g("s_cselect_b32 s99, 1, 0")
        g("s_xor_b32 s69, s69, s99")

def widetags(g, d):
    g(f"v_mov_b32 v{d}, s{S_E1}")
    g(f"v_bfe_u32 v{d+1}, v{d}, 20, 10")
    g(f"v_bfe_u32 v{d}, v{d}, 10, 10")

def r3addr(g, d, c, rec, tmp):
    g(f"s_lshl_b32 s{d}, s{c}, 17")
    if rec is not None:
        g(f"s_lshr_b32 s{tmp}, s{rec}, 3")
        g(f"s_lshl_b32 s{tmp}, s{tmp}, 14")
        g(f"s_add_u32 s{d}, s{d}, s{tmp}")
        g(f"s_and_b32 s{tmp}, s{rec}, 7")
        g(f"s_lshl_b32 s{tmp}, s{tmp}, 10")
        g(f"s_add_u32 s{d}, s{d}, s{tmp}")
    g(f"s_add_u32 s{d}, s{d}, {R3_WS}")

def r3par(g, d, c, mask, tmp):
    g(f"s_lshr_b32 s{tmp}, s{mask}, s{c}")
    g(f"s_and_b32 s{tmp}, s{tmp}, 1")
    g(f"s_lshl_b32 s{tmp}, s{tmp}, 13")
    g(f"s_add_u32 s{d}, s{d}, s{tmp}")

def flagwait4(g, lab, vbase, off, tmp, pre=None, n=0, sleep=0):
    g.label(lab)
    if sleep: g(f"s_sleep {sleep}")
    g(f"ds_read_b128 v[{tmp}:{tmp+3}], v{vbase} offset:{off}")
    if pre: pre()
    spin(g, lab + "ok", lds=True)
    g(f"s_waitcnt lgkmcnt({n})")
    g(f"v_and_b32 v{tmp}, v{tmp}, v{tmp+1}")
    g(f"v_and_b32 v{tmp+2}, v{tmp+2}, v{tmp+3}")
    g(f"v_and_b32 v{tmp}, v{tmp}, v{tmp+2}")
    g(f"v_cmp_eq_u32 vcc, 0, v{tmp}")
    g(f"s_cbranch_vccnz {lab}")
    g.label(lab + "ok")

def flagwait1(g, lab, vbase, off, tmp, sdst=None, sleep=1):
    g.label(lab)
    if sleep: g(f"s_sleep {sleep}")
    g(f"ds_read_b32 v{tmp}, v{vbase} offset:{off}")
    spin(g, lab + "ok", lds=True)
    g("s_waitcnt lgkmcnt(0)")
    g(f"v_cmp_eq_u32 vcc, 0, v{tmp}")
    g(f"s_cbranch_vccnz {lab}")
    g.label(lab + "ok")
    if sdst is not None: g(f"v_readfirstlane_b32 s{sdst}, v{tmp}")

F_LNA, F_XC, F_QP, F_H, F_OP, F_Q, F_LNB, F_P, F_K, F_K2, F_WO, F_V1, F_OS, F_NB = 0, 16, 20, 24, 32, 48, 64, 80, 96, 112, 128, 144, 160, 28
L_HP = L_OC + 2048

def gen(opt):
    g = G(opt)
    g.role = "-"
    HEV = opt.get("hev")
    if HEV:
        def st(k):
            if HEV == f"{g.role}{k}": g("s_memrealtime s[70:71]")
        g.stamp = st
    hcount = [0]
    def hevhold():
        if HEV and HEV[0] == g.role:
            hcount[0] += 1
            n = hcount[0]
            g(f"s_cmp_eq_u32 s2, {opt.get('holdwg', 9)}")
            g(f"s_cbranch_scc0 L_nh{n}")
            g.label(f"L_hh{n}")
            g("s_memrealtime s[72:73]")
            g("s_waitcnt lgkmcnt(0)")
            g("s_sub_u32 s72, s72, s70")
            g("s_cmp_lt_u32 s72, 1500")
            g(f"s_cbranch_scc1 L_hh{n}")
            g.label(f"L_nh{n}")
    NT = opt.get("nt", "nt")
    XF = opt.get("xflags", "")
    THR = opt.get("thr", 3)
    THR2 = opt.get("thr2", 6)
    THR3 = opt.get("thr3", THR2)
    TOUCH = opt.get("touch", 1)
    PWF = opt.get("pwf", "")
    NEAR = opt.get("near", 1)
    G1.NWAVES = 10 if NEAR else 9
    g.stamp(0)
    if opt.get("hold"): g("s_memrealtime s[70:71]")
    g("s_cmp_ge_u32 s2, 256")
    g("s_cbranch_scc1 L_exit")
    g("s_load_dwordx16 s[8:23], s[0:1], 0")
    g("s_load_dwordx8 s[24:31], s[0:1], 64")
    g("s_load_dwordx2 s[32:33], s[0:1], 96")
    g("v_lshrrev_b32 v1, 6, v0")
    g("v_and_b32 v0, 63, v0")
    g("v_readfirstlane_b32 s3, v1")
    g("s_and_b32 s4, s2, 7")
    g("s_lshr_b32 s5, s2, 3")
    g(f"s_movk_i32 s{S_LO}, 0x3ff")
    g("s_movk_i32 s98, 0xfc00")
    g("s_cmp_lt_u32 s3, 4")
    g("s_cbranch_scc0 L_notln")
    g("v_lshlrev_b32 v12, 4, v0")
    g("s_lshl_b32 s39, s3, 10")
    WIDE = opt.get("wide", 0)
    tile_voff(g, 2, 3, 8192)
    if WIDE & 1:
        g("v_lshrrev_b32 v3, 4, v0")
        g("v_and_b32 v100, 15, v0")
        g("v_lshlrev_b32 v100, 4, v100")
        g("v_lshl_add_u32 v100, v3, 13, v100")
        g("s_lshr_b32 s7, s5, 2")
        g("s_lshl_b32 s38, s7, 19")
        g("s_lshl_b32 s56, s3, 17")
        g("s_add_u32 s38, s38, s56")
        g("s_lshl_b32 s56, s4, 10")
        g("s_add_u32 s38, s38, s56")
        g("s_and_b32 s56, s5, 3")
        g("s_lshl_b32 s56, s56, 8")
        g("s_add_u32 s38, s38, s56")
    else:
        g("s_lshr_b32 s7, s5, 3")
        g("s_lshl_b32 s38, s7, 20")
        g("s_lshl_b32 s56, s3, 18")
        g("s_add_u32 s38, s38, s56")
        g("s_lshl_b32 s56, s4, 10")
        g("s_add_u32 s38, s38, s56")
        g("s_and_b32 s56, s5, 7")
        g("s_lshl_b32 s56, s56, 7")
        g("s_add_u32 s38, s38, s56")
    g("s_lshl_b32 s56, s3, 12")
    g(f"s_mov_b32 s{SRD_C+2}, 4096")
    g(f"s_mov_b32 s{SRD_C+3}, 0x20000")
    g(f"s_mov_b32 s{SRD_A+2}, {hex(512*4096*2)}")
    g(f"s_mov_b32 s{SRD_A+3}, 0x20000")
    g("s_waitcnt lgkmcnt(0)")
    g(f"s_mov_b32 s{SRD_C}, s{P_X}")
    g(f"s_mov_b32 s{SRD_C+1}, s{P_X+1}")
    g(f"buffer_load_dwordx4 v[4:7], v12, s[{SRD_C}:{SRD_C+3}], s39 offen {XF}")
    g(f"s_mov_b32 s{SRD_A}, s{P_WQ}")
    g(f"s_mov_b32 s{SRD_A+1}, s{P_WQ+1}")
    if WIDE & 1: tile_dma(g, 4, 100, SRD_A, 38, (56, L_WQ), 4096, NT)
    else: tile_dma(g, 4, 2, SRD_A, 38, (56, L_WQ), 8192, NT)
    g("s_barrier")
    g("s_branch L_ln")
    g.label("L_notln")
    g("s_cmp_lt_u32 s3, 8")
    g("s_cbranch_scc1 L_kv")
    if NEAR:
        g("s_cmp_eq_u32 s3, 8")
        g("s_cbranch_scc1 L_w8i")
        g("s_waitcnt lgkmcnt(0)")
        g(f"s_load_dword s{S_E}, s[{P_WS}:{P_WS+1}], 0")
        g("s_barrier")
        g("s_branch L_w9")
        g.label("L_w8i")
    if opt.get("cpf", 1):
        g("s_getpc_b64 s[64:65]")
        g.label("L_pc")
        g("s_and_b32 s6, s5, 7")
        g(f"s_mul_i32 s6, s6, {24*64}")
        g(f"s_sub_u32 s6, s6, L_pc-{NAME}_kernel")
        g("s_ashr_i32 s7, s6, 31")
        g("s_add_u32 s64, s64, s6")
        g("s_addc_u32 s65, s65, s7")
        g("v_lshlrev_b32 v3, 6, v0")
        g("s_mov_b64 exec, 0xffffff")
        g("global_load_dword v125, v3, s[64:65]")
        g("s_mov_b64 exec, -1")
    g("v_lshlrev_b32 v3, 2, v0")
    g(f"v_add_u32 v3, {L_ML}, v3")
    g("v_cmp_gt_u32 vcc, 16, v0")
    g("s_nop 1")
    g("v_cndmask_b32 v4, 0, -1, vcc")
    g("ds_write_b32 v3, v4")
    g("v_mov_b32 v4, 0")
    g("s_mov_b64 exec, 0xffff")
    g("ds_write_b32 v3, v4 offset:256")
    g("s_mov_b64 exec, -1")
    g("s_waitcnt lgkmcnt(0)")
    g(f"s_load_dword s{S_E}, s[{P_WS}:{P_WS+1}], 0")
    g("s_barrier")
    g("s_branch L_w0")
    g.role = "a"
    g.label("L_kv")
    g("s_sub_u32 s3, s3, 4")
    g("v_lshrrev_b32 v8, 4, v0")
    g("v_and_b32 v9, 15, v0")
    g("v_xor_b32 v2, v9, v8")
    g("v_lshlrev_b32 v2, 4, v2")
    g("v_lshl_add_u32 v2, v8, 8, v2")
    for i in (1, 2, 3):
        g(f"v_xor_b32 v{2+i}, {64*i}, v2")
    g("s_lshr_b32 s6, s5, 3")
    g("s_and_b32 s7, s5, 7")
    g("s_lshl_b32 s38, s6, 3")
    g("s_add_u32 s38, s38, s4")
    g("s_lshl_b32 s38, s38, 20")
    g("s_lshl_b32 s56, s3, 10")
    g("s_add_u32 s38, s38, s56")
    g(f"s_add_u32 s38, s38, {768*1024}")
    g("s_lshl_b32 s56, s3, 13")
    g("s_lshl_b32 s64, s7, 12")
    g("s_mov_b32 s66, s38")
    g(f"s_mov_b32 s{SRD_A+2}, {hex(4*8*4096*128*2)}")
    g(f"s_mov_b32 s{SRD_A+3}, 0x20000")
    g("s_waitcnt lgkmcnt(0)")
    g(f"s_mov_b32 s{SRD_A}, s{P_K}")
    g(f"s_mov_b32 s{SRD_A+1}, s{P_K+1}")
    B0L = opt.get("b0l", 0)
    if not B0L:
        g(f"s_load_dword s{S_E}, s[{P_WS}:{P_WS+1}], 0")
        g("s_barrier")
    g.stamp(1)
    def kvld(i, isv, th):
        if i % 4 == 0: g(f"s_add_u32 m0, s56, {(L_V if isv else L_K) + i*1024}")
        g("s_add_u32 s39, s64, s66")
        g("s_add_u32 s64, s64, 4096")
        g("s_and_b32 s64, s64, 0x7000")
        g(f"s_add_u32 s66, s66, {32768 + (3072 if i % 4 == 3 else -1024)}")
        if th: g(f"s_waitcnt vmcnt({th-1})")
        vo = 6 + (i & 1) if isv else 2 + (i & 3)
        g(f"buffer_load_dwordx4 v{vo}, s[{SRD_A}:{SRD_A+3}], s39 offen offset:{(i&3)*1024} {NT} lds")
    for i in range(8):
        if B0L and i == THR:
            g(f"s_load_dword s{S_E}, s[{P_WS}:{P_WS+1}], 0")
            g("s_barrier")
        kvld(i, 0, THR if i >= THR else 0)
    g("s_branch L_att")
    g.role = "l"
    g.label("L_ln")
    ffn_ids(g)
    g(f"s_mov_b32 s{SRD_B+3}, 0x20000")
    g(f"s_mul_i32 s{SRD_B+2}, s69, {512*1792*2}")
    g("v_lshrrev_b32 v3, 3, v0")
    g(f"v_mul_u32_u24 v3, {8192-3584}, v3")
    g("v_sub_u32 v2, v2, v3")
    g("s_and_b32 s38, s5, 7")
    g("s_lshl_b32 s38, s38, 2")
    g("s_add_u32 s38, s38, s3")
    g(f"s_mul_i32 s38, s38, {16*3584}")
    g("s_lshl_b32 s39, s68, 7")
    g("s_add_u32 s38, s38, s39")
    g("s_lshl_b32 s56, s3, 11")
    g(f"s_mov_b32 s{SRD_B}, s{P_W1}")
    g(f"s_mov_b32 s{SRD_B+1}, s{P_W1+1}")
    tile_dma(g, 2, 2, SRD_B, 38, (56, L_W1), 3584, NT)
    g(f"s_load_dword s{S_E}, s[{P_WS}:{P_WS+1}], 0")
    g.srd(SRD_W, P_WS, WS_BYTES)
    g("v_lshrrev_b32 v2, 2, v0")
    g("v_lshlrev_b32 v2, 6, v2")
    g("v_and_b32 v3, 1, v0")
    g("v_lshl_add_u32 v2, v3, 5, v2")
    g("v_and_b32 v3, 2, v0")
    g("v_lshl_add_u32 v2, v3, 2, v2")
    g(f"s_mul_i32 s38, s3, {XN_STR}")
    g(f"s_add_u32 s38, s38, {L_XN}")
    g("v_add_u32 v2, s38, v2")
    g("s_lshl_b32 s38, s3, 2")
    g(f"s_add_u32 s38, s38, {L_FL}")
    g("v_mov_b32 v9, s38")
    g("v_mov_b32 v10, 1")
    g(f"v_mov_b32 v21, {hex(f2u(1.0/512))}")
    g("s_waitcnt vmcnt(6)")
    g.stamp(1)
    for i in range(4):
        g(f"v_lshlrev_b32 v{12+2*i}, 16, v{4+i}")
        g(f"v_and_b32 v{13+2*i}, 0xffff0000, v{4+i}")
    g("v_pk_add_f32 v[22:23], v[12:13], v[14:15]")
    g("v_pk_add_f32 v[24:25], v[16:17], v[18:19]")
    g("v_pk_add_f32 v[22:23], v[22:23], v[24:25]")
    g("v_add_f32 v20, v22, v23")
    wave_sum(g, 20, 38)
    g("s_nop 1")
    g("v_mul_f32 v20, s38, v21")
    for i in range(8):
        g(f"v_sub_f32 v{24+i}, v{12+i}, v20")
    g("v_mul_f32 v22, v24, v24")
    g("v_mul_f32 v23, v25, v25")
    for i in range(1, 4):
        g(f"v_fmac_f32 v22, v{24+2*i}, v{24+2*i}")
        g(f"v_fmac_f32 v23, v{25+2*i}, v{25+2*i}")
    g("v_add_f32 v22, v22, v23")
    wave_sum(g, 22, 38)
    rnd(g, 20, 20)
    g("v_mul_f32 v22, s38, v21")
    rnd(g, 22, 22)
    g(f"v_add_f32 v22, {hex(f2u(1e-5))}, v22")
    rnd(g, 22, 22)
    g("v_sqrt_f32 v22, v22")
    for i in range(8):
        g(f"v_sub_f32 v{12+i}, v{12+i}, v20")
    rnd(g, 22, 22)
    g("v_rcp_f32 v22, v22")
    for i in range(4):
        g(f"v_cvt_pk_bf16_f32 v{4+i}, v{12+2*i}, v{13+2*i}")
    for i in range(4):
        g(f"v_lshlrev_b32 v{12+2*i}, 16, v{4+i}")
        g(f"v_and_b32 v{13+2*i}, 0xffff0000, v{4+i}")
    for i in range(8):
        g(f"v_mul_f32 v{12+i}, v{12+i}, v22")
    for i in range(4):
        g(f"v_cvt_pk_bf16_f32 v{4+i}, v{12+2*i}, v{13+2*i}")
    g("ds_write2_b64 v2, v[4:5], v[6:7] offset0:0 offset1:2")
    g("s_waitcnt vmcnt(2)")
    g(f"ds_write_b32 v9, v10 offset:{F_LNA}")
    g.stamp(2)
    g("s_waitcnt lgkmcnt(0)")
    epoch(g, 11)
    g("s_branch L_ln_done")
    if NEAR:
        g.label("L_w9")
        g("s_lshr_b32 s60, s2, 4")
        g("s_lshl_b32 s60, s60, 3")
        g("s_add_u32 s60, s60, s4")
        g("s_lshl_b32 s60, s60, 6")
        g("s_and_b32 s61, s5, 1")
        g("s_lshl_b32 s61, s61, 13")
        g("s_sub_u32 s60, s60, s61")
        g(f"s_add_u32 s60, s60, {PR_WS + 8192}")
        g.srd(SRD_W, P_WS, WS_BYTES)
        g("s_waitcnt lgkmcnt(0)")
        g("s_memtime s[90:91]")
        g("s_waitcnt lgkmcnt(0)")
        g(f"s_load_dword s61, s[{P_WS}:{P_WS+1}], s60")
        g("s_waitcnt lgkmcnt(0)")
        g("s_memtime s[94:95]")
        g(f"s_add_u32 s62, s{S_E}, 1")
        g("s_and_b32 s62, s62, 0x1fffff")
        g("s_lshl_b32 s63, s2, 2")
        g(f"s_add_u32 s63, s63, {PB_WS}")
        g("v_mov_b32 v21, 0")
        g("s_waitcnt lgkmcnt(0)")
        g("s_sub_u32 s94, s94, s90")
        g("s_lshr_b32 s94, s94, 3")
        g("s_min_u32 s94, s94, 0x7ff")
        g("s_lshl_b32 s94, s94, 21")
        g("s_or_b32 s94, s94, s62")
        g("v_mov_b32 v20, s94")
        g("s_mov_b64 exec, 1")
        g(f"buffer_store_dword v20, v21, {W}, s63 offen {SC}")
        if opt.get("stl", 1):
            g("s_lshr_b32 s60, s5, 3")
            g("s_lshl_b32 s60, s60, 3")
            g("s_add_u32 s60, s60, s4")
            g("s_lshl_b32 s60, s60, 20")
            g(f"s_add_u32 s60, s60, {768*1024}")
            g("s_lshl_b32 s61, s4, 19")
            g(f"s_load_dword s64, s[{P_WO}:{P_WO+1}], s61")
            g(f"s_load_dword s65, s[{P_V}:{P_V+1}], s60")
            g(f"s_load_dword s66, s[{P_W2}:{P_W2+1}], 0")
            g(f"s_load_dword s67, s[{P_OUT}:{P_OUT+1}], 0")
        if TOUCH:
            g("s_mov_b64 exec, 0")
            g("s_branch L_chain1")
            g.label("L_w3b")
        g("s_endpgm")
    g.role = "w"
    g.label("L_w0")
    g.srd(SRD_W, P_WS, WS_BYTES)
    g("s_getreg_b32 s57, hwreg(HW_REG_XCC_ID, 0, 3)")
    g("s_lshl_b32 s58, s4, 5")
    g("s_add_u32 s58, s58, s5")
    g("s_lshl_b32 s67, s58, 10")
    g("s_lshl_b32 s58, s58, 2")
    g(f"s_add_u32 s58, s58, {XC_WS}")
    g("v_mov_b32 v16, 0")
    if opt.get("tlb", 0):
        g("s_lshr_b32 s6, s5, 3")
        g("s_lshl_b32 s7, s6, 3")
        g("s_add_u32 s7, s7, s4")
        g("s_lshl_b32 s7, s7, 20")
        g(f"s_add_u32 s7, s7, {768*1024}")
        g("v_mov_b32 v13, s7")
        g("s_mov_b64 exec, 1")
        g(f"global_load_dword v124, v13, s[{P_V}:{P_V+1}] nt")
        g("s_lshl_b32 s7, s4, 19")
        g("v_mov_b32 v13, s7")
        g(f"global_load_dword v124, v13, s[{P_WO}:{P_WO+1}] nt")
        g(f"global_load_dword v124, v16, s[{P_W2}:{P_W2+1}] nt")
        g("s_mov_b64 exec, -1")
    g(f"s_add_u32 s56, s67, {QA_WS}")
    g("v_lshlrev_b32 v1, 4, v0")
    if opt.get("prew", 1): g(f"buffer_load_dwordx4 v[124:127], v1, {W}, s56 offen {PWF}")
    g("s_waitcnt lgkmcnt(0)")
    epoch(g, 11)
    g(f"s_and_b32 s56, s{S_E1}, 0x1fffffff")
    g("s_lshl_b32 s57, s57, 29")
    g("s_or_b32 s57, s57, s56")
    g("v_mov_b32 v12, s57")
    g("s_mov_b64 exec, 1")
    if not opt.get("noxc"): g(f"buffer_store_dword v12, v16, {W}, s58 offen {SC}")
    if TOUCH:
        g("s_mov_b64 exec, 0")
        g("s_branch L_chain0")
        g.label("L_w8b")
    g("s_mov_b64 exec, -1")
    g.srd(SRD_C, P_X, 4096)
    ffn_ids(g)
    g("s_lshr_b32 s6, s5, 3")
    g("s_and_b32 s7, s5, 7")
    tile_raddr(g, 4, 3)
    g("v_bfe_u32 v10, v0, 2, 2")
    g(f"v_mul_u32_u24 v8, {XN_STR}, v10")
    g("v_lshrrev_b32 v9, 4, v0")
    g("v_lshl_add_u32 v8, v9, 4, v8")
    g("s_lshl_b32 s39, s6, 8")
    g(f"s_add_u32 s39, s39, {L_XN}")
    g("v_add_u32 v8, s39, v8")
    g("v_lshlrev_b32 v10, 11, v10")
    g("v_lshl_add_u32 v10, v9, 6, v10")
    g("v_and_b32 v9, 3, v0")
    g("v_lshl_add_u32 v10, v9, 4, v10")
    selmasks(g, 9)
    g("s_lshl_b32 s38, s4, 15")
    g("s_lshl_b32 s39, s6, 13")
    g("s_add_u32 s38, s38, s39")
    g("s_lshl_b32 s39, s7, 8")
    g("s_add_u32 s38, s38, s39")
    g(f"s_add_u32 s38, s38, {QA_WS}")
    g("s_lshl_b32 s58, s4, 7")
    g(f"s_add_u32 s58, s58, {XC_WS}")
    g("v_and_b32 v3, 31, v0")
    g("v_lshlrev_b32 v3, 2, v3")
    g(f"v_mov_b32 v2, {L_FL}")
    g("v_mov_b32 v9, 1")
    g("s_mov_b32 s63, 0")
    g.stamp(1)
    flagwait4(g, "L_lnw", 2, F_LNA, 12)
    g("s_setprio 3")
    for t in range(4):
        g(f"ds_read_b128 v[{12+4*t}:{15+4*t}], v8 offset:{64*t}")
        for u in range(4):
            r = 60 + 16*t + 4*u
            g(f"ds_read_b64_tr_b16 v[{r}:{r+1}], v{4+u} offset:{L_WQ - 65536 + t*4096}")
            g(f"ds_read_b64_tr_b16 v[{r+2}:{r+3}], v{4+u} offset:{L_WQ - 65536 + t*4096 + 2048}")
        if t >= 1:
            tt = t - 1
            g("s_waitcnt lgkmcnt(9)")
            for u in range(4):
                r = 60 + 16*tt + 4*u
                c = "0" if tt == 0 else f"v[{44+4*u}:{47+4*u}]"
                g(f"v_mfma_f32_16x16x32_bf16 v[{44+4*u}:{47+4*u}], v[{r}:{r+3}], v[{12+4*tt}:{15+4*tt}], {c}")
    for u in range(4):
        r = 60 + 48 + 4*u
        g(f"s_waitcnt lgkmcnt({6-2*u})")
        g(f"v_mfma_f32_16x16x32_bf16 v[{44+4*u}:{47+4*u}], v[{r}:{r+3}], v[24:27], v[{44+4*u}:{47+4*u}]")
    g("s_nop 3")
    select4(g, 28, 44, 11)
    g(f"buffer_store_dwordx4 v[28:31], v10, {W}, s38 offen")
    g(f"ds_write_b32 v2, v9 offset:{F_QP}")
    g.stamp(2)
    g("s_setprio 0")
    g("s_mov_b32 s97, 0")
    pw0 = len(g.L)
    if opt.get("pwu", 0):
        g("s_and_b32 s56, s5, 3")
        g("s_cmp_eq_u32 s56, 3")
        g("s_cbranch_scc1 L_pwd")
        g("s_lshr_b32 s56, s5, 2")
        g("s_sub_u32 s59, s5, s56")
        g("s_mul_i32 s56, s59, 3072")
        g("s_min_u32 s56, s56, 62464")
        g("s_lshl_b32 s60, s4, 16")
        g("s_add_u32 s56, s56, s60")
        g(f"s_add_u32 s56, s56, {O_WS}")
        for i in range(3):
            g(f"buffer_load_dwordx4 v[124:127], v1, {W}, s56 offen offset:{1024*i} {PWF}")
        g("s_lshr_b32 s60, s5, 3")
        g("s_sub_u32 s60, s68, s60")
        g("s_lshl_b32 s60, s60, 13")
        g("s_mul_i32 s56, s59, 1408")
        g("s_cmp_lt_u32 s4, 4")
        g("s_cselect_b32 s61, 31360, 0")
        g("s_cselect_b32 s62, 0, 23168")
        g("s_or_b32 s61, s61, s62")
        g("s_min_u32 s56, s56, s61")
        g("s_add_u32 s56, s56, s60")
        g(f"s_add_u32 s56, s56, {H_WS}")
        g(f"buffer_load_dwordx4 v[124:127], v1, {W}, s56 offen {PWF}")
        g("s_mov_b64 exec, 0xffffff")
        g(f"buffer_load_dwordx4 v[124:127], v1, {W}, s56 offen offset:1024 {PWF}")
        g("s_and_b32 s59, s59, 15")
        g("s_lshl_b32 s59, s59, 7")
        g("s_lshl_b32 s60, s4, 11")
        g("s_add_u32 s59, s59, s60")
        g(f"s_add_u32 s59, s59, {M_WS}")
        g("s_mov_b64 exec, 0xff")
        g(f"buffer_load_dwordx4 v[124:127], v1, {W}, s59 offen {PWF}")
        g("s_mov_b64 exec, -1")
        g.label("L_pwd")
    else:
        g("s_lshl_b32 s56, s67, 1")
        g(f"s_add_u32 s56, s56, {O_WS}")
        g(f"buffer_load_dwordx4 v[124:127], v1, {W}, s56 offen {PWF}")
        g(f"buffer_load_dwordx4 v[124:127], v1, {W}, s56 offen offset:1024 {PWF}")
        g("s_lshl_b32 s56, s68, 3")
        g("s_add_u32 s56, s56, s7")
        g("s_lshl_b32 s56, s56, 10")
        g(f"s_add_u32 s56, s56, {H_WS}")
        g("s_lshr_b32 s59, s67, 4")
        g(f"s_add_u32 s59, s59, {M_WS}")
        g("s_cmp_ge_u32 s5, 24" if opt.get("bal", 0) else "s_cmp_eq_u32 s69, 0")
        g("s_cselect_b32 s56, s59, s56")
        g(f"buffer_load_dwordx4 v[124:127], v1, {W}, s56 offen {PWF}")
        g("s_mov_b64 exec, 15")
        g(f"buffer_load_dwordx4 v[124:127], v1, {W}, s59 offen {PWF}")
        g("s_mov_b64 exec, -1")
    if not opt.get("prew", 1): del g.L[pw0:]
    if opt.get("sx", 0): g(f"s_sleep {opt.get('sx', 0)}")
    if opt.get("noxc"):
        g("v_mov_b32 v20, s57")
    else:
        g(f"buffer_load_dword v20, v3, {W}, s58 offen {SC}")
        g("s_waitcnt vmcnt(0)")
    g.label("L_xc")
    g("v_xor_b32 v20, s57, v20")
    g("v_lshlrev_b32 v21, 3, v20")
    g("v_cmp_ne_u32 vcc, 0, v21")
    g("s_cbranch_vccz L_xcok")
    spin(g, "L_xcok")
    g(f"buffer_load_dword v20, v3, {W}, s58 offen {SC}")
    g("s_waitcnt vmcnt(0)")
    g("s_branch L_xc")
    g.label("L_xcok")
    g("v_cmp_ne_u32 vcc, 0, v20")
    g("s_cmp_lg_u64 vcc, 0")
    g("s_cselect_b32 s59, 2, 1")
    if opt.get("force_remote"):
        g("s_mov_b32 s59, 2")
    g("s_cmp_eq_u32 s59, 1")
    g("s_cbranch_scc1 L_xcl")
    g(f"buffer_store_dwordx4 v[28:31], v10, {W}, s38 offen {SC}")
    g.label("L_xcl")
    g("v_mov_b32 v20, s59")
    g(f"ds_write_b32 v2, v20 offset:{F_XC}")
    g.stamp(3)
    g("s_cmp_eq_u32 s69, 0")
    g("s_cbranch_scc1 L_w8")
    g("v_lshrrev_b32 v12, 4, v0")
    g("v_bfe_u32 v13, v0, 2, 2")
    g("v_and_b32 v14, 3, v0")
    g("v_lshlrev_b32 v12, 6, v12")
    g("v_lshl_add_u32 v12, v13, 8, v12")
    g("v_lshl_add_u32 v12, v14, 4, v12")
    g(f"v_add_u32 v13, {L_HP}, v1")
    g("s_lshl_b32 s56, s68, 3")
    g("s_add_u32 s56, s56, s7")
    g("s_lshl_b32 s56, s56, 10")
    g(f"s_add_u32 s56, s56, {H_WS}")
    flagwait1(g, "L_hw", 2, F_H, 14)
    g("ds_read_b128 v[20:23], v13")
    if opt.get("bal", 0):
        g("s_cmp_ge_u32 s5, 24")
        g("s_cselect_b32 s59, 2, s59")
    g("s_cmp_eq_u32 s59, 1")
    g("s_waitcnt lgkmcnt(0)")
    g("s_cbranch_scc0 L_hpub_rem")
    g(f"buffer_store_dwordx4 v[20:23], v12, {W}, s56 offen")
    g("s_branch L_w8")
    g.label("L_hpub_rem")
    g(f"buffer_store_dwordx4 v[20:23], v12, {W}, s56 offen {SC}")
    g("s_branch L_w8")
    g.role = "a"
    g.label("L_att")
    TRL = opt.get("trl", 2)
    def tile_dma_thr(n, voff, srd, ss, lb, stride, first=0):
        for i in range(first, n):
            if i == first: g(f"s_add_u32 m0, s{lb[0]}, {lb[1]}")
            if i: g(f"s_add_u32 s{ss}, s{ss}, {8*stride - 1024}")
            g(f"s_waitcnt vmcnt({(THR2 or 64)-1})")
            g(f"buffer_load_dwordx4 v{voff}, s[{srd}:{srd+3}], s{ss} offen offset:{i*1024} {NT} lds")
    g.srd(SRD_W, P_WS, WS_BYTES)
    g.srd(SRD_C, P_WO, 4096*512*2)
    tile_voff(g, 1, 10, 1024)
    g("s_lshl_b32 s60, s4, 2")
    g("s_add_u32 s60, s60, s6")
    g("s_lshl_b32 s60, s60, 17")
    g("s_lshl_b32 s61, s3, 15")
    g("s_add_u32 s60, s60, s61")
    XO, XF2 = (4, 2) if opt.get("perm", 1) else (0, 0)
    g(f"s_xor_b32 s62, s7, {XO}")
    g("s_lshl_b32 s62, s62, 7")
    g("s_add_u32 s93, s60, s62")
    g(f"s_xor_b32 s62, s62, {(XO ^ XF2) << 7}")
    if WIDE & 2:
        g("v_lshrrev_b32 v10, 4, v0")
        g("v_and_b32 v20, 15, v0")
        g("v_lshlrev_b32 v20, 4, v20")
        g("v_lshl_add_u32 v20, v10, 10, v20")
        g("s_lshl_b32 s60, s4, 3")
        g("s_lshr_b32 s61, s5, 2")
        g("s_add_u32 s60, s60, s61")
        g("s_lshl_b32 s60, s60, 16")
        g("s_lshl_b32 s61, s3, 14")
        g("s_add_u32 s60, s60, s61")
        g("s_and_b32 s61, s5, 3")
        g("s_lshl_b32 s61, s61, 8")
        g("s_add_u32 s93, s60, s61")
    g("s_lshl_b32 s65, s3, 12")
    QT = opt.get("qt", 6)
    if QT:
        g(f"v_mov_b32 v17, {L_FL}")
        g("s_lshl_b32 s60, s3, 2")
        g("v_add_u32 v18, s60, v17")
        g("v_mov_b32 v19, 1")
        g(f"s_waitcnt vmcnt({8-QT})")
        g(f"ds_write_b32 v18, v19 offset:{F_K2}")
    ld0 = len(g.L)
    if WIDE & 2: tile_dma_thr(4, 20, SRD_C, 93, (65, L_WO), 512)
    else: tile_dma_thr(4, 1, SRD_C, 93, (65, L_WO), 1024)
    if opt.get("kf", 6) == 4:
        g("s_waitcnt vmcnt(4)")
        g(f"ds_write_b32 v18, v19 offset:{F_K}")
    tile_dma_thr(2 - TRL, 1, SRD_B, 68, (69, L_W2), 1024)
    if opt.get("kf", 6) == 6:
        g(f"s_waitcnt vmcnt({6 - TRL})")
        g(f"ds_write_b32 v18, v19 offset:{F_K}")
    g(f"s_mov_b32 s{SRD_A}, s{P_V}")
    g(f"s_mov_b32 s{SRD_A+1}, s{P_V+1}")
    g("s_mov_b32 s66, s38")
    g.stamp(4)
    PRE = opt.get("pre", 1)
    for i in range(8):
        kvld(i, 1, (THR2 if i < 4 else THR3) or 64)
        if PRE and i == 5:
            g("s_waitcnt vmcnt(6)")
            g(f"ds_write_b32 v18, v19 offset:{F_WO}")
    if TRL: tile_dma_thr(2, 1, SRD_B, 68, (69, L_W2), 1024, first=2 - TRL)
    loads = g.L[ld0:]; del g.L[ld0:]
    g("s_mov_b32 s60, s7")
    ffn_ids2(g, opt.get("bal", 0))
    g("s_mov_b32 s7, s60")
    g(f"s_mov_b32 s{SRD_B}, s{P_W2}")
    g(f"s_mov_b32 s{SRD_B+1}, s{P_W2+1}")
    g(f"s_mul_i32 s{SRD_B+2}, s69, {1792*512*2}")
    g(f"s_mov_b32 s{SRD_B+3}, 0x20000")
    g("s_lshl_b32 s68, s68, 2")
    g("s_add_u32 s68, s68, s3")
    g("s_lshl_b32 s68, s68, 14")
    g("s_add_u32 s68, s68, s62")
    g("s_lshl_b32 s69, s3, 11")
    g("v_lshlrev_b32 v6, 1, v8")
    g("v_xor_b32 v6, v9, v6")
    g("v_lshlrev_b32 v6, 4, v6")
    g("v_lshl_add_u32 v6, v8, 8, v6")
    g("v_xor_b32 v7, 128, v6")
    g(f"v_mov_b32 v17, {L_FL}")
    g("s_lshl_b32 s60, s3, 2")
    g("v_add_u32 v18, s60, v17")
    g("v_mov_b32 v19, 1")
    nfirst = len(g.L) - ld0
    g("v_lshrrev_b32 v25, 2, v0")
    g("v_and_b32 v26, 7, v25")
    g("v_lshlrev_b32 v26, 5, v26")
    g("v_lshl_add_u32 v26, v25, 8, v26")
    g("v_and_b32 v14, 3, v0")
    g("v_lshl_add_u32 v14, v14, 3, v26")
    g("s_lshl_b32 s60, s3, 6")
    g("v_xor_b32 v14, s60, v14")
    g("v_xor_b32 v15, 32, v14")
    g("v_bfe_u32 v25, v0, 2, 2")
    g("v_lshlrev_b32 v28, 6, v25")
    g("v_lshl_add_u32 v28, v8, 4, v28")
    g(f"v_add_u32 v28, {L_OC}, v28")
    g("v_lshlrev_b32 v30, 14, v25")
    g("v_lshl_add_u32 v30, v8, 5, v30")
    g("v_and_b32 v16, 1, v0")
    g("v_lshl_add_u32 v30, v16, 4, v30")
    g("s_lshl_b32 s61, s4, 5")
    g("s_add_u32 s61, s61, s7")
    g("s_lshl_b32 s61, s61, 2")
    g("s_add_u32 s61, s61, s6")
    g("s_lshl_b32 s61, s61, 2")
    g("s_add_u32 s61, s61, s3")
    g("s_lshl_b32 s61, s61, 7")
    g(f"s_add_u32 s61, s61, {O_WS}")
    for r in range(80, 112):
        g(f"v_mov_b32 v{r}, 0")
    g("s_mov_b32 s63, 0"); g("s_mov_b32 s97, 0")
    g("s_waitcnt lgkmcnt(0)")
    epoch(g, 31)
    setup = g.L[ld0:]; del g.L[ld0:]
    per = -(-nfirst // 3)
    for x in loads:
        g.L.append(x)
        if "buffer_load" in x:
            g.L.extend(setup[:per]); setup = setup[per:]
    assert not setup
    g.stamp(3)
    flagwait4(g, "L_px", 17, F_P, 36, pre=lambda: g(f"ds_read_b32 v46, v17 offset:{F_XC}"), sleep=0)
    g("s_mov_b32 exec_lo, 0x55555555")
    g("s_mov_b32 exec_hi, 0x55555555")
    for t in range(4):
        g(f"ds_read_b128 v[{80+4*t}:{83+4*t}], v28 offset:{256*t}")
    g("s_not_b64 exec, exec")
    for t in range(4):
        g(f"ds_read_b128 v[{96+4*t}:{99+4*t}], v28 offset:{256*t}")
    g("s_mov_b64 exec, -1")
    g("v_readfirstlane_b32 s65, v46")
    g.stamp(2)
    def vrd(half):
        for t in range(4):
            for p in range(2):
                r = 48 + 8*t + 4*p + 2*half
                g(f"ds_read_b64_tr_b16 v[{r}:{r+1}], v{14+p} offset:{L_V + t*8192 + 4096*half}")
    if PRE:
        g(f"s_waitcnt vmcnt({TRL+4})")
        g(f"ds_write_b32 v18, v19 offset:{F_V1}")
        flagwait4(g, "L_v1", 17, F_V1, 36)
        vrd(0)
    g(f"s_waitcnt vmcnt({TRL}) lgkmcnt(0)")
    g.stamp(5)
    g("s_cmp_eq_u32 s65, 1")
    if opt.get("prio", 1): g("s_setprio 3")
    g("s_barrier")
    g.stamp(7)
    if not PRE: vrd(0)
    vrd(1)
    for t in range(4):
        for p in range(2):
            r = 48 + 8*t + 4*p
            k = 2*t + p
            g(f"s_waitcnt lgkmcnt({7-k})")
            g(f"v_mfma_f32_16x16x32_bf16 v[36:39], v[{r}:{r+3}], v[{80+16*p+4*t}:{83+16*p+4*t}], {'0' if k == 0 else 'v[36:39]'}")
    g("s_mov_b32 exec_lo, 0x33333333")
    g("s_mov_b32 exec_hi, 0x33333333")
    g("s_nop 4")
    g("s_cbranch_scc0 L_opub_rem")
    for rem in (0, 1):
        if rem: g.label("L_opub_rem")
        for r in range(4):
            g(f"v_bfi_b32 v{36+r}, s{S_LO}, v31, v{36+r}")
        g(f"buffer_store_dwordx4 v[36:39], v30, {W}, s61 offen {SC if rem else ''}")
        g(f"ds_write_b32 v18, v19 offset:{F_OS}")
        if TRL:
            g("s_waitcnt vmcnt(1)")
            g(f"ds_write_b32 v18, v19 offset:{F_OP}")
        g.stamp(8)
        if opt.get("stamps"):
            g("s_add_u32 s3, s3, 4")
            g("s_branch L_end")
        else:
            hevhold()
            g("s_endpgm")
    g.role = "l"
    g.label("L_ln_done")
    if TOUCH and not NEAR:
        g("s_cmp_eq_u32 s3, 3")
        g("s_cbranch_scc0 L_w3b")
        g("s_mov_b64 exec, 0")
        g("s_branch L_chain1")
        g.label("L_w3b")
        g("s_mov_b64 exec, -1")
    tile_raddr(g, 4, 3)
    g(f"v_mov_b32 v17, {L_FL}")
    g("s_mov_b32 s63, 0")
    g("s_waitcnt vmcnt(0)")
    g(f"ds_write_b32 v9, v10 offset:{F_LNB}")
    g("s_cmp_eq_u32 s3, 1")
    g("s_cbranch_scc0 L_qk")
    g("s_cmp_eq_u32 s69, 0")
    g("s_cbranch_scc1 L_qk")
    g("s_and_b32 s6, s5, 7")
    g("v_and_b32 v15, 3, v0")
    selmasks(g, 15)
    g("v_lshrrev_b32 v13, 4, v0")
    g("v_bfe_u32 v16, v0, 2, 2")
    g(f"v_mul_u32_u24 v14, {XN_STR}, v16")
    g("v_lshl_add_u32 v14, v13, 4, v14")
    g("s_lshl_b32 s39, s6, 7")
    g(f"s_add_u32 s39, s39, {L_XN}")
    g("v_add_u32 v14, s39, v14")
    g("v_lshlrev_b32 v13, 4, v0")
    g(f"v_add_u32 v13, {L_HP}, v13")
    flagwait4(g, "L_w1w", 17, F_LNB, 20, sleep=1)
    g("ds_read_b128 v[80:83], v14")
    g("ds_read_b128 v[84:87], v14 offset:64")
    for t in range(2):
        for u in range(4):
            r = 24 + 16*t + 4*u
            g(f"ds_read_b64_tr_b16 v[{r}:{r+1}], v{4+u} offset:{L_W1 - 65536 + t*4096}")
            g(f"ds_read_b64_tr_b16 v[{r+2}:{r+3}], v{4+u} offset:{L_W1 - 65536 + t*4096 + 2048}")
    for t in range(2):
        for u in range(4):
            r = 24 + 16*t + 4*u
            g(f"s_waitcnt lgkmcnt({14 - 8*t - 2*u})")
            c = "0" if t == 0 else f"v[{64+4*u}:{67+4*u}]"
            g(f"v_mfma_f32_16x16x32_bf16 v[{64+4*u}:{67+4*u}], v[{r}:{r+3}], v[{80+4*t}:{83+4*t}], {c}")
    g("s_nop 3")
    select4(g, 56, 64, 11)
    g("ds_write_b128 v13, v[56:59]")
    g(f"ds_write_b32 v17, v10 offset:{F_H}")
    g.stamp(1)
    g.label("L_qk")
    g("s_lshr_b32 s6, s5, 3")
    g("s_and_b32 s7, s5, 7")
    g("v_lshrrev_b32 v8, 4, v0")
    g("v_and_b32 v12, 15, v0")
    g("v_xor_b32 v20, v8, v12")
    g("v_lshlrev_b32 v20, 4, v20")
    g("v_lshl_add_u32 v20, v12, 8, v20")
    g("s_lshl_b32 s39, s3, 13")
    g("v_add_u32 v20, s39, v20")
    for t in (1, 2, 3):
        g(f"v_xor_b32 v{20+t}, {64*t}, v20")
    g("v_lshrrev_b32 v13, 5, v0")
    g("v_and_b32 v14, 31, v0")
    g("v_lshlrev_b32 v24, 14, v13")
    g("v_lshl_add_u32 v24, v14, 4, v24")
    g("s_lshl_b32 s58, s4, 15")
    g("s_lshl_b32 s59, s6, 11")
    g("s_add_u32 s58, s58, s59")
    g("s_lshl_b32 s59, s3, 9")
    g("s_add_u32 s65, s58, s59")
    g(f"s_add_u32 s65, s65, {QA_WS}")
    g("v_lshlrev_b32 v25, 2, v13")
    g("v_and_b32 v15, 16, v0")
    g("v_lshl_add_u32 v25, v15, 3, v25")
    g("v_and_b32 v15, 12, v0")
    g("v_lshl_add_u32 v25, v15, 1, v25")
    g("v_and_b32 v15, 3, v0")
    g("v_lshl_add_u32 v25, v15, 5, v25")
    g(f"s_mul_i32 s39, s3, {QL_STR}")
    g(f"s_add_u32 s38, s39, {L_QL}")
    g("v_add_u32 v25, s38, v25")
    g("v_bfe_u32 v16, v0, 2, 2")
    g(f"v_mul_u32_u24 v26, {QL_STR}, v16")
    g("v_lshl_add_u32 v26, v8, 4, v26")
    g(f"v_add_u32 v26, {L_QL}, v26")
    g("v_lshlrev_b32 v29, 4, v16")
    g(f"v_add_u32 v29, {L_ML}, v29")
    g("s_lshl_b32 s38, s3, 2")
    g("v_add_u32 v27, s38, v29")
    g("v_lshlrev_b32 v28, 6, v16")
    g("v_lshl_add_u32 v28, v8, 4, v28")
    g("s_lshl_b32 s38, s3, 8")
    g(f"s_add_u32 s38, s38, {L_OC}")
    g("v_add_u32 v28, s38, v28")
    g("v_lshlrev_b32 v30, 9, v16")
    g("s_lshl_b32 s67, s4, 7")
    g("s_add_u32 s67, s67, s5")
    g("s_lshl_b32 s67, s67, 4")
    g(f"s_add_u32 s67, s67, {M_WS}")
    for r in range(4):
        g(f"v_mov_b32 v{32+r}, 0x3f803f80")
    g(f"s_mov_b32 s66, {hex(f2u(1.4426950408889634))}")
    g(f"s_mov_b32 s38, {hex(f2u(128 ** -0.5))}")
    g("v_mov_b32 v108, s38")
    g("v_mov_b32 v109, s38")
    g("s_mov_b32 s57, 0x11111111")
    g("s_lshl_b32 s56, s4, 2")
    g("s_add_u32 s56, s56, s6")
    g("v_lshlrev_b32 v103, 13, v13")
    g("v_lshl_add_u32 v103, v14, 4, v103")
    g("s_lshl_b32 s61, s56, 14")
    g("s_add_u32 s61, s61, s59")
    g(f"s_add_u32 s61, s61, {O_WS}")
    g("s_add_u32 s64, s61, 4096")
    g("v_lshl_add_u32 v104, v13, 2, v15")
    g("v_lshlrev_b32 v104, 4, v104")
    g("s_lshl_b32 s60, s56, 2")
    g("s_add_u32 s60, s60, s3")
    g("s_lshl_b32 s60, s60, 7")
    g(f"s_add_u32 s60, s60, {M_WS}")
    g("v_lshlrev_b32 v102, 2, v13")
    g("v_lshl_add_u32 v102, v14, 3, v102")
    g(f"s_add_u32 s39, s39, {L_OL}")
    g("v_add_u32 v102, s39, v102")
    g(f"v_mul_u32_u24 v101, {QL_STR}, v15")
    g("v_lshl_add_u32 v101, v8, 4, v101")
    g(f"v_add_u32 v101, {L_OL}, v101")
    g("s_lshl_b32 s39, s3, 5")
    g("v_xor_b32 v107, s39, v4")
    g("v_lshlrev_b32 v105, 4, v0")
    widetags(g, 110)
    g(f"s_xor_b32 s92, s7, {XO}")
    r3addr(g, 62, 92, 56, 39)
    g("s_lshl_b32 s39, s3, 8")
    g("s_add_u32 s62, s62, s39")
    g.stamp(3)
    flagwait1(g, "L_qw", 17, F_QP, 12)
    flagwait1(g, "L_kw", 9, F_K2 if opt.get("qt", 6) else F_K, 12)
    if opt.get("dq", 0): g(f"s_sleep {opt.get('dq', 0)}")
    g("s_mov_b32 s97, 0")
    g("s_mov_b32 s58, s65")
    g("s_add_u32 s59, s58, 8192")
    g(f"buffer_load_dwordx4 v[36:39], v24, {W}, s58 offen {SC}")
    g(f"buffer_load_dwordx4 v[40:43], v24, {W}, s59 offen {SC}")
    if opt.get("qt", 6): flagwait1(g, "L_kv2", 9, F_K, 12)
    for tau in range(2):
        for t in range(4):
            r = 48 + 16*tau + 4*t
            g(f"ds_read_b128 v[{r}:{r+3}], v{20+t} offset:{4096*tau}")
    g.label("L_qc")
    g("s_waitcnt vmcnt(0)")
    tagcheck(g, list(range(36, 44)), 11, [44, 45, 46, 47])
    g("s_cbranch_vccz L_qok")
    spin(g, "L_qok")
    g(f"buffer_load_dwordx4 v[36:39], v24, {W}, s58 offen {SC}")
    g(f"buffer_load_dwordx4 v[40:43], v24, {W}, s59 offen {SC}")
    g("s_branch L_qc")
    g.label("L_qok")
    g.stamp(4)
    if opt.get("stamps"): g("s_min_u32 s96, s97, 0xff")
    untag(g, range(36, 44))
    g("v_pk_add_f32 v[36:37], v[36:37], v[40:41]")
    g("v_pk_add_f32 v[38:39], v[38:39], v[42:43]")
    g("s_nop 1")
    g("v_permlane32_swap_b32 v36, v38")
    g("v_permlane32_swap_b32 v37, v39")
    g("v_pk_add_f32 v[36:37], v[36:37], v[38:39]")
    g("v_cvt_pk_bf16_f32 v36, v36, v37")
    g("ds_write_b32 v25, v36")
    g(f"ds_write_b32 v9, v10 offset:{F_Q}")
    def qrd():
        for t in range(4):
            g(f"ds_read_b128 v[{80+4*t}:{83+4*t}], v26 offset:{64*t}")
    flagwait4(g, "L_qx", 17, F_Q, 36, pre=qrd, n=4)
    for t in range(4):
        g(f"s_waitcnt lgkmcnt({3-t})")
        for tau in range(2):
            r = 48 + 16*tau + 4*t
            c = "0" if t == 0 else f"v[{36+4*tau}:{39+4*tau}]"
            g(f"v_mfma_f32_16x16x32_bf16 v[{36+4*tau}:{39+4*tau}], v[{r}:{r+3}], v[{80+4*t}:{83+4*t}], {c}")
    g("s_nop 6")
    def rnd8():
        for i in range(4):
            g(f"v_cvt_pk_bf16_f32 v{48+i}, v{36+2*i}, v{37+2*i}")
        for i in range(4):
            g(f"v_lshlrev_b32 v{36+2*i}, 16, v{48+i}")
            g(f"v_and_b32 v{37+2*i}, 0xffff0000, v{48+i}")
    rnd8()
    for i in range(4):
        g(f"v_pk_mul_f32 v[{36+2*i}:{37+2*i}], v[{36+2*i}:{37+2*i}], v[108:109]")
    rnd8()
    g("v_max3_f32 v44, v36, v37, v38")
    g("v_max3_f32 v45, v39, v40, v41")
    g("v_max3_f32 v44, v44, v42, v43")
    g("v_max_f32 v44, v44, v45")
    g("v_mov_b32 v45, v44")
    g("s_nop 1")
    g("v_permlane32_swap_b32 v44, v45")
    g("v_max_f32 v44, v44, v45")
    g("v_mov_b32 v45, v44")
    g("s_nop 1")
    g("v_permlane16_swap_b32 v44, v45")
    g("v_max_f32 v44, v44, v45")
    g("v_mul_f32 v44, s66, v44")
    g("s_mov_b64 exec, 0x1111")
    g("ds_write_b32 v27, v44")
    g("s_mov_b64 exec, -1")
    g.label("L_mx")
    g("ds_read_b128 v[48:51], v29")
    spin(g, "L_mxok", lds=True)
    g("s_waitcnt lgkmcnt(0)")
    g("v_max_u32 v45, v48, v49")
    g("v_max3_u32 v45, v45, v50, v51")
    g("v_cmp_eq_u32 vcc, -1, v45")
    g("s_cbranch_vccnz L_mx")
    g.label("L_mxok")
    g("v_max3_f32 v44, v48, v49, v50")
    g("v_max_f32 v44, v44, v51")
    g("v_and_b32 v44, s98, v44")
    for i in range(8):
        g(f"v_fma_f32 v{36+i}, v{36+i}, s66, -v44")
    for i in range(8):
        g(f"v_exp_f32 v{36+i}, v{36+i}")
    for i in range(4):
        g(f"v_cvt_pk_bf16_f32 v{36+i}, v{36+2*i}, v{37+2*i}")
    g("s_nop 1")
    g("v_mfma_f32_16x16x32_bf16 v[40:43], v[32:35], v[36:39], 0")
    g("s_mov_b32 exec_lo, s57")
    g("s_mov_b32 exec_hi, s57")
    g("ds_write_b128 v28, v[36:39]")
    g("s_mov_b64 exec, 0x1111")
    g("s_nop 3")
    g("ds_write_b32 v27, v40 offset:64")
    g("s_mov_b64 exec, -1")
    flagwait1(g, "L_xw", 17, F_XC, 12, sdst=56, sleep=0)
    g(f"ds_write_b32 v9, v10 offset:{F_P}")
    g.stamp(2)
    g("s_cmp_eq_u32 s3, 0")
    g("s_cbranch_scc0 L_wo_b3")
    flagwait4(g, "L_lx", 17, F_P, 36, pre=lambda: g("ds_read_b128 v[40:43], v29 offset:64"), n=0)
    g("v_pk_add_f32 v[40:41], v[40:41], v[42:43]")
    g("v_mov_b32 v46, v11")
    g("v_mov_b32 v47, v11")
    g("v_or_b32 v44, v44, v11")
    g("v_add_f32 v45, v40, v41")
    g("s_mov_b64 exec, 0x1111")
    g(f"v_bfi_b32 v45, s{S_LO}, v11, v45")
    g("s_cmp_eq_u32 s56, 1")
    g("s_cbranch_scc0 L_mlr")
    g(f"buffer_store_dwordx4 v[44:47], v30, {W}, s67 offen")
    g("s_branch L_ml1")
    g.label("L_mlr")
    g(f"buffer_store_dwordx4 v[44:47], v30, {W}, s67 offen {SC}")
    g.label("L_ml1")
    g("s_mov_b64 exec, -1")
    g.label("L_wo_b3")
    g(f"v_mov_b32 v106, {L_FL}")
    def word():
        for t in range(4):
            g(f"ds_read_b64_tr_b16 v[{16+4*t}:{17+4*t}], v107 offset:{L_WO - 65536 + t*4096}")
            g(f"ds_read_b64_tr_b16 v[{18+4*t}:{19+4*t}], v107 offset:{L_WO - 65536 + t*4096 + 2048}")
    if opt.get("pre", 1):
        flagwait4(g, "L_wow", 106, F_WO, 36, sleep=1)
        word()
    pass
    g("s_waitcnt lgkmcnt(0)")
    g("s_barrier")
    def oml():
        g(f"buffer_load_dwordx4 v[32:35], v104, {W}, s60 offen {SC}")
    def opl():
        g(f"buffer_load_dwordx4 v[40:43], v103, {W}, s61 offen {SC}")
        g(f"buffer_load_dwordx4 v[44:47], v103, {W}, s61 offen offset:2048 {SC}")
        g(f"buffer_load_dwordx4 v[48:51], v103, {W}, s64 offen {SC}")
        g(f"buffer_load_dwordx4 v[52:55], v103, {W}, s64 offen offset:2048 {SC}")
    oml()
    if not opt.get("pre", 1): word()
    flagwait4(g, "L_wt", 106, F_OS, 36, pre=(lambda: g(f"ds_read_b32 v60, v106 offset:{F_NB}")) if NEAR else None)
    if opt.get("prio", 1): g("s_setprio 2")
    g("s_mov_b32 s97, 0")
    g.stamp(6)
    opl()
    if NEAR:
        g("v_readfirstlane_b32 s38, v60")
        g("s_nop 2")
        r3par(g, 62, 92, 38, 39)
    g("s_waitcnt vmcnt(4)")
    tagcheck(g, [32, 33, 34, 35], 11, [56, 57])
    g("s_cbranch_vccz L_o2")
    g.label("L_o")
    oml()
    spin(g, "L_o2")
    g("s_waitcnt vmcnt(0)")
    tagcheck(g, [32, 33, 34, 35], 11, [56, 57])
    g("s_cbranch_vccnz L_o")
    g.label("L_o2")
    g.stamp(5)
    untag(g, (32, 33))
    g("s_nop 0")
    g(f"v_max_f32_dpp v56, v32, v32 quad_perm:[1,0,3,2] {DPPM}")
    g("s_nop 1")
    g(f"v_max_f32_dpp v56, v56, v56 quad_perm:[2,3,0,1] {DPPM}")
    g("v_mov_b32 v57, v56")
    g("s_nop 1")
    g("v_permlane32_swap_b32 v56, v57")
    g("v_max_f32 v56, v56, v57")
    g("v_sub_f32 v32, v32, v56")
    g("v_exp_f32 v32, v32")
    g("s_nop 0")
    g("v_mul_f32 v57, v32, v33")
    g("s_nop 1")
    g(f"v_add_f32_dpp v57, v57, v57 quad_perm:[1,0,3,2] {DPPM}")
    g("s_nop 1")
    g(f"v_add_f32_dpp v57, v57, v57 quad_perm:[2,3,0,1] {DPPM}")
    g("v_mov_b32 v58, v57")
    g("s_nop 1")
    g("v_permlane32_swap_b32 v57, v58")
    g("v_add_f32 v57, v57, v58")
    g("v_rcp_f32 v57, v57")
    g("s_nop 0")
    g("v_mul_f32 v32, v32, v57")
    g("s_nop 1")
    for i in range(4):
        g(f"v_mov_b32_dpp v{64+2*i}, v32 quad_perm:[{i},{i},{i},{i}] {DPPM}")
    for i in range(4):
        g(f"v_mov_b32 v{65+2*i}, v{64+2*i}")
    g("s_mov_b32 s97, 0")
    g.label("L_o4")
    g("s_waitcnt vmcnt(0)")
    xorcheck(g, range(40, 56), 11, [56, 57, 58, 59, 36, 37, 38, 39])
    g("s_cbranch_vccnz L_o3")
    g("s_mov_b64 exec, -1")
    g.label("L_ook")
    g.stamp(7)
    g("v_pk_mul_f32 v[36:37], v[64:65], v[40:41]")
    g("v_pk_mul_f32 v[38:39], v[64:65], v[42:43]")
    for i in range(1, 4):
        g(f"v_pk_fma_f32 v[36:37], v[{64+2*i}:{65+2*i}], v[{40+4*i}:{41+4*i}], v[36:37]")
        g(f"v_pk_fma_f32 v[38:39], v[{64+2*i}:{65+2*i}], v[{42+4*i}:{43+4*i}], v[38:39]")
    g("s_nop 1")
    g("v_permlane32_swap_b32 v36, v38")
    g("v_permlane32_swap_b32 v37, v39")
    g("v_pk_add_f32 v[36:37], v[36:37], v[38:39]")
    g("v_cvt_pk_bf16_f32 v36, v36, v37")
    g("ds_write_b32 v102, v36")
    g("s_waitcnt lgkmcnt(0)")
    g("s_barrier")
    for t in range(4):
        g(f"ds_read_b128 v[{40+4*t}:{43+4*t}], v101 offset:{64*t}")
    for t in range(4):
        g(f"s_waitcnt lgkmcnt({3-t})")
        c = "0" if t == 0 else "v[32:35]"
        g(f"v_mfma_f32_16x16x32_bf16 v[32:35], v[{40+4*t}:{43+4*t}], v[{16+4*t}:{19+4*t}], {c}")
    g("s_mov_b64 exec, 0xffff")
    g("s_nop 6")
    for u in range(4):
        g(f"v_bfi_b32 v{32+u}, s{S_LO}, v{(11, 110, 111, 11)[u]}, v{32+u}")
    g(f"buffer_store_dwordx4 v[32:35], v105, {W}, s62 offen {opt.get('fs', SC).replace('+', ' ')}")
    g.stamp(8)
    if opt.get("stamps"):
        g("s_lshl_b32 s96, s96, 16")
        g("s_min_u32 s97, s97, 255")
        g("s_or_b32 s97, s97, s96")
    hevhold()
    g("s_branch L_end" if opt.get("stamps") else "s_endpgm")
    g.label("L_o3")
    g("s_add_u32 s97, s97, 1")
    g(f"s_cmp_gt_u32 s97, {SPIN_MAX}")
    g("s_cbranch_scc1 L_ook")
    g("s_mov_b64 exec, vcc")
    if opt.get("so", 0): g(f"s_sleep {opt['so']}")
    opl()
    g("s_branch L_o4")
    g.role = "w"
    g.label("L_w8")
    ffn_ids2(g, opt.get("bal", 0))
    g.srd(SRD_B, P_B1, 1792*2)
    g("s_and_b32 s6, s5, 7")
    g("v_lshrrev_b32 v12, 4, v0")
    g("v_and_b32 v13, 3, v0")
    g("v_bfe_u32 v14, v0, 2, 2")
    selmasks(g, 12)
    g("v_lshlrev_b32 v8, 5, v13")
    g("v_lshl_add_u32 v8, v14, 3, v8")
    g("s_lshl_b32 s57, s68, 7")
    g(f"v_mul_u32_u24 v9, {HL_STR}, v12")
    g("v_lshl_add_u32 v9, v14, 4, v9")
    g("v_and_b32 v14, 2, v0")
    g("v_lshl_add_u32 v9, v14, 5, v9")
    g("v_cmp_ne_u32 s[60:61], 0, v14")
    g("v_and_b32 v15, 1, v0")
    g("v_lshl_add_u32 v9, v15, 3, v9")
    g(f"v_add_u32 v9, {L_HL}, v9")
    g(f"v_mul_u32_u24 v19, {HL_STR}, v13")
    g("v_lshl_add_u32 v19, v12, 4, v19")
    g(f"v_add_u32 v19, {L_HL}, v19")
    g("s_lshl_b32 s58, s68, 13")
    g(f"s_add_u32 s58, s58, {H_WS}")
    g("s_add_u32 s59, s58, 4096")
    g("v_lshlrev_b32 v10, 4, v0")
    g(f"s_add_u32 s39, s4, {28 if opt.get('bal', 0) else 24}")
    g("s_cmp_eq_u32 s69, 0")
    g("s_cselect_b32 s39, s39, s68")
    g("s_add_u32 s64, s39, 32")
    g(f"s_xor_b32 s67, s6, {XF2}")
    r3addr(g, 62, 67, 64, 39)
    g("v_lshrrev_b32 v3, 4, v0")
    g("v_lshlrev_b32 v3, 14, v3")
    g("v_bfe_u32 v1, v0, 1, 3")
    g("v_lshl_add_u32 v3, v1, 10, v3")
    g("v_lshl_add_u32 v3, v15, 4, v3")
    r3addr(g, 64, 4, None, 39)
    g("s_lshl_b32 s39, s5, 5")
    g("s_add_u32 s64, s64, s39")
    g("v_and_b32 v16, 1, v12")
    g("v_add_u32 v16, v16, v14")
    g("v_lshlrev_b32 v1, 1, v15")
    g("v_lshl_add_u32 v16, v16, 10, v1")
    g("s_lshl_b32 s66, s4, 7")
    g("s_lshl_b32 s39, s5, 2")
    g("s_add_u32 s66, s66, s39")
    g(f"buffer_load_dwordx2 v[20:21], v8, s[{SRD_B}:{SRD_B+3}], s57 offen")
    g.srd(SRD_B, P_B2, 1024)
    g(f"buffer_load_ushort v17, v16, s[{SRD_C}:{SRD_C+3}], s66 offen")
    g(f"buffer_load_ushort v18, v1, s[{SRD_B}:{SRD_B+3}], s66 offen")
    g.srd(SRD_A, P_OUT, 4096)
    if opt.get("otouch", 2):
        g(f"buffer_load_ushort v124, v16, s[{SRD_A}:{SRD_A+3}], s66 offen {'nt' if opt.get('otouch', 2) == 2 else ''}")
    g(f"s_mov_b32 s57, {hex(f2u(-1.4426950408889634))}")
    g(f"v_mov_b32 v2, {L_FL}")
    widetags(g, 116)
    for r in range(4):
        g(f"v_mov_b32 v{96+r}, v{(11, 116, 117, 11)[r]}")
    pass
    flagwait1(g, "L_hg", 2, F_P if opt.get("hgate", 0) else F_Q, 12)
    g("s_mov_b32 s97, 0")
    def hld():
        for kp in range(8):
            g(f"buffer_load_dwordx4 v[{56+4*kp}:{59+4*kp}], v10, {W}, s{58+(kp>>2)} offen offset:{(kp&3)*1024} {SC}")
    if NEAR:
        g(f"s_mov_b32 s56, {PB_WS}")
        g(f"buffer_load_dwordx4 v[24:27], v10, {W}, s56 offen {SC}")
    g("s_cmp_eq_u32 s69, 0")
    g("s_cbranch_scc1 L_noh")
    hld()
    g.label("L_noh")
    if NEAR:
        g(f"s_and_b32 s39, s{S_E1}, 0x1fffff")
        g("v_mov_b32 v28, s39")
        g("v_lshrrev_b32 v29, 1, v0")
        g("v_xor_b32 v29, v29, v0")
        g("v_and_b32 v29, 1, v29")
        g("v_cmp_ne_u32 s[38:39], 0, v29")
        g("s_cmp_eq_u32 s69, 0")
        g("s_cbranch_scc1 L_pb0")
        g("s_waitcnt vmcnt(8)")
        g("s_branch L_pb")
        g.label("L_pb0")
        g("s_waitcnt vmcnt(0)")
        g.label("L_pb")
        g("v_bitop3_b32 v29, v24, v25, v28 bitop3:0x7e")
        g("v_bitop3_b32 v30, v26, v27, v28 bitop3:0x7e")
        g("v_or_b32 v29, v29, v30")
        g("v_lshlrev_b32 v29, 11, v29")
        g("v_cmp_ne_u32 vcc, 0, v29")
        g("s_cbranch_vccz L_pbok")
        spin(g, "L_pbok")
        g("s_sleep 8")
        g(f"buffer_load_dwordx4 v[24:27], v10, {W}, s56 offen {SC}")
        g("s_branch L_pb0")
        g.label("L_pbok")
        for i in range(4):
            g(f"v_lshrrev_b32 v{24+i}, 21, v{24+i}")
        g("v_add3_u32 v24, v24, v25, v26")
        g("v_add_u32 v24, v24, v27")
        g("v_sub_u32 v25, 0, v24")
        g("v_cndmask_b32 v24, v24, v25, s[38:39]")
        for c in ("row_ror:8", "row_ror:4", "row_ror:2", "row_ror:1"):
            g("s_nop 1")
            g(f"v_add_u32_dpp v24, v24, v24 {c} {DPPM}")
        g("s_nop 1")
        g("v_add_u32_dpp v24, v24, v24 row_bcast:15 row_mask:0xa bank_mask:0xf")
        g("s_nop 1")
        g("v_add_u32_dpp v24, v24, v24 row_bcast:31 row_mask:0xc bank_mask:0xf")
        g("s_nop 0")
        g("v_readlane_b32 s56, v24, 63")
        g("s_nop 2")
        g("s_cmp_gt_i32 s56, 0")
        g("s_cselect_b32 s56, 0x10f, 0")
        g("s_cselect_b32 s39, 0, 0x1f0")
        g("s_or_b32 s56, s56, s39")
        if "fixnb" in opt: g(f"s_movk_i32 s56, {0x100 | opt['fixnb']}")
        if opt.get("stamps"): g("s_mov_b32 s99, s56")
        g("v_mov_b32 v24, s56")
        g(f"ds_write_b32 v2, v24 offset:{F_NB}")
        r3par(g, 62, 67, 56, 39)
        r3par(g, 64, 4, 56, 39)
        g("s_mov_b32 s97, 0")
        g("s_waitcnt lgkmcnt(0)")
    g("s_add_u32 s65, s64, 65536")
    g("s_cmp_eq_u32 s69, 0")
    g("s_barrier")
    g("s_cbranch_scc1 L_w8_fin")
    g.label("L_h")
    g("s_waitcnt vmcnt(0)")
    g("v_lshlrev_b32 v88, 16, v20")
    g("v_and_b32 v89, 0xffff0000, v20")
    g("v_lshlrev_b32 v90, 16, v21")
    g("v_and_b32 v91, 0xffff0000, v21")
    tagcheck(g, list(range(56, 88)), 11, list(range(100, 116)))
    g("s_cbranch_vccz L_hok")
    spin(g, "L_hok")
    hld()
    g("s_branch L_h")
    g.label("L_hok")
    g.stamp(5)
    untag(g, range(56, 88))
    for (a, b) in ((56, 60), (64, 68), (72, 76), (80, 84), (56, 64), (72, 80), (56, 72)):
        g(f"v_pk_add_f32 v[{a}:{a+1}], v[{a}:{a+1}], v[{b}:{b+1}]")
        g(f"v_pk_add_f32 v[{a+2}:{a+3}], v[{a+2}:{a+3}], v[{b+2}:{b+3}]")
    def unp():
        g("v_cvt_pk_bf16_f32 v60, v56, v57")
        g("v_cvt_pk_bf16_f32 v61, v58, v59")
        g("v_lshlrev_b32 v56, 16, v60")
        g("v_and_b32 v57, 0xffff0000, v60")
        g("v_lshlrev_b32 v58, 16, v61")
        g("v_and_b32 v59, 0xffff0000, v61")
    unp()
    g("v_pk_add_f32 v[56:57], v[56:57], v[88:89]")
    g("v_pk_add_f32 v[58:59], v[58:59], v[90:91]")
    unp()
    for i in range(4):
        g(f"v_max_f32 v{56+i}, 0, v{56+i}")
    g("v_pk_mul_f32 v[56:57], v[56:57], v[56:57]")
    g("v_pk_mul_f32 v[58:59], v[58:59], v[58:59]")
    g("v_cvt_pk_bf16_f32 v60, v56, v57")
    g("v_cvt_pk_bf16_f32 v61, v58, v59")
    g("ds_write_b64 v9, v[60:61]")
    g("ds_read_b128 v[64:67], v19")
    g("ds_read_b128 v[68:71], v19 offset:64")
    if opt.get("trl", 2): flagwait4(g, "L_w2w", 2, F_OP, 72)
    g.stamp(4)
    for t in range(2):
        for u in range(4):
            r = 24 + 16*t + 4*u
            g(f"ds_read_b64_tr_b16 v[{r}:{r+1}], v{4+u} offset:{L_W2 - 65536 + t*4096}")
            g(f"ds_read_b64_tr_b16 v[{r+2}:{r+3}], v{4+u} offset:{L_W2 - 65536 + t*4096 + 2048}")
    for t in range(2):
        for u in range(4):
            g(f"s_waitcnt lgkmcnt({14 - 8*t - 2*u})")
            r = 24 + 16*t + 4*u
            d = 72 + 4*u
            c = "0" if t == 0 else f"v[{d}:{d+3}]"
            g(f"v_mfma_f32_16x16x32_bf16 v[{d}:{d+3}], v[{64+4*t}:{67+4*t}], v[{r}:{r+3}], {c}")
    g("s_nop 3")
    select4(g, 96, 72, 11, tags=(11, 116, 117, 11))
    g.label("L_w8_fin")
    g.stamp(6)
    g("s_barrier")
    g(f"buffer_store_dwordx4 v[96:99], v10, {W}, s62 offen {SC}")

    g("s_mov_b32 s97, 0")
    g("s_waitcnt vmcnt(1)")
    g("v_lshlrev_b32 v17, 16, v17")
    g("v_lshlrev_b32 v18, 16, v18")
    if opt.get("df", 13):
        g(f"s_sleep {opt.get('df', 13)}")
    else:
        g("s_waitcnt vmcnt(0)")
    FL = opt.get("fl", SC).replace("+", " ")
    if opt.get("fp", 0):
        g(f"buffer_load_dwordx4 v[24:27], v3, {W}, s64 offen {FL}")
        g(f"buffer_load_dwordx4 v[40:43], v3, {W}, s65 offen {FL}")
        g(f"s_sleep {opt['fp']}")
        g(f"buffer_load_dwordx4 v[48:51], v3, {W}, s64 offen {FL}")
        g(f"buffer_load_dwordx4 v[52:55], v3, {W}, s65 offen {FL}")
        g("s_waitcnt vmcnt(2)")
        xorcheck(g, [24, 40, 25, 41, 26, 42, 27, 43], [11, 11, 116, 116, 117, 117, 11, 11], list(range(44, 48)))
        g("s_cbranch_vccz L_fok")
        g("s_waitcnt vmcnt(0)")
        for i in range(4):
            g(f"v_mov_b32 v{24+i}, v{48+i}")
            g(f"v_mov_b32 v{40+i}, v{52+i}")
        g("s_branch L_f2")
    g.label("L_f")
    g(f"buffer_load_dwordx4 v[24:27], v3, {W}, s64 offen {FL}")
    g(f"buffer_load_dwordx4 v[40:43], v3, {W}, s65 offen {FL}")
    spin(g, "L_fok")
    g("s_waitcnt vmcnt(0)")
    g.label("L_f2")
    xorcheck(g, [24, 40, 25, 41, 26, 42, 27, 43], [11, 11, 116, 116, 117, 117, 11, 11], list(range(44, 48)))
    if opt.get("sf", 0):
        g("s_cbranch_vccz L_fok")
        if opt.get("sf", 0): g(f"s_sleep {opt['sf']}")
        g("s_branch L_f")
    else:
        g("s_cbranch_vccnz L_f")
    g.label("L_fok")
    g.stamp(7)
    for i in range(4):
        g(f"v_permlane32_swap_b32 v{24+i}, v{40+i}")
    g("v_pk_add_f32 v[24:25], v[24:25], v[40:41]")
    g("v_pk_add_f32 v[26:27], v[26:27], v[42:43]")
    g("s_nop 0")
    g("v_permlane16_swap_b32 v24, v25")
    g("v_permlane16_swap_b32 v26, v27")
    g("v_add_f32 v24, v24, v25")
    g("v_add_f32 v26, v26, v27")
    for c in ("row_ror:8", "row_ror:4", "row_ror:2"):
        g("s_nop 0")
        g(f"v_add_f32_dpp v24, v24, v24 {c} {DPPM}")
        g(f"v_add_f32_dpp v26, v26, v26 {c} {DPPM}")
    g("v_cndmask_b32 v24, v24, v26, s[60:61]")
    rnd(g, 24, 24)
    g("v_add_f32 v25, v24, v18")
    rnd(g, 25, 25)
    g("v_mul_f32 v26, s57, v25")
    g("v_exp_f32 v26, v26")
    g("s_nop 0")
    g("v_add_f32 v26, 1.0, v26")
    g("v_rcp_f32 v26, v26")
    g("s_nop 0")
    g("v_mul_f32 v26, v25, v26")
    rnd(g, 26, 26)
    g("s_nop 1")
    g("v_permlane32_swap_b32 v26, v27")
    g("s_mov_b32 exec_lo, 0x000f000f")
    g("s_mov_b32 exec_hi, 0")
    g("v_mul_f32 v24, v24, v27")
    rnd(g, 24, 24)
    g("v_add_f32 v24, v24, v17")
    g("v_cvt_pk_bf16_f32 v24, v24, v24")
    if not opt.get("noout"): g(f"buffer_store_short v24, v16, s[{SRD_A}:{SRD_A+3}], s66 offen {opt.get('of', '').replace('+', ' ')}")
    g.stamp(8)
    hevhold()
    if opt.get("hold"):
        g(f"s_cmp_eq_u32 s2, {opt.get('holdwg', 0)}")
        g("s_cbranch_scc0 L_nohold")
        g.label("L_hold")
        g("s_memrealtime s[72:73]")
        g("s_waitcnt lgkmcnt(0)")
        g("s_sub_u32 s72, s72, s70")
        g(f"s_cmp_lt_u32 s72, {opt['hold']}")
        g("s_cbranch_scc1 L_hold")
        g.label("L_nohold")
    g("s_cmp_eq_u32 s2, 0")
    g("s_cbranch_scc0 L_end")
    g(f"v_mov_b32 v24, s{S_E1}")
    g("v_mov_b32 v25, 0")
    g("s_mov_b64 exec, 1")
    g(f"buffer_store_dword v24, v25, {W}, 0 offen {opt.get('ef', '')}")
    g.label("L_end")
    if opt.get("stamps"):
        g("s_memrealtime s[88:89]")
        g("s_waitcnt lgkmcnt(0)")
        g("s_mov_b64 exec, 1")
        g("s_mul_i32 s38, s2, 9")
        g("s_add_u32 s38, s38, s3")
        g("s_lshl_b32 s38, s38, 6")
        g(f"s_add_u32 s38, s38, {ST_WS}")
        for k in range(10):
            g(f"v_mov_b32 v{4+k}, s{70+2*k}")
        g("v_mov_b32 v14, s97")
        g("v_mov_b32 v15, s99")
        g("v_mov_b32 v1, 0")
        g(f"buffer_store_dwordx4 v[4:7], v1, {W}, s38 offen")
        g(f"buffer_store_dwordx4 v[8:11], v1, {W}, s38 offen offset:16")
        g(f"buffer_store_dwordx4 v[12:15], v1, {W}, s38 offen offset:32")
    g.label("L_exit")
    C = {'L_notln': 'waves 4..9', 'L_w8i': 'W8 start: pull a share of the kernel text into L2, clear the LDS flags', 'L_kv': 'W4-7: K stream (page-rotated linear sweep over the 1024-key window)', 'L_ln': 'W0-3: w1 quarter, LayerNorm of row w -> LDS', 'L_w9': 'W9: latency of one cold line, then walk the instruction-cache pads', 'L_w0': 'W8: XCD id out, q partial = xn @ wq tile', 'L_xc': 'W8: are all workgroups of the group on this XCD?', 'L_att': 'W4-7: wo, V, w2 stream; P.V for 32 of the 128 dims; publish o', 'L_ln_done': 'W0-3 after LayerNorm; W1: h partial = xn @ w1 tile', 'L_qk': 'W0-3: gather q, scores, max exchange, probabilities', 'L_wo_b3': 'W0-3: combine the 8 splits of batch w, multiply by the wo tile, publish', 'L_w8': 'W8: FFN second half and final reduction', 'L_f': 'W8: gather 32 attention + 32 FFN partials, out = x + s * silu(ffn + b2)'}
    lines = []
    for x in g.L:
        if not x.strip(): continue
        if x.endswith(":") and x[:-1] in C: lines.append("; ---- " + C[x[:-1]])
        lines.append(x)
    return finish(lines, opt)

def finish(lines, opt):
    if not opt.get("touch", 1):
        return G1.text(lines)
    sz = _sizes(lines)
    out = []; pos = 0; nxt = 1024; n = 0
    for l, z in zip(lines, sz):
        if z and pos >= nxt:
            assert pos - nxt <= 56
            out.append(None); n += 1; pos += 4; nxt += 1024
        out.append(l); pos += z
    first = opt.get("pad0", 1)
    split = opt.get("pad1", 4)
    res = []; k = 0
    for l in out:
        if l is None:
            tgt = "L_w8b" if k + 1 == split else (f"L_pad{k+1}" if k + 1 < n else "L_w3b")
            if k == first: res.append("L_chain0:")
            if k == split: res.append("L_chain1:")
            res.append(f"L_pad{k}:")
            res.append(f"    s_cbranch_execz {tgt}")
            k += 1
        else:
            res.append(l)
    return G1.text(res)

if __name__ == "__main__":
    out = sys.argv[1]
    opt = {}
    for a in sys.argv[2:]:
        k, v = a.split("=")
        try: v = int(v)
        except ValueError: pass
        opt[k] = v
    open(out, "w").write(gen(opt))
```

```python
import sys, struct
from gen import f2u, G, tagcheck, rnd, wave_sum, tile_voff, tile_raddr, tile_dma, NAME, sizes as _sizes
import gen as G1

PR_WS  = 0x2000
QA_WS  = 0x8000
H_WS   = 0x48000
O_WS   = 0x80000
R3_WS  = 0x100000
XC_WS  = 0x200000
PB_WS  = 0x201000
M_WS   = 0x204000
ST_WS  = 0x300000
WS_BYTES = 0x400000

L_K, L_V, L_WQ, L_WO, L_W1, L_W2, L_XN = 0, 32768, 65536, 81920, 98304, 106496, 114688
XN_STR = 1088
L_QL = L_XN + 4352
QL_STR = 320
L_OC = L_QL + 1280
OC_H, OC_W = 528, 2112
L_ML = L_OC + 8448
L_FL = L_ML + 128
L_OL = L_FL + 192
L_HL = L_OL + 1280
HL_STR = 192
LDS_BYTES = L_HL + 768
G1.LDS_BYTES = LDS_BYTES

P_X, P_K, P_V, P_WQ, P_WO, P_BX, P_W1, P_B1, P_W2, P_B2, P_OUT, P_DBG, P_WS = 8, 10, 12, 14, 16, 18, 20, 22, 24, 26, 28, 30, 32
S_E, S_T, S_E1, S_LO = 34, 35, 36, 37
SRD_A, SRD_B, SRD_W, SRD_C = 40, 44, 48, 52
SPIN_MAX = 1 << 18
W = f"s[{SRD_W}:{SRD_W+3}]"
SC = "sc1"
DPPM = "row_mask:0xf bank_mask:0xf"

def epoch(g, vT):
    g(f"s_add_u32 s{S_E1}, s{S_E}, 1")
    g(f"s_and_b32 s{S_T}, s{S_E1}, s{S_LO}")
    g(f"v_mov_b32 v{vT}, s{S_T}")

def spin(g, lab_out, lds=False):
    r, mx = (63, 1 << 22) if lds else (97, SPIN_MAX)
    g(f"s_add_u32 s{r}, s{r}, 1")
    g(f"s_cmp_gt_u32 s{r}, {mx}")
    g(f"s_cbranch_scc1 {lab_out}")

def selmasks(g, vsel):
    for k in (1, 2, 3):
        g(f"v_cmp_eq_u32 s[{88+2*k}:{89+2*k}], {k}, v{vsel}")

def select4(g, d, D, vT, tags=None):
    for k in (1, 2, 3):
        for r in range(4):
            src = D + r if k == 1 else d + r
            g(f"v_cndmask_b32 v{d+r}, v{src}, v{D+4*k+r}, s[{88+2*k}:{89+2*k}]")
    for r in range(4):
        g(f"v_bfi_b32 v{d+r}, s{S_LO}, v{tags[r] if tags else vT}, v{d+r}")

def ffn_ids(g):
    g("s_lshr_b32 s7, s5, 3")
    g("s_mul_i32 s68, s4, 3")
    g("s_min_u32 s69, s4, 4")
    g("s_add_u32 s68, s68, s69")
    g("s_add_u32 s68, s68, s7")
    g("s_cmp_lt_u32 s4, 4")
    g("s_cselect_b32 s69, 4, 3")
    g("s_cmp_lt_u32 s7, s69")
    g("s_cselect_b32 s69, 1, 0")


def untag(g, regs):
    for r in regs:
        g(f"v_and_b32 v{r}, s98, v{r}")

def xorcheck(g, regs, vT, tmp):
    regs = list(regs)
    for k, r in enumerate(regs):
        g(f"v_xor_b32 v{r}, v{vT[k] if isinstance(vT, (list, tuple)) else vT}, v{r}")
    ts = regs; k = 0
    while len(ts) > 1:
        n = []; i = 0
        while i < len(ts):
            if len(ts) - i >= 3:
                g(f"v_or3_b32 v{tmp[k]}, v{ts[i]}, v{ts[i+1]}, v{ts[i+2]}"); n.append(tmp[k]); k += 1; i += 3
            elif len(ts) - i == 2 and len(n) != 2:
                g(f"v_or_b32 v{tmp[k]}, v{ts[i]}, v{ts[i+1]}"); n.append(tmp[k]); k += 1; i += 2
            else:
                n.append(ts[i]); i += 1
        ts = n
    g(f"v_and_b32 v{ts[0]}, 0x3ff, v{ts[0]}")
    g(f"v_cmp_ne_u32 vcc, 0, v{ts[0]}")

def ffn_ids2(g, bal):
    ffn_ids(g)
    if bal:
        g("s_lshl_b32 s99, s4, 2")
        g("s_sub_u32 s99, s99, 13")
        g("s_cmp_eq_u32 s7, 3")
        g("s_cselect_b32 s68, s99, s68")
        g("s_cselect_b32 s99, 1, 0")
        g("s_xor_b32 s69, s69, s99")

def widetags(g, d):
    g(f"v_mov_b32 v{d}, s{S_E1}")
    g(f"v_bfe_u32 v{d+1}, v{d}, 20, 10")
    g(f"v_bfe_u32 v{d}, v{d}, 10, 10")

def r3addr(g, d, c, rec, tmp):
    g(f"s_lshl_b32 s{d}, s{c}, 17")
    if rec is not None:
        g(f"s_lshr_b32 s{tmp}, s{rec}, 3")
        g(f"s_lshl_b32 s{tmp}, s{tmp}, 14")
        g(f"s_add_u32 s{d}, s{d}, s{tmp}")
        g(f"s_and_b32 s{tmp}, s{rec}, 7")
        g(f"s_lshl_b32 s{tmp}, s{tmp}, 10")
        g(f"s_add_u32 s{d}, s{d}, s{tmp}")
    g(f"s_add_u32 s{d}, s{d}, {R3_WS}")

def r3par(g, d, c, mask, tmp):
    g(f"s_lshr_b32 s{tmp}, s{mask}, s{c}")
    g(f"s_and_b32 s{tmp}, s{tmp}, 1")
    g(f"s_lshl_b32 s{tmp}, s{tmp}, 13")
    g(f"s_add_u32 s{d}, s{d}, s{tmp}")

def flagwait4(g, lab, vbase, off, tmp, pre=None, n=0, sleep=0):
    g.label(lab)
    if sleep: g(f"s_sleep {sleep}")
    g(f"ds_read_b128 v[{tmp}:{tmp+3}], v{vbase} offset:{off}")
    if pre: pre()
    spin(g, lab + "ok", lds=True)
    g(f"s_waitcnt lgkmcnt({n})")
    g(f"v_and_b32 v{tmp}, v{tmp}, v{tmp+1}")
    g(f"v_and_b32 v{tmp+2}, v{tmp+2}, v{tmp+3}")
    g(f"v_and_b32 v{tmp}, v{tmp}, v{tmp+2}")
    g(f"v_cmp_eq_u32 vcc, 0, v{tmp}")
    g(f"s_cbranch_vccnz {lab}")
    g.label(lab + "ok")

def flagwait1(g, lab, vbase, off, tmp, sdst=None, sleep=1):
    g.label(lab)
    if sleep: g(f"s_sleep {sleep}")
    g(f"ds_read_b32 v{tmp}, v{vbase} offset:{off}")
    spin(g, lab + "ok", lds=True)
    g("s_waitcnt lgkmcnt(0)")
    g(f"v_cmp_eq_u32 vcc, 0, v{tmp}")
    g(f"s_cbranch_vccnz {lab}")
    g.label(lab + "ok")
    if sdst is not None: g(f"v_readfirstlane_b32 s{sdst}, v{tmp}")

F_LNA, F_XC, F_QP, F_H, F_OP, F_Q, F_LNB, F_P, F_K, F_K2, F_WO, F_V1, F_OS, F_NB = 0, 16, 20, 24, 32, 48, 64, 80, 96, 112, 128, 144, 160, 28
L_HP = L_OC + 2048

def gen(opt):
    g = G(opt)
    g.role = "-"
    HEV = opt.get("hev")
    if HEV:
        def st(k):
            if HEV == f"{g.role}{k}": g("s_memrealtime s[70:71]")
        g.stamp = st
    hcount = [0]
    def hevhold():
        if HEV and HEV[0] == g.role:
            hcount[0] += 1
            n = hcount[0]
            g(f"s_cmp_eq_u32 s2, {opt.get('holdwg', 9)}")
            g(f"s_cbranch_scc0 L_nh{n}")
            g.label(f"L_hh{n}")
            g("s_memrealtime s[72:73]")
            g("s_waitcnt lgkmcnt(0)")
            g("s_sub_u32 s72, s72, s70")
            g("s_cmp_lt_u32 s72, 1500")
            g(f"s_cbranch_scc1 L_hh{n}")
            g.label(f"L_nh{n}")
    NT = opt.get("nt", "nt")
    XF = opt.get("xflags", "")
    THR = opt.get("thr", 3)
    THR2 = opt.get("thr2", 6)
    THR3 = opt.get("thr3", THR2)
    TOUCH = opt.get("touch", 1)
    PWF = opt.get("pwf", "")
    NEAR = opt.get("near", 1)
    G1.NWAVES = 10 if NEAR else 9
    g.stamp(0)
    if opt.get("hold"): g("s_memrealtime s[70:71]")
    g("s_cmp_ge_u32 s2, 256")
    g("s_cbranch_scc1 L_exit")
    g("s_load_dwordx16 s[8:23], s[0:1], 0")
    g("s_load_dwordx8 s[24:31], s[0:1], 64")
    g("s_load_dwordx2 s[32:33], s[0:1], 96")
    g("v_lshrrev_b32 v1, 6, v0")
    g("v_and_b32 v0, 63, v0")
    g("v_readfirstlane_b32 s3, v1")
    g("s_and_b32 s4, s2, 7")
    g("s_lshr_b32 s5, s2, 3")
    g(f"s_movk_i32 s{S_LO}, 0x3ff")
    g("s_movk_i32 s98, 0xfc00")
    g("s_cmp_lt_u32 s3, 4")
    g("s_cbranch_scc0 L_notln")
    g("v_lshlrev_b32 v12, 4, v0")
    g("s_lshl_b32 s39, s3, 10")
    WIDE = opt.get("wide", 0)
    tile_voff(g, 2, 3, 8192)
    if WIDE & 1:
        g("v_lshrrev_b32 v3, 4, v0")
        g("v_and_b32 v100, 15, v0")
        g("v_lshlrev_b32 v100, 4, v100")
        g("v_lshl_add_u32 v100, v3, 13, v100")
        g("s_lshr_b32 s7, s5, 2")
        g("s_lshl_b32 s38, s7, 19")
        g("s_lshl_b32 s56, s3, 17")
        g("s_add_u32 s38, s38, s56")
        g("s_lshl_b32 s56, s4, 10")
        g("s_add_u32 s38, s38, s56")
        g("s_and_b32 s56, s5, 3")
        g("s_lshl_b32 s56, s56, 8")
        g("s_add_u32 s38, s38, s56")
    else:
        g("s_lshr_b32 s7, s5, 3")
        g("s_lshl_b32 s38, s7, 20")
        g("s_lshl_b32 s56, s3, 18")
        g("s_add_u32 s38, s38, s56")
        g("s_lshl_b32 s56, s4, 10")
        g("s_add_u32 s38, s38, s56")
        g("s_and_b32 s56, s5, 7")
        g("s_lshl_b32 s56, s56, 7")
        g("s_add_u32 s38, s38, s56")
    g("s_lshl_b32 s56, s3, 12")
    g(f"s_mov_b32 s{SRD_C+2}, 4096")
    g(f"s_mov_b32 s{SRD_C+3}, 0x20000")
    g(f"s_mov_b32 s{SRD_A+2}, {hex(512*4096*2)}")
    g(f"s_mov_b32 s{SRD_A+3}, 0x20000")
    g("s_waitcnt lgkmcnt(0)")
    g(f"s_mov_b32 s{SRD_C}, s{P_X}")
    g(f"s_mov_b32 s{SRD_C+1}, s{P_X+1}")
    g(f"buffer_load_dwordx4 v[4:7], v12, s[{SRD_C}:{SRD_C+3}], s39 offen {XF}")
    g(f"s_mov_b32 s{SRD_A}, s{P_WQ}")
    g(f"s_mov_b32 s{SRD_A+1}, s{P_WQ+1}")
    if WIDE & 1: tile_dma(g, 4, 100, SRD_A, 38, (56, L_WQ), 4096, NT)
    else: tile_dma(g, 4, 2, SRD_A, 38, (56, L_WQ), 8192, NT)
    g("s_barrier")
    g("s_branch L_ln")
    g.label("L_notln")
    g("s_cmp_lt_u32 s3, 8")
    g("s_cbranch_scc1 L_kv")
    if NEAR:
        g("s_cmp_eq_u32 s3, 8")
        g("s_cbranch_scc1 L_w8i")
        g("s_waitcnt lgkmcnt(0)")
        g(f"s_load_dword s{S_E}, s[{P_WS}:{P_WS+1}], 0")
        g("s_barrier")
        g("s_branch L_w9")
        g.label("L_w8i")
    if opt.get("cpf", 1):
        g("s_getpc_b64 s[64:65]")
        g.label("L_pc")
        g("s_and_b32 s6, s5, 7")
        g(f"s_mul_i32 s6, s6, {24*64}")
        g(f"s_sub_u32 s6, s6, L_pc-{NAME}_kernel")
        g("s_ashr_i32 s7, s6, 31")
        g("s_add_u32 s64, s64, s6")
        g("s_addc_u32 s65, s65, s7")
        g("v_lshlrev_b32 v3, 6, v0")
        g("s_mov_b64 exec, 0xffffff")
        g("global_load_dword v125, v3, s[64:65]")
        g("s_mov_b64 exec, -1")
    g("v_lshlrev_b32 v3, 2, v0")
    g(f"v_add_u32 v3, {L_ML}, v3")
    g("v_cmp_gt_u32 vcc, 16, v0")
    g("s_nop 1")
    g("v_cndmask_b32 v4, 0, -1, vcc")
    g("ds_write_b32 v3, v4")
    g("v_mov_b32 v4, 0")
    g("s_mov_b64 exec, 0xffff")
    g("ds_write_b32 v3, v4 offset:256")
    g("s_mov_b64 exec, -1")
    g("s_waitcnt lgkmcnt(0)")
    g(f"s_load_dword s{S_E}, s[{P_WS}:{P_WS+1}], 0")
    g("s_barrier")
    g("s_branch L_w0")
    g.role = "a"
    g.label("L_kv")
    g("s_sub_u32 s3, s3, 4")
    g("v_lshrrev_b32 v8, 4, v0")
    g("v_and_b32 v9, 15, v0")
    g("v_xor_b32 v2, v9, v8")
    g("v_lshlrev_b32 v2, 4, v2")
    g("v_lshl_add_u32 v2, v8, 8, v2")
    for i in (1, 2, 3):
        g(f"v_xor_b32 v{2+i}, {64*i}, v2")
    g("s_lshr_b32 s6, s5, 3")
    g("s_and_b32 s7, s5, 7")
    g("s_lshl_b32 s38, s6, 3")
    g("s_add_u32 s38, s38, s4")
    g("s_lshl_b32 s38, s38, 20")
    g("s_lshl_b32 s56, s3, 10")
    g("s_add_u32 s38, s38, s56")
    g(f"s_add_u32 s38, s38, {768*1024}")
    g("s_lshl_b32 s56, s3, 13")
    g("s_lshl_b32 s64, s7, 12")
    g("s_mov_b32 s66, s38")
    g(f"s_mov_b32 s{SRD_A+2}, {hex(4*8*4096*128*2)}")
    g(f"s_mov_b32 s{SRD_A+3}, 0x20000")
    g("s_waitcnt lgkmcnt(0)")
    g(f"s_mov_b32 s{SRD_A}, s{P_K}")
    g(f"s_mov_b32 s{SRD_A+1}, s{P_K+1}")
    B0L = opt.get("b0l", 0)
    if not B0L:
        g(f"s_load_dword s{S_E}, s[{P_WS}:{P_WS+1}], 0")
        g("s_barrier")
    g.stamp(1)
    def kvld(i, isv, th):
        if i % 4 == 0: g(f"s_add_u32 m0, s56, {(L_V if isv else L_K) + i*1024}")
        g("s_add_u32 s39, s64, s66")
        g("s_add_u32 s64, s64, 4096")
        g("s_and_b32 s64, s64, 0x7000")
        g(f"s_add_u32 s66, s66, {32768 + (3072 if i % 4 == 3 else -1024)}")
        if th: g(f"s_waitcnt vmcnt({th-1})")
        vo = 6 + (i & 1) if isv else 2 + (i & 3)
        g(f"buffer_load_dwordx4 v{vo}, s[{SRD_A}:{SRD_A+3}], s39 offen offset:{(i&3)*1024} {NT} lds")
    for i in range(8):
        if B0L and i == THR:
            g(f"s_load_dword s{S_E}, s[{P_WS}:{P_WS+1}], 0")
            g("s_barrier")
        kvld(i, 0, THR if i >= THR else 0)
    g("s_branch L_att")
    g.role = "l"
    g.label("L_ln")
    ffn_ids(g)
    g(f"s_mov_b32 s{SRD_B+3}, 0x20000")
    g(f"s_mul_i32 s{SRD_B+2}, s69, {512*1792*2}")
    g("v_lshrrev_b32 v3, 3, v0")
    g(f"v_mul_u32_u24 v3, {8192-3584}, v3")
    g("v_sub_u32 v2, v2, v3")
    g("s_and_b32 s38, s5, 7")
    g("s_lshl_b32 s38, s38, 2")
    g("s_add_u32 s38, s38, s3")
    g(f"s_mul_i32 s38, s38, {16*3584}")
    g("s_lshl_b32 s39, s68, 7")
    g("s_add_u32 s38, s38, s39")
    g("s_lshl_b32 s56, s3, 11")
    g(f"s_mov_b32 s{SRD_B}, s{P_W1}")
    g(f"s_mov_b32 s{SRD_B+1}, s{P_W1+1}")
    tile_dma(g, 2, 2, SRD_B, 38, (56, L_W1), 3584, NT)
    g(f"s_load_dword s{S_E}, s[{P_WS}:{P_WS+1}], 0")
    g.srd(SRD_W, P_WS, WS_BYTES)
    g("v_lshrrev_b32 v2, 2, v0")
    g("v_lshlrev_b32 v2, 6, v2")
    g("v_and_b32 v3, 1, v0")
    g("v_lshl_add_u32 v2, v3, 5, v2")
    g("v_and_b32 v3, 2, v0")
    g("v_lshl_add_u32 v2, v3, 2, v2")
    g(f"s_mul_i32 s38, s3, {XN_STR}")
    g(f"s_add_u32 s38, s38, {L_XN}")
    g("v_add_u32 v2, s38, v2")
    g("s_lshl_b32 s38, s3, 2")
    g(f"s_add_u32 s38, s38, {L_FL}")
    g("v_mov_b32 v9, s38")
    g("v_mov_b32 v10, 1")
    g(f"v_mov_b32 v21, {hex(f2u(1.0/512))}")
    g("s_waitcnt vmcnt(6)")
    g.stamp(1)
    for i in range(4):
        g(f"v_lshlrev_b32 v{12+2*i}, 16, v{4+i}")
        g(f"v_and_b32 v{13+2*i}, 0xffff0000, v{4+i}")
    g("v_pk_add_f32 v[22:23], v[12:13], v[14:15]")
    g("v_pk_add_f32 v[24:25], v[16:17], v[18:19]")
    g("v_pk_add_f32 v[22:23], v[22:23], v[24:25]")
    g("v_add_f32 v20, v22, v23")
    wave_sum(g, 20, 38)
    g("s_nop 1")
    g("v_mul_f32 v20, s38, v21")
    for i in range(8):
        g(f"v_sub_f32 v{24+i}, v{12+i}, v20")
    g("v_mul_f32 v22, v24, v24")
    g("v_mul_f32 v23, v25, v25")
    for i in range(1, 4):
        g(f"v_fmac_f32 v22, v{24+2*i}, v{24+2*i}")
        g(f"v_fmac_f32 v23, v{25+2*i}, v{25+2*i}")
    g("v_add_f32 v22, v22, v23")
    wave_sum(g, 22, 38)
    rnd(g, 20, 20)
    g("v_mul_f32 v22, s38, v21")
    rnd(g, 22, 22)
    g(f"v_add_f32 v22, {hex(f2u(1e-5))}, v22")
    rnd(g, 22, 22)
    g("v_sqrt_f32 v22, v22")
    for i in range(8):
        g(f"v_sub_f32 v{12+i}, v{12+i}, v20")
    rnd(g, 22, 22)
    g("v_rcp_f32 v22, v22")
    for i in range(4):
        g(f"v_cvt_pk_bf16_f32 v{4+i}, v{12+2*i}, v{13+2*i}")
    for i in range(4):
        g(f"v_lshlrev_b32 v{12+2*i}, 16, v{4+i}")
        g(f"v_and_b32 v{13+2*i}, 0xffff0000, v{4+i}")
    for i in range(8):
        g(f"v_mul_f32 v{12+i}, v{12+i}, v22")
    for i in range(4):
        g(f"v_cvt_pk_bf16_f32 v{4+i}, v{12+2*i}, v{13+2*i}")
    g("ds_write2_b64 v2, v[4:5], v[6:7] offset0:0 offset1:2")
    g("s_waitcnt vmcnt(2)")
    g(f"ds_write_b32 v9, v10 offset:{F_LNA}")
    g.stamp(2)
    g("s_waitcnt lgkmcnt(0)")
    epoch(g, 11)
    g("s_branch L_ln_done")
    if NEAR:
        g.label("L_w9")
        g("s_lshr_b32 s60, s2, 4")
        g("s_lshl_b32 s60, s60, 3")
        g("s_add_u32 s60, s60, s4")
        g("s_lshl_b32 s60, s60, 6")
        g("s_and_b32 s61, s5, 1")
        g("s_lshl_b32 s61, s61, 13")
        g("s_sub_u32 s60, s60, s61")
        g(f"s_add_u32 s60, s60, {PR_WS + 8192}")
        g.srd(SRD_W, P_WS, WS_BYTES)
        g("s_waitcnt lgkmcnt(0)")
        g("s_memtime s[90:91]")
        g("s_waitcnt lgkmcnt(0)")
        g(f"s_load_dword s61, s[{P_WS}:{P_WS+1}], s60")
        g("s_waitcnt lgkmcnt(0)")
        g("s_memtime s[94:95]")
        g(f"s_add_u32 s62, s{S_E}, 1")
        g("s_and_b32 s62, s62, 0x1fffff")
        g("s_lshl_b32 s63, s2, 2")
        g(f"s_add_u32 s63, s63, {PB_WS}")
        g("v_mov_b32 v21, 0")
        g("s_waitcnt lgkmcnt(0)")
        g("s_sub_u32 s94, s94, s90")
        g("s_lshr_b32 s94, s94, 3")
        g("s_min_u32 s94, s94, 0x7ff")
        g("s_lshl_b32 s94, s94, 21")
        g("s_or_b32 s94, s94, s62")
        g("v_mov_b32 v20, s94")
        g("s_mov_b64 exec, 1")
        g(f"buffer_store_dword v20, v21, {W}, s63 offen {SC}")
        if opt.get("stl", 1):
            g("s_lshr_b32 s60, s5, 3")
            g("s_lshl_b32 s60, s60, 3")
            g("s_add_u32 s60, s60, s4")
            g("s_lshl_b32 s60, s60, 20")
            g(f"s_add_u32 s60, s60, {768*1024}")
            g("s_lshl_b32 s61, s4, 19")
            g(f"s_load_dword s64, s[{P_WO}:{P_WO+1}], s61")
            g(f"s_load_dword s65, s[{P_V}:{P_V+1}], s60")
            g(f"s_load_dword s66, s[{P_W2}:{P_W2+1}], 0")
            g(f"s_load_dword s67, s[{P_OUT}:{P_OUT+1}], 0")
        if TOUCH:
            g("s_mov_b64 exec, 0")
            g("s_branch L_chain1")
            g.label("L_w3b")
        g("s_waitcnt lgkmcnt(0)")
        g("s_endpgm")
    g.role = "w"
    g.label("L_w0")
    g.srd(SRD_W, P_WS, WS_BYTES)
    g("s_getreg_b32 s57, hwreg(HW_REG_XCC_ID, 0, 3)")
    g("s_lshl_b32 s58, s4, 5")
    g("s_add_u32 s58, s58, s5")
    g("s_lshl_b32 s67, s58, 10")
    g("s_lshl_b32 s58, s58, 2")
    g(f"s_add_u32 s58, s58, {XC_WS}")
    g("v_mov_b32 v16, 0")
    if opt.get("tlb", 0):
        g("s_lshr_b32 s6, s5, 3")
        g("s_lshl_b32 s7, s6, 3")
        g("s_add_u32 s7, s7, s4")
        g("s_lshl_b32 s7, s7, 20")
        g(f"s_add_u32 s7, s7, {768*1024}")
        g("v_mov_b32 v13, s7")
        g("s_mov_b64 exec, 1")
        g(f"global_load_dword v124, v13, s[{P_V}:{P_V+1}] nt")
        g("s_lshl_b32 s7, s4, 19")
        g("v_mov_b32 v13, s7")
        g(f"global_load_dword v124, v13, s[{P_WO}:{P_WO+1}] nt")
        g(f"global_load_dword v124, v16, s[{P_W2}:{P_W2+1}] nt")
        g("s_mov_b64 exec, -1")
    g(f"s_add_u32 s56, s67, {QA_WS}")
    g("v_lshlrev_b32 v1, 4, v0")
    if opt.get("prew", 1): g(f"buffer_load_dwordx4 v[124:127], v1, {W}, s56 offen {PWF}")
    g("s_waitcnt lgkmcnt(0)")
    epoch(g, 11)
    g(f"s_and_b32 s56, s{S_E1}, 0x1fffffff")
    g("s_lshl_b32 s57, s57, 29")
    g("s_or_b32 s57, s57, s56")
    g("v_mov_b32 v12, s57")
    g("s_mov_b64 exec, 1")
    if not opt.get("noxc"): g(f"buffer_store_dword v12, v16, {W}, s58 offen {SC}")
    if TOUCH:
        g("s_mov_b64 exec, 0")
        g("s_branch L_chain0")
        g.label("L_w8b")
    g("s_mov_b64 exec, -1")
    g.srd(SRD_C, P_X, 4096)
    ffn_ids(g)
    g("s_lshr_b32 s6, s5, 3")
    g("s_and_b32 s7, s5, 7")
    tile_raddr(g, 4, 3)
    g("v_bfe_u32 v10, v0, 2, 2")
    g(f"v_mul_u32_u24 v8, {XN_STR}, v10")
    g("v_lshrrev_b32 v9, 4, v0")
    g("v_lshl_add_u32 v8, v9, 4, v8")
    g("s_lshl_b32 s39, s6, 8")
    g(f"s_add_u32 s39, s39, {L_XN}")
    g("v_add_u32 v8, s39, v8")
    g("v_lshlrev_b32 v10, 11, v10")
    g("v_lshl_add_u32 v10, v9, 6, v10")
    g("v_and_b32 v9, 3, v0")
    g("v_lshl_add_u32 v10, v9, 4, v10")
    selmasks(g, 9)
    g("s_lshl_b32 s38, s4, 15")
    g("s_lshl_b32 s39, s6, 13")
    g("s_add_u32 s38, s38, s39")
    g("s_lshl_b32 s39, s7, 8")
    g("s_add_u32 s38, s38, s39")
    g(f"s_add_u32 s38, s38, {QA_WS}")
    g("s_lshl_b32 s58, s4, 7")
    g(f"s_add_u32 s58, s58, {XC_WS}")
    g("v_and_b32 v3, 31, v0")
    g("v_lshlrev_b32 v3, 2, v3")
    g(f"v_mov_b32 v2, {L_FL}")
    g("v_mov_b32 v9, 1")
    g("s_mov_b32 s63, 0")
    g.stamp(1)
    flagwait4(g, "L_lnw", 2, F_LNA, 12)
    g("s_setprio 3")
    for t in range(4):
        g(f"ds_read_b128 v[{12+4*t}:{15+4*t}], v8 offset:{64*t}")
        for u in range(4):
            r = 60 + 16*t + 4*u
            g(f"ds_read_b64_tr_b16 v[{r}:{r+1}], v{4+u} offset:{L_WQ - 65536 + t*4096}")
            g(f"ds_read_b64_tr_b16 v[{r+2}:{r+3}], v{4+u} offset:{L_WQ - 65536 + t*4096 + 2048}")
        if t >= 1:
            tt = t - 1
            g("s_waitcnt lgkmcnt(9)")
            for u in range(4):
                r = 60 + 16*tt + 4*u
                c = "0" if tt == 0 else f"v[{44+4*u}:{47+4*u}]"
                g(f"v_mfma_f32_16x16x32_bf16 v[{44+4*u}:{47+4*u}], v[{r}:{r+3}], v[{12+4*tt}:{15+4*tt}], {c}")
    for u in range(4):
        r = 60 + 48 + 4*u
        g(f"s_waitcnt lgkmcnt({6-2*u})")
        g(f"v_mfma_f32_16x16x32_bf16 v[{44+4*u}:{47+4*u}], v[{r}:{r+3}], v[24:27], v[{44+4*u}:{47+4*u}]")
    g("s_nop 3")
    select4(g, 28, 44, 11)
    g(f"buffer_store_dwordx4 v[28:31], v10, {W}, s38 offen")
    g(f"ds_write_b32 v2, v9 offset:{F_QP}")
    g.stamp(2)
    g("s_setprio 0")
    g("s_mov_b32 s97, 0")
    pw0 = len(g.L)
    if opt.get("pwu", 0):
        g("s_and_b32 s56, s5, 3")
        g("s_cmp_eq_u32 s56, 3")
        g("s_cbranch_scc1 L_pwd")
        g("s_lshr_b32 s56, s5, 2")
        g("s_sub_u32 s59, s5, s56")
        g("s_mul_i32 s56, s59, 3072")
        g("s_min_u32 s56, s56, 62464")
        g("s_lshl_b32 s60, s4, 16")
        g("s_add_u32 s56, s56, s60")
        g(f"s_add_u32 s56, s56, {O_WS}")
        for i in range(3):
            g(f"buffer_load_dwordx4 v[124:127], v1, {W}, s56 offen offset:{1024*i} {PWF}")
        g("s_lshr_b32 s60, s5, 3")
        g("s_sub_u32 s60, s68, s60")
        g("s_lshl_b32 s60, s60, 13")
        g("s_mul_i32 s56, s59, 1408")
        g("s_cmp_lt_u32 s4, 4")
        g("s_cselect_b32 s61, 31360, 0")
        g("s_cselect_b32 s62, 0, 23168")
        g("s_or_b32 s61, s61, s62")
        g("s_min_u32 s56, s56, s61")
        g("s_add_u32 s56, s56, s60")
        g(f"s_add_u32 s56, s56, {H_WS}")
        g(f"buffer_load_dwordx4 v[124:127], v1, {W}, s56 offen {PWF}")
        g("s_mov_b64 exec, 0xffffff")
        g(f"buffer_load_dwordx4 v[124:127], v1, {W}, s56 offen offset:1024 {PWF}")
        g("s_and_b32 s59, s59, 15")
        g("s_lshl_b32 s59, s59, 7")
        g("s_lshl_b32 s60, s4, 11")
        g("s_add_u32 s59, s59, s60")
        g(f"s_add_u32 s59, s59, {M_WS}")
        g("s_mov_b64 exec, 0xff")
        g(f"buffer_load_dwordx4 v[124:127], v1, {W}, s59 offen {PWF}")
        g("s_mov_b64 exec, -1")
        g.label("L_pwd")
    else:
        g("s_lshl_b32 s56, s67, 1")
        g(f"s_add_u32 s56, s56, {O_WS}")
        g(f"buffer_load_dwordx4 v[124:127], v1, {W}, s56 offen {PWF}")
        g(f"buffer_load_dwordx4 v[124:127], v1, {W}, s56 offen offset:1024 {PWF}")
        g("s_lshl_b32 s56, s68, 3")
        g("s_add_u32 s56, s56, s7")
        g("s_lshl_b32 s56, s56, 10")
        g(f"s_add_u32 s56, s56, {H_WS}")
        g("s_lshr_b32 s59, s67, 4")
        g(f"s_add_u32 s59, s59, {M_WS}")
        g("s_cmp_ge_u32 s5, 24" if opt.get("bal", 0) else "s_cmp_eq_u32 s69, 0")
        g("s_cselect_b32 s56, s59, s56")
        g(f"buffer_load_dwordx4 v[124:127], v1, {W}, s56 offen {PWF}")
        g("s_mov_b64 exec, 15")
        g(f"buffer_load_dwordx4 v[124:127], v1, {W}, s59 offen {PWF}")
        g("s_mov_b64 exec, -1")
    if not opt.get("prew", 1): del g.L[pw0:]
    if opt.get("sx", 0): g(f"s_sleep {opt.get('sx', 0)}")
    if opt.get("noxc"):
        g("v_mov_b32 v20, s57")
    else:
        g(f"buffer_load_dword v20, v3, {W}, s58 offen {SC}")
        g("s_waitcnt vmcnt(0)")
    g.label("L_xc")
    g("v_xor_b32 v20, s57, v20")
    g("v_lshlrev_b32 v21, 3, v20")
    g("v_cmp_ne_u32 vcc, 0, v21")
    g("s_cbranch_vccz L_xcok")
    spin(g, "L_xcok")
    g(f"buffer_load_dword v20, v3, {W}, s58 offen {SC}")
    g("s_waitcnt vmcnt(0)")
    g("s_branch L_xc")
    g.label("L_xcok")
    g("v_cmp_ne_u32 vcc, 0, v20")
    g("s_cmp_lg_u64 vcc, 0")
    g("s_cselect_b32 s59, 2, 1")
    if opt.get("force_remote"):
        g("s_mov_b32 s59, 2")
    g("s_cmp_eq_u32 s59, 1")
    g("s_cbranch_scc1 L_xcl")
    g(f"buffer_store_dwordx4 v[28:31], v10, {W}, s38 offen {SC}")
    g.label("L_xcl")
    g("v_mov_b32 v20, s59")
    g(f"ds_write_b32 v2, v20 offset:{F_XC}")
    g.stamp(3)
    g("s_cmp_eq_u32 s69, 0")
    g("s_cbranch_scc1 L_w8")
    g("v_lshrrev_b32 v12, 4, v0")
    g("v_bfe_u32 v13, v0, 2, 2")
    g("v_and_b32 v14, 3, v0")
    g("v_lshlrev_b32 v12, 6, v12")
    g("v_lshl_add_u32 v12, v13, 8, v12")
    g("v_lshl_add_u32 v12, v14, 4, v12")
    g(f"v_add_u32 v13, {L_HP}, v1")
    g("s_lshl_b32 s56, s68, 3")
    g("s_add_u32 s56, s56, s7")
    g("s_lshl_b32 s56, s56, 10")
    g(f"s_add_u32 s56, s56, {H_WS}")
    flagwait1(g, "L_hw", 2, F_H, 14)
    g("ds_read_b128 v[20:23], v13")
    if opt.get("bal", 0):
        g("s_cmp_ge_u32 s5, 24")
        g("s_cselect_b32 s59, 2, s59")
    g("s_cmp_eq_u32 s59, 1")
    g("s_waitcnt lgkmcnt(0)")
    g("s_cbranch_scc0 L_hpub_rem")
    g(f"buffer_store_dwordx4 v[20:23], v12, {W}, s56 offen")
    g("s_branch L_w8")
    g.label("L_hpub_rem")
    g(f"buffer_store_dwordx4 v[20:23], v12, {W}, s56 offen {SC}")
    g("s_branch L_w8")
    g.role = "a"
    g.label("L_att")
    TRL = opt.get("trl", 2)
    def tile_dma_thr(n, voff, srd, ss, lb, stride, first=0):
        for i in range(first, n):
            if i == first: g(f"s_add_u32 m0, s{lb[0]}, {lb[1]}")
            if i: g(f"s_add_u32 s{ss}, s{ss}, {8*stride - 1024}")
            g(f"s_waitcnt vmcnt({(THR2 or 64)-1})")
            g(f"buffer_load_dwordx4 v{voff}, s[{srd}:{srd+3}], s{ss} offen offset:{i*1024} {NT} lds")
    g.srd(SRD_W, P_WS, WS_BYTES)
    g.srd(SRD_C, P_WO, 4096*512*2)
    tile_voff(g, 1, 10, 1024)
    g("s_lshl_b32 s60, s4, 2")
    g("s_add_u32 s60, s60, s6")
    g("s_lshl_b32 s60, s60, 17")
    g("s_lshl_b32 s61, s3, 15")
    g("s_add_u32 s60, s60, s61")
    XO, XF2 = (4, 2) if opt.get("perm", 1) else (0, 0)
    g(f"s_xor_b32 s62, s7, {XO}")
    g("s_lshl_b32 s62, s62, 7")
    g("s_add_u32 s93, s60, s62")
    g(f"s_xor_b32 s62, s62, {(XO ^ XF2) << 7}")
    if WIDE & 2:
        g("v_lshrrev_b32 v10, 4, v0")
        g("v_and_b32 v20, 15, v0")
        g("v_lshlrev_b32 v20, 4, v20")
        g("v_lshl_add_u32 v20, v10, 10, v20")
        g("s_lshl_b32 s60, s4, 3")
        g("s_lshr_b32 s61, s5, 2")
        g("s_add_u32 s60, s60, s61")
        g("s_lshl_b32 s60, s60, 16")
        g("s_lshl_b32 s61, s3, 14")
        g("s_add_u32 s60, s60, s61")
        g("s_and_b32 s61, s5, 3")
        g("s_lshl_b32 s61, s61, 8")
        g("s_add_u32 s93, s60, s61")
    g("s_lshl_b32 s65, s3, 12")
    QT = opt.get("qt", 6)
    if QT:
        g(f"v_mov_b32 v17, {L_FL}")
        g("s_lshl_b32 s60, s3, 2")
        g("v_add_u32 v18, s60, v17")
        g("v_mov_b32 v19, 1")
        g(f"s_waitcnt vmcnt({8-QT})")
        g(f"ds_write_b32 v18, v19 offset:{F_K2}")
    ld0 = len(g.L)
    if WIDE & 2: tile_dma_thr(4, 20, SRD_C, 93, (65, L_WO), 512)
    else: tile_dma_thr(4, 1, SRD_C, 93, (65, L_WO), 1024)
    if opt.get("kf", 6) == 4:
        g("s_waitcnt vmcnt(4)")
        g(f"ds_write_b32 v18, v19 offset:{F_K}")
    tile_dma_thr(2 - TRL, 1, SRD_B, 68, (69, L_W2), 1024)
    if opt.get("kf", 6) == 6:
        g(f"s_waitcnt vmcnt({6 - TRL})")
        g(f"ds_write_b32 v18, v19 offset:{F_K}")
    g(f"s_mov_b32 s{SRD_A}, s{P_V}")
    g(f"s_mov_b32 s{SRD_A+1}, s{P_V+1}")
    g("s_mov_b32 s66, s38")
    g.stamp(4)
    PRE = opt.get("pre", 1)
    for i in range(8):
        kvld(i, 1, (THR2 if i < 4 else THR3) or 64)
        if PRE and i == 5:
            g("s_waitcnt vmcnt(6)")
            g(f"ds_write_b32 v18, v19 offset:{F_WO}")
    if TRL: tile_dma_thr(2, 1, SRD_B, 68, (69, L_W2), 1024, first=2 - TRL)
    loads = g.L[ld0:]; del g.L[ld0:]
    g("s_mov_b32 s60, s7")
    ffn_ids2(g, opt.get("bal", 0))
    g("s_mov_b32 s7, s60")
    g(f"s_mov_b32 s{SRD_B}, s{P_W2}")
    g(f"s_mov_b32 s{SRD_B+1}, s{P_W2+1}")
    g(f"s_mul_i32 s{SRD_B+2}, s69, {1792*512*2}")
    g(f"s_mov_b32 s{SRD_B+3}, 0x20000")
    g("s_lshl_b32 s68, s68, 2")
    g("s_add_u32 s68, s68, s3")
    g("s_lshl_b32 s68, s68, 14")
    g("s_add_u32 s68, s68, s62")
    g("s_lshl_b32 s69, s3, 11")
    g("v_lshlrev_b32 v6, 1, v8")
    g("v_xor_b32 v6, v9, v6")
    g("v_lshlrev_b32 v6, 4, v6")
    g("v_lshl_add_u32 v6, v8, 8, v6")
    g("v_xor_b32 v7, 128, v6")
    g(f"v_mov_b32 v17, {L_FL}")
    g("s_lshl_b32 s60, s3, 2")
    g("v_add_u32 v18, s60, v17")
    g("v_mov_b32 v19, 1")
    nfirst = len(g.L) - ld0
    g("v_lshrrev_b32 v25, 2, v0")
    g("v_and_b32 v26, 7, v25")
    g("v_lshlrev_b32 v26, 5, v26")
    g("v_lshl_add_u32 v26, v25, 8, v26")
    g("v_and_b32 v14, 3, v0")
    g("v_lshl_add_u32 v14, v14, 3, v26")
    g("s_lshl_b32 s60, s3, 6")
    g("v_xor_b32 v14, s60, v14")
    g("v_xor_b32 v15, 32, v14")
    g("v_bfe_u32 v25, v0, 2, 2")
    g("v_lshlrev_b32 v28, 6, v25")
    g("v_lshl_add_u32 v28, v8, 4, v28")
    g(f"v_add_u32 v28, {L_OC}, v28")
    g("v_lshlrev_b32 v30, 14, v25")
    g("v_lshl_add_u32 v30, v8, 5, v30")
    g("v_and_b32 v16, 1, v0")
    g("v_lshl_add_u32 v30, v16, 4, v30")
    g("s_lshl_b32 s61, s4, 5")
    g("s_add_u32 s61, s61, s7")
    g("s_lshl_b32 s61, s61, 2")
    g("s_add_u32 s61, s61, s6")
    g("s_lshl_b32 s61, s61, 2")
    g("s_add_u32 s61, s61, s3")
    g("s_lshl_b32 s61, s61, 7")
    g(f"s_add_u32 s61, s61, {O_WS}")
    for r in range(80, 112):
        g(f"v_mov_b32 v{r}, 0")
    g("s_mov_b32 s63, 0"); g("s_mov_b32 s97, 0")
    g("s_waitcnt lgkmcnt(0)")
    epoch(g, 31)
    setup = g.L[ld0:]; del g.L[ld0:]
    per = -(-nfirst // 3)
    for x in loads:
        g.L.append(x)
        if "buffer_load" in x:
            g.L.extend(setup[:per]); setup = setup[per:]
    assert not setup
    g.stamp(3)
    flagwait4(g, "L_px", 17, F_P, 36, pre=lambda: g(f"ds_read_b32 v46, v17 offset:{F_XC}"), sleep=0)
    g("s_mov_b32 exec_lo, 0x55555555")
    g("s_mov_b32 exec_hi, 0x55555555")
    for t in range(4):
        g(f"ds_read_b128 v[{80+4*t}:{83+4*t}], v28 offset:{256*t}")
    g("s_not_b64 exec, exec")
    for t in range(4):
        g(f"ds_read_b128 v[{96+4*t}:{99+4*t}], v28 offset:{256*t}")
    g("s_mov_b64 exec, -1")
    g("v_readfirstlane_b32 s65, v46")
    g.stamp(2)
    def vrd(half):
        for t in range(4):
            for p in range(2):
                r = 48 + 8*t + 4*p + 2*half
                g(f"ds_read_b64_tr_b16 v[{r}:{r+1}], v{14+p} offset:{L_V + t*8192 + 4096*half}")
    if PRE:
        g(f"s_waitcnt vmcnt({TRL+4})")
        g(f"ds_write_b32 v18, v19 offset:{F_V1}")
        flagwait4(g, "L_v1", 17, F_V1, 36)
        vrd(0)
    g(f"s_waitcnt vmcnt({TRL}) lgkmcnt(0)")
    g.stamp(5)
    g("s_cmp_eq_u32 s65, 1")
    if opt.get("prio", 1): g("s_setprio 3")
    g("s_barrier")
    g.stamp(7)
    if not PRE: vrd(0)
    vrd(1)
    for t in range(4):
        for p in range(2):
            r = 48 + 8*t + 4*p
            k = 2*t + p
            g(f"s_waitcnt lgkmcnt({7-k})")
            g(f"v_mfma_f32_16x16x32_bf16 v[36:39], v[{r}:{r+3}], v[{80+16*p+4*t}:{83+16*p+4*t}], {'0' if k == 0 else 'v[36:39]'}")
    g("s_mov_b32 exec_lo, 0x33333333")
    g("s_mov_b32 exec_hi, 0x33333333")
    g("s_nop 4")
    g("s_cbranch_scc0 L_opub_rem")
    for rem in (0, 1):
        if rem: g.label("L_opub_rem")
        for r in range(4):
            g(f"v_bfi_b32 v{36+r}, s{S_LO}, v31, v{36+r}")
        g(f"buffer_store_dwordx4 v[36:39], v30, {W}, s61 offen {SC if rem else ''}")
        g(f"ds_write_b32 v18, v19 offset:{F_OS}")
        if TRL:
            g("s_waitcnt vmcnt(1)")
            g(f"ds_write_b32 v18, v19 offset:{F_OP}")
        g.stamp(8)
        if opt.get("stamps"):
            g("s_add_u32 s3, s3, 4")
            g("s_branch L_end")
        else:
            hevhold()
            g("s_endpgm")
    g.role = "l"
    g.label("L_ln_done")
    if TOUCH and not NEAR:
        g("s_cmp_eq_u32 s3, 3")
        g("s_cbranch_scc0 L_w3b")
        g("s_mov_b64 exec, 0")
        g("s_branch L_chain1")
        g.label("L_w3b")
        g("s_mov_b64 exec, -1")
    tile_raddr(g, 4, 3)
    g(f"v_mov_b32 v17, {L_FL}")
    g("s_mov_b32 s63, 0")
    g("s_waitcnt vmcnt(0)")
    g(f"ds_write_b32 v9, v10 offset:{F_LNB}")
    g("s_cmp_eq_u32 s3, 1")
    g("s_cbranch_scc0 L_qk")
    g("s_cmp_eq_u32 s69, 0")
    g("s_cbranch_scc1 L_qk")
    g("s_and_b32 s6, s5, 7")
    g("v_and_b32 v15, 3, v0")
    selmasks(g, 15)
    g("v_lshrrev_b32 v13, 4, v0")
    g("v_bfe_u32 v16, v0, 2, 2")
    g(f"v_mul_u32_u24 v14, {XN_STR}, v16")
    g("v_lshl_add_u32 v14, v13, 4, v14")
    g("s_lshl_b32 s39, s6, 7")
    g(f"s_add_u32 s39, s39, {L_XN}")
    g("v_add_u32 v14, s39, v14")
    g("v_lshlrev_b32 v13, 4, v0")
    g(f"v_add_u32 v13, {L_HP}, v13")
    flagwait4(g, "L_w1w", 17, F_LNB, 20, sleep=1)
    g("ds_read_b128 v[80:83], v14")
    g("ds_read_b128 v[84:87], v14 offset:64")
    for t in range(2):
        for u in range(4):
            r = 24 + 16*t + 4*u
            g(f"ds_read_b64_tr_b16 v[{r}:{r+1}], v{4+u} offset:{L_W1 - 65536 + t*4096}")
            g(f"ds_read_b64_tr_b16 v[{r+2}:{r+3}], v{4+u} offset:{L_W1 - 65536 + t*4096 + 2048}")
    for t in range(2):
        for u in range(4):
            r = 24 + 16*t + 4*u
            g(f"s_waitcnt lgkmcnt({14 - 8*t - 2*u})")
            c = "0" if t == 0 else f"v[{64+4*u}:{67+4*u}]"
            g(f"v_mfma_f32_16x16x32_bf16 v[{64+4*u}:{67+4*u}], v[{r}:{r+3}], v[{80+4*t}:{83+4*t}], {c}")
    g("s_nop 3")
    select4(g, 56, 64, 11)
    g("ds_write_b128 v13, v[56:59]")
    g(f"ds_write_b32 v17, v10 offset:{F_H}")
    g.stamp(1)
    g.label("L_qk")
    g("s_lshr_b32 s6, s5, 3")
    g("s_and_b32 s7, s5, 7")
    g("v_lshrrev_b32 v8, 4, v0")
    g("v_and_b32 v12, 15, v0")
    g("v_xor_b32 v20, v8, v12")
    g("v_lshlrev_b32 v20, 4, v20")
    g("v_lshl_add_u32 v20, v12, 8, v20")
    g("s_lshl_b32 s39, s3, 13")
    g("v_add_u32 v20, s39, v20")
    for t in (1, 2, 3):
        g(f"v_xor_b32 v{20+t}, {64*t}, v20")
    g("v_lshrrev_b32 v13, 5, v0")
    g("v_and_b32 v14, 31, v0")
    g("v_lshlrev_b32 v24, 14, v13")
    g("v_lshl_add_u32 v24, v14, 4, v24")
    g("s_lshl_b32 s58, s4, 15")
    g("s_lshl_b32 s59, s6, 11")
    g("s_add_u32 s58, s58, s59")
    g("s_lshl_b32 s59, s3, 9")
    g("s_add_u32 s65, s58, s59")
    g(f"s_add_u32 s65, s65, {QA_WS}")
    g("v_lshlrev_b32 v25, 2, v13")
    g("v_and_b32 v15, 16, v0")
    g("v_lshl_add_u32 v25, v15, 3, v25")
    g("v_and_b32 v15, 12, v0")
    g("v_lshl_add_u32 v25, v15, 1, v25")
    g("v_and_b32 v15, 3, v0")
    g("v_lshl_add_u32 v25, v15, 5, v25")
    g(f"s_mul_i32 s39, s3, {QL_STR}")
    g(f"s_add_u32 s38, s39, {L_QL}")
    g("v_add_u32 v25, s38, v25")
    g("v_bfe_u32 v16, v0, 2, 2")
    g(f"v_mul_u32_u24 v26, {QL_STR}, v16")
    g("v_lshl_add_u32 v26, v8, 4, v26")
    g(f"v_add_u32 v26, {L_QL}, v26")
    g("v_lshlrev_b32 v29, 4, v16")
    g(f"v_add_u32 v29, {L_ML}, v29")
    g("s_lshl_b32 s38, s3, 2")
    g("v_add_u32 v27, s38, v29")
    g("v_lshlrev_b32 v28, 6, v16")
    g("v_lshl_add_u32 v28, v8, 4, v28")
    g("s_lshl_b32 s38, s3, 8")
    g(f"s_add_u32 s38, s38, {L_OC}")
    g("v_add_u32 v28, s38, v28")
    g("v_lshlrev_b32 v30, 9, v16")
    g("s_lshl_b32 s67, s4, 7")
    g("s_add_u32 s67, s67, s5")
    g("s_lshl_b32 s67, s67, 4")
    g(f"s_add_u32 s67, s67, {M_WS}")
    for r in range(4):
        g(f"v_mov_b32 v{32+r}, 0x3f803f80")
    g(f"s_mov_b32 s66, {hex(f2u(1.4426950408889634))}")
    g(f"s_mov_b32 s38, {hex(f2u(128 ** -0.5))}")
    g("v_mov_b32 v108, s38")
    g("v_mov_b32 v109, s38")
    g("s_mov_b32 s57, 0x11111111")
    g("s_lshl_b32 s56, s4, 2")
    g("s_add_u32 s56, s56, s6")
    g("v_lshlrev_b32 v103, 13, v13")
    g("v_lshl_add_u32 v103, v14, 4, v103")
    g("s_lshl_b32 s61, s56, 14")
    g("s_add_u32 s61, s61, s59")
    g(f"s_add_u32 s61, s61, {O_WS}")
    g("s_add_u32 s64, s61, 4096")
    g("v_lshl_add_u32 v104, v13, 2, v15")
    g("v_lshlrev_b32 v104, 4, v104")
    g("s_lshl_b32 s60, s56, 2")
    g("s_add_u32 s60, s60, s3")
    g("s_lshl_b32 s60, s60, 7")
    g(f"s_add_u32 s60, s60, {M_WS}")
    g("v_lshlrev_b32 v102, 2, v13")
    g("v_lshl_add_u32 v102, v14, 3, v102")
    g(f"s_add_u32 s39, s39, {L_OL}")
    g("v_add_u32 v102, s39, v102")
    g(f"v_mul_u32_u24 v101, {QL_STR}, v15")
    g("v_lshl_add_u32 v101, v8, 4, v101")
    g(f"v_add_u32 v101, {L_OL}, v101")
    g("s_lshl_b32 s39, s3, 5")
    g("v_xor_b32 v107, s39, v4")
    g("v_lshlrev_b32 v105, 4, v0")
    widetags(g, 110)
    g(f"s_xor_b32 s92, s7, {XO}")
    r3addr(g, 62, 92, 56, 39)
    g("s_lshl_b32 s39, s3, 8")
    g("s_add_u32 s62, s62, s39")
    g.stamp(3)
    flagwait1(g, "L_qw", 17, F_QP, 12)
    flagwait1(g, "L_kw", 9, F_K2 if opt.get("qt", 6) else F_K, 12)
    if opt.get("dq", 0): g(f"s_sleep {opt.get('dq', 0)}")
    g("s_mov_b32 s97, 0")
    g("s_mov_b32 s58, s65")
    g("s_add_u32 s59, s58, 8192")
    g(f"buffer_load_dwordx4 v[36:39], v24, {W}, s58 offen {SC}")
    g(f"buffer_load_dwordx4 v[40:43], v24, {W}, s59 offen {SC}")
    if opt.get("qt", 6): flagwait1(g, "L_kv2", 9, F_K, 12)
    for tau in range(2):
        for t in range(4):
            r = 48 + 16*tau + 4*t
            g(f"ds_read_b128 v[{r}:{r+3}], v{20+t} offset:{4096*tau}")
    g.label("L_qc")
    g("s_waitcnt vmcnt(0)")
    tagcheck(g, list(range(36, 44)), 11, [44, 45, 46, 47])
    g("s_cbranch_vccz L_qok")
    spin(g, "L_qok")
    g(f"buffer_load_dwordx4 v[36:39], v24, {W}, s58 offen {SC}")
    g(f"buffer_load_dwordx4 v[40:43], v24, {W}, s59 offen {SC}")
    g("s_branch L_qc")
    g.label("L_qok")
    g.stamp(4)
    if opt.get("stamps"): g("s_min_u32 s96, s97, 0xff")
    untag(g, range(36, 44))
    g("v_pk_add_f32 v[36:37], v[36:37], v[40:41]")
    g("v_pk_add_f32 v[38:39], v[38:39], v[42:43]")
    g("s_nop 1")
    g("v_permlane32_swap_b32 v36, v38")
    g("v_permlane32_swap_b32 v37, v39")
    g("v_pk_add_f32 v[36:37], v[36:37], v[38:39]")
    g("v_cvt_pk_bf16_f32 v36, v36, v37")
    g("ds_write_b32 v25, v36")
    g(f"ds_write_b32 v9, v10 offset:{F_Q}")
    def qrd():
        for t in range(4):
            g(f"ds_read_b128 v[{80+4*t}:{83+4*t}], v26 offset:{64*t}")
    flagwait4(g, "L_qx", 17, F_Q, 36, pre=qrd, n=4)
    for t in range(4):
        g(f"s_waitcnt lgkmcnt({3-t})")
        for tau in range(2):
            r = 48 + 16*tau + 4*t
            c = "0" if t == 0 else f"v[{36+4*tau}:{39+4*tau}]"
            g(f"v_mfma_f32_16x16x32_bf16 v[{36+4*tau}:{39+4*tau}], v[{r}:{r+3}], v[{80+4*t}:{83+4*t}], {c}")
    g("s_nop 6")
    def rnd8():
        for i in range(4):
            g(f"v_cvt_pk_bf16_f32 v{48+i}, v{36+2*i}, v{37+2*i}")
        for i in range(4):
            g(f"v_lshlrev_b32 v{36+2*i}, 16, v{48+i}")
            g(f"v_and_b32 v{37+2*i}, 0xffff0000, v{48+i}")
    rnd8()
    for i in range(4):
        g(f"v_pk_mul_f32 v[{36+2*i}:{37+2*i}], v[{36+2*i}:{37+2*i}], v[108:109]")
    rnd8()
    g("v_max3_f32 v44, v36, v37, v38")
    g("v_max3_f32 v45, v39, v40, v41")
    g("v_max3_f32 v44, v44, v42, v43")
    g("v_max_f32 v44, v44, v45")
    g("v_mov_b32 v45, v44")
    g("s_nop 1")
    g("v_permlane32_swap_b32 v44, v45")
    g("v_max_f32 v44, v44, v45")
    g("v_mov_b32 v45, v44")
    g("s_nop 1")
    g("v_permlane16_swap_b32 v44, v45")
    g("v_max_f32 v44, v44, v45")
    g("v_mul_f32 v44, s66, v44")
    g("s_mov_b64 exec, 0x1111")
    g("ds_write_b32 v27, v44")
    g("s_mov_b64 exec, -1")
    g.label("L_mx")
    g("ds_read_b128 v[48:51], v29")
    spin(g, "L_mxok", lds=True)
    g("s_waitcnt lgkmcnt(0)")
    g("v_max_u32 v45, v48, v49")
    g("v_max3_u32 v45, v45, v50, v51")
    g("v_cmp_eq_u32 vcc, -1, v45")
    g("s_cbranch_vccnz L_mx")
    g.label("L_mxok")
    g("v_max3_f32 v44, v48, v49, v50")
    g("v_max_f32 v44, v44, v51")
    g("v_and_b32 v44, s98, v44")
    for i in range(8):
        g(f"v_fma_f32 v{36+i}, v{36+i}, s66, -v44")
    for i in range(8):
        g(f"v_exp_f32 v{36+i}, v{36+i}")
    for i in range(4):
        g(f"v_cvt_pk_bf16_f32 v{36+i}, v{36+2*i}, v{37+2*i}")
    g("s_nop 1")
    g("v_mfma_f32_16x16x32_bf16 v[40:43], v[32:35], v[36:39], 0")
    g("s_mov_b32 exec_lo, s57")
    g("s_mov_b32 exec_hi, s57")
    g("ds_write_b128 v28, v[36:39]")
    g("s_mov_b64 exec, 0x1111")
    g("s_nop 3")
    g("ds_write_b32 v27, v40 offset:64")
    g("s_mov_b64 exec, -1")
    flagwait1(g, "L_xw", 17, F_XC, 12, sdst=56, sleep=0)
    g(f"ds_write_b32 v9, v10 offset:{F_P}")
    g.stamp(2)
    g("s_cmp_eq_u32 s3, 0")
    g("s_cbranch_scc0 L_wo_b3")
    flagwait4(g, "L_lx", 17, F_P, 36, pre=lambda: g("ds_read_b128 v[40:43], v29 offset:64"), n=0)
    g("v_pk_add_f32 v[40:41], v[40:41], v[42:43]")
    g("v_mov_b32 v46, v11")
    g("v_mov_b32 v47, v11")
    g("v_or_b32 v44, v44, v11")
    g("v_add_f32 v45, v40, v41")
    g("s_mov_b64 exec, 0x1111")
    g(f"v_bfi_b32 v45, s{S_LO}, v11, v45")
    g("s_cmp_eq_u32 s56, 1")
    g("s_cbranch_scc0 L_mlr")
    g(f"buffer_store_dwordx4 v[44:47], v30, {W}, s67 offen")
    g("s_branch L_ml1")
    g.label("L_mlr")
    g(f"buffer_store_dwordx4 v[44:47], v30, {W}, s67 offen {SC}")
    g.label("L_ml1")
    g("s_mov_b64 exec, -1")
    g.label("L_wo_b3")
    g(f"v_mov_b32 v106, {L_FL}")
    def word():
        for t in range(4):
            g(f"ds_read_b64_tr_b16 v[{16+4*t}:{17+4*t}], v107 offset:{L_WO - 65536 + t*4096}")
            g(f"ds_read_b64_tr_b16 v[{18+4*t}:{19+4*t}], v107 offset:{L_WO - 65536 + t*4096 + 2048}")
    if opt.get("pre", 1):
        flagwait4(g, "L_wow", 106, F_WO, 36, sleep=1)
        word()
    pass
    g("s_waitcnt lgkmcnt(0)")
    g("s_barrier")
    def oml():
        g(f"buffer_load_dwordx4 v[32:35], v104, {W}, s60 offen {SC}")
    def opl():
        g(f"buffer_load_dwordx4 v[40:43], v103, {W}, s61 offen {SC}")
        g(f"buffer_load_dwordx4 v[44:47], v103, {W}, s61 offen offset:2048 {SC}")
        g(f"buffer_load_dwordx4 v[48:51], v103, {W}, s64 offen {SC}")
        g(f"buffer_load_dwordx4 v[52:55], v103, {W}, s64 offen offset:2048 {SC}")
    oml()
    if not opt.get("pre", 1): word()
    flagwait4(g, "L_wt", 106, F_OS, 36, pre=(lambda: g(f"ds_read_b32 v60, v106 offset:{F_NB}")) if NEAR else None)
    if opt.get("prio", 1): g("s_setprio 2")
    g("s_mov_b32 s97, 0")
    g.stamp(6)
    opl()
    if NEAR:
        g("v_readfirstlane_b32 s38, v60")
        g("s_nop 2")
        r3par(g, 62, 92, 38, 39)
    g("s_waitcnt vmcnt(4)")
    tagcheck(g, [32, 33, 34, 35], 11, [56, 57])
    g("s_cbranch_vccz L_o2")
    g.label("L_o")
    oml()
    spin(g, "L_o2")
    g("s_waitcnt vmcnt(0)")
    tagcheck(g, [32, 33, 34, 35], 11, [56, 57])
    g("s_cbranch_vccnz L_o")
    g.label("L_o2")
    g.stamp(5)
    untag(g, (32, 33))
    g("s_nop 0")
    g(f"v_max_f32_dpp v56, v32, v32 quad_perm:[1,0,3,2] {DPPM}")
    g("s_nop 1")
    g(f"v_max_f32_dpp v56, v56, v56 quad_perm:[2,3,0,1] {DPPM}")
    g("v_mov_b32 v57, v56")
    g("s_nop 1")
    g("v_permlane32_swap_b32 v56, v57")
    g("v_max_f32 v56, v56, v57")
    g("v_sub_f32 v32, v32, v56")
    g("v_exp_f32 v32, v32")
    g("s_nop 0")
    g("v_mul_f32 v57, v32, v33")
    g("s_nop 1")
    g(f"v_add_f32_dpp v57, v57, v57 quad_perm:[1,0,3,2] {DPPM}")
    g("s_nop 1")
    g(f"v_add_f32_dpp v57, v57, v57 quad_perm:[2,3,0,1] {DPPM}")
    g("v_mov_b32 v58, v57")
    g("s_nop 1")
    g("v_permlane32_swap_b32 v57, v58")
    g("v_add_f32 v57, v57, v58")
    g("v_rcp_f32 v57, v57")
    g("s_nop 0")
    g("v_mul_f32 v32, v32, v57")
    g("s_nop 1")
    for i in range(4):
        g(f"v_mov_b32_dpp v{64+2*i}, v32 quad_perm:[{i},{i},{i},{i}] {DPPM}")
    for i in range(4):
        g(f"v_mov_b32 v{65+2*i}, v{64+2*i}")
    g("s_mov_b32 s97, 0")
    g.label("L_o4")
    g("s_waitcnt vmcnt(0)")
    xorcheck(g, range(40, 56), 11, [56, 57, 58, 59, 36, 37, 38, 39])
    g("s_cbranch_vccnz L_o3")
    g("s_mov_b64 exec, -1")
    g.label("L_ook")
    g.stamp(7)
    g("v_pk_mul_f32 v[36:37], v[64:65], v[40:41]")
    g("v_pk_mul_f32 v[38:39], v[64:65], v[42:43]")
    for i in range(1, 4):
        g(f"v_pk_fma_f32 v[36:37], v[{64+2*i}:{65+2*i}], v[{40+4*i}:{41+4*i}], v[36:37]")
        g(f"v_pk_fma_f32 v[38:39], v[{64+2*i}:{65+2*i}], v[{42+4*i}:{43+4*i}], v[38:39]")
    g("s_nop 1")
    g("v_permlane32_swap_b32 v36, v38")
    g("v_permlane32_swap_b32 v37, v39")
    g("v_pk_add_f32 v[36:37], v[36:37], v[38:39]")
    g("v_cvt_pk_bf16_f32 v36, v36, v37")
    g("ds_write_b32 v102, v36")
    g("s_waitcnt lgkmcnt(0)")
    g("s_barrier")
    for t in range(4):
        g(f"ds_read_b128 v[{40+4*t}:{43+4*t}], v101 offset:{64*t}")
    for t in range(4):
        g(f"s_waitcnt lgkmcnt({3-t})")
        c = "0" if t == 0 else "v[32:35]"
        g(f"v_mfma_f32_16x16x32_bf16 v[32:35], v[{40+4*t}:{43+4*t}], v[{16+4*t}:{19+4*t}], {c}")
    g("s_mov_b64 exec, 0xffff")
    g("s_nop 6")
    for u in range(4):
        g(f"v_bfi_b32 v{32+u}, s{S_LO}, v{(11, 110, 111, 11)[u]}, v{32+u}")
    g(f"buffer_store_dwordx4 v[32:35], v105, {W}, s62 offen {opt.get('fs', SC).replace('+', ' ')}")
    g.stamp(8)
    if opt.get("stamps"):
        g("s_lshl_b32 s96, s96, 16")
        g("s_min_u32 s97, s97, 255")
        g("s_or_b32 s97, s97, s96")
    hevhold()
    g("s_branch L_end" if opt.get("stamps") else "s_endpgm")
    g.label("L_o3")
    g("s_add_u32 s97, s97, 1")
    g(f"s_cmp_gt_u32 s97, {SPIN_MAX}")
    g("s_cbranch_scc1 L_ook")
    g("s_mov_b64 exec, vcc")
    if opt.get("so", 0): g(f"s_sleep {opt['so']}")
    opl()
    g("s_branch L_o4")
    g.role = "w"
    g.label("L_w8")
    ffn_ids2(g, opt.get("bal", 0))
    g.srd(SRD_B, P_B1, 1792*2)
    g("s_and_b32 s6, s5, 7")
    g("v_lshrrev_b32 v12, 4, v0")
    g("v_and_b32 v13, 3, v0")
    g("v_bfe_u32 v14, v0, 2, 2")
    selmasks(g, 12)
    g("v_lshlrev_b32 v8, 5, v13")
    g("v_lshl_add_u32 v8, v14, 3, v8")
    g("s_lshl_b32 s57, s68, 7")
    g(f"v_mul_u32_u24 v9, {HL_STR}, v12")
    g("v_lshl_add_u32 v9, v14, 4, v9")
    g("v_and_b32 v14, 2, v0")
    g("v_lshl_add_u32 v9, v14, 5, v9")
    g("v_cmp_ne_u32 s[60:61], 0, v14")
    g("v_and_b32 v15, 1, v0")
    g("v_lshl_add_u32 v9, v15, 3, v9")
    g(f"v_add_u32 v9, {L_HL}, v9")
    g(f"v_mul_u32_u24 v19, {HL_STR}, v13")
    g("v_lshl_add_u32 v19, v12, 4, v19")
    g(f"v_add_u32 v19, {L_HL}, v19")
    g("s_lshl_b32 s58, s68, 13")
    g(f"s_add_u32 s58, s58, {H_WS}")
    g("s_add_u32 s59, s58, 4096")
    g("v_lshlrev_b32 v10, 4, v0")
    g(f"s_add_u32 s39, s4, {28 if opt.get('bal', 0) else 24}")
    g("s_cmp_eq_u32 s69, 0")
    g("s_cselect_b32 s39, s39, s68")
    g("s_add_u32 s64, s39, 32")
    g(f"s_xor_b32 s67, s6, {XF2}")
    r3addr(g, 62, 67, 64, 39)
    g("v_lshrrev_b32 v3, 4, v0")
    g("v_lshlrev_b32 v3, 14, v3")
    g("v_bfe_u32 v1, v0, 1, 3")
    g("v_lshl_add_u32 v3, v1, 10, v3")
    g("v_lshl_add_u32 v3, v15, 4, v3")
    r3addr(g, 64, 4, None, 39)
    g("s_lshl_b32 s39, s5, 5")
    g("s_add_u32 s64, s64, s39")
    g("v_and_b32 v16, 1, v12")
    g("v_add_u32 v16, v16, v14")
    g("v_lshlrev_b32 v1, 1, v15")
    g("v_lshl_add_u32 v16, v16, 10, v1")
    g("s_lshl_b32 s66, s4, 7")
    g("s_lshl_b32 s39, s5, 2")
    g("s_add_u32 s66, s66, s39")
    g(f"buffer_load_dwordx2 v[20:21], v8, s[{SRD_B}:{SRD_B+3}], s57 offen")
    g.srd(SRD_B, P_B2, 1024)
    g(f"buffer_load_ushort v17, v16, s[{SRD_C}:{SRD_C+3}], s66 offen")
    g(f"buffer_load_ushort v18, v1, s[{SRD_B}:{SRD_B+3}], s66 offen")
    g.srd(SRD_A, P_OUT, 4096)
    if opt.get("otouch", 2):
        g(f"buffer_load_ushort v124, v16, s[{SRD_A}:{SRD_A+3}], s66 offen {'nt' if opt.get('otouch', 2) == 2 else ''}")
    g(f"s_mov_b32 s57, {hex(f2u(-1.4426950408889634))}")
    g(f"v_mov_b32 v2, {L_FL}")
    widetags(g, 116)
    for r in range(4):
        g(f"v_mov_b32 v{96+r}, v{(11, 116, 117, 11)[r]}")
    pass
    flagwait1(g, "L_hg", 2, F_P if opt.get("hgate", 0) else F_Q, 12)
    g("s_mov_b32 s97, 0")
    def hld():
        for kp in range(8):
            g(f"buffer_load_dwordx4 v[{56+4*kp}:{59+4*kp}], v10, {W}, s{58+(kp>>2)} offen offset:{(kp&3)*1024} {SC}")
    if NEAR:
        g(f"s_mov_b32 s56, {PB_WS}")
        g(f"buffer_load_dwordx4 v[24:27], v10, {W}, s56 offen {SC}")
    g("s_cmp_eq_u32 s69, 0")
    g("s_cbranch_scc1 L_noh")
    hld()
    g.label("L_noh")
    if NEAR:
        g(f"s_and_b32 s39, s{S_E1}, 0x1fffff")
        g("v_mov_b32 v28, s39")
        g("v_lshrrev_b32 v29, 1, v0")
        g("v_xor_b32 v29, v29, v0")
        g("v_and_b32 v29, 1, v29")
        g("v_cmp_ne_u32 s[38:39], 0, v29")
        g("s_cmp_eq_u32 s69, 0")
        g("s_cbranch_scc1 L_pb0")
        g("s_waitcnt vmcnt(8)")
        g("s_branch L_pb")
        g.label("L_pb0")
        g("s_waitcnt vmcnt(0)")
        g.label("L_pb")
        g("v_bitop3_b32 v29, v24, v25, v28 bitop3:0x7e")
        g("v_bitop3_b32 v30, v26, v27, v28 bitop3:0x7e")
        g("v_or_b32 v29, v29, v30")
        g("v_lshlrev_b32 v29, 11, v29")
        g("v_cmp_ne_u32 vcc, 0, v29")
        g("s_cbranch_vccz L_pbok")
        spin(g, "L_pbok")
        g("s_sleep 8")
        g(f"buffer_load_dwordx4 v[24:27], v10, {W}, s56 offen {SC}")
        g("s_branch L_pb0")
        g.label("L_pbok")
        for i in range(4):
            g(f"v_lshrrev_b32 v{24+i}, 21, v{24+i}")
        g("v_add3_u32 v24, v24, v25, v26")
        g("v_add_u32 v24, v24, v27")
        g("v_sub_u32 v25, 0, v24")
        g("v_cndmask_b32 v24, v24, v25, s[38:39]")
        for c in ("row_ror:8", "row_ror:4", "row_ror:2", "row_ror:1"):
            g("s_nop 1")
            g(f"v_add_u32_dpp v24, v24, v24 {c} {DPPM}")
        g("s_nop 1")
        g("v_add_u32_dpp v24, v24, v24 row_bcast:15 row_mask:0xa bank_mask:0xf")
        g("s_nop 1")
        g("v_add_u32_dpp v24, v24, v24 row_bcast:31 row_mask:0xc bank_mask:0xf")
        g("s_nop 0")
        g("v_readlane_b32 s56, v24, 63")
        g("s_nop 2")
        g("s_cmp_gt_i32 s56, 0")
        g("s_cselect_b32 s56, 0x10f, 0")
        g("s_cselect_b32 s39, 0, 0x1f0")
        g("s_or_b32 s56, s56, s39")
        if "fixnb" in opt: g(f"s_movk_i32 s56, {0x100 | opt['fixnb']}")
        if opt.get("stamps"): g("s_mov_b32 s99, s56")
        g("v_mov_b32 v24, s56")
        g(f"ds_write_b32 v2, v24 offset:{F_NB}")
        r3par(g, 62, 67, 56, 39)
        r3par(g, 64, 4, 56, 39)
        g("s_mov_b32 s97, 0")
        g("s_waitcnt lgkmcnt(0)")
    g("s_add_u32 s65, s64, 65536")
    g("s_cmp_eq_u32 s69, 0")
    g("s_barrier")
    g("s_cbranch_scc1 L_w8_fin")
    g.label("L_h")
    g("s_waitcnt vmcnt(0)")
    g("v_lshlrev_b32 v88, 16, v20")
    g("v_and_b32 v89, 0xffff0000, v20")
    g("v_lshlrev_b32 v90, 16, v21")
    g("v_and_b32 v91, 0xffff0000, v21")
    tagcheck(g, list(range(56, 88)), 11, list(range(100, 116)))
    g("s_cbranch_vccz L_hok")
    spin(g, "L_hok")
    hld()
    g("s_branch L_h")
    g.label("L_hok")
    g.stamp(5)
    untag(g, range(56, 88))
    for (a, b) in ((56, 60), (64, 68), (72, 76), (80, 84), (56, 64), (72, 80), (56, 72)):
        g(f"v_pk_add_f32 v[{a}:{a+1}], v[{a}:{a+1}], v[{b}:{b+1}]")
        g(f"v_pk_add_f32 v[{a+2}:{a+3}], v[{a+2}:{a+3}], v[{b+2}:{b+3}]")
    def unp():
        g("v_cvt_pk_bf16_f32 v60, v56, v57")
        g("v_cvt_pk_bf16_f32 v61, v58, v59")
        g("v_lshlrev_b32 v56, 16, v60")
        g("v_and_b32 v57, 0xffff0000, v60")
        g("v_lshlrev_b32 v58, 16, v61")
        g("v_and_b32 v59, 0xffff0000, v61")
    unp()
    g("v_pk_add_f32 v[56:57], v[56:57], v[88:89]")
    g("v_pk_add_f32 v[58:59], v[58:59], v[90:91]")
    unp()
    for i in range(4):
        g(f"v_max_f32 v{56+i}, 0, v{56+i}")
    g("v_pk_mul_f32 v[56:57], v[56:57], v[56:57]")
    g("v_pk_mul_f32 v[58:59], v[58:59], v[58:59]")
    g("v_cvt_pk_bf16_f32 v60, v56, v57")
    g("v_cvt_pk_bf16_f32 v61, v58, v59")
    g("ds_write_b64 v9, v[60:61]")
    g("ds_read_b128 v[64:67], v19")
    g("ds_read_b128 v[68:71], v19 offset:64")
    if opt.get("trl", 2): flagwait4(g, "L_w2w", 2, F_OP, 72)
    g.stamp(4)
    for t in range(2):
        for u in range(4):
            r = 24 + 16*t + 4*u
            g(f"ds_read_b64_tr_b16 v[{r}:{r+1}], v{4+u} offset:{L_W2 - 65536 + t*4096}")
            g(f"ds_read_b64_tr_b16 v[{r+2}:{r+3}], v{4+u} offset:{L_W2 - 65536 + t*4096 + 2048}")
    for t in range(2):
        for u in range(4):
            g(f"s_waitcnt lgkmcnt({14 - 8*t - 2*u})")
            r = 24 + 16*t + 4*u
            d = 72 + 4*u
            c = "0" if t == 0 else f"v[{d}:{d+3}]"
            g(f"v_mfma_f32_16x16x32_bf16 v[{d}:{d+3}], v[{64+4*t}:{67+4*t}], v[{r}:{r+3}], {c}")
    g("s_nop 3")
    select4(g, 96, 72, 11, tags=(11, 116, 117, 11))
    g.label("L_w8_fin")
    g.stamp(6)
    g("s_barrier")
    g(f"buffer_store_dwordx4 v[96:99], v10, {W}, s62 offen {SC}")

    g("s_mov_b32 s97, 0")
    g("s_waitcnt vmcnt(1)")
    g("v_lshlrev_b32 v17, 16, v17")
    g("v_lshlrev_b32 v18, 16, v18")
    if opt.get("df", 13):
        g(f"s_sleep {opt.get('df', 13)}")
    else:
        g("s_waitcnt vmcnt(0)")
    FL = opt.get("fl", SC).replace("+", " ")
    if opt.get("fp", 0):
        g(f"buffer_load_dwordx4 v[24:27], v3, {W}, s64 offen {FL}")
        g(f"buffer_load_dwordx4 v[40:43], v3, {W}, s65 offen {FL}")
        g(f"s_sleep {opt['fp']}")
        g(f"buffer_load_dwordx4 v[48:51], v3, {W}, s64 offen {FL}")
        g(f"buffer_load_dwordx4 v[52:55], v3, {W}, s65 offen {FL}")
        g("s_waitcnt vmcnt(2)")
        xorcheck(g, [24, 40, 25, 41, 26, 42, 27, 43], [11, 11, 116, 116, 117, 117, 11, 11], list(range(44, 48)))
        g("s_cbranch_vccz L_fok")
        g("s_waitcnt vmcnt(0)")
        for i in range(4):
            g(f"v_mov_b32 v{24+i}, v{48+i}")
            g(f"v_mov_b32 v{40+i}, v{52+i}")
        g("s_branch L_f2")
    g.label("L_f")
    g(f"buffer_load_dwordx4 v[24:27], v3, {W}, s64 offen {FL}")
    g(f"buffer_load_dwordx4 v[40:43], v3, {W}, s65 offen {FL}")
    spin(g, "L_fok")
    g("s_waitcnt vmcnt(0)")
    g.label("L_f2")
    xorcheck(g, [24, 40, 25, 41, 26, 42, 27, 43], [11, 11, 116, 116, 117, 117, 11, 11], list(range(44, 48)))
    if opt.get("sf", 0):
        g("s_cbranch_vccz L_fok")
        if opt.get("sf", 0): g(f"s_sleep {opt['sf']}")
        g("s_branch L_f")
    else:
        g("s_cbranch_vccnz L_f")
    g.label("L_fok")
    g.stamp(7)
    for i in range(4):
        g(f"v_permlane32_swap_b32 v{24+i}, v{40+i}")
    g("v_pk_add_f32 v[24:25], v[24:25], v[40:41]")
    g("v_pk_add_f32 v[26:27], v[26:27], v[42:43]")
    g("s_nop 0")
    g("v_permlane16_swap_b32 v24, v25")
    g("v_permlane16_swap_b32 v26, v27")
    g("v_add_f32 v24, v24, v25")
    g("v_add_f32 v26, v26, v27")
    for c in ("row_ror:8", "row_ror:4", "row_ror:2"):
        g("s_nop 0")
        g(f"v_add_f32_dpp v24, v24, v24 {c} {DPPM}")
        g(f"v_add_f32_dpp v26, v26, v26 {c} {DPPM}")
    g("v_cndmask_b32 v24, v24, v26, s[60:61]")
    rnd(g, 24, 24)
    g("v_add_f32 v25, v24, v18")
    rnd(g, 25, 25)
    g("v_mul_f32 v26, s57, v25")
    g("v_exp_f32 v26, v26")
    g("s_nop 0")
    g("v_add_f32 v26, 1.0, v26")
    g("v_rcp_f32 v26, v26")
    g("s_nop 0")
    g("v_mul_f32 v26, v25, v26")
    rnd(g, 26, 26)
    g("s_nop 1")
    g("v_permlane32_swap_b32 v26, v27")
    g("s_mov_b32 exec_lo, 0x000f000f")
    g("s_mov_b32 exec_hi, 0")
    g("v_mul_f32 v24, v24, v27")
    rnd(g, 24, 24)
    g("v_add_f32 v24, v24, v17")
    g("v_cvt_pk_bf16_f32 v24, v24, v24")
    if not opt.get("noout"): g(f"buffer_store_short v24, v16, s[{SRD_A}:{SRD_A+3}], s66 offen {opt.get('of', '').replace('+', ' ')}")
    g.stamp(8)
    hevhold()
    if opt.get("hold"):
        g(f"s_cmp_eq_u32 s2, {opt.get('holdwg', 0)}")
        g("s_cbranch_scc0 L_nohold")
        g.label("L_hold")
        g("s_memrealtime s[72:73]")
        g("s_waitcnt lgkmcnt(0)")
        g("s_sub_u32 s72, s72, s70")
        g(f"s_cmp_lt_u32 s72, {opt['hold']}")
        g("s_cbranch_scc1 L_hold")
        g.label("L_nohold")
    g("s_cmp_eq_u32 s2, 0")
    g("s_cbranch_scc0 L_end")
    g(f"v_mov_b32 v24, s{S_E1}")
    g("v_mov_b32 v25, 0")
    g("s_mov_b64 exec, 1")
    g(f"buffer_store_dword v24, v25, {W}, 0 offen {opt.get('ef', '')}")
    g.label("L_end")
    if opt.get("stamps"):
        g("s_memrealtime s[88:89]")
        g("s_waitcnt lgkmcnt(0)")
        g("s_mov_b64 exec, 1")
        g("s_mul_i32 s38, s2, 9")
        g("s_add_u32 s38, s38, s3")
        g("s_lshl_b32 s38, s38, 6")
        g(f"s_add_u32 s38, s38, {ST_WS}")
        for k in range(10):
            g(f"v_mov_b32 v{4+k}, s{70+2*k}")
        g("v_mov_b32 v14, s97")
        g("v_mov_b32 v15, s99")
        g("v_mov_b32 v1, 0")
        g(f"buffer_store_dwordx4 v[4:7], v1, {W}, s38 offen")
        g(f"buffer_store_dwordx4 v[8:11], v1, {W}, s38 offen offset:16")
        g(f"buffer_store_dwordx4 v[12:15], v1, {W}, s38 offen offset:32")
    g.label("L_exit")
    C = {'L_notln': 'waves 4..9', 'L_w8i': 'W8 start: pull a share of the kernel text into L2, clear the LDS flags', 'L_kv': 'W4-7: K stream (page-rotated linear sweep over the 1024-key window)', 'L_ln': 'W0-3: w1 quarter, LayerNorm of row w -> LDS', 'L_w9': 'W9: latency of one cold line, then walk the instruction-cache pads', 'L_w0': 'W8: XCD id out, q partial = xn @ wq tile', 'L_xc': 'W8: are all workgroups of the group on this XCD?', 'L_att': 'W4-7: wo, V, w2 stream; P.V for 32 of the 128 dims; publish o', 'L_ln_done': 'W0-3 after LayerNorm; W1: h partial = xn @ w1 tile', 'L_qk': 'W0-3: gather q, scores, max exchange, probabilities', 'L_wo_b3': 'W0-3: combine the 8 splits of batch w, multiply by the wo tile, publish', 'L_w8': 'W8: FFN second half and final reduction', 'L_f': 'W8: gather 32 attention + 32 FFN partials, out = x + s * silu(ffn + b2)'}
    lines = []
    for x in g.L:
        if not x.strip(): continue
        if x.endswith(":") and x[:-1] in C: lines.append("; ---- " + C[x[:-1]])
        lines.append(x)
    return finish(lines, opt)

def finish(lines, opt):
    if not opt.get("touch", 1):
        return G1.text(lines)
    sz = _sizes(lines)
    out = []; pos = 0; nxt = 1024; n = 0
    zero = False
    for l, z in zip(lines, sz):
        t = l.strip()
        if t in ("L_w3b:", "L_w8b:"): zero = True
        if z and pos >= nxt and not zero:
            assert pos - nxt <= 56
            out.append(None); n += 1; pos += 4; nxt += 1024
        out.append(l); pos += z
        if t == "s_mov_b64 exec, 0": zero = True
        elif z and (t.startswith("s_branch L_chain") or t == "s_mov_b64 exec, -1" or t == "s_endpgm"): zero = False
    first = opt.get("pad0", 1)
    split = opt.get("pad1", 4)
    res = []; k = 0
    for l in out:
        if l is None:
            tgt = "L_w8b" if k + 1 == split else (f"L_pad{k+1}" if k + 1 < n else "L_w3b")
            if k == first: res.append("L_chain0:")
            if k == split: res.append("L_chain1:")
            res.append(f"L_pad{k}:")
            res.append(f"    s_cbranch_execz {tgt}")
            k += 1
        else:
            res.append(l)
    return G1.text(res)

if __name__ == "__main__":
    out = sys.argv[1]
    opt = {}
    for a in sys.argv[2:]:
        k, v = a.split("=")
        try: v = int(v)
        except ValueError: pass
        opt[k] = v
    open(out, "w").write(gen(opt))
```

```python
import sys, struct
from gen import f2u, G, tagcheck, rnd, wave_sum, tile_voff, tile_raddr, tile_dma, NAME, sizes as _sizes
import gen as G1

PR_WS  = 0x2000
QA_WS  = 0x8000
H_WS   = 0x48000
O_WS   = 0x80000
R3_WS  = 0x100000
XC_WS  = 0x210000
PB_WS  = 0x201000
M_WS   = 0x204000
ST_WS  = 0x300000
WS_BYTES = 0x400000

L_K, L_V, L_WQ, L_WO, L_W1, L_W2, L_XN = 0, 32768, 65536, 81920, 98304, 106496, 114688
XN_STR = 1088
L_QL = L_XN + 4352
QL_STR = 320
L_OC = L_QL + 1280
OC_H, OC_W = 528, 2112
L_ML = L_OC + 8448
L_FL = L_ML + 128
L_OL = L_FL + 192
L_HL = L_OL + 1280
HL_STR = 192
LDS_BYTES = L_HL + 768
G1.LDS_BYTES = LDS_BYTES

P_X, P_K, P_V, P_WQ, P_WO, P_BX, P_W1, P_B1, P_W2, P_B2, P_OUT, P_DBG, P_WS = 8, 10, 12, 14, 16, 18, 20, 22, 24, 26, 28, 30, 32
S_E, S_T, S_E1, S_LO = 34, 35, 36, 37
SRD_A, SRD_B, SRD_W, SRD_C = 40, 44, 48, 52
SPIN_MAX = 1 << 18
W = f"s[{SRD_W}:{SRD_W+3}]"
SC = "sc1"
DPPM = "row_mask:0xf bank_mask:0xf"

def epoch(g, vT):
    g(f"s_add_u32 s{S_E1}, s{S_E}, 1")
    g(f"s_and_b32 s{S_T}, s{S_E1}, s{S_LO}")
    g(f"v_mov_b32 v{vT}, s{S_T}")

def spin(g, lab_out, lds=False):
    r, mx = (63, 1 << 22) if lds else (97, SPIN_MAX)
    g(f"s_add_u32 s{r}, s{r}, 1")
    g(f"s_cmp_gt_u32 s{r}, {mx}")
    g(f"s_cbranch_scc1 {lab_out}")

def selmasks(g, vsel):
    for k in (1, 2, 3):
        g(f"v_cmp_eq_u32 s[{88+2*k}:{89+2*k}], {k}, v{vsel}")

def select4(g, d, D, vT, tags=None):
    for k in (1, 2, 3):
        for r in range(4):
            src = D + r if k == 1 else d + r
            g(f"v_cndmask_b32 v{d+r}, v{src}, v{D+4*k+r}, s[{88+2*k}:{89+2*k}]")
    for r in range(4):
        g(f"v_bfi_b32 v{d+r}, s{S_LO}, v{tags[r] if tags else vT}, v{d+r}")

def ffn_ids(g):
    g("s_lshr_b32 s7, s5, 3")
    g("s_mul_i32 s68, s4, 3")
    g("s_min_u32 s69, s4, 4")
    g("s_add_u32 s68, s68, s69")
    g("s_add_u32 s68, s68, s7")
    g("s_cmp_lt_u32 s4, 4")
    g("s_cselect_b32 s69, 4, 3")
    g("s_cmp_lt_u32 s7, s69")
    g("s_cselect_b32 s69, 1, 0")


def untag(g, regs):
    for r in regs:
        g(f"v_and_b32 v{r}, s98, v{r}")

def xorcheck(g, regs, vT, tmp):
    regs = list(regs)
    for k, r in enumerate(regs):
        g(f"v_xor_b32 v{r}, v{vT[k] if isinstance(vT, (list, tuple)) else vT}, v{r}")
    ts = regs; k = 0
    while len(ts) > 1:
        n = []; i = 0
        while i < len(ts):
            if len(ts) - i >= 3:
                g(f"v_or3_b32 v{tmp[k]}, v{ts[i]}, v{ts[i+1]}, v{ts[i+2]}"); n.append(tmp[k]); k += 1; i += 3
            elif len(ts) - i == 2 and len(n) != 2:
                g(f"v_or_b32 v{tmp[k]}, v{ts[i]}, v{ts[i+1]}"); n.append(tmp[k]); k += 1; i += 2
            else:
                n.append(ts[i]); i += 1
        ts = n
    g(f"v_and_b32 v{ts[0]}, 0x3ff, v{ts[0]}")
    g(f"v_cmp_ne_u32 vcc, 0, v{ts[0]}")

def ffn_ids2(g, bal):
    ffn_ids(g)
    if bal:
        g("s_lshl_b32 s99, s4, 2")
        g("s_sub_u32 s99, s99, 13")
        g("s_cmp_eq_u32 s7, 3")
        g("s_cselect_b32 s68, s99, s68")
        g("s_cselect_b32 s99, 1, 0")
        g("s_xor_b32 s69, s69, s99")

def widetags(g, d):
    g(f"v_mov_b32 v{d}, s{S_E1}")
    g(f"v_bfe_u32 v{d+1}, v{d}, 20, 10")
    g(f"v_bfe_u32 v{d}, v{d}, 10, 10")

def r3addr(g, d, c, rec, tmp):
    g(f"s_lshl_b32 s{d}, s{c}, 17")
    if rec is not None:
        g(f"s_lshr_b32 s{tmp}, s{rec}, 3")
        g(f"s_lshl_b32 s{tmp}, s{tmp}, 14")
        g(f"s_add_u32 s{d}, s{d}, s{tmp}")
        g(f"s_and_b32 s{tmp}, s{rec}, 7")
        g(f"s_lshl_b32 s{tmp}, s{tmp}, 10")
        g(f"s_add_u32 s{d}, s{d}, s{tmp}")
    g(f"s_add_u32 s{d}, s{d}, {R3_WS}")

def r3par(g, d, c, mask, tmp):
    g(f"s_lshr_b32 s{tmp}, s{mask}, s{c}")
    g(f"s_and_b32 s{tmp}, s{tmp}, 1")
    g(f"s_lshl_b32 s{tmp}, s{tmp}, 13")
    g(f"s_add_u32 s{d}, s{d}, s{tmp}")

def flagwait4(g, lab, vbase, off, tmp, pre=None, n=0, sleep=0):
    g.label(lab)
    if sleep: g(f"s_sleep {sleep}")
    g(f"ds_read_b128 v[{tmp}:{tmp+3}], v{vbase} offset:{off}")
    if pre: pre()
    spin(g, lab + "ok", lds=True)
    g(f"s_waitcnt lgkmcnt({n})")
    g(f"v_and_b32 v{tmp}, v{tmp}, v{tmp+1}")
    g(f"v_and_b32 v{tmp+2}, v{tmp+2}, v{tmp+3}")
    g(f"v_and_b32 v{tmp}, v{tmp}, v{tmp+2}")
    g(f"v_cmp_eq_u32 vcc, 0, v{tmp}")
    g(f"s_cbranch_vccnz {lab}")
    g.label(lab + "ok")

def flagwait1(g, lab, vbase, off, tmp, sdst=None, sleep=1):
    g.label(lab)
    if sleep: g(f"s_sleep {sleep}")
    g(f"ds_read_b32 v{tmp}, v{vbase} offset:{off}")
    spin(g, lab + "ok", lds=True)
    g("s_waitcnt lgkmcnt(0)")
    g(f"v_cmp_eq_u32 vcc, 0, v{tmp}")
    g(f"s_cbranch_vccnz {lab}")
    g.label(lab + "ok")
    if sdst is not None: g(f"v_readfirstlane_b32 s{sdst}, v{tmp}")

F_LNA, F_XC, F_QP, F_H, F_OP, F_Q, F_LNB, F_P, F_K, F_K2, F_WO, F_V1, F_OS, F_NB, F_GI = 0, 16, 20, 24, 32, 48, 64, 80, 96, 112, 128, 144, 160, 28, 176
L_HP = L_OC + 2048

def gen(opt):
    g = G(opt)
    g.role = "-"
    HEV = opt.get("hev")
    if HEV:
        def st(k):
            if HEV == f"{g.role}{k}": g("s_memrealtime s[70:71]")
        g.stamp = st
    hcount = [0]
    def hevhold():
        if HEV and HEV[0] == g.role:
            hcount[0] += 1
            n = hcount[0]
            g(f"s_cmp_eq_u32 s2, {opt.get('holdwg', 9)}")
            g(f"s_cbranch_scc0 L_nh{n}")
            g.label(f"L_hh{n}")
            g("s_memrealtime s[72:73]")
            g("s_waitcnt lgkmcnt(0)")
            g("s_sub_u32 s72, s72, s70")
            g("s_cmp_lt_u32 s72, 1500")
            g(f"s_cbranch_scc1 L_hh{n}")
            g.label(f"L_nh{n}")
    NT = opt.get("nt", "nt")
    XF = opt.get("xflags", "")
    THR = opt.get("thr", 3)
    THR2 = opt.get("thr2", 4)
    THR3 = opt.get("thr3", 8)
    TOUCH = opt.get("touch", 1)
    PWF = opt.get("pwf", "")
    NEAR = opt.get("near", 1)
    G1.NWAVES = 10 if NEAR else 9
    g.stamp(0)
    if opt.get("hold"): g("s_memrealtime s[70:71]")
    g("s_cmp_ge_u32 s2, 256")
    g("s_cbranch_scc1 L_exit")
    g("s_load_dwordx16 s[8:23], s[0:1], 0")
    g("s_load_dwordx8 s[24:31], s[0:1], 64")
    g("s_load_dwordx2 s[32:33], s[0:1], 96")
    g("v_lshrrev_b32 v1, 6, v0")
    g("v_and_b32 v0, 63, v0")
    g("v_readfirstlane_b32 s3, v1")
    g("s_and_b32 s4, s2, 7")
    g("s_lshr_b32 s5, s2, 3")
    g(f"s_movk_i32 s{S_LO}, 0x3ff")
    g("s_movk_i32 s98, 0xfc00")
    g("s_cmp_lt_u32 s3, 4")
    g("s_cbranch_scc0 L_notln")
    g("v_lshlrev_b32 v12, 4, v0")
    g("s_lshl_b32 s39, s3, 10")
    WIDE = opt.get("wide", 0)
    tile_voff(g, 2, 3, 8192)
    if WIDE & 1:
        g("v_lshrrev_b32 v3, 4, v0")
        g("v_and_b32 v100, 15, v0")
        g("v_lshlrev_b32 v100, 4, v100")
        g("v_lshl_add_u32 v100, v3, 13, v100")
        g("s_lshr_b32 s7, s5, 2")
        g("s_lshl_b32 s38, s7, 19")
        g("s_lshl_b32 s56, s3, 17")
        g("s_add_u32 s38, s38, s56")
        g("s_lshl_b32 s56, s4, 10")
        g("s_add_u32 s38, s38, s56")
        g("s_and_b32 s56, s5, 3")
        g("s_lshl_b32 s56, s56, 8")
        g("s_add_u32 s38, s38, s56")
    else:
        g("s_lshr_b32 s7, s5, 3")
        g("s_lshl_b32 s38, s7, 20")
        g("s_lshl_b32 s56, s3, 18")
        g("s_add_u32 s38, s38, s56")
        g("s_lshl_b32 s56, s4, 10")
        g("s_add_u32 s38, s38, s56")
        g("s_and_b32 s56, s5, 7")
        g("s_lshl_b32 s56, s56, 7")
        g("s_add_u32 s38, s38, s56")
    g("s_lshl_b32 s56, s3, 12")
    g(f"s_mov_b32 s{SRD_C+2}, 4096")
    g(f"s_mov_b32 s{SRD_C+3}, 0x20000")
    g(f"s_mov_b32 s{SRD_A+2}, {hex(512*4096*2)}")
    g(f"s_mov_b32 s{SRD_A+3}, 0x20000")
    g("s_waitcnt lgkmcnt(0)")
    g(f"s_mov_b32 s{SRD_C}, s{P_X}")
    g(f"s_mov_b32 s{SRD_C+1}, s{P_X+1}")
    g(f"buffer_load_dwordx4 v[4:7], v12, s[{SRD_C}:{SRD_C+3}], s39 offen {XF}")
    g(f"s_mov_b32 s{SRD_A}, s{P_WQ}")
    g(f"s_mov_b32 s{SRD_A+1}, s{P_WQ+1}")
    if WIDE & 1: tile_dma(g, 4, 100, SRD_A, 38, (56, L_WQ), 4096, NT)
    else: tile_dma(g, 4, 2, SRD_A, 38, (56, L_WQ), 8192, NT)
    g("s_barrier")
    g("s_branch L_ln")
    g.label("L_notln")
    g("s_cmp_lt_u32 s3, 8")
    g("s_cbranch_scc1 L_kv")
    if NEAR:
        g("s_cmp_eq_u32 s3, 8")
        g("s_cbranch_scc1 L_w8i")
        g("s_waitcnt lgkmcnt(0)")
        g(f"s_load_dword s{S_E}, s[{P_WS}:{P_WS+1}], 0")
        g("s_barrier")
        g("s_branch L_w9")
        g.label("L_w8i")
    if opt.get("cpf", 1):
        g("s_getpc_b64 s[64:65]")
        g.label("L_pc")
        g("s_and_b32 s6, s5, 7")
        g(f"s_mul_i32 s6, s6, {24*64}")
        g(f"s_sub_u32 s6, s6, L_pc-{NAME}_kernel")
        g("s_ashr_i32 s7, s6, 31")
        g("s_add_u32 s64, s64, s6")
        g("s_addc_u32 s65, s65, s7")
        g("v_lshlrev_b32 v3, 6, v0")
        g("s_mov_b64 exec, 0xffffff")
        g("global_load_dword v125, v3, s[64:65]")
        g("s_mov_b64 exec, -1")
    g("v_lshlrev_b32 v3, 2, v0")
    g(f"v_add_u32 v3, {L_ML}, v3")
    g("v_cmp_gt_u32 vcc, 16, v0")
    g("s_nop 1")
    g("v_cndmask_b32 v4, 0, -1, vcc")
    g("ds_write_b32 v3, v4")
    g("v_mov_b32 v4, 0")
    g("s_mov_b64 exec, 0xffff")
    g("ds_write_b32 v3, v4 offset:256")
    g("s_mov_b64 exec, -1")
    g("s_waitcnt lgkmcnt(0)")
    g(f"s_load_dword s{S_E}, s[{P_WS}:{P_WS+1}], 0")
    g("s_barrier")
    g("s_branch L_w0")
    g.role = "a"
    g.label("L_kv")
    g("s_sub_u32 s3, s3, 4")
    if opt.get("lprio", 0): g(f"s_setprio {opt['lprio']}")
    g("v_lshrrev_b32 v8, 4, v0")
    g("v_and_b32 v9, 15, v0")
    g("v_xor_b32 v2, v9, v8")
    g("v_lshlrev_b32 v2, 4, v2")
    g("v_lshl_add_u32 v2, v8, 8, v2")
    for i in (1, 2, 3):
        g(f"v_xor_b32 v{2+i}, {64*i}, v2")
    g("s_lshr_b32 s6, s5, 3")
    g("s_and_b32 s7, s5, 7")
    g("s_lshl_b32 s38, s6, 3")
    g("s_add_u32 s38, s38, s4")
    g("s_lshl_b32 s38, s38, 20")
    g("s_lshl_b32 s56, s3, 10")
    g("s_add_u32 s38, s38, s56")
    g(f"s_add_u32 s38, s38, {768*1024}")
    g("s_lshl_b32 s56, s3, 13")
    g("s_lshl_b32 s64, s7, 12")
    g("s_mov_b32 s66, s38")
    g(f"s_mov_b32 s{SRD_A+2}, {hex(4*8*4096*128*2)}")
    g(f"s_mov_b32 s{SRD_A+3}, 0x20000")
    g("s_waitcnt lgkmcnt(0)")
    g(f"s_mov_b32 s{SRD_A}, s{P_K}")
    g(f"s_mov_b32 s{SRD_A+1}, s{P_K+1}")
    B0L = opt.get("b0l", 0)
    if not B0L:
        g(f"s_load_dword s{S_E}, s[{P_WS}:{P_WS+1}], 0")
        g("s_barrier")
    g.stamp(1)
    def kvld(i, isv, th):
        if i % 4 == 0: g(f"s_add_u32 m0, s56, {(L_V if isv else L_K) + i*1024}")
        g("s_add_u32 s39, s64, s66")
        g("s_add_u32 s64, s64, 4096")
        g("s_and_b32 s64, s64, 0x7000")
        g(f"s_add_u32 s66, s66, {32768 + (3072 if i % 4 == 3 else -1024)}")
        if th: g(f"s_waitcnt vmcnt({th-1})")
        vo = 6 + (i & 1) if isv else 2 + (i & 3)
        g(f"buffer_load_dwordx4 v{vo}, s[{SRD_A}:{SRD_A+3}], s39 offen offset:{(i&3)*1024} {NT} lds")
    for i in range(8):
        if B0L and i == THR:
            g(f"s_load_dword s{S_E}, s[{P_WS}:{P_WS+1}], 0")
            g("s_barrier")
        kvld(i, 0, THR if i >= THR else 0)
    g("s_branch L_att")
    g.role = "l"
    g.label("L_ln")
    ffn_ids(g)
    g(f"s_mov_b32 s{SRD_B+3}, 0x20000")
    g(f"s_mul_i32 s{SRD_B+2}, s69, {512*1792*2}")
    g("v_lshrrev_b32 v3, 3, v0")
    g(f"v_mul_u32_u24 v3, {8192-3584}, v3")
    g("v_sub_u32 v2, v2, v3")
    g("s_and_b32 s38, s5, 7")
    g("s_lshl_b32 s38, s38, 2")
    g("s_add_u32 s38, s38, s3")
    g(f"s_mul_i32 s38, s38, {16*3584}")
    g("s_lshl_b32 s39, s68, 7")
    g("s_add_u32 s38, s38, s39")
    g("s_lshl_b32 s56, s3, 11")
    g(f"s_mov_b32 s{SRD_B}, s{P_W1}")
    g(f"s_mov_b32 s{SRD_B+1}, s{P_W1+1}")
    tile_dma(g, 2, 2, SRD_B, 38, (56, L_W1), 3584, NT)
    g(f"s_load_dword s{S_E}, s[{P_WS}:{P_WS+1}], 0")
    g.srd(SRD_W, P_WS, WS_BYTES)
    g("v_lshrrev_b32 v2, 2, v0")
    g("v_lshlrev_b32 v2, 6, v2")
    g("v_and_b32 v3, 1, v0")
    g("v_lshl_add_u32 v2, v3, 5, v2")
    g("v_and_b32 v3, 2, v0")
    g("v_lshl_add_u32 v2, v3, 2, v2")
    g(f"s_mul_i32 s38, s3, {XN_STR}")
    g(f"s_add_u32 s38, s38, {L_XN}")
    g("v_add_u32 v2, s38, v2")
    g("s_lshl_b32 s38, s3, 2")
    g(f"s_add_u32 s38, s38, {L_FL}")
    g("v_mov_b32 v9, s38")
    g("v_mov_b32 v10, 1")
    g(f"v_mov_b32 v21, {hex(f2u(1.0/512))}")
    g("s_waitcnt vmcnt(6)")
    g.stamp(1)
    for i in range(4):
        g(f"v_lshlrev_b32 v{12+2*i}, 16, v{4+i}")
        g(f"v_and_b32 v{13+2*i}, 0xffff0000, v{4+i}")
    g("v_pk_add_f32 v[22:23], v[12:13], v[14:15]")
    g("v_pk_add_f32 v[24:25], v[16:17], v[18:19]")
    g("v_pk_add_f32 v[22:23], v[22:23], v[24:25]")
    g("v_add_f32 v20, v22, v23")
    wave_sum(g, 20, 38)
    g("s_nop 1")
    g("v_mul_f32 v20, s38, v21")
    for i in range(8):
        g(f"v_sub_f32 v{24+i}, v{12+i}, v20")
    g("v_mul_f32 v22, v24, v24")
    g("v_mul_f32 v23, v25, v25")
    for i in range(1, 4):
        g(f"v_fmac_f32 v22, v{24+2*i}, v{24+2*i}")
        g(f"v_fmac_f32 v23, v{25+2*i}, v{25+2*i}")
    g("v_add_f32 v22, v22, v23")
    wave_sum(g, 22, 38)
    rnd(g, 20, 20)
    g("v_mul_f32 v22, s38, v21")
    rnd(g, 22, 22)
    g(f"v_add_f32 v22, {hex(f2u(1e-5))}, v22")
    rnd(g, 22, 22)
    g("v_sqrt_f32 v22, v22")
    for i in range(8):
        g(f"v_sub_f32 v{12+i}, v{12+i}, v20")
    rnd(g, 22, 22)
    g("v_rcp_f32 v22, v22")
    for i in range(4):
        g(f"v_cvt_pk_bf16_f32 v{4+i}, v{12+2*i}, v{13+2*i}")
    for i in range(4):
        g(f"v_lshlrev_b32 v{12+2*i}, 16, v{4+i}")
        g(f"v_and_b32 v{13+2*i}, 0xffff0000, v{4+i}")
    for i in range(8):
        g(f"v_mul_f32 v{12+i}, v{12+i}, v22")
    for i in range(4):
        g(f"v_cvt_pk_bf16_f32 v{4+i}, v{12+2*i}, v{13+2*i}")
    g("ds_write2_b64 v2, v[4:5], v[6:7] offset0:0 offset1:2")
    g("s_waitcnt vmcnt(2)")
    g(f"ds_write_b32 v9, v10 offset:{F_LNA}")
    g.stamp(2)
    g("s_waitcnt lgkmcnt(0)")
    epoch(g, 11)
    g("s_branch L_ln_done")
    if NEAR:
        g.label("L_w9")
        g("s_lshr_b32 s60, s2, 4")
        g("s_lshl_b32 s60, s60, 3")
        g("s_add_u32 s60, s60, s4")
        g("s_lshl_b32 s60, s60, 6")
        g("s_and_b32 s61, s5, 1")
        g("s_lshl_b32 s61, s61, 13")
        g("s_sub_u32 s60, s60, s61")
        g(f"s_add_u32 s60, s60, {PR_WS + 8192}")
        g.srd(SRD_W, P_WS, WS_BYTES)
        if opt.get("vtl", 0):
            g("s_lshr_b32 s64, s5, 3")
            g("s_lshl_b32 s65, s64, 3")
            g("s_add_u32 s65, s65, s4")
            g("s_lshl_b32 s65, s65, 20")
            g(f"s_add_u32 s65, s65, {768*1024}")
            g("v_mov_b32 v4, s65")
            g("s_lshl_b32 s65, s4, 19")
            g("v_mov_b32 v5, s65")
            g("v_mov_b32 v6, 0")
            g("s_mov_b64 exec, 1")
            g(f"global_load_dword v8, v5, s[{P_WO}:{P_WO+1}] nt")
            g(f"global_load_dword v9, v4, s[{P_V}:{P_V+1}] nt")
            g(f"global_load_dword v10, v6, s[{P_W2}:{P_W2+1}] nt")
            g("s_mov_b64 exec, -1")
        g("s_waitcnt lgkmcnt(0)")
        g("s_memtime s[90:91]")
        g("s_waitcnt lgkmcnt(0)")
        g(f"s_load_dword s61, s[{P_WS}:{P_WS+1}], s60")
        g("s_waitcnt lgkmcnt(0)")
        g("s_memtime s[94:95]")
        g(f"s_add_u32 s62, s{S_E}, 1")
        g("s_and_b32 s62, s62, 0x1fffff")
        g("s_getreg_b32 s63, hwreg(HW_REG_XCC_ID, 0, 3)")
        g("s_lshl_b32 s63, s63, 21")
        g("s_or_b32 s62, s62, s63")
        g("s_lshl_b32 s63, s4, 5")
        g("s_add_u32 s63, s63, s5")
        g("s_lshl_b32 s63, s63, 2")
        g(f"s_add_u32 s63, s63, {PB_WS}")
        g("v_mov_b32 v21, 0")
        g("s_waitcnt lgkmcnt(0)")
        g("s_sub_u32 s94, s94, s90")
        g("s_lshr_b32 s94, s94, 4")
        g("s_min_u32 s94, s94, 0xff")
        g("s_lshl_b32 s94, s94, 24")
        g("s_or_b32 s94, s94, s62")
        g("v_mov_b32 v20, s94")
        g("s_mov_b64 exec, 1")
        g(f"buffer_store_dword v20, v21, {W}, s63 offen {SC}")
        if opt.get("stl", 1):
            g("s_lshr_b32 s60, s5, 3")
            g("s_lshl_b32 s60, s60, 3")
            g("s_add_u32 s60, s60, s4")
            g("s_lshl_b32 s60, s60, 20")
            g(f"s_add_u32 s60, s60, {768*1024}")
            g("s_lshl_b32 s61, s4, 19")
            g(f"s_load_dword s64, s[{P_WO}:{P_WO+1}], s61")
            g(f"s_load_dword s65, s[{P_V}:{P_V+1}], s60")
            g(f"s_load_dword s66, s[{P_W2}:{P_W2+1}], 0")
            g(f"s_load_dword s67, s[{P_OUT}:{P_OUT+1}], 0")
        if TOUCH:
            g("s_mov_b64 exec, 0")
            g("s_branch L_chain1")
            g.label("L_w3b")
        g("s_waitcnt lgkmcnt(0)")
        g("s_endpgm")
    g.role = "w"
    g.label("L_w0")
    g.srd(SRD_W, P_WS, WS_BYTES)
    g("s_getreg_b32 s57, hwreg(HW_REG_XCC_ID, 0, 3)")
    g("s_lshl_b32 s58, s4, 5")
    g("s_add_u32 s58, s58, s5")
    g("s_lshl_b32 s67, s58, 10")
    g(f"s_add_u32 s56, s67, {QA_WS}")
    g("v_lshlrev_b32 v1, 4, v0")
    if opt.get("prew", 1): g(f"buffer_load_dwordx4 v[124:127], v1, {W}, s56 offen {PWF}")
    g("s_waitcnt lgkmcnt(0)")
    epoch(g, 11)
    g(f"s_and_b32 s56, s{S_E1}, 0x1fffff")
    g("s_lshl_b32 s57, s57, 21")
    g("s_or_b32 s57, s57, s56")
    if TOUCH:
        g("s_mov_b64 exec, 0")
        g("s_branch L_chain0")
        g.label("L_w8b")
    g("s_mov_b64 exec, -1")
    g.srd(SRD_C, P_X, 4096)
    ffn_ids(g)
    g("s_lshr_b32 s6, s5, 3")
    g("s_and_b32 s7, s5, 7")
    tile_raddr(g, 4, 3)
    g("v_bfe_u32 v10, v0, 2, 2")
    g(f"v_mul_u32_u24 v8, {XN_STR}, v10")
    g("v_lshrrev_b32 v9, 4, v0")
    g("v_lshl_add_u32 v8, v9, 4, v8")
    g("s_lshl_b32 s39, s6, 8")
    g(f"s_add_u32 s39, s39, {L_XN}")
    g("v_add_u32 v8, s39, v8")
    g("v_lshlrev_b32 v10, 11, v10")
    g("v_lshl_add_u32 v10, v9, 6, v10")
    g("v_and_b32 v9, 3, v0")
    g("v_lshl_add_u32 v10, v9, 4, v10")
    selmasks(g, 9)
    g("s_lshl_b32 s38, s4, 15")
    g("s_lshl_b32 s39, s6, 13")
    g("s_add_u32 s38, s38, s39")
    g("s_lshl_b32 s39, s7, 8")
    g("s_add_u32 s38, s38, s39")
    g(f"s_add_u32 s38, s38, {QA_WS}")
    g(f"v_mov_b32 v2, {L_FL}")
    g("v_mov_b32 v9, 1")
    g("s_mov_b32 s63, 0")
    g.stamp(1)
    flagwait4(g, "L_lnw", 2, F_LNA, 12)
    g("s_setprio 3")
    for t in range(4):
        g(f"ds_read_b128 v[{12+4*t}:{15+4*t}], v8 offset:{64*t}")
        for u in range(4):
            r = 60 + 16*t + 4*u
            g(f"ds_read_b64_tr_b16 v[{r}:{r+1}], v{4+u} offset:{L_WQ - 65536 + t*4096}")
            g(f"ds_read_b64_tr_b16 v[{r+2}:{r+3}], v{4+u} offset:{L_WQ - 65536 + t*4096 + 2048}")
        if t >= 1:
            tt = t - 1
            g("s_waitcnt lgkmcnt(9)")
            for u in range(4):
                r = 60 + 16*tt + 4*u
                c = "0" if tt == 0 else f"v[{44+4*u}:{47+4*u}]"
                g(f"v_mfma_f32_16x16x32_bf16 v[{44+4*u}:{47+4*u}], v[{r}:{r+3}], v[{12+4*tt}:{15+4*tt}], {c}")
    for u in range(4):
        r = 60 + 48 + 4*u
        g(f"s_waitcnt lgkmcnt({6-2*u})")
        g(f"v_mfma_f32_16x16x32_bf16 v[{44+4*u}:{47+4*u}], v[{r}:{r+3}], v[24:27], v[{44+4*u}:{47+4*u}]")
    g("s_nop 3")
    select4(g, 28, 44, 11)
    g(f"buffer_store_dwordx4 v[28:31], v10, {W}, s38 offen")
    g(f"ds_write_b32 v2, v9 offset:{F_QP}")
    g.stamp(2)
    g("s_setprio 0")
    g("s_mov_b32 s97, 0")
    pw0 = len(g.L)
    if opt.get("pwu", 0):
        g("s_and_b32 s56, s5, 3")
        g("s_cmp_eq_u32 s56, 3")
        g("s_cbranch_scc1 L_pwd")
        g("s_lshr_b32 s56, s5, 2")
        g("s_sub_u32 s59, s5, s56")
        g("s_mul_i32 s56, s59, 3072")
        g("s_min_u32 s56, s56, 62464")
        g("s_lshl_b32 s60, s4, 16")
        g("s_add_u32 s56, s56, s60")
        g(f"s_add_u32 s56, s56, {O_WS}")
        for i in range(3):
            g(f"buffer_load_dwordx4 v[124:127], v1, {W}, s56 offen offset:{1024*i} {PWF}")
        g("s_lshr_b32 s60, s5, 3")
        g("s_sub_u32 s60, s68, s60")
        g("s_lshl_b32 s60, s60, 13")
        g("s_mul_i32 s56, s59, 1408")
        g("s_cmp_lt_u32 s4, 4")
        g("s_cselect_b32 s61, 31360, 0")
        g("s_cselect_b32 s62, 0, 23168")
        g("s_or_b32 s61, s61, s62")
        g("s_min_u32 s56, s56, s61")
        g("s_add_u32 s56, s56, s60")
        g(f"s_add_u32 s56, s56, {H_WS}")
        g(f"buffer_load_dwordx4 v[124:127], v1, {W}, s56 offen {PWF}")
        g("s_mov_b64 exec, 0xffffff")
        g(f"buffer_load_dwordx4 v[124:127], v1, {W}, s56 offen offset:1024 {PWF}")
        g("s_and_b32 s59, s59, 15")
        g("s_lshl_b32 s59, s59, 7")
        g("s_lshl_b32 s60, s4, 11")
        g("s_add_u32 s59, s59, s60")
        g(f"s_add_u32 s59, s59, {M_WS}")
        g("s_mov_b64 exec, 0xff")
        g(f"buffer_load_dwordx4 v[124:127], v1, {W}, s59 offen {PWF}")
        g("s_mov_b64 exec, -1")
        g.label("L_pwd")
    else:
        g("s_lshl_b32 s56, s67, 1")
        g(f"s_add_u32 s56, s56, {O_WS}")
        g(f"buffer_load_dwordx4 v[124:127], v1, {W}, s56 offen {PWF}")
        g(f"buffer_load_dwordx4 v[124:127], v1, {W}, s56 offen offset:1024 {PWF}")
        g("s_lshl_b32 s56, s68, 3")
        g("s_add_u32 s56, s56, s7")
        g("s_lshl_b32 s56, s56, 10")
        g(f"s_add_u32 s56, s56, {H_WS}")
        g("s_lshr_b32 s59, s67, 4")
        g(f"s_add_u32 s59, s59, {M_WS}")
        g("s_cmp_ge_u32 s5, 24" if opt.get("bal", 0) else "s_cmp_eq_u32 s69, 0")
        g("s_cselect_b32 s56, s59, s56")
        g(f"buffer_load_dwordx4 v[124:127], v1, {W}, s56 offen {PWF}")
        g("s_mov_b64 exec, 15")
        g(f"buffer_load_dwordx4 v[124:127], v1, {W}, s59 offen {PWF}")
        g("s_mov_b64 exec, -1")
    if not opt.get("prew", 1): del g.L[pw0:]
    g("v_lshrrev_b32 v12, 4, v0")
    g("v_bfe_u32 v13, v0, 2, 2")
    g("v_and_b32 v14, 3, v0")
    g("v_lshlrev_b32 v12, 6, v12")
    g("v_lshl_add_u32 v12, v13, 8, v12")
    g("v_lshl_add_u32 v12, v14, 4, v12")
    g(f"v_add_u32 v13, {L_HP}, v1")
    g("s_lshl_b32 s56, s68, 3")
    g("s_add_u32 s56, s56, s7")
    g("s_lshl_b32 s56, s56, 10")
    g(f"s_add_u32 s56, s56, {H_WS}")
    g("s_cmp_eq_u32 s69, 0")
    g("s_cbranch_scc1 L_nohp")
    flagwait1(g, "L_hw", 2, F_H, 14)
    g("ds_read_b128 v[32:35], v13")
    g("s_waitcnt lgkmcnt(0)")
    g(f"buffer_store_dwordx4 v[32:35], v12, {W}, s56 offen")
    g.label("L_nohp")
    flagwait1(g, "L_xg", 2, F_K2 if opt.get("xg", 2) == 1 else F_K, 14)
    g(f"s_mov_b32 s58, {PB_WS}")
    g("v_mov_b32 v24, s57")
    g("s_lshl_b32 s60, s4, 3")
    g("s_lshl_b64 s[60:61], 0xff, s60")
    g.label("L_xc")
    g(f"buffer_load_dwordx4 v[20:23], v1, {W}, s58 offen {SC}")
    spin(g, "L_xcok")
    g("s_waitcnt vmcnt(0)")
    g("v_bitop3_b32 v25, v20, v21, v24 bitop3:0x7e")
    g("v_bitop3_b32 v26, v22, v23, v24 bitop3:0x7e")
    g("v_or_b32 v25, v25, v26")
    g("v_lshlrev_b32 v26, 11, v25")
    g("v_cmp_ne_u32 vcc, 0, v26")
    g("s_and_b64 s[64:65], vcc, s[60:61]")
    g("s_cbranch_scc0 L_xcok")
    g("s_sleep 4")
    g("s_branch L_xc")
    g.label("L_xcok")
    g("v_lshlrev_b32 v26, 8, v25")
    g("v_cmp_ne_u32 s[64:65], 0, v26")
    g("s_and_b64 s[64:65], s[64:65], s[60:61]")
    g("s_cselect_b32 s59, 2, 1")
    if opt.get("force_remote"):
        g("s_mov_b32 s59, 2")
    g("s_cmp_eq_u32 s59, 1")
    g("s_cbranch_scc1 L_xcl")
    g(f"buffer_store_dwordx4 v[28:31], v10, {W}, s38 offen {SC}")
    g("s_cmp_eq_u32 s69, 0")
    g("s_cbranch_scc1 L_xcl")
    g(f"buffer_store_dwordx4 v[32:35], v12, {W}, s56 offen {SC}")
    g.label("L_xcl")
    g("v_mov_b32 v26, s59")
    g(f"ds_write_b32 v2, v26 offset:{F_XC}")
    g.stamp(3)
    g("s_mov_b32 s97, 0")
    g("s_cbranch_vccz L_pbok")
    g.label("L_pb")
    spin(g, "L_pbok")
    g("s_sleep 8")
    g(f"buffer_load_dwordx4 v[20:23], v1, {W}, s58 offen {SC}")
    g("s_waitcnt vmcnt(0)")
    g("v_bitop3_b32 v25, v20, v21, v24 bitop3:0x7e")
    g("v_bitop3_b32 v26, v22, v23, v24 bitop3:0x7e")
    g("v_or_b32 v25, v25, v26")
    g("v_lshlrev_b32 v26, 11, v25")
    g("v_cmp_ne_u32 vcc, 0, v26")
    g("s_cbranch_vccnz L_pb")
    g.label("L_pbok")
    for i in range(4):
        g(f"v_lshrrev_b32 v{20+i}, 24, v{20+i}")
    g("v_add_u32 v20, v20, v22")
    g("v_add_u32 v21, v21, v23")
    g("v_sub_u32 v20, v20, v21")
    for c in ("row_ror:8", "row_ror:4", "row_ror:2", "row_ror:1"):
        g("s_nop 1")
        g(f"v_add_u32_dpp v20, v20, v20 {c} {DPPM}")
    g("s_nop 1")
    g("v_add_u32_dpp v20, v20, v20 row_bcast:15 row_mask:0xa bank_mask:0xf")
    g("s_nop 0")
    g("v_readlane_b32 s60, v20, 31")
    g("v_readlane_b32 s61, v20, 63")
    g("s_nop 2")
    g("s_cmp_gt_i32 s60, s61")
    g("s_cselect_b32 s96, 0x10f, 0")
    g("s_cselect_b32 s61, 0, 0x1f0")
    g("s_or_b32 s96, s96, s61")
    if "fixnb" in opt: g(f"s_movk_i32 s96, {0x100 | opt['fixnb']}")
    if opt.get("stamps"): g("s_mov_b32 s99, s96")
    g("v_mov_b32 v20, s96")
    g(f"ds_write_b32 v2, v20 offset:{F_NB}")
    g("s_branch L_w8")
    g.role = "a"
    g.label("L_att")
    TRL = opt.get("trl", 2)
    LATE = opt.get("late", 0)
    def tile_dma_thr(n, voff, srd, ss, lb, stride, first=0, th=None):
        for i in range(first, n):
            if i == first: g(f"s_add_u32 m0, s{lb[0]}, {lb[1]}")
            if i: g(f"s_add_u32 s{ss}, s{ss}, {8*stride - 1024}")
            g(f"s_waitcnt vmcnt({((th or THR2) or 64)-1})")
            g(f"buffer_load_dwordx4 v{voff}, s[{srd}:{srd+3}], s{ss} offen offset:{i*1024} {NT} lds")
    g.srd(SRD_W, P_WS, WS_BYTES)
    g.srd(SRD_C, P_WO, 4096*512*2)
    tile_voff(g, 1, 10, 1024)
    g("s_lshl_b32 s60, s4, 2")
    g("s_add_u32 s60, s60, s6")
    g("s_lshl_b32 s60, s60, 17")
    g("s_lshl_b32 s61, s3, 15")
    g("s_add_u32 s60, s60, s61")
    XO, XF2 = (4, 2) if opt.get("perm", 1) else (0, 0)
    g(f"s_xor_b32 s62, s7, {XO}")
    g("s_lshl_b32 s62, s62, 7")
    g("s_add_u32 s93, s60, s62")
    g(f"s_xor_b32 s62, s62, {(XO ^ XF2) << 7}")
    if WIDE & 2:
        g("v_lshrrev_b32 v10, 4, v0")
        g("v_and_b32 v20, 15, v0")
        g("v_lshlrev_b32 v20, 4, v20")
        g("v_lshl_add_u32 v20, v10, 10, v20")
        g("s_lshl_b32 s60, s4, 3")
        g("s_lshr_b32 s61, s5, 2")
        g("s_add_u32 s60, s60, s61")
        g("s_lshl_b32 s60, s60, 16")
        g("s_lshl_b32 s61, s3, 14")
        g("s_add_u32 s60, s60, s61")
        g("s_and_b32 s61, s5, 3")
        g("s_lshl_b32 s61, s61, 8")
        g("s_add_u32 s93, s60, s61")
    g("s_lshl_b32 s65, s3, 12")
    QT = opt.get("qt", 6)
    if QT:
        g(f"v_mov_b32 v17, {L_FL}")
        g("s_lshl_b32 s60, s3, 2")
        g("v_add_u32 v18, s60, v17")
        g("v_mov_b32 v19, 1")
        g(f"s_waitcnt vmcnt({8-QT})")
        g(f"ds_write_b32 v18, v19 offset:{F_K2}")
    ld0 = len(g.L)
    if WIDE & 2: tile_dma_thr(4, 20, SRD_C, 93, (65, L_WO), 512)
    else: tile_dma_thr(4 - LATE, 1, SRD_C, 93, (65, L_WO), 1024)
    if opt.get("kf", 6) == 4:
        g("s_waitcnt vmcnt(4)")
        g(f"ds_write_b32 v18, v19 offset:{F_K}")
    tile_dma_thr(2 - TRL, 1, SRD_B, 68, (69, L_W2), 1024)
    if opt.get("kf", 6) == 6:
        g(f"s_waitcnt vmcnt({6 - TRL - LATE})")
        g(f"ds_write_b32 v18, v19 offset:{F_K}")
    g(f"s_mov_b32 s{SRD_A}, s{P_V}")
    g(f"s_mov_b32 s{SRD_A+1}, s{P_V+1}")
    g("s_mov_b32 s66, s38")
    g.stamp(4)
    PRE = opt.get("pre", 1)
    for i in range(8):
        kvld(i, 1, (THR2 if i < opt.get("t3i", 4) else THR3) or 64)
        if PRE and i == 5:
            g("s_waitcnt vmcnt(6)")
            g(f"ds_write_b32 v18, v19 offset:{F_WO}")
    if TRL: tile_dma_thr(2, 1, SRD_B, 68, (69, L_W2), 1024, first=2 - TRL, th=THR3 if opt.get("trt", 1) else None)
    loads = g.L[ld0:]; del g.L[ld0:]
    g("s_mov_b32 s60, s7")
    ffn_ids2(g, opt.get("bal", 0))
    g("s_mov_b32 s7, s60")
    g(f"s_mov_b32 s{SRD_B}, s{P_W2}")
    g(f"s_mov_b32 s{SRD_B+1}, s{P_W2+1}")
    g(f"s_mul_i32 s{SRD_B+2}, s69, {1792*512*2}")
    g(f"s_mov_b32 s{SRD_B+3}, 0x20000")
    g("s_lshl_b32 s68, s68, 2")
    g("s_add_u32 s68, s68, s3")
    g("s_lshl_b32 s68, s68, 14")
    g("s_add_u32 s68, s68, s62")
    g("s_lshl_b32 s69, s3, 11")
    g("v_lshlrev_b32 v6, 1, v8")
    g("v_xor_b32 v6, v9, v6")
    g("v_lshlrev_b32 v6, 4, v6")
    g("v_lshl_add_u32 v6, v8, 8, v6")
    g("v_xor_b32 v7, 128, v6")
    g(f"v_mov_b32 v17, {L_FL}")
    g("s_lshl_b32 s60, s3, 2")
    g("v_add_u32 v18, s60, v17")
    g("v_mov_b32 v19, 1")
    nfirst = len(g.L) - ld0
    g("v_lshrrev_b32 v25, 2, v0")
    g("v_and_b32 v26, 7, v25")
    g("v_lshlrev_b32 v26, 5, v26")
    g("v_lshl_add_u32 v26, v25, 8, v26")
    g("v_and_b32 v14, 3, v0")
    g("v_lshl_add_u32 v14, v14, 3, v26")
    g("s_lshl_b32 s60, s3, 6")
    g("v_xor_b32 v14, s60, v14")
    g("v_xor_b32 v15, 32, v14")
    g("v_bfe_u32 v25, v0, 2, 2")
    g("v_lshlrev_b32 v28, 6, v25")
    g("v_lshl_add_u32 v28, v8, 4, v28")
    g(f"v_add_u32 v28, {L_OC}, v28")
    g("v_lshlrev_b32 v30, 14, v25")
    g("v_lshl_add_u32 v30, v8, 5, v30")
    g("v_and_b32 v16, 1, v0")
    g("v_lshl_add_u32 v30, v16, 4, v30")
    g("s_lshl_b32 s61, s4, 5")
    g("s_add_u32 s61, s61, s7")
    g("s_lshl_b32 s61, s61, 2")
    g("s_add_u32 s61, s61, s6")
    g("s_lshl_b32 s61, s61, 2")
    g("s_add_u32 s61, s61, s3")
    g("s_lshl_b32 s61, s61, 7")
    g(f"s_add_u32 s61, s61, {O_WS}")
    for r in range(80, 112):
        g(f"v_mov_b32 v{r}, 0")
    g("s_mov_b32 s63, 0"); g("s_mov_b32 s97, 0")
    g("s_waitcnt lgkmcnt(0)")
    epoch(g, 31)
    setup = g.L[ld0:]; del g.L[ld0:]
    per = -(-nfirst // min(3, 4 - LATE))
    for x in loads:
        g.L.append(x)
        if "buffer_load" in x:
            g.L.extend(setup[:per]); setup = setup[per:]
    assert not setup
    if opt.get("dend"): g("s_waitcnt vmcnt(0)")
    g.stamp(3)
    flagwait4(g, "L_px", 17, F_P, 36, pre=lambda: g(f"ds_read_b32 v46, v17 offset:{F_XC}"), sleep=0)
    g("s_mov_b32 exec_lo, 0x55555555")
    g("s_mov_b32 exec_hi, 0x55555555")
    for t in range(4):
        g(f"ds_read_b128 v[{80+4*t}:{83+4*t}], v28 offset:{256*t}")
    g("s_not_b64 exec, exec")
    for t in range(4):
        g(f"ds_read_b128 v[{96+4*t}:{99+4*t}], v28 offset:{256*t}")
    g("s_mov_b64 exec, -1")
    g("v_readfirstlane_b32 s59, v46")
    g.stamp(2)
    def vrd(half):
        for t in range(4):
            for p in range(2):
                r = 48 + 8*t + 4*p + 2*half
                g(f"ds_read_b64_tr_b16 v[{r}:{r+1}], v{14+p} offset:{L_V + t*8192 + 4096*half}")
    if PRE:
        g(f"s_waitcnt vmcnt({TRL+4})")
        g(f"ds_write_b32 v18, v19 offset:{F_V1}")
        flagwait4(g, "L_v1", 17, F_V1, 36)
        vrd(0)
    g(f"s_waitcnt vmcnt({TRL}) lgkmcnt(0)")
    g.stamp(5)
    g("s_cmp_eq_u32 s59, 1")
    if opt.get("prio", 1): g("s_setprio 3")
    g("s_barrier")
    g.stamp(7)
    if not PRE: vrd(0)
    vrd(1)
    for t in range(4):
        for p in range(2):
            r = 48 + 8*t + 4*p
            k = 2*t + p
            g(f"s_waitcnt lgkmcnt({7-k})")
            g(f"v_mfma_f32_16x16x32_bf16 v[36:39], v[{r}:{r+3}], v[{80+16*p+4*t}:{83+16*p+4*t}], {'0' if k == 0 else 'v[36:39]'}")
    g("s_mov_b32 exec_lo, 0x33333333")
    g("s_mov_b32 exec_hi, 0x33333333")
    g("s_nop 4")
    g("s_cbranch_scc0 L_opub_rem")
    for rem in (0, 1):
        if rem: g.label("L_opub_rem")
        for r in range(4):
            g(f"v_bfi_b32 v{36+r}, s{S_LO}, v31, v{36+r}")
        g(f"buffer_store_dwordx4 v[36:39], v30, {W}, s61 offen {SC if rem else ''}")
        g(f"ds_write_b32 v18, v19 offset:{F_OS}")
        if LATE:
            g("s_mov_b64 exec, -1")
            if opt.get("gi", 1): flagwait4(g, f"L_gi{rem}", 17, F_GI, 40)
            tile_dma_thr(4, 1, SRD_C, 93, (65, L_WO), 1024, first=4 - LATE, th=64)
        if TRL:
            g(f"s_waitcnt vmcnt({1 + LATE})")
            g(f"ds_write_b32 v18, v19 offset:{F_OP}")
        if LATE: g("s_waitcnt vmcnt(0)")
        g.stamp(8)
        if opt.get("stamps"):
            g("s_add_u32 s3, s3, 4")
            g("s_branch L_end")
        else:
            hevhold()
            g("s_endpgm")
    g.role = "l"
    g.label("L_ln_done")
    if TOUCH and not NEAR:
        g("s_cmp_eq_u32 s3, 3")
        g("s_cbranch_scc0 L_w3b")
        g("s_mov_b64 exec, 0")
        g("s_branch L_chain1")
        g.label("L_w3b")
        g("s_mov_b64 exec, -1")
    tile_raddr(g, 4, 3)
    g(f"v_mov_b32 v17, {L_FL}")
    g("s_mov_b32 s63, 0")
    g("s_waitcnt vmcnt(0)")
    g(f"ds_write_b32 v9, v10 offset:{F_LNB}")
    g("s_cmp_eq_u32 s3, 1")
    g("s_cbranch_scc0 L_qk")
    g("s_cmp_eq_u32 s69, 0")
    g("s_cbranch_scc1 L_qk")
    g("s_and_b32 s6, s5, 7")
    g("v_and_b32 v15, 3, v0")
    selmasks(g, 15)
    g("v_lshrrev_b32 v13, 4, v0")
    g("v_bfe_u32 v16, v0, 2, 2")
    g(f"v_mul_u32_u24 v14, {XN_STR}, v16")
    g("v_lshl_add_u32 v14, v13, 4, v14")
    g("s_lshl_b32 s39, s6, 7")
    g(f"s_add_u32 s39, s39, {L_XN}")
    g("v_add_u32 v14, s39, v14")
    g("v_lshlrev_b32 v13, 4, v0")
    g(f"v_add_u32 v13, {L_HP}, v13")
    flagwait4(g, "L_w1w", 17, F_LNB, 20, sleep=1)
    g("ds_read_b128 v[80:83], v14")
    g("ds_read_b128 v[84:87], v14 offset:64")
    for t in range(2):
        for u in range(4):
            r = 24 + 16*t + 4*u
            g(f"ds_read_b64_tr_b16 v[{r}:{r+1}], v{4+u} offset:{L_W1 - 65536 + t*4096}")
            g(f"ds_read_b64_tr_b16 v[{r+2}:{r+3}], v{4+u} offset:{L_W1 - 65536 + t*4096 + 2048}")
    for t in range(2):
        for u in range(4):
            r = 24 + 16*t + 4*u
            g(f"s_waitcnt lgkmcnt({14 - 8*t - 2*u})")
            c = "0" if t == 0 else f"v[{64+4*u}:{67+4*u}]"
            g(f"v_mfma_f32_16x16x32_bf16 v[{64+4*u}:{67+4*u}], v[{r}:{r+3}], v[{80+4*t}:{83+4*t}], {c}")
    g("s_nop 3")
    select4(g, 56, 64, 11)
    g("ds_write_b128 v13, v[56:59]")
    g(f"ds_write_b32 v17, v10 offset:{F_H}")
    g.stamp(1)
    g.label("L_qk")
    g("s_lshr_b32 s6, s5, 3")
    g("s_and_b32 s7, s5, 7")
    g("v_lshrrev_b32 v8, 4, v0")
    g("v_and_b32 v12, 15, v0")
    g("v_xor_b32 v20, v8, v12")
    g("v_lshlrev_b32 v20, 4, v20")
    g("v_lshl_add_u32 v20, v12, 8, v20")
    g("s_lshl_b32 s39, s3, 13")
    g("v_add_u32 v20, s39, v20")
    for t in (1, 2, 3):
        g(f"v_xor_b32 v{20+t}, {64*t}, v20")
    g("v_lshrrev_b32 v13, 5, v0")
    g("v_and_b32 v14, 31, v0")
    g("v_lshlrev_b32 v24, 14, v13")
    g("v_lshl_add_u32 v24, v14, 4, v24")
    g("s_lshl_b32 s58, s4, 15")
    g("s_lshl_b32 s59, s6, 11")
    g("s_add_u32 s58, s58, s59")
    g("s_lshl_b32 s59, s3, 9")
    g("s_add_u32 s65, s58, s59")
    g(f"s_add_u32 s65, s65, {QA_WS}")
    g("v_lshlrev_b32 v25, 2, v13")
    g("v_and_b32 v15, 16, v0")
    g("v_lshl_add_u32 v25, v15, 3, v25")
    g("v_and_b32 v15, 12, v0")
    g("v_lshl_add_u32 v25, v15, 1, v25")
    g("v_and_b32 v15, 3, v0")
    g("v_lshl_add_u32 v25, v15, 5, v25")
    g(f"s_mul_i32 s39, s3, {QL_STR}")
    g(f"s_add_u32 s38, s39, {L_QL}")
    g("v_add_u32 v25, s38, v25")
    g("v_bfe_u32 v16, v0, 2, 2")
    g(f"v_mul_u32_u24 v26, {QL_STR}, v16")
    g("v_lshl_add_u32 v26, v8, 4, v26")
    g(f"v_add_u32 v26, {L_QL}, v26")
    g("v_lshlrev_b32 v29, 4, v16")
    g(f"v_add_u32 v29, {L_ML}, v29")
    g("s_lshl_b32 s38, s3, 2")
    g("v_add_u32 v27, s38, v29")
    g("v_lshlrev_b32 v28, 6, v16")
    g("v_lshl_add_u32 v28, v8, 4, v28")
    g("s_lshl_b32 s38, s3, 8")
    g(f"s_add_u32 s38, s38, {L_OC}")
    g("v_add_u32 v28, s38, v28")
    g("v_lshlrev_b32 v30, 9, v16")
    g("s_lshl_b32 s67, s4, 7")
    g("s_add_u32 s67, s67, s5")
    g("s_lshl_b32 s67, s67, 4")
    g(f"s_add_u32 s67, s67, {M_WS}")
    for r in range(4):
        g(f"v_mov_b32 v{32+r}, 0x3f803f80")
    g(f"s_mov_b32 s66, {hex(f2u(1.4426950408889634))}")
    g(f"s_mov_b32 s38, {hex(f2u(128 ** -0.5))}")
    g("v_mov_b32 v108, s38")
    g("v_mov_b32 v109, s38")
    g("s_mov_b32 s57, 0x11111111")
    g("s_lshl_b32 s56, s4, 2")
    g("s_add_u32 s56, s56, s6")
    g("v_lshlrev_b32 v103, 13, v13")
    g("v_lshl_add_u32 v103, v14, 4, v103")
    g("s_lshl_b32 s61, s56, 14")
    g("s_add_u32 s61, s61, s59")
    g(f"s_add_u32 s61, s61, {O_WS}")
    g("s_add_u32 s64, s61, 4096")
    g("v_lshl_add_u32 v104, v13, 2, v15")
    g("v_lshlrev_b32 v104, 4, v104")
    g("s_lshl_b32 s60, s56, 2")
    g("s_add_u32 s60, s60, s3")
    g("s_lshl_b32 s60, s60, 7")
    g(f"s_add_u32 s60, s60, {M_WS}")
    g("v_lshlrev_b32 v102, 2, v13")
    g("v_lshl_add_u32 v102, v14, 3, v102")
    g(f"s_add_u32 s39, s39, {L_OL}")
    g("v_add_u32 v102, s39, v102")
    g(f"v_mul_u32_u24 v101, {QL_STR}, v15")
    g("v_lshl_add_u32 v101, v8, 4, v101")
    g(f"v_add_u32 v101, {L_OL}, v101")
    g("s_lshl_b32 s39, s3, 5")
    g("v_xor_b32 v107, s39, v4")
    g("v_lshlrev_b32 v105, 4, v0")
    widetags(g, 110)
    g(f"s_xor_b32 s92, s7, {XO}")
    r3addr(g, 62, 92, 56, 39)
    g("s_lshl_b32 s39, s3, 8")
    g("s_add_u32 s62, s62, s39")
    g.stamp(3)
    flagwait1(g, "L_qw", 17, F_QP, 12)
    flagwait1(g, "L_kw", 9, F_K2 if opt.get("qt", 6) else F_K, 12)
    if opt.get("dq", 0): g(f"s_sleep {opt.get('dq', 0)}")
    g("s_mov_b32 s97, 0")
    g("s_mov_b32 s58, s65")
    g("s_add_u32 s59, s58, 8192")
    if opt.get("nog", 0) & 1:
        for r in range(36, 44): g(f"v_mov_b32 v{r}, v11")
    else:
        g(f"buffer_load_dwordx4 v[36:39], v24, {W}, s58 offen {SC}")
        g(f"buffer_load_dwordx4 v[40:43], v24, {W}, s59 offen {SC}")
    if opt.get("qt", 6): flagwait1(g, "L_kv2", 9, F_K, 12)
    for tau in range(2):
        for t in range(4):
            r = 48 + 16*tau + 4*t
            g(f"ds_read_b128 v[{r}:{r+3}], v{20+t} offset:{4096*tau}")
    g.label("L_qc")
    g("s_waitcnt vmcnt(0)")
    tagcheck(g, list(range(36, 44)), 11, [44, 45, 46, 47])
    g("s_cbranch_vccz L_qok")
    spin(g, "L_qok")
    g(f"buffer_load_dwordx4 v[36:39], v24, {W}, s58 offen {SC}")
    g(f"buffer_load_dwordx4 v[40:43], v24, {W}, s59 offen {SC}")
    g("s_branch L_qc")
    g.label("L_qok")
    g.stamp(4)
    if opt.get("stamps"): g("s_min_u32 s96, s97, 0xff")
    untag(g, range(36, 44))
    g("v_pk_add_f32 v[36:37], v[36:37], v[40:41]")
    g("v_pk_add_f32 v[38:39], v[38:39], v[42:43]")
    g("s_nop 1")
    g("v_permlane32_swap_b32 v36, v38")
    g("v_permlane32_swap_b32 v37, v39")
    g("v_pk_add_f32 v[36:37], v[36:37], v[38:39]")
    g("v_cvt_pk_bf16_f32 v36, v36, v37")
    g("ds_write_b32 v25, v36")
    g(f"ds_write_b32 v9, v10 offset:{F_Q}")
    def qrd():
        for t in range(4):
            g(f"ds_read_b128 v[{80+4*t}:{83+4*t}], v26 offset:{64*t}")
    flagwait4(g, "L_qx", 17, F_Q, 36, pre=qrd, n=4)
    for t in range(4):
        g(f"s_waitcnt lgkmcnt({3-t})")
        for tau in range(2):
            r = 48 + 16*tau + 4*t
            c = "0" if t == 0 else f"v[{36+4*tau}:{39+4*tau}]"
            g(f"v_mfma_f32_16x16x32_bf16 v[{36+4*tau}:{39+4*tau}], v[{r}:{r+3}], v[{80+4*t}:{83+4*t}], {c}")
    g("s_nop 6")
    def rnd8():
        for i in range(4):
            g(f"v_cvt_pk_bf16_f32 v{48+i}, v{36+2*i}, v{37+2*i}")
        for i in range(4):
            g(f"v_lshlrev_b32 v{36+2*i}, 16, v{48+i}")
            g(f"v_and_b32 v{37+2*i}, 0xffff0000, v{48+i}")
    rnd8()
    for i in range(4):
        g(f"v_pk_mul_f32 v[{36+2*i}:{37+2*i}], v[{36+2*i}:{37+2*i}], v[108:109]")
    rnd8()
    g("v_max3_f32 v44, v36, v37, v38")
    g("v_max3_f32 v45, v39, v40, v41")
    g("v_max3_f32 v44, v44, v42, v43")
    g("v_max_f32 v44, v44, v45")
    g("v_mov_b32 v45, v44")
    g("s_nop 1")
    g("v_permlane32_swap_b32 v44, v45")
    g("v_max_f32 v44, v44, v45")
    g("v_mov_b32 v45, v44")
    g("s_nop 1")
    g("v_permlane16_swap_b32 v44, v45")
    g("v_max_f32 v44, v44, v45")
    g("v_mul_f32 v44, s66, v44")
    g("s_mov_b64 exec, 0x1111")
    g("ds_write_b32 v27, v44")
    g("s_mov_b64 exec, -1")
    g.label("L_mx")
    g("ds_read_b128 v[48:51], v29")
    spin(g, "L_mxok", lds=True)
    g("s_waitcnt lgkmcnt(0)")
    g("v_max_u32 v45, v48, v49")
    g("v_max3_u32 v45, v45, v50, v51")
    g("v_cmp_eq_u32 vcc, -1, v45")
    g("s_cbranch_vccnz L_mx")
    g.label("L_mxok")
    g("v_max3_f32 v44, v48, v49, v50")
    g("v_max_f32 v44, v44, v51")
    g("v_and_b32 v44, s98, v44")
    for i in range(8):
        g(f"v_fma_f32 v{36+i}, v{36+i}, s66, -v44")
    for i in range(8):
        g(f"v_exp_f32 v{36+i}, v{36+i}")
    for i in range(4):
        g(f"v_cvt_pk_bf16_f32 v{36+i}, v{36+2*i}, v{37+2*i}")
    g("s_nop 1")
    g("v_mfma_f32_16x16x32_bf16 v[40:43], v[32:35], v[36:39], 0")
    g("s_mov_b32 exec_lo, s57")
    g("s_mov_b32 exec_hi, s57")
    g("ds_write_b128 v28, v[36:39]")
    g("s_mov_b64 exec, 0x1111")
    g("s_nop 3")
    g("ds_write_b32 v27, v40 offset:64")
    g("s_mov_b64 exec, -1")
    flagwait1(g, "L_xw", 17, F_XC, 12, sdst=56, sleep=0)
    g(f"ds_write_b32 v9, v10 offset:{F_P}")
    g.stamp(2)
    g("s_cmp_eq_u32 s3, 0")
    g("s_cbranch_scc0 L_wo_b3")
    flagwait4(g, "L_lx", 17, F_P, 36, pre=lambda: g("ds_read_b128 v[40:43], v29 offset:64"), n=0)
    g("v_pk_add_f32 v[40:41], v[40:41], v[42:43]")
    g("v_mov_b32 v46, v11")
    g("v_mov_b32 v47, v11")
    g("v_or_b32 v44, v44, v11")
    g("v_add_f32 v45, v40, v41")
    g("s_mov_b64 exec, 0x1111")
    g(f"v_bfi_b32 v45, s{S_LO}, v11, v45")
    g("s_cmp_eq_u32 s56, 1")
    g("s_cbranch_scc0 L_mlr")
    g(f"buffer_store_dwordx4 v[44:47], v30, {W}, s67 offen")
    g("s_branch L_ml1")
    g.label("L_mlr")
    g(f"buffer_store_dwordx4 v[44:47], v30, {W}, s67 offen {SC}")
    g.label("L_ml1")
    g("s_mov_b64 exec, -1")
    g.label("L_wo_b3")
    g(f"v_mov_b32 v106, {L_FL}")
    def word(halves=(0,) if LATE else (0, 1)):
        for t in range(4):
            for hf in halves:
                g(f"ds_read_b64_tr_b16 v[{16+4*t+2*hf}:{17+4*t+2*hf}], v107 offset:{L_WO - 65536 + t*4096 + 2048*hf}")
    if opt.get("pre", 1):
        flagwait4(g, "L_wow", 106, F_WO, 36, sleep=1)
        word()
    pass
    g("s_waitcnt lgkmcnt(0)")
    g("s_barrier")
    def oml():
        g(f"buffer_load_dwordx4 v[32:35], v104, {W}, s60 offen {SC}")
    def opl():
        g(f"buffer_load_dwordx4 v[40:43], v103, {W}, s61 offen {SC}")
        g(f"buffer_load_dwordx4 v[44:47], v103, {W}, s61 offen offset:2048 {SC}")
        g(f"buffer_load_dwordx4 v[48:51], v103, {W}, s64 offen {SC}")
        g(f"buffer_load_dwordx4 v[52:55], v103, {W}, s64 offen offset:2048 {SC}")
    oml()
    if not opt.get("pre", 1): word()
    flagwait4(g, "L_wt", 106, F_OS, 36, pre=(lambda: g(f"ds_read_b32 v60, v106 offset:{F_NB}")) if NEAR else None)
    if opt.get("prio", 1): g("s_setprio 2")
    g("s_mov_b32 s97, 0")
    g.stamp(6)
    opl()
    if LATE: g(f"ds_write_b32 v9, v10 offset:{F_GI}")
    if NEAR:
        g("v_readfirstlane_b32 s38, v60")
        g("s_nop 2")
        r3par(g, 62, 92, 38, 39)
    g("s_waitcnt vmcnt(4)")
    tagcheck(g, [32, 33, 34, 35], 11, [56, 57])
    g("s_cbranch_vccz L_o2")
    g.label("L_o")
    oml()
    spin(g, "L_o2")
    g("s_waitcnt vmcnt(0)")
    tagcheck(g, [32, 33, 34, 35], 11, [56, 57])
    g("s_cbranch_vccnz L_o")
    g.label("L_o2")
    g.stamp(5)
    untag(g, (32, 33))
    g("s_nop 0")
    g(f"v_max_f32_dpp v56, v32, v32 quad_perm:[1,0,3,2] {DPPM}")
    g("s_nop 1")
    g(f"v_max_f32_dpp v56, v56, v56 quad_perm:[2,3,0,1] {DPPM}")
    g("v_mov_b32 v57, v56")
    g("s_nop 1")
    g("v_permlane32_swap_b32 v56, v57")
    g("v_max_f32 v56, v56, v57")
    g("v_sub_f32 v32, v32, v56")
    g("v_exp_f32 v32, v32")
    g("s_nop 0")
    g("v_mul_f32 v57, v32, v33")
    g("s_nop 1")
    g(f"v_add_f32_dpp v57, v57, v57 quad_perm:[1,0,3,2] {DPPM}")
    g("s_nop 1")
    g(f"v_add_f32_dpp v57, v57, v57 quad_perm:[2,3,0,1] {DPPM}")
    g("v_mov_b32 v58, v57")
    g("s_nop 1")
    g("v_permlane32_swap_b32 v57, v58")
    g("v_add_f32 v57, v57, v58")
    g("v_rcp_f32 v57, v57")
    g("s_nop 0")
    g("v_mul_f32 v32, v32, v57")
    g("s_nop 1")
    for i in range(4):
        g(f"v_mov_b32_dpp v{64+2*i}, v32 quad_perm:[{i},{i},{i},{i}] {DPPM}")
    for i in range(4):
        g(f"v_mov_b32 v{65+2*i}, v{64+2*i}")
    g("s_mov_b32 s97, 0")
    g.label("L_o4")
    g("s_waitcnt vmcnt(0)")
    xorcheck(g, range(40, 56), 11, [56, 57, 58, 59, 36, 37, 38, 39])
    g("s_cbranch_vccnz L_o3")
    g("s_mov_b64 exec, -1")
    g.label("L_ook")
    g.stamp(7)
    g("v_pk_mul_f32 v[36:37], v[64:65], v[40:41]")
    g("v_pk_mul_f32 v[38:39], v[64:65], v[42:43]")
    for i in range(1, 4):
        g(f"v_pk_fma_f32 v[36:37], v[{64+2*i}:{65+2*i}], v[{40+4*i}:{41+4*i}], v[36:37]")
        g(f"v_pk_fma_f32 v[38:39], v[{64+2*i}:{65+2*i}], v[{42+4*i}:{43+4*i}], v[38:39]")
    g("s_nop 1")
    g("v_permlane32_swap_b32 v36, v38")
    g("v_permlane32_swap_b32 v37, v39")
    g("v_pk_add_f32 v[36:37], v[36:37], v[38:39]")
    g("v_cvt_pk_bf16_f32 v36, v36, v37")
    g("ds_write_b32 v102, v36")
    g("s_waitcnt lgkmcnt(0)")
    g("s_barrier")
    for t in range(4):
        g(f"ds_read_b128 v[{40+4*t}:{43+4*t}], v101 offset:{64*t}")
        if LATE: g(f"ds_read_b64_tr_b16 v[{18+4*t}:{19+4*t}], v107 offset:{L_WO - 65536 + t*4096 + 2048}")
    for t in range(4):
        g(f"s_waitcnt lgkmcnt({(3-t)*(2 if LATE else 1)})")
        c = "0" if t == 0 else "v[32:35]"
        g(f"v_mfma_f32_16x16x32_bf16 v[32:35], v[{40+4*t}:{43+4*t}], v[{16+4*t}:{19+4*t}], {c}")
    g("s_mov_b64 exec, 0xffff")
    g("s_nop 6")
    for u in range(4):
        g(f"v_bfi_b32 v{32+u}, s{S_LO}, v{(11, 110, 111, 11)[u]}, v{32+u}")
    g(f"buffer_store_dwordx4 v[32:35], v105, {W}, s62 offen {opt.get('fs', SC).replace('+', ' ')}")
    g.stamp(8)
    if opt.get("stamps"):
        g("s_lshl_b32 s96, s96, 16")
        g("s_min_u32 s97, s97, 255")
        g("s_or_b32 s97, s97, s96")
    hevhold()
    g("s_branch L_end" if opt.get("stamps") else "s_endpgm")
    g.label("L_o3")
    g("s_add_u32 s97, s97, 1")
    g(f"s_cmp_gt_u32 s97, {SPIN_MAX}")
    g("s_cbranch_scc1 L_ook")
    g("s_mov_b64 exec, vcc")
    if opt.get("so", 0): g(f"s_sleep {opt['so']}")
    opl()
    g("s_branch L_o4")
    g.role = "w"
    g.label("L_w8")
    ffn_ids2(g, opt.get("bal", 0))
    g.srd(SRD_B, P_B1, 1792*2)
    g("s_and_b32 s6, s5, 7")
    g("v_lshrrev_b32 v12, 4, v0")
    g("v_and_b32 v13, 3, v0")
    g("v_bfe_u32 v14, v0, 2, 2")
    selmasks(g, 12)
    g("v_lshlrev_b32 v8, 5, v13")
    g("v_lshl_add_u32 v8, v14, 3, v8")
    g("s_lshl_b32 s57, s68, 7")
    g(f"v_mul_u32_u24 v9, {HL_STR}, v12")
    g("v_lshl_add_u32 v9, v14, 4, v9")
    g("v_and_b32 v14, 2, v0")
    g("v_lshl_add_u32 v9, v14, 5, v9")
    g("v_cmp_ne_u32 s[60:61], 0, v14")
    g("v_and_b32 v15, 1, v0")
    g("v_lshl_add_u32 v9, v15, 3, v9")
    g(f"v_add_u32 v9, {L_HL}, v9")
    g(f"v_mul_u32_u24 v19, {HL_STR}, v13")
    g("v_lshl_add_u32 v19, v12, 4, v19")
    g(f"v_add_u32 v19, {L_HL}, v19")
    g("s_lshl_b32 s58, s68, 13")
    g(f"s_add_u32 s58, s58, {H_WS}")
    g("s_add_u32 s59, s58, 4096")
    g("v_lshlrev_b32 v10, 4, v0")
    g(f"s_add_u32 s39, s4, {28 if opt.get('bal', 0) else 24}")
    g("s_cmp_eq_u32 s69, 0")
    g("s_cselect_b32 s39, s39, s68")
    g("s_add_u32 s64, s39, 32")
    g(f"s_xor_b32 s67, s6, {XF2}")
    r3addr(g, 62, 67, 64, 39)
    g("v_lshrrev_b32 v3, 4, v0")
    g("v_lshlrev_b32 v3, 14, v3")
    g("v_bfe_u32 v1, v0, 1, 3")
    g("v_lshl_add_u32 v3, v1, 10, v3")
    g("v_lshl_add_u32 v3, v15, 4, v3")
    r3addr(g, 64, 4, None, 39)
    g("s_lshl_b32 s39, s5, 5")
    g("s_add_u32 s64, s64, s39")
    g("v_and_b32 v16, 1, v12")
    g("v_add_u32 v16, v16, v14")
    g("v_lshlrev_b32 v1, 1, v15")
    g("v_lshl_add_u32 v16, v16, 10, v1")
    g("s_lshl_b32 s66, s4, 7")
    g("s_lshl_b32 s39, s5, 2")
    g("s_add_u32 s66, s66, s39")
    g(f"buffer_load_dwordx2 v[20:21], v8, s[{SRD_B}:{SRD_B+3}], s57 offen")
    g.srd(SRD_B, P_B2, 1024)
    g(f"buffer_load_ushort v17, v16, s[{SRD_C}:{SRD_C+3}], s66 offen")
    g(f"buffer_load_ushort v18, v1, s[{SRD_B}:{SRD_B+3}], s66 offen")
    g.srd(SRD_A, P_OUT, 4096)
    if opt.get("otouch", 2):
        g(f"buffer_load_ushort v124, v16, s[{SRD_A}:{SRD_A+3}], s66 offen {'nt' if opt.get('otouch', 2) == 2 else ''}")
    g(f"s_mov_b32 s57, {hex(f2u(-1.4426950408889634))}")
    g(f"v_mov_b32 v2, {L_FL}")
    widetags(g, 116)
    for r in range(4):
        g(f"v_mov_b32 v{96+r}, v{(11, 116, 117, 11)[r]}")
    pass
    flagwait1(g, "L_hg", 2, F_P if opt.get("hgate", 0) else F_Q, 12)
    g("s_mov_b32 s97, 0")
    def hld():
        for kp in range(8):
            g(f"buffer_load_dwordx4 v[{56+4*kp}:{59+4*kp}], v10, {W}, s{58+(kp>>2)} offen offset:{(kp&3)*1024} {SC}")
    g("s_cmp_eq_u32 s69, 0")
    g("s_cbranch_scc1 L_noh")
    if not opt.get("nog", 0) & 2: hld()
    g.label("L_noh")
    r3par(g, 62, 67, 96, 39)
    r3par(g, 64, 4, 96, 39)
    g("s_waitcnt lgkmcnt(0)")
    g("s_add_u32 s65, s64, 65536")
    g("s_cmp_eq_u32 s69, 0")
    g("s_barrier")
    g("s_cbranch_scc1 L_w8_fin")
    g.label("L_h")
    g("s_waitcnt vmcnt(0)")
    g("v_lshlrev_b32 v88, 16, v20")
    g("v_and_b32 v89, 0xffff0000, v20")
    g("v_lshlrev_b32 v90, 16, v21")
    g("v_and_b32 v91, 0xffff0000, v21")
    tagcheck(g, list(range(56, 88)), 11, list(range(100, 116)))
    g("s_cbranch_vccz L_hok")
    spin(g, "L_hok")
    hld()
    g("s_branch L_h")
    g.label("L_hok")
    g.stamp(5)
    untag(g, range(56, 88))
    for (a, b) in ((56, 60), (64, 68), (72, 76), (80, 84), (56, 64), (72, 80), (56, 72)):
        g(f"v_pk_add_f32 v[{a}:{a+1}], v[{a}:{a+1}], v[{b}:{b+1}]")
        g(f"v_pk_add_f32 v[{a+2}:{a+3}], v[{a+2}:{a+3}], v[{b+2}:{b+3}]")
    def unp():
        g("v_cvt_pk_bf16_f32 v60, v56, v57")
        g("v_cvt_pk_bf16_f32 v61, v58, v59")
        g("v_lshlrev_b32 v56, 16, v60")
        g("v_and_b32 v57, 0xffff0000, v60")
        g("v_lshlrev_b32 v58, 16, v61")
        g("v_and_b32 v59, 0xffff0000, v61")
    unp()
    g("v_pk_add_f32 v[56:57], v[56:57], v[88:89]")
    g("v_pk_add_f32 v[58:59], v[58:59], v[90:91]")
    unp()
    for i in range(4):
        g(f"v_max_f32 v{56+i}, 0, v{56+i}")
    g("v_pk_mul_f32 v[56:57], v[56:57], v[56:57]")
    g("v_pk_mul_f32 v[58:59], v[58:59], v[58:59]")
    g("v_cvt_pk_bf16_f32 v60, v56, v57")
    g("v_cvt_pk_bf16_f32 v61, v58, v59")
    g("ds_write_b64 v9, v[60:61]")
    g("ds_read_b128 v[64:67], v19")
    g("ds_read_b128 v[68:71], v19 offset:64")
    if opt.get("trl", 2): flagwait4(g, "L_w2w", 2, F_OP, 72)
    g.stamp(4)
    for t in range(2):
        for u in range(4):
            r = 24 + 16*t + 4*u
            g(f"ds_read_b64_tr_b16 v[{r}:{r+1}], v{4+u} offset:{L_W2 - 65536 + t*4096}")
            g(f"ds_read_b64_tr_b16 v[{r+2}:{r+3}], v{4+u} offset:{L_W2 - 65536 + t*4096 + 2048}")
    for t in range(2):
        for u in range(4):
            g(f"s_waitcnt lgkmcnt({14 - 8*t - 2*u})")
            r = 24 + 16*t + 4*u
            d = 72 + 4*u
            c = "0" if t == 0 else f"v[{d}:{d+3}]"
            g(f"v_mfma_f32_16x16x32_bf16 v[{d}:{d+3}], v[{64+4*t}:{67+4*t}], v[{r}:{r+3}], {c}")
    g("s_nop 3")
    select4(g, 96, 72, 11, tags=(11, 116, 117, 11))
    g.label("L_w8_fin")
    g.stamp(6)
    g("s_barrier")
    g(f"buffer_store_dwordx4 v[96:99], v10, {W}, s62 offen {SC}")

    g("s_mov_b32 s97, 0")
    g("s_waitcnt vmcnt(1)")
    g("v_lshlrev_b32 v17, 16, v17")
    g("v_lshlrev_b32 v18, 16, v18")
    if opt.get("df", 13):
        g(f"s_sleep {opt.get('df', 13)}")
    else:
        g("s_waitcnt vmcnt(0)")
    FL = opt.get("fl", SC).replace("+", " ")
    if opt.get("fp", 0):
        g(f"buffer_load_dwordx4 v[24:27], v3, {W}, s64 offen {FL}")
        g(f"buffer_load_dwordx4 v[40:43], v3, {W}, s65 offen {FL}")
        g(f"s_sleep {opt['fp']}")
        g(f"buffer_load_dwordx4 v[48:51], v3, {W}, s64 offen {FL}")
        g(f"buffer_load_dwordx4 v[52:55], v3, {W}, s65 offen {FL}")
        g("s_waitcnt vmcnt(2)")
        xorcheck(g, [24, 40, 25, 41, 26, 42, 27, 43], [11, 11, 116, 116, 117, 117, 11, 11], list(range(44, 48)))
        g("s_cbranch_vccz L_fok")
        g("s_waitcnt vmcnt(0)")
        for i in range(4):
            g(f"v_mov_b32 v{24+i}, v{48+i}")
            g(f"v_mov_b32 v{40+i}, v{52+i}")
        g("s_branch L_f2")
    g.label("L_f")
    g(f"buffer_load_dwordx4 v[24:27], v3, {W}, s64 offen {FL}")
    g(f"buffer_load_dwordx4 v[40:43], v3, {W}, s65 offen {FL}")
    spin(g, "L_fok")
    g("s_waitcnt vmcnt(0)")
    g.label("L_f2")
    xorcheck(g, [24, 40, 25, 41, 26, 42, 27, 43], [11, 11, 116, 116, 117, 117, 11, 11], list(range(44, 48)))
    if opt.get("sf", 0):
        g("s_cbranch_vccz L_fok")
        if opt.get("sf", 0): g(f"s_sleep {opt['sf']}")
        g("s_branch L_f")
    else:
        g("s_cbranch_vccnz L_f")
    g.label("L_fok")
    g.stamp(7)
    for i in range(4):
        g(f"v_permlane32_swap_b32 v{24+i}, v{40+i}")
    g("v_pk_add_f32 v[24:25], v[24:25], v[40:41]")
    g("v_pk_add_f32 v[26:27], v[26:27], v[42:43]")
    g("s_nop 0")
    g("v_permlane16_swap_b32 v24, v25")
    g("v_permlane16_swap_b32 v26, v27")
    g("v_add_f32 v24, v24, v25")
    g("v_add_f32 v26, v26, v27")
    for c in ("row_ror:8", "row_ror:4", "row_ror:2"):
        g("s_nop 0")
        g(f"v_add_f32_dpp v24, v24, v24 {c} {DPPM}")
        g(f"v_add_f32_dpp v26, v26, v26 {c} {DPPM}")
    g("v_cndmask_b32 v24, v24, v26, s[60:61]")
    rnd(g, 24, 24)
    g("v_add_f32 v25, v24, v18")
    rnd(g, 25, 25)
    g("v_mul_f32 v26, s57, v25")
    g("v_exp_f32 v26, v26")
    g("s_nop 0")
    g("v_add_f32 v26, 1.0, v26")
    g("v_rcp_f32 v26, v26")
    g("s_nop 0")
    g("v_mul_f32 v26, v25, v26")
    rnd(g, 26, 26)
    g("s_nop 1")
    g("v_permlane32_swap_b32 v26, v27")
    g("s_mov_b32 exec_lo, 0x000f000f")
    g("s_mov_b32 exec_hi, 0")
    g("v_mul_f32 v24, v24, v27")
    rnd(g, 24, 24)
    g("v_add_f32 v24, v24, v17")
    g("v_cvt_pk_bf16_f32 v24, v24, v24")
    if not opt.get("noout"): g(f"buffer_store_short v24, v16, s[{SRD_A}:{SRD_A+3}], s66 offen {opt.get('of', '').replace('+', ' ')}")
    g.stamp(8)
    hevhold()
    if opt.get("hold"):
        g(f"s_cmp_eq_u32 s2, {opt.get('holdwg', 0)}")
        g("s_cbranch_scc0 L_nohold")
        g.label("L_hold")
        g("s_memrealtime s[72:73]")
        g("s_waitcnt lgkmcnt(0)")
        g("s_sub_u32 s72, s72, s70")
        g(f"s_cmp_lt_u32 s72, {opt['hold']}")
        g("s_cbranch_scc1 L_hold")
        g.label("L_nohold")
    g("s_cmp_eq_u32 s2, 0")
    g("s_cbranch_scc0 L_end")
    g(f"v_mov_b32 v24, s{S_E1}")
    g("v_mov_b32 v25, 0")
    g("s_mov_b64 exec, 1")
    g(f"buffer_store_dword v24, v25, {W}, 0 offen {opt.get('ef', '')}")
    g.label("L_end")
    if opt.get("stamps"):
        g("s_memrealtime s[88:89]")
        g("s_waitcnt lgkmcnt(0)")
        g("s_mov_b64 exec, 1")
        g("s_mul_i32 s38, s2, 9")
        g("s_add_u32 s38, s38, s3")
        g("s_lshl_b32 s38, s38, 6")
        g(f"s_add_u32 s38, s38, {ST_WS}")
        for k in range(10):
            g(f"v_mov_b32 v{4+k}, s{70+2*k}")
        g("v_mov_b32 v14, s97")
        g("v_mov_b32 v15, s99")
        g("v_mov_b32 v1, 0")
        g(f"buffer_store_dwordx4 v[4:7], v1, {W}, s38 offen")
        g(f"buffer_store_dwordx4 v[8:11], v1, {W}, s38 offen offset:16")
        g(f"buffer_store_dwordx4 v[12:15], v1, {W}, s38 offen offset:32")
    g.label("L_exit")
    C = {'L_notln': 'waves 4..9', 'L_w8i': 'W8 start: pull a share of the kernel text into L2, clear the LDS flags', 'L_kv': 'W4-7: K stream (page-rotated linear sweep over the 1024-key window)', 'L_ln': 'W0-3: w1 quarter, LayerNorm of row w -> LDS', 'L_w9': 'W9: latency of one cold line, then walk the instruction-cache pads', 'L_w0': 'W8: q partial = xn @ wq tile', 'L_xc': 'W8: words of all workgroups (XCD id, probe latency): is the group on this XCD? which parity is near?', 'L_att': 'W4-7: wo, V, w2 stream; P.V for 32 of the 128 dims; publish o', 'L_ln_done': 'W0-3 after LayerNorm; W1: h partial = xn @ w1 tile', 'L_qk': 'W0-3: gather q, scores, max exchange, probabilities', 'L_wo_b3': 'W0-3: combine the 8 splits of batch w, multiply by the wo tile, publish', 'L_w8': 'W8: FFN second half and final reduction', 'L_f': 'W8: gather 32 attention + 32 FFN partials, out = x + s * silu(ffn + b2)'}
    lines = []
    for x in g.L:
        if not x.strip(): continue
        if x.endswith(":") and x[:-1] in C: lines.append("; ---- " + C[x[:-1]])
        lines.append(x)
    return finish(lines, opt)

def finish(lines, opt):
    if not opt.get("touch", 1):
        return G1.text(lines)
    sz = _sizes(lines)
    out = []; pos = 0; nxt = 1024; n = 0
    zero = False
    for l, z in zip(lines, sz):
        t = l.strip()
        if t in ("L_w3b:", "L_w8b:"): zero = True
        if z and pos >= nxt and not zero:
            assert pos - nxt <= 56
            out.append(None); n += 1; pos += 4; nxt += 1024
        out.append(l); pos += z
        if t == "s_mov_b64 exec, 0": zero = True
        elif z and (t.startswith("s_branch L_chain") or t == "s_mov_b64 exec, -1" or t == "s_endpgm"): zero = False
    first = opt.get("pad0", 1)
    split = opt.get("pad1", 4)
    res = []; k = 0
    for l in out:
        if l is None:
            tgt = "L_w8b" if k + 1 == split else (f"L_pad{k+1}" if k + 1 < n else "L_w3b")
            if k == first: res.append("L_chain0:")
            if k == split: res.append("L_chain1:")
            res.append(f"L_pad{k}:")
            res.append(f"    s_cbranch_execz {tgt}")
            k += 1
        else:
            res.append(l)
    return G1.text(res)

if __name__ == "__main__":
    out = sys.argv[1]
    opt = {}
    for a in sys.argv[2:]:
        k, v = a.split("=")
        try: v = int(v)
        except ValueError: pass
        opt[k] = v
    open(out, "w").write(gen(opt))
```

```python
import sys, struct
from gen import f2u, G, tagcheck, rnd, wave_sum, tile_voff, tile_raddr, tile_dma, NAME, sizes as _sizes
import gen as G1

PR_WS  = 0x2000
QA_WS  = 0x8000
H_WS   = 0x48000
O_WS   = 0x80000
R3_WS  = 0x100000
XC_WS  = 0x210000
PB_WS  = 0x201000
M_WS   = 0x204000
ST_WS  = 0x300000
WS_BYTES = 0x400000

L_K, L_V, L_WQ, L_WO, L_W1, L_W2, L_XN = 0, 32768, 65536, 81920, 98304, 106496, 114688
XN_STR = 1088
L_QL = L_XN + 4352
QL_STR = 320
L_OC = L_QL + 1280
OC_H, OC_W = 528, 2112
L_ML = L_OC + 8448
L_FL = L_ML + 128
L_OL = L_FL + 192
L_HL = L_OL + 1280
HL_STR = 192
LDS_BYTES = L_HL + 768
G1.LDS_BYTES = LDS_BYTES

P_X, P_K, P_V, P_WQ, P_WO, P_BX, P_W1, P_B1, P_W2, P_B2, P_OUT, P_DBG, P_WS = 8, 10, 12, 14, 16, 18, 20, 22, 24, 26, 28, 30, 32
S_E, S_T, S_E1, S_LO = 34, 35, 36, 37
SRD_A, SRD_B, SRD_W, SRD_C = 40, 44, 48, 52
SPIN_MAX = 1 << 18
W = f"s[{SRD_W}:{SRD_W+3}]"
SC = "sc1"
DPPM = "row_mask:0xf bank_mask:0xf"

def epoch(g, vT):
    g(f"s_add_u32 s{S_E1}, s{S_E}, 1")
    g(f"s_and_b32 s{S_T}, s{S_E1}, s{S_LO}")
    g(f"v_mov_b32 v{vT}, s{S_T}")

def spin(g, lab_out, lds=False):
    r, mx = (63, 1 << 22) if lds else (97, SPIN_MAX)
    g(f"s_add_u32 s{r}, s{r}, 1")
    g(f"s_cmp_gt_u32 s{r}, {mx}")
    g(f"s_cbranch_scc1 {lab_out}")

def selmasks(g, vsel):
    for k in (1, 2, 3):
        g(f"v_cmp_eq_u32 s[{88+2*k}:{89+2*k}], {k}, v{vsel}")

def select4(g, d, D, vT, tags=None):
    for k in (1, 2, 3):
        for r in range(4):
            src = D + r if k == 1 else d + r
            g(f"v_cndmask_b32 v{d+r}, v{src}, v{D+4*k+r}, s[{88+2*k}:{89+2*k}]")
    for r in range(4):
        g(f"v_bfi_b32 v{d+r}, s{S_LO}, v{tags[r] if tags else vT}, v{d+r}")

def ffn_ids(g):
    g("s_lshr_b32 s7, s5, 3")
    g("s_mul_i32 s68, s4, 3")
    g("s_min_u32 s69, s4, 4")
    g("s_add_u32 s68, s68, s69")
    g("s_add_u32 s68, s68, s7")
    g("s_cmp_lt_u32 s4, 4")
    g("s_cselect_b32 s69, 4, 3")
    g("s_cmp_lt_u32 s7, s69")
    g("s_cselect_b32 s69, 1, 0")


def untag(g, regs):
    for r in regs:
        g(f"v_and_b32 v{r}, s98, v{r}")

def xorcheck(g, regs, vT, tmp):
    regs = list(regs)
    for k, r in enumerate(regs):
        g(f"v_xor_b32 v{r}, v{vT[k] if isinstance(vT, (list, tuple)) else vT}, v{r}")
    ts = regs; k = 0
    while len(ts) > 1:
        n = []; i = 0
        while i < len(ts):
            if len(ts) - i >= 3:
                g(f"v_or3_b32 v{tmp[k]}, v{ts[i]}, v{ts[i+1]}, v{ts[i+2]}"); n.append(tmp[k]); k += 1; i += 3
            elif len(ts) - i == 2 and len(n) != 2:
                g(f"v_or_b32 v{tmp[k]}, v{ts[i]}, v{ts[i+1]}"); n.append(tmp[k]); k += 1; i += 2
            else:
                n.append(ts[i]); i += 1
        ts = n
    g(f"v_and_b32 v{ts[0]}, 0x3ff, v{ts[0]}")
    g(f"v_cmp_ne_u32 vcc, 0, v{ts[0]}")

def ffn_ids2(g, bal):
    ffn_ids(g)
    if bal:
        g("s_lshl_b32 s99, s4, 2")
        g("s_sub_u32 s99, s99, 13")
        g("s_cmp_eq_u32 s7, 3")
        g("s_cselect_b32 s68, s99, s68")
        g("s_cselect_b32 s99, 1, 0")
        g("s_xor_b32 s69, s69, s99")

def widetags(g, d):
    g(f"v_mov_b32 v{d}, s{S_E1}")
    g(f"v_bfe_u32 v{d+1}, v{d}, 20, 10")
    g(f"v_bfe_u32 v{d}, v{d}, 10, 10")

def r3addr(g, d, c, rec, tmp):
    g(f"s_lshl_b32 s{d}, s{c}, 17")
    if rec is not None:
        g(f"s_lshr_b32 s{tmp}, s{rec}, 3")
        g(f"s_lshl_b32 s{tmp}, s{tmp}, 14")
        g(f"s_add_u32 s{d}, s{d}, s{tmp}")
        g(f"s_and_b32 s{tmp}, s{rec}, 7")
        g(f"s_lshl_b32 s{tmp}, s{tmp}, 10")
        g(f"s_add_u32 s{d}, s{d}, s{tmp}")
    g(f"s_add_u32 s{d}, s{d}, {R3_WS}")

def r3par(g, d, c, mask, tmp):
    g(f"s_lshr_b32 s{tmp}, s{mask}, s{c}")
    g(f"s_and_b32 s{tmp}, s{tmp}, 1")
    g(f"s_lshl_b32 s{tmp}, s{tmp}, 13")
    g(f"s_add_u32 s{d}, s{d}, s{tmp}")

def flagwait4(g, lab, vbase, off, tmp, pre=None, n=0, sleep=0):
    g.label(lab)
    if sleep: g(f"s_sleep {sleep}")
    g(f"ds_read_b128 v[{tmp}:{tmp+3}], v{vbase} offset:{off}")
    if pre: pre()
    spin(g, lab + "ok", lds=True)
    g(f"s_waitcnt lgkmcnt({n})")
    g(f"v_and_b32 v{tmp}, v{tmp}, v{tmp+1}")
    g(f"v_and_b32 v{tmp+2}, v{tmp+2}, v{tmp+3}")
    g(f"v_and_b32 v{tmp}, v{tmp}, v{tmp+2}")
    g(f"v_cmp_eq_u32 vcc, 0, v{tmp}")
    g(f"s_cbranch_vccnz {lab}")
    g.label(lab + "ok")

def flagwait1(g, lab, vbase, off, tmp, sdst=None, sleep=1):
    g.label(lab)
    if sleep: g(f"s_sleep {sleep}")
    g(f"ds_read_b32 v{tmp}, v{vbase} offset:{off}")
    spin(g, lab + "ok", lds=True)
    g("s_waitcnt lgkmcnt(0)")
    g(f"v_cmp_eq_u32 vcc, 0, v{tmp}")
    g(f"s_cbranch_vccnz {lab}")
    g.label(lab + "ok")
    if sdst is not None: g(f"v_readfirstlane_b32 s{sdst}, v{tmp}")

F_LNA, F_XC, F_QP, F_H, F_OP, F_Q, F_LNB, F_P, F_K, F_K2, F_WO, F_V1, F_OS, F_NB, F_GI = 0, 16, 20, 24, 32, 48, 64, 80, 96, 112, 128, 144, 160, 28, 176
L_HP = L_OC + 2048

def gen(opt):
    g = G(opt)
    g.role = "-"
    HEV = opt.get("hev")
    if HEV:
        def st(k):
            if HEV == f"{g.role}{k}": g("s_memrealtime s[70:71]")
        g.stamp = st
    hcount = [0]
    def hevhold():
        if HEV and HEV[0] == g.role:
            hcount[0] += 1
            n = hcount[0]
            g(f"s_cmp_eq_u32 s2, {opt.get('holdwg', 9)}")
            g(f"s_cbranch_scc0 L_nh{n}")
            g.label(f"L_hh{n}")
            g("s_memrealtime s[72:73]")
            g("s_waitcnt lgkmcnt(0)")
            g("s_sub_u32 s72, s72, s70")
            g("s_cmp_lt_u32 s72, 1500")
            g(f"s_cbranch_scc1 L_hh{n}")
            g.label(f"L_nh{n}")
    NT = opt.get("nt", "nt")
    XF = opt.get("xflags", "")
    THR = opt.get("thr", 3)
    THR2 = opt.get("thr2", 4)
    THR3 = opt.get("thr3", 8)
    TOUCH = opt.get("touch", 1)
    PWF = opt.get("pwf", "")
    NEAR = opt.get("near", 1)
    G1.NWAVES = 10 if NEAR else 9
    g.stamp(0)
    if opt.get("hold"): g("s_memrealtime s[70:71]")
    g("s_cmp_ge_u32 s2, 256")
    g("s_cbranch_scc1 L_exit")
    g("s_load_dwordx16 s[8:23], s[0:1], 0")
    g("s_load_dwordx8 s[24:31], s[0:1], 64")
    g("s_load_dwordx2 s[32:33], s[0:1], 96")
    g("v_lshrrev_b32 v1, 6, v0")
    g("v_and_b32 v0, 63, v0")
    g("v_readfirstlane_b32 s3, v1")
    g("s_and_b32 s4, s2, 7")
    g("s_lshr_b32 s5, s2, 3")
    g(f"s_movk_i32 s{S_LO}, 0x3ff")
    g("s_movk_i32 s98, 0xfc00")
    g("s_cmp_lt_u32 s3, 4")
    g("s_cbranch_scc0 L_notln")
    g("v_lshlrev_b32 v12, 4, v0")
    g("s_lshl_b32 s39, s3, 10")
    WIDE = opt.get("wide", 0)
    tile_voff(g, 2, 3, 8192)
    if WIDE & 1:
        g("v_lshrrev_b32 v3, 4, v0")
        g("v_and_b32 v100, 15, v0")
        g("v_lshlrev_b32 v100, 4, v100")
        g("v_lshl_add_u32 v100, v3, 13, v100")
        g("s_lshr_b32 s7, s5, 2")
        g("s_lshl_b32 s38, s7, 19")
        g("s_lshl_b32 s56, s3, 17")
        g("s_add_u32 s38, s38, s56")
        g("s_lshl_b32 s56, s4, 10")
        g("s_add_u32 s38, s38, s56")
        g("s_and_b32 s56, s5, 3")
        g("s_lshl_b32 s56, s56, 8")
        g("s_add_u32 s38, s38, s56")
    else:
        g("s_lshr_b32 s7, s5, 3")
        g("s_lshl_b32 s38, s7, 20")
        g("s_lshl_b32 s56, s3, 18")
        g("s_add_u32 s38, s38, s56")
        g("s_lshl_b32 s56, s4, 10")
        g("s_add_u32 s38, s38, s56")
        g("s_and_b32 s56, s5, 7")
        g("s_lshl_b32 s56, s56, 7")
        g("s_add_u32 s38, s38, s56")
    g("s_lshl_b32 s56, s3, 12")
    g(f"s_mov_b32 s{SRD_C+2}, 4096")
    g(f"s_mov_b32 s{SRD_C+3}, 0x20000")
    g(f"s_mov_b32 s{SRD_A+2}, {hex(512*4096*2)}")
    g(f"s_mov_b32 s{SRD_A+3}, 0x20000")
    g("s_waitcnt lgkmcnt(0)")
    g(f"s_mov_b32 s{SRD_C}, s{P_X}")
    g(f"s_mov_b32 s{SRD_C+1}, s{P_X+1}")
    g(f"buffer_load_dwordx4 v[4:7], v12, s[{SRD_C}:{SRD_C+3}], s39 offen {XF}")
    g(f"s_mov_b32 s{SRD_A}, s{P_WQ}")
    g(f"s_mov_b32 s{SRD_A+1}, s{P_WQ+1}")
    if WIDE & 1: tile_dma(g, 4, 100, SRD_A, 38, (56, L_WQ), 4096, NT)
    else: tile_dma(g, 4, 2, SRD_A, 38, (56, L_WQ), 8192, NT)
    g("s_barrier")
    g("s_branch L_ln")
    g.label("L_notln")
    g("s_cmp_lt_u32 s3, 8")
    g("s_cbranch_scc1 L_kv")
    if NEAR:
        g("s_cmp_eq_u32 s3, 8")
        g("s_cbranch_scc1 L_w8i")
        g("s_waitcnt lgkmcnt(0)")
        g(f"s_load_dword s{S_E}, s[{P_WS}:{P_WS+1}], 0")
        g("s_barrier")
        g("s_branch L_w9")
        g.label("L_w8i")
    if opt.get("cpf", 1):
        g("s_getpc_b64 s[64:65]")
        g.label("L_pc")
        g("s_and_b32 s6, s5, 7")
        g(f"s_mul_i32 s6, s6, {24*64}")
        g(f"s_sub_u32 s6, s6, L_pc-{NAME}_kernel")
        g("s_ashr_i32 s7, s6, 31")
        g("s_add_u32 s64, s64, s6")
        g("s_addc_u32 s65, s65, s7")
        g("v_lshlrev_b32 v3, 6, v0")
        g("s_mov_b64 exec, 0xffffff")
        g("global_load_dword v125, v3, s[64:65]")
        g("s_mov_b64 exec, -1")
    g("v_lshlrev_b32 v3, 2, v0")
    g(f"v_add_u32 v3, {L_ML}, v3")
    g("v_cmp_gt_u32 vcc, 16, v0")
    g("s_nop 1")
    g("v_cndmask_b32 v4, 0, -1, vcc")
    g("ds_write_b32 v3, v4")
    g("v_mov_b32 v4, 0")
    g("s_mov_b64 exec, 0xffff")
    g("ds_write_b32 v3, v4 offset:256")
    g("s_mov_b64 exec, -1")
    g("s_waitcnt lgkmcnt(0)")
    g(f"s_load_dword s{S_E}, s[{P_WS}:{P_WS+1}], 0")
    g("s_barrier")
    g("s_branch L_w0")
    g.role = "a"
    g.label("L_kv")
    g("s_sub_u32 s3, s3, 4")
    if opt.get("lprio", 0): g(f"s_setprio {opt['lprio']}")
    g("v_lshrrev_b32 v8, 4, v0")
    g("v_and_b32 v9, 15, v0")
    g("v_xor_b32 v2, v9, v8")
    g("v_lshlrev_b32 v2, 4, v2")
    g("v_lshl_add_u32 v2, v8, 8, v2")
    for i in (1, 2, 3):
        g(f"v_xor_b32 v{2+i}, {64*i}, v2")
    g("s_lshr_b32 s6, s5, 3")
    g("s_and_b32 s7, s5, 7")
    g("s_lshl_b32 s38, s6, 3")
    g("s_add_u32 s38, s38, s4")
    g("s_lshl_b32 s38, s38, 20")
    g("s_lshl_b32 s56, s3, 10")
    g("s_add_u32 s38, s38, s56")
    g(f"s_add_u32 s38, s38, {768*1024}")
    g("s_lshl_b32 s56, s3, 13")
    g("s_lshl_b32 s64, s7, 12")
    g("s_mov_b32 s66, s38")
    g(f"s_mov_b32 s{SRD_A+2}, {hex(4*8*4096*128*2)}")
    g(f"s_mov_b32 s{SRD_A+3}, 0x20000")
    g("s_waitcnt lgkmcnt(0)")
    g(f"s_mov_b32 s{SRD_A}, s{P_K}")
    g(f"s_mov_b32 s{SRD_A+1}, s{P_K+1}")
    B0L = opt.get("b0l", 0)
    if not B0L:
        g(f"s_load_dword s{S_E}, s[{P_WS}:{P_WS+1}], 0")
        g("s_barrier")
    g.stamp(1)
    def kvld(i, isv, th):
        if i % 4 == 0: g(f"s_add_u32 m0, s56, {(L_V if isv else L_K) + i*1024}")
        g("s_add_u32 s39, s64, s66")
        g("s_add_u32 s64, s64, 4096")
        g("s_and_b32 s64, s64, 0x7000")
        g(f"s_add_u32 s66, s66, {32768 + (3072 if i % 4 == 3 else -1024)}")
        if th: g(f"s_waitcnt vmcnt({th-1})")
        vo = 6 + (i & 1) if isv else 2 + (i & 3)
        g(f"buffer_load_dwordx4 v{vo}, s[{SRD_A}:{SRD_A+3}], s39 offen offset:{(i&3)*1024} {NT} lds")
    for i in range(8):
        if B0L and i == THR:
            g(f"s_load_dword s{S_E}, s[{P_WS}:{P_WS+1}], 0")
            g("s_barrier")
        kvld(i, 0, THR if i >= THR else 0)
    g("s_branch L_att")
    g.role = "l"
    g.label("L_ln")
    ffn_ids(g)
    g(f"s_mov_b32 s{SRD_B+3}, 0x20000")
    g(f"s_mul_i32 s{SRD_B+2}, s69, {512*1792*2}")
    g("v_lshrrev_b32 v3, 3, v0")
    g(f"v_mul_u32_u24 v3, {8192-3584}, v3")
    g("v_sub_u32 v2, v2, v3")
    g("s_and_b32 s38, s5, 7")
    g("s_lshl_b32 s38, s38, 2")
    g("s_add_u32 s38, s38, s3")
    g(f"s_mul_i32 s38, s38, {16*3584}")
    g("s_lshl_b32 s39, s68, 7")
    g("s_add_u32 s38, s38, s39")
    g("s_lshl_b32 s56, s3, 11")
    g(f"s_mov_b32 s{SRD_B}, s{P_W1}")
    g(f"s_mov_b32 s{SRD_B+1}, s{P_W1+1}")
    tile_dma(g, 2, 2, SRD_B, 38, (56, L_W1), 3584, NT)
    g(f"s_load_dword s{S_E}, s[{P_WS}:{P_WS+1}], 0")
    g.srd(SRD_W, P_WS, WS_BYTES)
    g("v_lshrrev_b32 v2, 2, v0")
    g("v_lshlrev_b32 v2, 6, v2")
    g("v_and_b32 v3, 1, v0")
    g("v_lshl_add_u32 v2, v3, 5, v2")
    g("v_and_b32 v3, 2, v0")
    g("v_lshl_add_u32 v2, v3, 2, v2")
    g(f"s_mul_i32 s38, s3, {XN_STR}")
    g(f"s_add_u32 s38, s38, {L_XN}")
    g("v_add_u32 v2, s38, v2")
    g("s_lshl_b32 s38, s3, 2")
    g(f"s_add_u32 s38, s38, {L_FL}")
    g("v_mov_b32 v9, s38")
    g("v_mov_b32 v10, 1")
    g(f"v_mov_b32 v21, {hex(f2u(1.0/512))}")
    g("s_waitcnt vmcnt(6)")
    g.stamp(1)
    for i in range(4):
        g(f"v_lshlrev_b32 v{12+2*i}, 16, v{4+i}")
        g(f"v_and_b32 v{13+2*i}, 0xffff0000, v{4+i}")
    g("v_pk_add_f32 v[22:23], v[12:13], v[14:15]")
    g("v_pk_add_f32 v[24:25], v[16:17], v[18:19]")
    g("v_pk_add_f32 v[22:23], v[22:23], v[24:25]")
    g("v_add_f32 v20, v22, v23")
    wave_sum(g, 20, 38)
    g("s_nop 1")
    g("v_mul_f32 v20, s38, v21")
    for i in range(8):
        g(f"v_sub_f32 v{24+i}, v{12+i}, v20")
    g("v_mul_f32 v22, v24, v24")
    g("v_mul_f32 v23, v25, v25")
    for i in range(1, 4):
        g(f"v_fmac_f32 v22, v{24+2*i}, v{24+2*i}")
        g(f"v_fmac_f32 v23, v{25+2*i}, v{25+2*i}")
    g("v_add_f32 v22, v22, v23")
    wave_sum(g, 22, 38)
    rnd(g, 20, 20)
    g("v_mul_f32 v22, s38, v21")
    rnd(g, 22, 22)
    g(f"v_add_f32 v22, {hex(f2u(1e-5))}, v22")
    rnd(g, 22, 22)
    g("v_sqrt_f32 v22, v22")
    for i in range(8):
        g(f"v_sub_f32 v{12+i}, v{12+i}, v20")
    rnd(g, 22, 22)
    g("v_rcp_f32 v22, v22")
    for i in range(4):
        g(f"v_cvt_pk_bf16_f32 v{4+i}, v{12+2*i}, v{13+2*i}")
    for i in range(4):
        g(f"v_lshlrev_b32 v{12+2*i}, 16, v{4+i}")
        g(f"v_and_b32 v{13+2*i}, 0xffff0000, v{4+i}")
    for i in range(8):
        g(f"v_mul_f32 v{12+i}, v{12+i}, v22")
    for i in range(4):
        g(f"v_cvt_pk_bf16_f32 v{4+i}, v{12+2*i}, v{13+2*i}")
    g("ds_write2_b64 v2, v[4:5], v[6:7] offset0:0 offset1:2")
    g("s_waitcnt vmcnt(2)")
    g(f"ds_write_b32 v9, v10 offset:{F_LNA}")
    g.stamp(2)
    g("s_waitcnt lgkmcnt(0)")
    epoch(g, 11)
    g("s_branch L_ln_done")
    if NEAR:
        g.label("L_w9")
        g("s_lshr_b32 s60, s2, 4")
        g("s_lshl_b32 s60, s60, 3")
        g("s_add_u32 s60, s60, s4")
        g("s_lshl_b32 s60, s60, 6")
        g("s_and_b32 s61, s5, 1")
        g("s_lshl_b32 s61, s61, 13")
        g("s_sub_u32 s60, s60, s61")
        g(f"s_add_u32 s60, s60, {PR_WS + 8192}")
        g.srd(SRD_W, P_WS, WS_BYTES)
        if opt.get("vtl", 0):
            g("s_lshr_b32 s64, s5, 3")
            g("s_lshl_b32 s65, s64, 3")
            g("s_add_u32 s65, s65, s4")
            g("s_lshl_b32 s65, s65, 20")
            g(f"s_add_u32 s65, s65, {768*1024}")
            g("v_mov_b32 v4, s65")
            g("s_lshl_b32 s65, s4, 19")
            g("v_mov_b32 v5, s65")
            g("v_mov_b32 v6, 0")
            g("s_mov_b64 exec, 1")
            g(f"global_load_dword v8, v5, s[{P_WO}:{P_WO+1}] nt")
            g(f"global_load_dword v9, v4, s[{P_V}:{P_V+1}] nt")
            g(f"global_load_dword v10, v6, s[{P_W2}:{P_W2+1}] nt")
            g("s_mov_b64 exec, -1")
        g("s_waitcnt lgkmcnt(0)")
        g("s_memtime s[90:91]")
        g("s_waitcnt lgkmcnt(0)")
        g(f"s_load_dword s61, s[{P_WS}:{P_WS+1}], s60")
        g("s_waitcnt lgkmcnt(0)")
        g("s_memtime s[94:95]")
        g(f"s_add_u32 s62, s{S_E}, 1")
        g("s_and_b32 s62, s62, 0x1fffff")
        g("s_getreg_b32 s63, hwreg(HW_REG_XCC_ID, 0, 3)")
        g("s_lshl_b32 s63, s63, 21")
        g("s_or_b32 s62, s62, s63")
        g("s_lshl_b32 s63, s4, 5")
        g("s_add_u32 s63, s63, s5")
        g("s_lshl_b32 s63, s63, 2")
        g(f"s_add_u32 s63, s63, {PB_WS}")
        g("v_mov_b32 v21, 0")
        g("s_waitcnt lgkmcnt(0)")
        g("s_sub_u32 s94, s94, s90")
        g("s_lshr_b32 s94, s94, 4")
        g("s_min_u32 s94, s94, 160")
        g("s_max_u32 s94, s94, 48")
        g("s_lshl_b32 s94, s94, 24")
        g("s_or_b32 s94, s94, s62")
        g("v_mov_b32 v20, s94")
        g("s_mov_b64 exec, 1")
        g(f"buffer_store_dword v20, v21, {W}, s63 offen {SC}")
        if opt.get("stl", 1):
            g("s_lshr_b32 s60, s5, 3")
            g("s_lshl_b32 s60, s60, 3")
            g("s_add_u32 s60, s60, s4")
            g("s_lshl_b32 s60, s60, 20")
            g(f"s_add_u32 s60, s60, {768*1024}")
            g("s_lshl_b32 s61, s4, 19")
            g(f"s_load_dword s64, s[{P_WO}:{P_WO+1}], s61")
            g(f"s_load_dword s65, s[{P_V}:{P_V+1}], s60")
            g(f"s_load_dword s66, s[{P_W2}:{P_W2+1}], 0")
            g(f"s_load_dword s67, s[{P_OUT}:{P_OUT+1}], 0")
        if TOUCH:
            g("s_mov_b64 exec, 0")
            g("s_branch L_chain1")
            g.label("L_w3b")
        g("s_waitcnt lgkmcnt(0)")
        g("s_endpgm")
    g.role = "w"
    g.label("L_w0")
    g.srd(SRD_W, P_WS, WS_BYTES)
    g("s_getreg_b32 s57, hwreg(HW_REG_XCC_ID, 0, 3)")
    g("s_lshl_b32 s58, s4, 5")
    g("s_add_u32 s58, s58, s5")
    g("s_lshl_b32 s67, s58, 10")
    g(f"s_add_u32 s56, s67, {QA_WS}")
    g("v_lshlrev_b32 v1, 4, v0")
    if opt.get("prew", 1): g(f"buffer_load_dwordx4 v[124:127], v1, {W}, s56 offen {PWF}")
    g("s_waitcnt lgkmcnt(0)")
    epoch(g, 11)
    g(f"s_and_b32 s56, s{S_E1}, 0x1fffff")
    g("s_lshl_b32 s57, s57, 21")
    g("s_or_b32 s57, s57, s56")
    if TOUCH:
        g("s_mov_b64 exec, 0")
        g("s_branch L_chain0")
        g.label("L_w8b")
    g("s_mov_b64 exec, -1")
    g.srd(SRD_C, P_X, 4096)
    ffn_ids(g)
    g("s_lshr_b32 s6, s5, 3")
    g("s_and_b32 s7, s5, 7")
    tile_raddr(g, 4, 3)
    g("v_bfe_u32 v10, v0, 2, 2")
    g(f"v_mul_u32_u24 v8, {XN_STR}, v10")
    g("v_lshrrev_b32 v9, 4, v0")
    g("v_lshl_add_u32 v8, v9, 4, v8")
    g("s_lshl_b32 s39, s6, 8")
    g(f"s_add_u32 s39, s39, {L_XN}")
    g("v_add_u32 v8, s39, v8")
    g("v_lshlrev_b32 v10, 11, v10")
    g("v_lshl_add_u32 v10, v9, 6, v10")
    g("v_and_b32 v9, 3, v0")
    g("v_lshl_add_u32 v10, v9, 4, v10")
    selmasks(g, 9)
    g("s_lshl_b32 s38, s4, 15")
    g("s_lshl_b32 s39, s6, 13")
    g("s_add_u32 s38, s38, s39")
    g("s_lshl_b32 s39, s7, 8")
    g("s_add_u32 s38, s38, s39")
    g(f"s_add_u32 s38, s38, {QA_WS}")
    g(f"v_mov_b32 v2, {L_FL}")
    g("v_mov_b32 v9, 1")
    g("s_mov_b32 s63, 0")
    g.stamp(1)
    flagwait4(g, "L_lnw", 2, F_LNA, 12)
    g("s_setprio 3")
    for t in range(4):
        g(f"ds_read_b128 v[{12+4*t}:{15+4*t}], v8 offset:{64*t}")
        for u in range(4):
            r = 60 + 16*t + 4*u
            g(f"ds_read_b64_tr_b16 v[{r}:{r+1}], v{4+u} offset:{L_WQ - 65536 + t*4096}")
            g(f"ds_read_b64_tr_b16 v[{r+2}:{r+3}], v{4+u} offset:{L_WQ - 65536 + t*4096 + 2048}")
        if t >= 1:
            tt = t - 1
            g("s_waitcnt lgkmcnt(9)")
            for u in range(4):
                r = 60 + 16*tt + 4*u
                c = "0" if tt == 0 else f"v[{44+4*u}:{47+4*u}]"
                g(f"v_mfma_f32_16x16x32_bf16 v[{44+4*u}:{47+4*u}], v[{r}:{r+3}], v[{12+4*tt}:{15+4*tt}], {c}")
    for u in range(4):
        r = 60 + 48 + 4*u
        g(f"s_waitcnt lgkmcnt({6-2*u})")
        g(f"v_mfma_f32_16x16x32_bf16 v[{44+4*u}:{47+4*u}], v[{r}:{r+3}], v[24:27], v[{44+4*u}:{47+4*u}]")
    g("s_nop 3")
    select4(g, 28, 44, 11)
    g(f"buffer_store_dwordx4 v[28:31], v10, {W}, s38 offen")
    g(f"ds_write_b32 v2, v9 offset:{F_QP}")
    g.stamp(2)
    g("s_setprio 0")
    g("s_mov_b32 s97, 0")
    pw0 = len(g.L)
    if opt.get("pwu", 0):
        g("s_and_b32 s56, s5, 3")
        g("s_cmp_eq_u32 s56, 3")
        g("s_cbranch_scc1 L_pwd")
        g("s_lshr_b32 s56, s5, 2")
        g("s_sub_u32 s59, s5, s56")
        g("s_mul_i32 s56, s59, 3072")
        g("s_min_u32 s56, s56, 62464")
        g("s_lshl_b32 s60, s4, 16")
        g("s_add_u32 s56, s56, s60")
        g(f"s_add_u32 s56, s56, {O_WS}")
        for i in range(3):
            g(f"buffer_load_dwordx4 v[124:127], v1, {W}, s56 offen offset:{1024*i} {PWF}")
        g("s_lshr_b32 s60, s5, 3")
        g("s_sub_u32 s60, s68, s60")
        g("s_lshl_b32 s60, s60, 13")
        g("s_mul_i32 s56, s59, 1408")
        g("s_cmp_lt_u32 s4, 4")
        g("s_cselect_b32 s61, 31360, 0")
        g("s_cselect_b32 s62, 0, 23168")
        g("s_or_b32 s61, s61, s62")
        g("s_min_u32 s56, s56, s61")
        g("s_add_u32 s56, s56, s60")
        g(f"s_add_u32 s56, s56, {H_WS}")
        g(f"buffer_load_dwordx4 v[124:127], v1, {W}, s56 offen {PWF}")
        g("s_mov_b64 exec, 0xffffff")
        g(f"buffer_load_dwordx4 v[124:127], v1, {W}, s56 offen offset:1024 {PWF}")
        g("s_and_b32 s59, s59, 15")
        g("s_lshl_b32 s59, s59, 7")
        g("s_lshl_b32 s60, s4, 11")
        g("s_add_u32 s59, s59, s60")
        g(f"s_add_u32 s59, s59, {M_WS}")
        g("s_mov_b64 exec, 0xff")
        g(f"buffer_load_dwordx4 v[124:127], v1, {W}, s59 offen {PWF}")
        g("s_mov_b64 exec, -1")
        g.label("L_pwd")
    else:
        g("s_lshl_b32 s56, s67, 1")
        g(f"s_add_u32 s56, s56, {O_WS}")
        g(f"buffer_load_dwordx4 v[124:127], v1, {W}, s56 offen {PWF}")
        g(f"buffer_load_dwordx4 v[124:127], v1, {W}, s56 offen offset:1024 {PWF}")
        g("s_lshl_b32 s56, s68, 3")
        g("s_add_u32 s56, s56, s7")
        g("s_lshl_b32 s56, s56, 10")
        g(f"s_add_u32 s56, s56, {H_WS}")
        g("s_lshr_b32 s59, s67, 4")
        g(f"s_add_u32 s59, s59, {M_WS}")
        g("s_cmp_ge_u32 s5, 24" if opt.get("bal", 0) else "s_cmp_eq_u32 s69, 0")
        g("s_cselect_b32 s56, s59, s56")
        g(f"buffer_load_dwordx4 v[124:127], v1, {W}, s56 offen {PWF}")
        g("s_mov_b64 exec, 15")
        g(f"buffer_load_dwordx4 v[124:127], v1, {W}, s59 offen {PWF}")
        g("s_mov_b64 exec, -1")
    if not opt.get("prew", 1): del g.L[pw0:]
    g("v_lshrrev_b32 v12, 4, v0")
    g("v_bfe_u32 v13, v0, 2, 2")
    g("v_and_b32 v14, 3, v0")
    g("v_lshlrev_b32 v12, 6, v12")
    g("v_lshl_add_u32 v12, v13, 8, v12")
    g("v_lshl_add_u32 v12, v14, 4, v12")
    g(f"v_add_u32 v13, {L_HP}, v1")
    g("s_lshl_b32 s56, s68, 3")
    g("s_add_u32 s56, s56, s7")
    g("s_lshl_b32 s56, s56, 10")
    g(f"s_add_u32 s56, s56, {H_WS}")
    g("s_cmp_eq_u32 s69, 0")
    g("s_cbranch_scc1 L_nohp")
    flagwait1(g, "L_hw", 2, F_H, 14)
    g("ds_read_b128 v[32:35], v13")
    g("s_waitcnt lgkmcnt(0)")
    g(f"buffer_store_dwordx4 v[32:35], v12, {W}, s56 offen")
    g.label("L_nohp")
    flagwait1(g, "L_xg", 2, F_K2 if opt.get("xg", 2) == 1 else F_K, 14)
    g(f"s_mov_b32 s58, {PB_WS}")
    g("v_mov_b32 v24, s57")
    g("s_lshl_b32 s60, s4, 3")
    g("s_lshl_b64 s[60:61], 0xff, s60")
    g.label("L_xc")
    g(f"buffer_load_dwordx4 v[20:23], v1, {W}, s58 offen {SC}")
    spin(g, "L_xcok")
    g("s_waitcnt vmcnt(0)")
    g("v_bitop3_b32 v25, v20, v21, v24 bitop3:0x7e")
    g("v_bitop3_b32 v26, v22, v23, v24 bitop3:0x7e")
    g("v_or_b32 v25, v25, v26")
    g("v_lshlrev_b32 v26, 11, v25")
    g("v_cmp_ne_u32 vcc, 0, v26")
    g("s_and_b64 s[64:65], vcc, s[60:61]")
    g("s_cbranch_scc0 L_xcok")
    g("s_sleep 4")
    g("s_branch L_xc")
    g.label("L_xcok")
    g("v_lshlrev_b32 v26, 8, v25")
    g("v_cmp_ne_u32 s[64:65], 0, v26")
    g("s_and_b64 s[64:65], s[64:65], s[60:61]")
    g("s_cselect_b32 s59, 2, 1")
    if opt.get("force_remote"):
        g("s_mov_b32 s59, 2")
    g("s_cmp_eq_u32 s59, 1")
    g("s_cbranch_scc1 L_xcl")
    g(f"buffer_store_dwordx4 v[28:31], v10, {W}, s38 offen {SC}")
    g("s_cmp_eq_u32 s69, 0")
    g("s_cbranch_scc1 L_xcl")
    g(f"buffer_store_dwordx4 v[32:35], v12, {W}, s56 offen {SC}")
    g.label("L_xcl")
    g("v_mov_b32 v26, s59")
    g(f"ds_write_b32 v2, v26 offset:{F_XC}")
    g.stamp(3)
    g("s_mov_b32 s97, 0")
    g("s_cbranch_vccz L_pbok")
    g.label("L_pb")
    spin(g, "L_pbok")
    g("s_sleep 8")
    g(f"buffer_load_dwordx4 v[20:23], v1, {W}, s58 offen {SC}")
    g("s_waitcnt vmcnt(0)")
    g("v_bitop3_b32 v25, v20, v21, v24 bitop3:0x7e")
    g("v_bitop3_b32 v26, v22, v23, v24 bitop3:0x7e")
    g("v_or_b32 v25, v25, v26")
    g("v_lshlrev_b32 v26, 11, v25")
    g("v_cmp_ne_u32 vcc, 0, v26")
    g("s_cbranch_vccnz L_pb")
    g.label("L_pbok")
    for i in range(4):
        g(f"v_lshrrev_b32 v{20+i}, 24, v{20+i}")
    g("v_add_u32 v20, v20, v22")
    g("v_add_u32 v21, v21, v23")
    g("v_sub_u32 v20, v20, v21")
    for c in ("row_ror:8", "row_ror:4", "row_ror:2", "row_ror:1"):
        g("s_nop 1")
        g(f"v_add_u32_dpp v20, v20, v20 {c} {DPPM}")
    g("s_nop 1")
    g("v_add_u32_dpp v20, v20, v20 row_bcast:15 row_mask:0xa bank_mask:0xf")
    g("s_nop 0")
    g("v_readlane_b32 s60, v20, 31")
    g("v_readlane_b32 s61, v20, 63")
    g("s_nop 2")
    g("s_cmp_gt_i32 s60, s61")
    g("s_cselect_b32 s96, 0x10f, 0")
    g("s_cselect_b32 s61, 0, 0x1f0")
    g("s_or_b32 s96, s96, s61")
    if "fixnb" in opt: g(f"s_movk_i32 s96, {0x100 | opt['fixnb']}")
    if opt.get("stamps"): g("s_mov_b32 s99, s96")
    g("v_mov_b32 v20, s96")
    g(f"ds_write_b32 v2, v20 offset:{F_NB}")
    g("s_branch L_w8")
    g.role = "a"
    g.label("L_att")
    TRL = opt.get("trl", 2)
    LATE = opt.get("late", 0)
    def tile_dma_thr(n, voff, srd, ss, lb, stride, first=0, th=None):
        for i in range(first, n):
            if i == first: g(f"s_add_u32 m0, s{lb[0]}, {lb[1]}")
            if i: g(f"s_add_u32 s{ss}, s{ss}, {8*stride - 1024}")
            g(f"s_waitcnt vmcnt({((th or THR2) or 64)-1})")
            g(f"buffer_load_dwordx4 v{voff}, s[{srd}:{srd+3}], s{ss} offen offset:{i*1024} {NT} lds")
    g.srd(SRD_W, P_WS, WS_BYTES)
    g.srd(SRD_C, P_WO, 4096*512*2)
    tile_voff(g, 1, 10, 1024)
    g("s_lshl_b32 s60, s4, 2")
    g("s_add_u32 s60, s60, s6")
    g("s_lshl_b32 s60, s60, 17")
    g("s_lshl_b32 s61, s3, 15")
    g("s_add_u32 s60, s60, s61")
    XO, XF2 = (4, 2) if opt.get("perm", 1) else (0, 0)
    g(f"s_xor_b32 s62, s7, {XO}")
    g("s_lshl_b32 s62, s62, 7")
    g("s_add_u32 s93, s60, s62")
    g(f"s_xor_b32 s62, s62, {(XO ^ XF2) << 7}")
    if WIDE & 2:
        g("v_lshrrev_b32 v10, 4, v0")
        g("v_and_b32 v20, 15, v0")
        g("v_lshlrev_b32 v20, 4, v20")
        g("v_lshl_add_u32 v20, v10, 10, v20")
        g("s_lshl_b32 s60, s4, 3")
        g("s_lshr_b32 s61, s5, 2")
        g("s_add_u32 s60, s60, s61")
        g("s_lshl_b32 s60, s60, 16")
        g("s_lshl_b32 s61, s3, 14")
        g("s_add_u32 s60, s60, s61")
        g("s_and_b32 s61, s5, 3")
        g("s_lshl_b32 s61, s61, 8")
        g("s_add_u32 s93, s60, s61")
    g("s_lshl_b32 s65, s3, 12")
    QT = opt.get("qt", 6)
    if QT:
        g(f"v_mov_b32 v17, {L_FL}")
        g("s_lshl_b32 s60, s3, 2")
        g("v_add_u32 v18, s60, v17")
        g("v_mov_b32 v19, 1")
        g(f"s_waitcnt vmcnt({8-QT})")
        g(f"ds_write_b32 v18, v19 offset:{F_K2}")
    ld0 = len(g.L)
    if WIDE & 2: tile_dma_thr(4, 20, SRD_C, 93, (65, L_WO), 512)
    else: tile_dma_thr(4 - LATE, 1, SRD_C, 93, (65, L_WO), 1024)
    if opt.get("kf", 6) == 4:
        g("s_waitcnt vmcnt(4)")
        g(f"ds_write_b32 v18, v19 offset:{F_K}")
    tile_dma_thr(2 - TRL, 1, SRD_B, 68, (69, L_W2), 1024)
    if opt.get("kf", 6) == 6:
        g(f"s_waitcnt vmcnt({6 - TRL - LATE})")
        g(f"ds_write_b32 v18, v19 offset:{F_K}")
    g(f"s_mov_b32 s{SRD_A}, s{P_V}")
    g(f"s_mov_b32 s{SRD_A+1}, s{P_V+1}")
    g("s_mov_b32 s66, s38")
    g.stamp(4)
    PRE = opt.get("pre", 1)
    for i in range(8):
        kvld(i, 1, (THR2 if i < opt.get("t3i", 4) else THR3) or 64)
        if PRE and i == 5:
            g("s_waitcnt vmcnt(6)")
            g(f"ds_write_b32 v18, v19 offset:{F_WO}")
    if TRL: tile_dma_thr(2, 1, SRD_B, 68, (69, L_W2), 1024, first=2 - TRL, th=THR3 if opt.get("trt", 1) else None)
    loads = g.L[ld0:]; del g.L[ld0:]
    g("s_mov_b32 s60, s7")
    ffn_ids2(g, opt.get("bal", 0))
    g("s_mov_b32 s7, s60")
    g(f"s_mov_b32 s{SRD_B}, s{P_W2}")
    g(f"s_mov_b32 s{SRD_B+1}, s{P_W2+1}")
    g(f"s_mul_i32 s{SRD_B+2}, s69, {1792*512*2}")
    g(f"s_mov_b32 s{SRD_B+3}, 0x20000")
    g("s_lshl_b32 s68, s68, 2")
    g("s_add_u32 s68, s68, s3")
    g("s_lshl_b32 s68, s68, 14")
    g("s_add_u32 s68, s68, s62")
    g("s_lshl_b32 s69, s3, 11")
    g("v_lshlrev_b32 v6, 1, v8")
    g("v_xor_b32 v6, v9, v6")
    g("v_lshlrev_b32 v6, 4, v6")
    g("v_lshl_add_u32 v6, v8, 8, v6")
    g("v_xor_b32 v7, 128, v6")
    g(f"v_mov_b32 v17, {L_FL}")
    g("s_lshl_b32 s60, s3, 2")
    g("v_add_u32 v18, s60, v17")
    g("v_mov_b32 v19, 1")
    nfirst = len(g.L) - ld0
    g("v_lshrrev_b32 v25, 2, v0")
    g("v_and_b32 v26, 7, v25")
    g("v_lshlrev_b32 v26, 5, v26")
    g("v_lshl_add_u32 v26, v25, 8, v26")
    g("v_and_b32 v14, 3, v0")
    g("v_lshl_add_u32 v14, v14, 3, v26")
    g("s_lshl_b32 s60, s3, 6")
    g("v_xor_b32 v14, s60, v14")
    g("v_xor_b32 v15, 32, v14")
    g("v_bfe_u32 v25, v0, 2, 2")
    g("v_lshlrev_b32 v28, 6, v25")
    g("v_lshl_add_u32 v28, v8, 4, v28")
    g(f"v_add_u32 v28, {L_OC}, v28")
    g("v_lshlrev_b32 v30, 14, v25")
    g("v_lshl_add_u32 v30, v8, 5, v30")
    g("v_and_b32 v16, 1, v0")
    g("v_lshl_add_u32 v30, v16, 4, v30")
    g("s_lshl_b32 s61, s4, 5")
    g("s_add_u32 s61, s61, s7")
    g("s_lshl_b32 s61, s61, 2")
    g("s_add_u32 s61, s61, s6")
    g("s_lshl_b32 s61, s61, 2")
    g("s_add_u32 s61, s61, s3")
    g("s_lshl_b32 s61, s61, 7")
    g(f"s_add_u32 s61, s61, {O_WS}")
    for r in range(80, 112):
        g(f"v_mov_b32 v{r}, 0")
    g("s_mov_b32 s63, 0"); g("s_mov_b32 s97, 0")
    g("s_waitcnt lgkmcnt(0)")
    epoch(g, 31)
    setup = g.L[ld0:]; del g.L[ld0:]
    per = -(-nfirst // min(3, 4 - LATE))
    for x in loads:
        g.L.append(x)
        if "buffer_load" in x:
            g.L.extend(setup[:per]); setup = setup[per:]
    assert not setup
    if opt.get("dend"): g("s_waitcnt vmcnt(0)")
    g.stamp(3)
    flagwait4(g, "L_px", 17, F_P, 36, pre=lambda: g(f"ds_read_b32 v46, v17 offset:{F_XC}"), sleep=0)
    g("s_mov_b32 exec_lo, 0x55555555")
    g("s_mov_b32 exec_hi, 0x55555555")
    for t in range(4):
        g(f"ds_read_b128 v[{80+4*t}:{83+4*t}], v28 offset:{256*t}")
    g("s_not_b64 exec, exec")
    for t in range(4):
        g(f"ds_read_b128 v[{96+4*t}:{99+4*t}], v28 offset:{256*t}")
    g("s_mov_b64 exec, -1")
    g("v_readfirstlane_b32 s59, v46")
    g.stamp(2)
    def vrd(half):
        for t in range(4):
            for p in range(2):
                r = 48 + 8*t + 4*p + 2*half
                g(f"ds_read_b64_tr_b16 v[{r}:{r+1}], v{14+p} offset:{L_V + t*8192 + 4096*half}")
    if PRE:
        g(f"s_waitcnt vmcnt({TRL+4})")
        g(f"ds_write_b32 v18, v19 offset:{F_V1}")
        flagwait4(g, "L_v1", 17, F_V1, 36)
        vrd(0)
    g(f"s_waitcnt vmcnt({TRL}) lgkmcnt(0)")
    g.stamp(5)
    g("s_cmp_eq_u32 s59, 1")
    if opt.get("prio", 1): g("s_setprio 3")
    g("s_barrier")
    g.stamp(7)
    if not PRE: vrd(0)
    vrd(1)
    for t in range(4):
        for p in range(2):
            r = 48 + 8*t + 4*p
            k = 2*t + p
            g(f"s_waitcnt lgkmcnt({7-k})")
            g(f"v_mfma_f32_16x16x32_bf16 v[36:39], v[{r}:{r+3}], v[{80+16*p+4*t}:{83+16*p+4*t}], {'0' if k == 0 else 'v[36:39]'}")
    g("s_mov_b32 exec_lo, 0x33333333")
    g("s_mov_b32 exec_hi, 0x33333333")
    g("s_nop 4")
    g("s_cbranch_scc0 L_opub_rem")
    for rem in (0, 1):
        if rem: g.label("L_opub_rem")
        for r in range(4):
            g(f"v_bfi_b32 v{36+r}, s{S_LO}, v31, v{36+r}")
        g(f"buffer_store_dwordx4 v[36:39], v30, {W}, s61 offen {SC if rem else ''}")
        g(f"ds_write_b32 v18, v19 offset:{F_OS}")
        if LATE:
            g("s_mov_b64 exec, -1")
            if opt.get("gi", 1): flagwait4(g, f"L_gi{rem}", 17, F_GI, 40)
            tile_dma_thr(4, 1, SRD_C, 93, (65, L_WO), 1024, first=4 - LATE, th=64)
        if TRL:
            g(f"s_waitcnt vmcnt({1 + LATE})")
            g(f"ds_write_b32 v18, v19 offset:{F_OP}")
        if LATE: g("s_waitcnt vmcnt(0)")
        g.stamp(8)
        if opt.get("stamps"):
            g("s_add_u32 s3, s3, 4")
            g("s_branch L_end")
        else:
            hevhold()
            g("s_endpgm")
    g.role = "l"
    g.label("L_ln_done")
    if TOUCH and not NEAR:
        g("s_cmp_eq_u32 s3, 3")
        g("s_cbranch_scc0 L_w3b")
        g("s_mov_b64 exec, 0")
        g("s_branch L_chain1")
        g.label("L_w3b")
        g("s_mov_b64 exec, -1")
    tile_raddr(g, 4, 3)
    g(f"v_mov_b32 v17, {L_FL}")
    g("s_mov_b32 s63, 0")
    g("s_waitcnt vmcnt(0)")
    g(f"ds_write_b32 v9, v10 offset:{F_LNB}")
    g("s_cmp_eq_u32 s3, 1")
    g("s_cbranch_scc0 L_qk")
    g("s_cmp_eq_u32 s69, 0")
    g("s_cbranch_scc1 L_qk")
    g("s_and_b32 s6, s5, 7")
    g("v_and_b32 v15, 3, v0")
    selmasks(g, 15)
    g("v_lshrrev_b32 v13, 4, v0")
    g("v_bfe_u32 v16, v0, 2, 2")
    g(f"v_mul_u32_u24 v14, {XN_STR}, v16")
    g("v_lshl_add_u32 v14, v13, 4, v14")
    g("s_lshl_b32 s39, s6, 7")
    g(f"s_add_u32 s39, s39, {L_XN}")
    g("v_add_u32 v14, s39, v14")
    g("v_lshlrev_b32 v13, 4, v0")
    g(f"v_add_u32 v13, {L_HP}, v13")
    flagwait4(g, "L_w1w", 17, F_LNB, 20, sleep=1)
    g("ds_read_b128 v[80:83], v14")
    g("ds_read_b128 v[84:87], v14 offset:64")
    for t in range(2):
        for u in range(4):
            r = 24 + 16*t + 4*u
            g(f"ds_read_b64_tr_b16 v[{r}:{r+1}], v{4+u} offset:{L_W1 - 65536 + t*4096}")
            g(f"ds_read_b64_tr_b16 v[{r+2}:{r+3}], v{4+u} offset:{L_W1 - 65536 + t*4096 + 2048}")
    for t in range(2):
        for u in range(4):
            r = 24 + 16*t + 4*u
            g(f"s_waitcnt lgkmcnt({14 - 8*t - 2*u})")
            c = "0" if t == 0 else f"v[{64+4*u}:{67+4*u}]"
            g(f"v_mfma_f32_16x16x32_bf16 v[{64+4*u}:{67+4*u}], v[{r}:{r+3}], v[{80+4*t}:{83+4*t}], {c}")
    g("s_nop 3")
    select4(g, 56, 64, 11)
    g("ds_write_b128 v13, v[56:59]")
    g(f"ds_write_b32 v17, v10 offset:{F_H}")
    g.stamp(1)
    g.label("L_qk")
    g("s_lshr_b32 s6, s5, 3")
    g("s_and_b32 s7, s5, 7")
    g("v_lshrrev_b32 v8, 4, v0")
    g("v_and_b32 v12, 15, v0")
    g("v_xor_b32 v20, v8, v12")
    g("v_lshlrev_b32 v20, 4, v20")
    g("v_lshl_add_u32 v20, v12, 8, v20")
    g("s_lshl_b32 s39, s3, 13")
    g("v_add_u32 v20, s39, v20")
    for t in (1, 2, 3):
        g(f"v_xor_b32 v{20+t}, {64*t}, v20")
    g("v_lshrrev_b32 v13, 5, v0")
    g("v_and_b32 v14, 31, v0")
    g("v_lshlrev_b32 v24, 14, v13")
    g("v_lshl_add_u32 v24, v14, 4, v24")
    g("s_lshl_b32 s58, s4, 15")
    g("s_lshl_b32 s59, s6, 11")
    g("s_add_u32 s58, s58, s59")
    g("s_lshl_b32 s59, s3, 9")
    g("s_add_u32 s65, s58, s59")
    g(f"s_add_u32 s65, s65, {QA_WS}")
    g("v_lshlrev_b32 v25, 2, v13")
    g("v_and_b32 v15, 16, v0")
    g("v_lshl_add_u32 v25, v15, 3, v25")
    g("v_and_b32 v15, 12, v0")
    g("v_lshl_add_u32 v25, v15, 1, v25")
    g("v_and_b32 v15, 3, v0")
    g("v_lshl_add_u32 v25, v15, 5, v25")
    g(f"s_mul_i32 s39, s3, {QL_STR}")
    g(f"s_add_u32 s38, s39, {L_QL}")
    g("v_add_u32 v25, s38, v25")
    g("v_bfe_u32 v16, v0, 2, 2")
    g(f"v_mul_u32_u24 v26, {QL_STR}, v16")
    g("v_lshl_add_u32 v26, v8, 4, v26")
    g(f"v_add_u32 v26, {L_QL}, v26")
    g("v_lshlrev_b32 v29, 4, v16")
    g(f"v_add_u32 v29, {L_ML}, v29")
    g("s_lshl_b32 s38, s3, 2")
    g("v_add_u32 v27, s38, v29")
    g("v_lshlrev_b32 v28, 6, v16")
    g("v_lshl_add_u32 v28, v8, 4, v28")
    g("s_lshl_b32 s38, s3, 8")
    g(f"s_add_u32 s38, s38, {L_OC}")
    g("v_add_u32 v28, s38, v28")
    g("v_lshlrev_b32 v30, 9, v16")
    g("s_lshl_b32 s67, s4, 7")
    g("s_add_u32 s67, s67, s5")
    g("s_lshl_b32 s67, s67, 4")
    g(f"s_add_u32 s67, s67, {M_WS}")
    for r in range(4):
        g(f"v_mov_b32 v{32+r}, 0x3f803f80")
    g(f"s_mov_b32 s66, {hex(f2u(1.4426950408889634))}")
    g(f"s_mov_b32 s38, {hex(f2u(128 ** -0.5))}")
    g("v_mov_b32 v108, s38")
    g("v_mov_b32 v109, s38")
    g("s_mov_b32 s57, 0x11111111")
    g("s_lshl_b32 s56, s4, 2")
    g("s_add_u32 s56, s56, s6")
    g("v_lshlrev_b32 v103, 13, v13")
    g("v_lshl_add_u32 v103, v14, 4, v103")
    g("s_lshl_b32 s61, s56, 14")
    g("s_add_u32 s61, s61, s59")
    g(f"s_add_u32 s61, s61, {O_WS}")
    g("s_add_u32 s64, s61, 4096")
    g("v_lshl_add_u32 v104, v13, 2, v15")
    g("v_lshlrev_b32 v104, 4, v104")
    g("s_lshl_b32 s60, s56, 2")
    g("s_add_u32 s60, s60, s3")
    g("s_lshl_b32 s60, s60, 7")
    g(f"s_add_u32 s60, s60, {M_WS}")
    g("v_lshlrev_b32 v102, 2, v13")
    g("v_lshl_add_u32 v102, v14, 3, v102")
    g(f"s_add_u32 s39, s39, {L_OL}")
    g("v_add_u32 v102, s39, v102")
    g(f"v_mul_u32_u24 v101, {QL_STR}, v15")
    g("v_lshl_add_u32 v101, v8, 4, v101")
    g(f"v_add_u32 v101, {L_OL}, v101")
    g("s_lshl_b32 s39, s3, 5")
    g("v_xor_b32 v107, s39, v4")
    g("v_lshlrev_b32 v105, 4, v0")
    widetags(g, 110)
    g(f"s_xor_b32 s92, s7, {XO}")
    r3addr(g, 62, 92, 56, 39)
    g("s_lshl_b32 s39, s3, 8")
    g("s_add_u32 s62, s62, s39")
    g.stamp(3)
    flagwait1(g, "L_qw", 17, F_QP, 12)
    flagwait1(g, "L_kw", 9, F_K2 if opt.get("qt", 6) else F_K, 12)
    if opt.get("dq", 0): g(f"s_sleep {opt.get('dq', 0)}")
    g("s_mov_b32 s97, 0")
    g("s_mov_b32 s58, s65")
    g("s_add_u32 s59, s58, 8192")
    if opt.get("nog", 0) & 1:
        for r in range(36, 44): g(f"v_mov_b32 v{r}, v11")
    else:
        g(f"buffer_load_dwordx4 v[36:39], v24, {W}, s58 offen {SC}")
        g(f"buffer_load_dwordx4 v[40:43], v24, {W}, s59 offen {SC}")
    if opt.get("qt", 6): flagwait1(g, "L_kv2", 9, F_K, 12)
    for tau in range(2):
        for t in range(4):
            r = 48 + 16*tau + 4*t
            g(f"ds_read_b128 v[{r}:{r+3}], v{20+t} offset:{4096*tau}")
    g.label("L_qc")
    g("s_waitcnt vmcnt(0)")
    tagcheck(g, list(range(36, 44)), 11, [44, 45, 46, 47])
    g("s_cbranch_vccz L_qok")
    spin(g, "L_qok")
    g(f"buffer_load_dwordx4 v[36:39], v24, {W}, s58 offen {SC}")
    g(f"buffer_load_dwordx4 v[40:43], v24, {W}, s59 offen {SC}")
    g("s_branch L_qc")
    g.label("L_qok")
    g.stamp(4)
    if opt.get("stamps"): g("s_min_u32 s96, s97, 0xff")
    untag(g, range(36, 44))
    g("v_pk_add_f32 v[36:37], v[36:37], v[40:41]")
    g("v_pk_add_f32 v[38:39], v[38:39], v[42:43]")
    g("s_nop 1")
    g("v_permlane32_swap_b32 v36, v38")
    g("v_permlane32_swap_b32 v37, v39")
    g("v_pk_add_f32 v[36:37], v[36:37], v[38:39]")
    g("v_cvt_pk_bf16_f32 v36, v36, v37")
    g("ds_write_b32 v25, v36")
    g(f"ds_write_b32 v9, v10 offset:{F_Q}")
    def qrd():
        for t in range(4):
            g(f"ds_read_b128 v[{80+4*t}:{83+4*t}], v26 offset:{64*t}")
    flagwait4(g, "L_qx", 17, F_Q, 36, pre=qrd, n=4)
    for t in range(4):
        g(f"s_waitcnt lgkmcnt({3-t})")
        for tau in range(2):
            r = 48 + 16*tau + 4*t
            c = "0" if t == 0 else f"v[{36+4*tau}:{39+4*tau}]"
            g(f"v_mfma_f32_16x16x32_bf16 v[{36+4*tau}:{39+4*tau}], v[{r}:{r+3}], v[{80+4*t}:{83+4*t}], {c}")
    g("s_nop 6")
    def rnd8():
        for i in range(4):
            g(f"v_cvt_pk_bf16_f32 v{48+i}, v{36+2*i}, v{37+2*i}")
        for i in range(4):
            g(f"v_lshlrev_b32 v{36+2*i}, 16, v{48+i}")
            g(f"v_and_b32 v{37+2*i}, 0xffff0000, v{48+i}")
    rnd8()
    for i in range(4):
        g(f"v_pk_mul_f32 v[{36+2*i}:{37+2*i}], v[{36+2*i}:{37+2*i}], v[108:109]")
    rnd8()
    g("v_max3_f32 v44, v36, v37, v38")
    g("v_max3_f32 v45, v39, v40, v41")
    g("v_max3_f32 v44, v44, v42, v43")
    g("v_max_f32 v44, v44, v45")
    g("v_mov_b32 v45, v44")
    g("s_nop 1")
    g("v_permlane32_swap_b32 v44, v45")
    g("v_max_f32 v44, v44, v45")
    g("v_mov_b32 v45, v44")
    g("s_nop 1")
    g("v_permlane16_swap_b32 v44, v45")
    g("v_max_f32 v44, v44, v45")
    g("v_mul_f32 v44, s66, v44")
    g("s_mov_b64 exec, 0x1111")
    g("ds_write_b32 v27, v44")
    g("s_mov_b64 exec, -1")
    g.label("L_mx")
    g("ds_read_b128 v[48:51], v29")
    spin(g, "L_mxok", lds=True)
    g("s_waitcnt lgkmcnt(0)")
    g("v_max_u32 v45, v48, v49")
    g("v_max3_u32 v45, v45, v50, v51")
    g("v_cmp_eq_u32 vcc, -1, v45")
    g("s_cbranch_vccnz L_mx")
    g.label("L_mxok")
    g("v_max3_f32 v44, v48, v49, v50")
    g("v_max_f32 v44, v44, v51")
    g("v_and_b32 v44, s98, v44")
    for i in range(8):
        g(f"v_fma_f32 v{36+i}, v{36+i}, s66, -v44")
    for i in range(8):
        g(f"v_exp_f32 v{36+i}, v{36+i}")
    for i in range(4):
        g(f"v_cvt_pk_bf16_f32 v{36+i}, v{36+2*i}, v{37+2*i}")
    g("s_nop 1")
    g("v_mfma_f32_16x16x32_bf16 v[40:43], v[32:35], v[36:39], 0")
    g("s_mov_b32 exec_lo, s57")
    g("s_mov_b32 exec_hi, s57")
    g("ds_write_b128 v28, v[36:39]")
    g("s_mov_b64 exec, 0x1111")
    g("s_nop 3")
    g("ds_write_b32 v27, v40 offset:64")
    g("s_mov_b64 exec, -1")
    flagwait1(g, "L_xw", 17, F_XC, 12, sdst=56, sleep=0)
    g(f"ds_write_b32 v9, v10 offset:{F_P}")
    g.stamp(2)
    g("s_cmp_eq_u32 s3, 0")
    g("s_cbranch_scc0 L_wo_b3")
    flagwait4(g, "L_lx", 17, F_P, 36, pre=lambda: g("ds_read_b128 v[40:43], v29 offset:64"), n=0)
    g("v_pk_add_f32 v[40:41], v[40:41], v[42:43]")
    g("v_mov_b32 v46, v11")
    g("v_mov_b32 v47, v11")
    g("v_or_b32 v44, v44, v11")
    g("v_add_f32 v45, v40, v41")
    g("s_mov_b64 exec, 0x1111")
    g(f"v_bfi_b32 v45, s{S_LO}, v11, v45")
    g("s_cmp_eq_u32 s56, 1")
    g("s_cbranch_scc0 L_mlr")
    g(f"buffer_store_dwordx4 v[44:47], v30, {W}, s67 offen")
    g("s_branch L_ml1")
    g.label("L_mlr")
    g(f"buffer_store_dwordx4 v[44:47], v30, {W}, s67 offen {SC}")
    g.label("L_ml1")
    g("s_mov_b64 exec, -1")
    g.label("L_wo_b3")
    g(f"v_mov_b32 v106, {L_FL}")
    def word(halves=(0,) if LATE else (0, 1)):
        for t in range(4):
            for hf in halves:
                g(f"ds_read_b64_tr_b16 v[{16+4*t+2*hf}:{17+4*t+2*hf}], v107 offset:{L_WO - 65536 + t*4096 + 2048*hf}")
    if opt.get("pre", 1):
        flagwait4(g, "L_wow", 106, F_WO, 36, sleep=1)
        word()
    pass
    g("s_waitcnt lgkmcnt(0)")
    g("s_barrier")
    def oml():
        g(f"buffer_load_dwordx4 v[32:35], v104, {W}, s60 offen {SC}")
    def opl():
        g(f"buffer_load_dwordx4 v[40:43], v103, {W}, s61 offen {SC}")
        g(f"buffer_load_dwordx4 v[44:47], v103, {W}, s61 offen offset:2048 {SC}")
        g(f"buffer_load_dwordx4 v[48:51], v103, {W}, s64 offen {SC}")
        g(f"buffer_load_dwordx4 v[52:55], v103, {W}, s64 offen offset:2048 {SC}")
    oml()
    if not opt.get("pre", 1): word()
    flagwait4(g, "L_wt", 106, F_OS, 36, pre=(lambda: g(f"ds_read_b32 v60, v106 offset:{F_NB}")) if NEAR else None)
    if opt.get("prio", 1): g("s_setprio 2")
    g("s_mov_b32 s97, 0")
    g.stamp(6)
    opl()
    if LATE: g(f"ds_write_b32 v9, v10 offset:{F_GI}")
    if NEAR:
        g("v_readfirstlane_b32 s38, v60")
        g("s_nop 2")
        r3par(g, 62, 92, 38, 39)
    g("s_waitcnt vmcnt(4)")
    tagcheck(g, [32, 33, 34, 35], 11, [56, 57])
    g("s_cbranch_vccz L_o2")
    g.label("L_o")
    oml()
    spin(g, "L_o2")
    g("s_waitcnt vmcnt(0)")
    tagcheck(g, [32, 33, 34, 35], 11, [56, 57])
    g("s_cbranch_vccnz L_o")
    g.label("L_o2")
    g.stamp(5)
    untag(g, (32, 33))
    g("s_nop 0")
    g(f"v_max_f32_dpp v56, v32, v32 quad_perm:[1,0,3,2] {DPPM}")
    g("s_nop 1")
    g(f"v_max_f32_dpp v56, v56, v56 quad_perm:[2,3,0,1] {DPPM}")
    g("v_mov_b32 v57, v56")
    g("s_nop 1")
    g("v_permlane32_swap_b32 v56, v57")
    g("v_max_f32 v56, v56, v57")
    g("v_sub_f32 v32, v32, v56")
    g("v_exp_f32 v32, v32")
    g("s_nop 0")
    g("v_mul_f32 v57, v32, v33")
    g("s_nop 1")
    g(f"v_add_f32_dpp v57, v57, v57 quad_perm:[1,0,3,2] {DPPM}")
    g("s_nop 1")
    g(f"v_add_f32_dpp v57, v57, v57 quad_perm:[2,3,0,1] {DPPM}")
    g("v_mov_b32 v58, v57")
    g("s_nop 1")
    g("v_permlane32_swap_b32 v57, v58")
    g("v_add_f32 v57, v57, v58")
    g("v_rcp_f32 v57, v57")
    g("s_nop 0")
    g("v_mul_f32 v32, v32, v57")
    g("s_nop 1")
    for i in range(4):
        g(f"v_mov_b32_dpp v{64+2*i}, v32 quad_perm:[{i},{i},{i},{i}] {DPPM}")
    for i in range(4):
        g(f"v_mov_b32 v{65+2*i}, v{64+2*i}")
    g("s_mov_b32 s97, 0")
    g.label("L_o4")
    g("s_waitcnt vmcnt(0)")
    xorcheck(g, range(40, 56), 11, [56, 57, 58, 59, 36, 37, 38, 39])
    g("s_cbranch_vccnz L_o3")
    g("s_mov_b64 exec, -1")
    g.label("L_ook")
    g.stamp(7)
    g("v_pk_mul_f32 v[36:37], v[64:65], v[40:41]")
    g("v_pk_mul_f32 v[38:39], v[64:65], v[42:43]")
    for i in range(1, 4):
        g(f"v_pk_fma_f32 v[36:37], v[{64+2*i}:{65+2*i}], v[{40+4*i}:{41+4*i}], v[36:37]")
        g(f"v_pk_fma_f32 v[38:39], v[{64+2*i}:{65+2*i}], v[{42+4*i}:{43+4*i}], v[38:39]")
    g("s_nop 1")
    g("v_permlane32_swap_b32 v36, v38")
    g("v_permlane32_swap_b32 v37, v39")
    g("v_pk_add_f32 v[36:37], v[36:37], v[38:39]")
    g("v_cvt_pk_bf16_f32 v36, v36, v37")
    g("ds_write_b32 v102, v36")
    g("s_waitcnt lgkmcnt(0)")
    g("s_barrier")
    for t in range(4):
        g(f"ds_read_b128 v[{40+4*t}:{43+4*t}], v101 offset:{64*t}")
        if LATE: g(f"ds_read_b64_tr_b16 v[{18+4*t}:{19+4*t}], v107 offset:{L_WO - 65536 + t*4096 + 2048}")
    for t in range(4):
        g(f"s_waitcnt lgkmcnt({(3-t)*(2 if LATE else 1)})")
        c = "0" if t == 0 else "v[32:35]"
        g(f"v_mfma_f32_16x16x32_bf16 v[32:35], v[{40+4*t}:{43+4*t}], v[{16+4*t}:{19+4*t}], {c}")
    g("s_mov_b64 exec, 0xffff")
    g("s_nop 6")
    for u in range(4):
        g(f"v_bfi_b32 v{32+u}, s{S_LO}, v{(11, 110, 111, 11)[u]}, v{32+u}")
    g(f"buffer_store_dwordx4 v[32:35], v105, {W}, s62 offen {opt.get('fs', SC).replace('+', ' ')}")
    g.stamp(8)
    if opt.get("stamps"):
        g("s_lshl_b32 s96, s96, 16")
        g("s_min_u32 s97, s97, 255")
        g("s_or_b32 s97, s97, s96")
    hevhold()
    g("s_branch L_end" if opt.get("stamps") else "s_endpgm")
    g.label("L_o3")
    g("s_add_u32 s97, s97, 1")
    g(f"s_cmp_gt_u32 s97, {SPIN_MAX}")
    g("s_cbranch_scc1 L_ook")
    g("s_mov_b64 exec, vcc")
    if opt.get("so", 0): g(f"s_sleep {opt['so']}")
    opl()
    g("s_branch L_o4")
    g.role = "w"
    g.label("L_w8")
    ffn_ids2(g, opt.get("bal", 0))
    g.srd(SRD_B, P_B1, 1792*2)
    g("s_and_b32 s6, s5, 7")
    g("v_lshrrev_b32 v12, 4, v0")
    g("v_and_b32 v13, 3, v0")
    g("v_bfe_u32 v14, v0, 2, 2")
    selmasks(g, 12)
    g("v_lshlrev_b32 v8, 5, v13")
    g("v_lshl_add_u32 v8, v14, 3, v8")
    g("s_lshl_b32 s57, s68, 7")
    g(f"v_mul_u32_u24 v9, {HL_STR}, v12")
    g("v_lshl_add_u32 v9, v14, 4, v9")
    g("v_and_b32 v14, 2, v0")
    g("v_lshl_add_u32 v9, v14, 5, v9")
    g("v_cmp_ne_u32 s[60:61], 0, v14")
    g("v_and_b32 v15, 1, v0")
    g("v_lshl_add_u32 v9, v15, 3, v9")
    g(f"v_add_u32 v9, {L_HL}, v9")
    g(f"v_mul_u32_u24 v19, {HL_STR}, v13")
    g("v_lshl_add_u32 v19, v12, 4, v19")
    g(f"v_add_u32 v19, {L_HL}, v19")
    g("s_lshl_b32 s58, s68, 13")
    g(f"s_add_u32 s58, s58, {H_WS}")
    g("s_add_u32 s59, s58, 4096")
    g("v_lshlrev_b32 v10, 4, v0")
    g(f"s_add_u32 s39, s4, {28 if opt.get('bal', 0) else 24}")
    g("s_cmp_eq_u32 s69, 0")
    g("s_cselect_b32 s39, s39, s68")
    g("s_add_u32 s64, s39, 32")
    g(f"s_xor_b32 s67, s6, {XF2}")
    r3addr(g, 62, 67, 64, 39)
    g("v_lshrrev_b32 v3, 4, v0")
    g("v_lshlrev_b32 v3, 14, v3")
    g("v_bfe_u32 v1, v0, 1, 3")
    g("v_lshl_add_u32 v3, v1, 10, v3")
    g("v_lshl_add_u32 v3, v15, 4, v3")
    r3addr(g, 64, 4, None, 39)
    g("s_lshl_b32 s39, s5, 5")
    g("s_add_u32 s64, s64, s39")
    g("v_and_b32 v16, 1, v12")
    g("v_add_u32 v16, v16, v14")
    g("v_lshlrev_b32 v1, 1, v15")
    g("v_lshl_add_u32 v16, v16, 10, v1")
    g("s_lshl_b32 s66, s4, 7")
    g("s_lshl_b32 s39, s5, 2")
    g("s_add_u32 s66, s66, s39")
    g(f"buffer_load_dwordx2 v[20:21], v8, s[{SRD_B}:{SRD_B+3}], s57 offen")
    g.srd(SRD_B, P_B2, 1024)
    g(f"buffer_load_ushort v17, v16, s[{SRD_C}:{SRD_C+3}], s66 offen")
    g(f"buffer_load_ushort v18, v1, s[{SRD_B}:{SRD_B+3}], s66 offen")
    g.srd(SRD_A, P_OUT, 4096)
    if opt.get("otouch", 2):
        g(f"buffer_load_ushort v124, v16, s[{SRD_A}:{SRD_A+3}], s66 offen {'nt' if opt.get('otouch', 2) == 2 else ''}")
    g(f"s_mov_b32 s57, {hex(f2u(-1.4426950408889634))}")
    g(f"v_mov_b32 v2, {L_FL}")
    widetags(g, 116)
    for r in range(4):
        g(f"v_mov_b32 v{96+r}, v{(11, 116, 117, 11)[r]}")
    pass
    flagwait1(g, "L_hg", 2, F_P if opt.get("hgate", 0) else F_Q, 12)
    g("s_mov_b32 s97, 0")
    def hld():
        for kp in range(8):
            g(f"buffer_load_dwordx4 v[{56+4*kp}:{59+4*kp}], v10, {W}, s{58+(kp>>2)} offen offset:{(kp&3)*1024} {SC}")
    g("s_cmp_eq_u32 s69, 0")
    g("s_cbranch_scc1 L_noh")
    if not opt.get("nog", 0) & 2: hld()
    g.label("L_noh")
    r3par(g, 62, 67, 96, 39)
    r3par(g, 64, 4, 96, 39)
    g("s_waitcnt lgkmcnt(0)")
    g("s_add_u32 s65, s64, 65536")
    g("s_cmp_eq_u32 s69, 0")
    g("s_barrier")
    g("s_cbranch_scc1 L_w8_fin")
    g.label("L_h")
    g("s_waitcnt vmcnt(0)")
    g("v_lshlrev_b32 v88, 16, v20")
    g("v_and_b32 v89, 0xffff0000, v20")
    g("v_lshlrev_b32 v90, 16, v21")
    g("v_and_b32 v91, 0xffff0000, v21")
    tagcheck(g, list(range(56, 88)), 11, list(range(100, 116)))
    g("s_cbranch_vccz L_hok")
    spin(g, "L_hok")
    hld()
    g("s_branch L_h")
    g.label("L_hok")
    g.stamp(5)
    untag(g, range(56, 88))
    for (a, b) in ((56, 60), (64, 68), (72, 76), (80, 84), (56, 64), (72, 80), (56, 72)):
        g(f"v_pk_add_f32 v[{a}:{a+1}], v[{a}:{a+1}], v[{b}:{b+1}]")
        g(f"v_pk_add_f32 v[{a+2}:{a+3}], v[{a+2}:{a+3}], v[{b+2}:{b+3}]")
    def unp():
        g("v_cvt_pk_bf16_f32 v60, v56, v57")
        g("v_cvt_pk_bf16_f32 v61, v58, v59")
        g("v_lshlrev_b32 v56, 16, v60")
        g("v_and_b32 v57, 0xffff0000, v60")
        g("v_lshlrev_b32 v58, 16, v61")
        g("v_and_b32 v59, 0xffff0000, v61")
    unp()
    g("v_pk_add_f32 v[56:57], v[56:57], v[88:89]")
    g("v_pk_add_f32 v[58:59], v[58:59], v[90:91]")
    unp()
    for i in range(4):
        g(f"v_max_f32 v{56+i}, 0, v{56+i}")
    g("v_pk_mul_f32 v[56:57], v[56:57], v[56:57]")
    g("v_pk_mul_f32 v[58:59], v[58:59], v[58:59]")
    g("v_cvt_pk_bf16_f32 v60, v56, v57")
    g("v_cvt_pk_bf16_f32 v61, v58, v59")
    g("ds_write_b64 v9, v[60:61]")
    g("ds_read_b128 v[64:67], v19")
    g("ds_read_b128 v[68:71], v19 offset:64")
    if opt.get("trl", 2): flagwait4(g, "L_w2w", 2, F_OP, 72)
    g.stamp(4)
    for t in range(2):
        for u in range(4):
            r = 24 + 16*t + 4*u
            g(f"ds_read_b64_tr_b16 v[{r}:{r+1}], v{4+u} offset:{L_W2 - 65536 + t*4096}")
            g(f"ds_read_b64_tr_b16 v[{r+2}:{r+3}], v{4+u} offset:{L_W2 - 65536 + t*4096 + 2048}")
    for t in range(2):
        for u in range(4):
            g(f"s_waitcnt lgkmcnt({14 - 8*t - 2*u})")
            r = 24 + 16*t + 4*u
            d = 72 + 4*u
            c = "0" if t == 0 else f"v[{d}:{d+3}]"
            g(f"v_mfma_f32_16x16x32_bf16 v[{d}:{d+3}], v[{64+4*t}:{67+4*t}], v[{r}:{r+3}], {c}")
    g("s_nop 3")
    select4(g, 96, 72, 11, tags=(11, 116, 117, 11))
    g.label("L_w8_fin")
    g.stamp(6)
    g("s_barrier")
    g(f"buffer_store_dwordx4 v[96:99], v10, {W}, s62 offen {SC}")

    g("s_mov_b32 s97, 0")
    g("s_waitcnt vmcnt(1)")
    g("v_lshlrev_b32 v17, 16, v17")
    g("v_lshlrev_b32 v18, 16, v18")
    if opt.get("dbar", 1):
        g("s_barrier")
        if opt.get("dbar", 1) > 1: g(f"s_sleep {opt['dbar'] - 1}")
    elif opt.get("df", 13):
        g(f"s_sleep {opt.get('df', 13)}")
    else:
        g("s_waitcnt vmcnt(0)")
    FL = opt.get("fl", SC).replace("+", " ")
    if opt.get("fp", 0):
        g(f"buffer_load_dwordx4 v[24:27], v3, {W}, s64 offen {FL}")
        g(f"buffer_load_dwordx4 v[40:43], v3, {W}, s65 offen {FL}")
        g(f"s_sleep {opt['fp']}")
        g(f"buffer_load_dwordx4 v[48:51], v3, {W}, s64 offen {FL}")
        g(f"buffer_load_dwordx4 v[52:55], v3, {W}, s65 offen {FL}")
        g("s_waitcnt vmcnt(2)")
        xorcheck(g, [24, 40, 25, 41, 26, 42, 27, 43], [11, 11, 116, 116, 117, 117, 11, 11], list(range(44, 48)))
        g("s_cbranch_vccz L_fok")
        g("s_waitcnt vmcnt(0)")
        for i in range(4):
            g(f"v_mov_b32 v{24+i}, v{48+i}")
            g(f"v_mov_b32 v{40+i}, v{52+i}")
        g("s_branch L_f2")
    g.label("L_f")
    g(f"buffer_load_dwordx4 v[24:27], v3, {W}, s64 offen {FL}")
    g(f"buffer_load_dwordx4 v[40:43], v3, {W}, s65 offen {FL}")
    spin(g, "L_fok")
    g("s_waitcnt vmcnt(0)")
    g.label("L_f2")
    xorcheck(g, [24, 40, 25, 41, 26, 42, 27, 43], [11, 11, 116, 116, 117, 117, 11, 11], list(range(44, 48)))
    if opt.get("sf", 0):
        g("s_cbranch_vccz L_fok")
        if opt.get("sf", 0): g(f"s_sleep {opt['sf']}")
        g("s_branch L_f")
    else:
        g("s_cbranch_vccnz L_f")
    g.label("L_fok")
    g.stamp(7)
    for i in range(4):
        g(f"v_permlane32_swap_b32 v{24+i}, v{40+i}")
    g("v_pk_add_f32 v[24:25], v[24:25], v[40:41]")
    g("v_pk_add_f32 v[26:27], v[26:27], v[42:43]")
    g("s_nop 0")
    g("v_permlane16_swap_b32 v24, v25")
    g("v_permlane16_swap_b32 v26, v27")
    g("v_add_f32 v24, v24, v25")
    g("v_add_f32 v26, v26, v27")
    for c in ("row_ror:8", "row_ror:4", "row_ror:2"):
        g("s_nop 0")
        g(f"v_add_f32_dpp v24, v24, v24 {c} {DPPM}")
        g(f"v_add_f32_dpp v26, v26, v26 {c} {DPPM}")
    g("v_cndmask_b32 v24, v24, v26, s[60:61]")
    rnd(g, 24, 24)
    g("v_add_f32 v25, v24, v18")
    rnd(g, 25, 25)
    g("v_mul_f32 v26, s57, v25")
    g("v_exp_f32 v26, v26")
    g("s_nop 0")
    g("v_add_f32 v26, 1.0, v26")
    g("v_rcp_f32 v26, v26")
    g("s_nop 0")
    g("v_mul_f32 v26, v25, v26")
    rnd(g, 26, 26)
    g("s_nop 1")
    g("v_permlane32_swap_b32 v26, v27")
    g("s_mov_b32 exec_lo, 0x000f000f")
    g("s_mov_b32 exec_hi, 0")
    g("v_mul_f32 v24, v24, v27")
    rnd(g, 24, 24)
    g("v_add_f32 v24, v24, v17")
    g("v_cvt_pk_bf16_f32 v24, v24, v24")
    if not opt.get("noout"): g(f"buffer_store_short v24, v16, s[{SRD_A}:{SRD_A+3}], s66 offen {opt.get('of', '').replace('+', ' ')}")
    g.stamp(8)
    hevhold()
    if opt.get("hold"):
        g(f"s_cmp_eq_u32 s2, {opt.get('holdwg', 0)}")
        g("s_cbranch_scc0 L_nohold")
        g.label("L_hold")
        g("s_memrealtime s[72:73]")
        g("s_waitcnt lgkmcnt(0)")
        g("s_sub_u32 s72, s72, s70")
        g(f"s_cmp_lt_u32 s72, {opt['hold']}")
        g("s_cbranch_scc1 L_hold")
        g.label("L_nohold")
    g("s_cmp_eq_u32 s2, 0")
    g("s_cbranch_scc0 L_end")
    g(f"v_mov_b32 v24, s{S_E1}")
    g("v_mov_b32 v25, 0")
    g("s_mov_b64 exec, 1")
    g(f"buffer_store_dword v24, v25, {W}, 0 offen {opt.get('ef', '')}")
    g.label("L_end")
    if opt.get("stamps"):
        g("s_memrealtime s[88:89]")
        g("s_waitcnt lgkmcnt(0)")
        g("s_mov_b64 exec, 1")
        g("s_mul_i32 s38, s2, 9")
        g("s_add_u32 s38, s38, s3")
        g("s_lshl_b32 s38, s38, 6")
        g(f"s_add_u32 s38, s38, {ST_WS}")
        for k in range(10):
            g(f"v_mov_b32 v{4+k}, s{70+2*k}")
        g("v_mov_b32 v14, s97")
        g("v_mov_b32 v15, s99")
        g("v_mov_b32 v1, 0")
        g(f"buffer_store_dwordx4 v[4:7], v1, {W}, s38 offen")
        g(f"buffer_store_dwordx4 v[8:11], v1, {W}, s38 offen offset:16")
        g(f"buffer_store_dwordx4 v[12:15], v1, {W}, s38 offen offset:32")
    g.label("L_exit")
    C = {'L_notln': 'waves 4..9', 'L_w8i': 'W8 start: pull a share of the kernel text into L2, clear the LDS flags', 'L_kv': 'W4-7: K stream (page-rotated linear sweep over the 1024-key window)', 'L_ln': 'W0-3: w1 quarter, LayerNorm of row w -> LDS', 'L_w9': 'W9: latency of one cold line, then walk the instruction-cache pads', 'L_w0': 'W8: q partial = xn @ wq tile', 'L_xc': 'W8: words of all workgroups (XCD id, probe latency): is the group on this XCD? which parity is near?', 'L_att': 'W4-7: wo, V, w2 stream; P.V for 32 of the 128 dims; publish o', 'L_ln_done': 'W0-3 after LayerNorm; W1: h partial = xn @ w1 tile', 'L_qk': 'W0-3: gather q, scores, max exchange, probabilities', 'L_wo_b3': 'W0-3: combine the 8 splits of batch w, multiply by the wo tile, publish', 'L_w8': 'W8: FFN second half and final reduction', 'L_f': 'W8: gather 32 attention + 32 FFN partials, out = x + s * silu(ffn + b2)'}
    lines = []
    for x in g.L:
        if not x.strip(): continue
        if x.endswith(":") and x[:-1] in C: lines.append("; ---- " + C[x[:-1]])
        lines.append(x)
    return finish(lines, opt)

def finish(lines, opt):
    if not opt.get("touch", 1):
        return G1.text(lines)
    sz = _sizes(lines)
    out = []; pos = 0; nxt = 1024; n = 0
    zero = False
    for l, z in zip(lines, sz):
        t = l.strip()
        if t in ("L_w3b:", "L_w8b:"): zero = True
        if z and pos >= nxt and not zero:
            assert pos - nxt <= 56
            out.append(None); n += 1; pos += 4; nxt += 1024
        out.append(l); pos += z
        if t == "s_mov_b64 exec, 0": zero = True
        elif z and (t.startswith("s_branch L_chain") or t == "s_mov_b64 exec, -1" or t == "s_endpgm"): zero = False
    first = opt.get("pad0", 1)
    split = opt.get("pad1", 4)
    res = []; k = 0
    for l in out:
        if l is None:
            tgt = "L_w8b" if k + 1 == split else (f"L_pad{k+1}" if k + 1 < n else "L_w3b")
            if k == first: res.append("L_chain0:")
            if k == split: res.append("L_chain1:")
            res.append(f"L_pad{k}:")
            res.append(f"    s_cbranch_execz {tgt}")
            k += 1
        else:
            res.append(l)
    return G1.text(res)

if __name__ == "__main__":
    out = sys.argv[1]
    opt = {}
    for a in sys.argv[2:]:
        k, v = a.split("=")
        try: v = int(v)
        except ValueError: pass
        opt[k] = v
    open(out, "w").write(gen(opt))
```
